```python
import torch

def _softmax(x, axis=-1):
    return torch.softmax(x, dim=axis)
def _gelu(x):
    return torch.nn.functional.gelu(x, approximate="tanh")
def _silu(x):
    return torch.nn.functional.silu(x)
def _sigmoid(x):
    return torch.sigmoid(x)
def _layernorm(x, axis=-1, eps=1e-5):
    m = x.mean(dim=axis, keepdim=True)
    v = x.var(dim=axis, keepdim=True, unbiased=False)
    return (x - m) / torch.sqrt(v + eps)
def _scatter_add(tgt, idx, src, axis=0):
    return tgt.clone().index_add_(axis, idx, src)
def _segment_sum(src, seg, n):
    out = torch.zeros((n,) + src.shape[1:], dtype=src.dtype)
    return out.index_add_(0, seg, src)
def _pad(x, pw):
    flat = tuple(v for pair in reversed(pw) for v in pair)
    return torch.nn.functional.pad(x, flat)

kernel_name = 'gated_mix__linear_kernel_hedgehog__dense_activation_gelu__prompt'

def setup_inputs():

    _w = (lambda a: (lambda t: t.to(torch.bfloat16) if t.is_floating_point() else t)(torch.as_tensor(a)))
    def _A_setup():
        B, S, D, H = 1, 2048, 640, 32
        Dh = D // H
        return {
            "x": _w((lambda *s: torch.randn(*s, dtype=torch.bfloat16) * 0.05)(B, S, D)),
            "wqkv": _w((lambda *s: torch.randn(*s, dtype=torch.bfloat16) * 0.8)(D, 3 * D)),
            "w_phi": _w((lambda *s: torch.randn(*s, dtype=torch.bfloat16) * 0.8)(H, Dh, Dh) * (Dh ** -0.5)),
            "wo": _w((lambda *s: torch.randn(*s, dtype=torch.bfloat16) * 0.05)(D, D)),
        }
    _A_in = _A_setup()

    def _B_setup():
        B, S, D, F = 1, 2048, 640, 1728
        return {
            "x": _w((lambda *s: torch.randn(*s, dtype=torch.bfloat16) * 0.05)(B, S, D)),
            "w1": _w((lambda *s: torch.randn(*s, dtype=torch.bfloat16) * 3.2)(D, F) * (D ** -0.5)),
            "b1": _w((lambda *s: torch.randn(*s, dtype=torch.bfloat16) * 3.2)(F) * 0.01),
            "w2": _w((lambda *s: torch.randn(*s, dtype=torch.bfloat16) * 0.4)(F, D) * (F ** -0.5)),
            "b2": _w((lambda *s: torch.randn(*s, dtype=torch.bfloat16) * 0.8)(D) * 0.01),
        }
    _B_in = _B_setup()

    return {
        "A_x": _A_in["x"],
        "A_wqkv": _A_in["wqkv"],
        "A_w_phi": _A_in["w_phi"],
        "A_wo": _A_in["wo"],
        "B_x": _B_in["x"],
        "B_w1": _B_in["w1"],
        "B_b1": _B_in["b1"],
        "B_w2": _B_in["w2"],
        "B_b2": _B_in["b2"],
        "gate_w": _w((lambda *s: torch.randn(*s, dtype=torch.bfloat16) * 0.05)(640) * 16.0),
    }

def reference(A_x, A_wqkv, A_w_phi, A_wo, B_x, B_w1, B_b1, B_w2, B_b2, gate_w):
    def _A_ref(x, wqkv, w_phi, wo):
        B, S, D = x.shape
        H = 32; Dh = D // H
        qkv = (lambda x, *d: x.permute(*d))((x @ wqkv).reshape(B, S, 3, H, Dh), 2, 0, 3, 1, 4)
        q, k, v = qkv[0], qkv[1], qkv[2]
        pq = torch.einsum("bhsd,hdf->bhsf", q, w_phi)
        pk = torch.einsum("bhsd,hdf->bhsf", k, w_phi)
        phi_q = torch.concatenate([_softmax(pq, axis=-1), _softmax(-pq, axis=-1)], axis=-1)
        phi_k = torch.concatenate([_softmax(pk, axis=-1), _softmax(-pk, axis=-1)], axis=-1)
        kv = torch.einsum("bhsf,bhsd->bhfd", phi_k, v)
        z  = torch.einsum("bhsf->bhf", phi_k)
        num = torch.einsum("bhqf,bhfd->bhqd", phi_q, kv)
        den = torch.einsum("bhqf,bhf->bhq", phi_q, z)[..., None] + 1e-6
        o = num / den
        return (lambda x, *d: x.permute(*d))(o, 0, 2, 1, 3).reshape(B, S, D) @ wo

    def _B_ref(x, w1, b1, w2, b2):
        h = torch.einsum("bsd,df->bsf", x, w1) + b1
        h = _gelu(h)
        return torch.einsum("bsf,fd->bsd", h, w2) + b2

    x = A_x
    g = _sigmoid((x * gate_w).sum(-1, keepdims=True))
    a = _A_ref(x, A_wqkv, A_w_phi, A_wo)
    b = _B_ref(x, B_w1, B_b1, B_w2, B_b2)
    return g * a + (1 - g) * b
```

```python
import re
_R = re.compile(r'^(-?)(?:abs\()?([vsa])(?:\[(\d+):(\d+)\]|(\d+))\)?$')
def regs(tok):
    tok = tok.strip()
    if tok in ('vcc',): return {('s', 106), ('s', 107)}
    if tok == 'vcc_lo': return {('s', 106)}
    if tok == 'vcc_hi': return {('s', 107)}
    if tok == 'exec': return {('s', 126), ('s', 127)}
    if tok == 'exec_lo': return {('s', 126)}
    if tok == 'exec_hi': return {('s', 127)}
    if tok == 'm0': return {('s', 124)}
    m = _R.match(tok)
    if not m: return set()
    k = m.group(2)
    if m.group(3): return {(k, i) for i in range(int(m.group(3)), int(m.group(4)) + 1)}
    return {(k, int(m.group(5)))}
TRANS = ('v_exp_f32', 'v_log_f32', 'v_rcp_f32', 'v_rsq_f32', 'v_sqrt_f32', 'v_sin_f32', 'v_cos_f32')
def parse(line):
    s = line.split(';')[0].strip()
    if not s or s.endswith(':') or s.startswith('.'): return None
    p = s.split(None, 1); op = p[0]
    args = [a.strip() for a in re.split(r',(?![^\[]*\])', p[1])] if len(p) > 1 else []
    toks = []
    for a in args:
        toks.append(a.split()[0] if a else a)
    d = dict(op=op, toks=toks, text=s, w=set(), r=set(), kind='other')
    if op.startswith('v_mfma'):
        d['kind'] = 'mfma'; d['w'] = regs(toks[0]); d['a'] = regs(toks[1]) | regs(toks[2]); d['c'] = regs(toks[3]); d['r'] = d['a'] | d['c']
        d['passes'] = 8 if '32x32' in op else (2 if '4x4' in op else 4)
    elif op.startswith('v_cmp'):
        d['kind'] = 'valu'; d['w'] = regs(toks[0]); d['r'] = set().union(*[regs(t) for t in toks[1:]])
    elif op.startswith('v_'):
        d['kind'] = 'valu'
        nd = 2 if (op.startswith(('v_add_co', 'v_sub_co', 'v_addc_co', 'v_subb_co', 'v_subrev_co', 'v_mad_u64_u32', 'v_div_scale'))) else 1
        d['w'] = set().union(*[regs(t) for t in toks[:nd]]); d['r'] = set().union(*([regs(t) for t in toks[nd:]] or [set()]))
        if op.startswith(('v_swap', 'v_permlane')): d['w'] |= regs(toks[1]); d['r'] |= regs(toks[0])
        if op.startswith(('v_fmac', 'v_pk_fmac', 'v_writelane')): d['r'] |= regs(toks[0])
        if 'dpp' in op or 'quad_perm' in s or 'row_' in s: d['dpp'] = True
        if op.startswith('v_cndmask') and len(toks) == 3: d['r'] |= regs('vcc')
    elif op.startswith(('buffer_', 'global_', 'flat_')):
        d['kind'] = 'vmem'
        allr = [regs(t) for t in toks]
        lds = ' lds' in s or '_lds_' in op
        if lds: d['r'] = set().union(*allr) | regs('m0'); d['lds'] = True
        elif 'load' in op: d['w'] = allr[0]; d['r'] = set().union(*allr[1:])
        else:
            d['r'] = set().union(*allr)
            if 'x4' in op or 'x3' in op: d['wide'] = allr[0] if op.startswith('buffer_') else allr[1]
    elif op.startswith('ds_'):
        d['kind'] = 'ds'
        allr = [regs(t) for t in toks]
        if op.startswith('ds_read') or '_rtn' in op or 'permute' in op or 'swizzle' in op: d['w'] = allr[0]; d['r'] = set().union(*allr[1:])
        else: d['r'] = set().union(*allr)
    elif op.startswith('s_'):
        d['kind'] = 'salu'
        if op in ('s_nop',): d['nop'] = int(toks[0], 0) + 1
        elif op.startswith(('s_cmp', 's_cbranch', 's_branch', 's_waitcnt', 's_barrier', 's_setprio', 's_sleep', 's_endpgm')): d['r'] = set().union(*([regs(t) for t in toks] or [set()]))
        else:
            d['w'] = regs(toks[0]) if toks else set(); d['r'] = set().union(*([regs(t) for t in toks[1:]] or [set()]))
            if 'saveexec' in op: d['w'] |= regs('exec')
    return d
def need(p, c):
    n = 0
    pv = {x for x in p['w'] if x[0] in 'va'}; ps = {x for x in p['w'] if x[0] == 's'}
    if p['kind'] == 'valu':
        if c['kind'] == 'mfma' and pv & c['r']: n = max(n, 2)
        if c['op'].startswith(('v_readfirstlane', 'v_readlane')) and pv & c['r']: n = max(n, 1)
        if c['op'].startswith('v_permlane') and pv & c['r']: n = max(n, 2)
        if c.get('dpp') and pv & c['r']: n = max(n, 2)
        if p['op'].startswith(TRANS) and c['kind'] in ('valu', 'mfma', 'vmem', 'ds') and pv & c['r']: n = max(n, 1)
        if c['kind'] == 'vmem' and ps & c['r']: n = max(n, 5)
        if c['kind'] == 'valu' and ps & c['r']: n = max(n, 2)
        if c['kind'] == 'salu' and ps & c['r']: n = max(n, 2)
        if ps & regs('exec') and c['kind'] == 'mfma': n = max(n, 4)
    if p['kind'] == 'mfma':
        big = {2: 5, 4: 8, 8: 12}[p['passes']]; ov = {2: 4, 4: 6, 8: 10}[p['passes']]
        if c['kind'] == 'mfma':
            if pv & c['a']: n = max(n, big)
            if pv & c['c'] and not (c['c'] == p['w'] and c['passes'] == p['passes'] and c['op'] == p['op']): n = max(n, ov)
            elif pv & c['c'] and p['passes'] == 2: n = max(n, 2)
            if pv & c['w'] and not (pv & c['c']): n = max(n, ov)
        elif pv & (c['r'] | c['w']): n = max(n, big)
        if c['kind'] == 'valu' and p['c'] & c['w']: n = max(n, {2: 1, 4: 3, 8: 7}[p['passes']])
    if p['kind'] == 'vmem' and p.get('wide') and (p['wide'] & c['w']): n = max(n, 2)
    if p['kind'] == 'salu' and regs('m0') & p['w'] and c.get('lds'): n = max(n, 1)
    return n
def fix(text, verbose=False):
    out = []; hist = []
    added = 0
    for line in text.split('\n'):
        d = parse(line)
        if d is None:
            out.append(line); continue
        req = 0; dist = 0
        for p in reversed(hist):
            k = need(p, d)
            if k > dist: req = max(req, k - dist)
            dist += p.get('nop', 1)
            if dist >= 20: break
        if req:
            added += 1
            if verbose: print("hazard pad", req, "before", d['text'])
            r = req
            while r > 0:
                k = min(r, 16); out.append(f"s_nop {k-1}"); hist.append(dict(op='s_nop', kind='salu', w=set(), r=set(), nop=k)); r -= k
        out.append(line); hist.append(d)
        if d['op'] in ('s_branch', 's_endpgm'): hist = []
        hist = hist[-24:]
    return '\n'.join(out), added
```

```python
import sys
import hazard

NAME = "gated_mix__linear_kernel_hedgehog__dense_activation_gelu__prompt_kernel"
WSLOT = 16384; NW = 6; XBASE = 98304; XSLOT = 16384; NX = 3; NSTEP = 20
SPARE = 147456
WPHI_LDS = SPARE; ZERO_LDS = SPARE + 4096; STG3 = SPARE + 6144; CNT_LDS = SPARE + 11264
STG012 = XBASE + XSLOT
EXCH = 2*WSLOT; KVT = 2*WSLOT; RED = 0
LDS_TOTAL = 163840
WS_HF = 0; WS_OF = 0x700000; WS_WF = 0xA00000; WS_G = 0xD00000; WS_KV = 0xE00000; WS_FL = 0xE20000
WS_SIZE = 0x1000000; WS_STAMP = 0x2000000
FL_H, FL_O, FL_KV, FL_W = 0, 16, 32, 40
NINIT = 36
OOB = 0x40000000
S_X, S_WQKV, S_WPHI, S_WO, S_BX, S_W1, S_B1, S_W2 = 16, 18, 20, 22, 24, 26, 28, 30
S_B2, S_GATE, S_OUT, S_DBG, S_WS = 32, 34, 36, 38, 40
SRD_X, SRD_WS, SRD_T, SRD_D = 44, 48, 52, 56
S_RB, S_J, S_ISQ, S_WAVE, S_PH, S_WV, S_R64, S_CB = 60, 61, 62, 63, 64, 65, 66, 67
S_KK, S_XK, S_XOFF, S_M0X, S_M0W = 68, 69, 4, 5, 6
S_C2, S_L = 8, 10
LOG2E = 1.4426950408889634
import struct, math
def f2u(x): return struct.unpack('<I', struct.pack('<f', x))[0]
GC1 = -2.0 * LOG2E * math.sqrt(2.0 / math.pi); GC2 = GC1 * 0.044715

def vr(b, n=4): return f"v[{b}:{b+n-1}]" if n > 1 else f"v{b}"
def sr(b, n=4): return f"s[{b}:{b+n-1}]"

class G:
    def __init__(self, diag=False, **opt):
        self.L = []; self.diag = diag; self.opt = opt; self.nlab = 0
    def __call__(self, s): self.L.append(s)
    def dsbatch(self, lst):
        for i, x in enumerate(lst):
            if i >= 15 and (i - 15) % 5 == 0: self("s_waitcnt lgkmcnt(10)")
            self(x)
    def lab(self, p="L"): self.nlab += 1; return f"{p}_{self.nlab}"
    def srd(self, R, p, size):
        self(f"s_mov_b32 s{R}, s{p}\ns_mov_b32 s{R+1}, s{p+1}\ns_mov_b32 s{R+2}, {size}\ns_mov_b32 s{R+3}, 0x20000")
    def stamp(self, i):
        if self.diag: self(f"s_waitcnt lgkmcnt(0)\ns_memtime s[{80+2*i}:{81+2*i}]\ns_waitcnt lgkmcnt(0)")
    def stamps_out(self):
        if not self.diag: return
        e = self
        e(f"s_waitcnt vmcnt(0) lgkmcnt(0)")
        e.stamp(9)
        e(f"s_mov_b32 s{SRD_T}, s{S_WS}\ns_mov_b32 s{SRD_T+1}, s{S_WS+1}\ns_mov_b32 s{SRD_T+2}, 0x10000000\ns_mov_b32 s{SRD_T+3}, 0x20000")
        e(f"s_lshl_b32 s70, s2, 3\ns_add_u32 s70, s70, s{S_WAVE}\ns_lshl_b32 s70, s70, 6\ns_add_u32 s70, s70, {WS_STAMP}")
        e("s_mov_b64 exec, 1\nv_mov_b32 v1, 0")
        for i in range(10):
            if i: e(f"s_sub_u32 s71, s{80+2*i}, s80")
            else: e("s_mov_b32 s71, s80")
            e(f"v_mov_b32 v2, s71\nbuffer_store_dword v2, v1, {sr(SRD_T)}, s70 offen offset:{4*i}")
        e("s_waitcnt vmcnt(0)")
    def poll(self, srd, soff, target, vz, vt, first_loaded=False):
        e = self; L = e.lab("L_poll"); D = e.lab("L_polld")
        e("s_mov_b32 s79, 0")
        if first_loaded:
            e(f"v_readfirstlane_b32 s78, v{vt}\ns_cmp_ge_u32 s78, {target}\ns_cbranch_scc1 {D}")
        e(f"{L}:")
        e(f"buffer_load_dword v{vt}, v{vz}, {sr(srd)}, {soff} offen sc1\ns_waitcnt vmcnt(0)\nv_readfirstlane_b32 s78, v{vt}")
        e(f"s_cmp_ge_u32 s78, {target}\ns_cbranch_scc1 {D}")
        e(f"s_add_u32 s79, s79, 1\ns_cmp_ge_u32 s79, 0x100000\ns_cbranch_scc1 L_end\ns_sleep 2\ns_branch {L}\n{D}:")
    def arrive(self, cnt, soff, vz, va, vt):
        e = self; D = e.lab("L_arr")
        e(f"s_mov_b64 exec, 1\nv_mov_b32 v{va}, {CNT_LDS + 4*cnt}\nv_mov_b32 v{vt}, 1\nds_add_rtn_u32 v{va}, v{va}, v{vt}\ns_waitcnt lgkmcnt(0)")
        e(f"v_readfirstlane_b32 s78, v{va}\ns_cmp_lg_u32 s78, 3\ns_cbranch_scc1 {D}")
        e(f"buffer_atomic_add v{vt}, v{vz}, {sr(SRD_WS)}, {soff} offen sc1\n{D}:\ns_mov_b64 exec, -1")
    def lsync(self, cnt, va, vt):
        e = self; L = e.lab("L_ls")
        e(f"s_waitcnt lgkmcnt(0)\ns_mov_b64 exec, 1\nv_mov_b32 v{va}, {CNT_LDS + 4*cnt}\nv_mov_b32 v{vt}, 1\nds_add_u32 v{va}, v{vt}\ns_mov_b32 s79, 0\n{L}:")
        e(f"ds_read_b32 v{vt}, v{va}\ns_waitcnt lgkmcnt(0)\nv_readfirstlane_b32 s78, v{vt}\ns_add_u32 s79, s79, 1\ns_cmp_ge_u32 s79, 0x1000000\ns_cbranch_scc1 L_end\ns_cmp_lt_u32 s78, 4\ns_cbranch_scc1 {L}\ns_mov_b64 exec, -1")

class Unit:
    def __init__(self, areg, off, acc, gate=False): self.areg, self.off, self.acc, self.gate = areg, off, acc, gate

def c_main_loop(e, units, xreg, xaddr, ring, D, after_bar0):
    n = len(units); R = D + 2; lg = []; total = NSTEP * n
    def wait_lg(tags):
        idx = max([i for i, t in enumerate(lg) if t in tags], default=-1)
        if idx < 0: return
        cnt = len(lg) - 1 - idx; assert cnt <= 15
        e(f"s_waitcnt lgkmcnt({cnt})"); del lg[:idx + 1]
    def xreads(s, out):
        for m in range(2):
            out.append(f"ds_read_b128 {vr(xreg + 8*(s % 2) + 4*m)}, v{xaddr[s % 2]} offset:{((s//2) % NX)*XSLOT + m*2048}"); lg.append(('x', s))
    def wreads(q, out):
        s, u = divmod(q, n); U = units[u]; r = ring + 4*(q % R); slot = s % NW
        a = U.areg[slot // 3]; o = (slot % 3)*WSLOT + U.off
        if U.gate:
            out.append(f"ds_read_b128 {vr(r)}, v{a} offset:{o}"); lg.append(('w', q)); return
        out.append(f"ds_read_b64_tr_b16 {vr(r,2)}, v{a} offset:{o}"); out.append(f"ds_read_b64_tr_b16 {vr(r+2,2)}, v{a} offset:{o + 4096}")
        lg.extend([('w', q)]*2)
    e("s_barrier"); after_bar0()
    buf = []; xreads(0, buf)
    for q in range(D): wreads(q, buf)
    for b in buf: e(b)
    for q in range(total):
        s, u = divmod(q, n)
        tags = [('w', q), ('x', s)]
        if q % 2 == 0 and q + 1 < total: tags += [('w', q + 1), ('x', (q + 1)//n)]
        wait_lg(tags)
        buf = []; qa = q + D
        if qa < total:
            if qa % n == 0: buf.append("s_barrier"); xreads(qa // n, buf)
            wreads(qa, buf)
        U = units[u]; r = ring + 4*(q % R); half = (len(buf) + 1)//2
        for m in range(2):
            acc = vr(U.acc + 4*m)
            e(f"v_mfma_f32_16x16x32_bf16 {acc}, {vr(r)}, {vr(xreg + 8*(s % 2) + 4*m)}, {acc}")
            for b in (buf[:half] if m == 0 else buf[half:]): e(b)

def gelu_pack(e, jobs, T, C1):
    for i in range(0, len(jobs), 4):
        grp = jobs[i:i+4]
        for k, (s, d) in enumerate(grp): e(f"v_pk_mul_f32 {vr(T+2*k,2)}, {vr(s,2)}, {vr(s,2)}")
        for k, (s, d) in enumerate(grp): e(f"v_pk_fma_f32 {vr(T+2*k,2)}, {vr(T+2*k,2)}, {sr(S_C2,2)}, {vr(C1,2)}")
        for k, (s, d) in enumerate(grp): e(f"v_pk_mul_f32 {vr(T+2*k,2)}, {vr(T+2*k,2)}, {vr(s,2)}")
        for k in range(2*len(grp)): e(f"v_exp_f32 v{T+k}, v{T+k}")
        for k, (s, d) in enumerate(grp): e(f"v_pk_add_f32 {vr(T+2*k,2)}, {vr(T+2*k,2)}, 1.0 op_sel_hi:[1,0]")
        for k in range(2*len(grp)): e(f"v_rcp_f32 v{T+k}, v{T+k}")
        for k, (s, d) in enumerate(grp): e(f"v_pk_mul_f32 {vr(T+2*k,2)}, {vr(T+2*k,2)}, {vr(s,2)}")
        for k, (s, d) in enumerate(grp): e(f"v_cvt_pk_bf16_f32 v{d}, v{T+2*k}, v{T+2*k+1}")

def softmax2(e, P, E, OUT, X):
    mx, mn = X, X + 2
    e(f"v_max3_f32 v{mx}, v{P}, v{P+1}, v{P+2}\nv_min3_f32 v{mn}, v{P}, v{P+1}, v{P+2}")
    for i in range(3, 19, 2): e(f"v_max3_f32 v{mx}, v{mx}, v{P+i}, v{P+i+1}\nv_min3_f32 v{mn}, v{mn}, v{P+i}, v{P+i+1}")
    e(f"v_max_f32 v{mx}, v{mx}, v{P+19}\nv_min_f32 v{mn}, v{mn}, v{P+19}")
    e(f"v_mul_f32 v{mx}, s{S_L}, v{mx}\nv_mul_f32 v{mn}, s{S_L}, v{mn}")
    for i in range(0, 20, 2):
        e(f"v_pk_fma_f32 {vr(E+i,2)}, {vr(P+i,2)}, {sr(S_L,2)}, {vr(mx,2)} op_sel_hi:[1,1,0] neg_lo:[0,0,1] neg_hi:[0,0,1]")
        e(f"v_pk_fma_f32 {vr(P+i,2)}, {vr(P+i,2)}, {sr(S_L,2)}, {vr(mn,2)} op_sel_hi:[1,1,0] neg_lo:[1,0,0] neg_hi:[1,0,0]")
    for i in range(20): e(f"v_exp_f32 v{E+i}, v{E+i}\nv_exp_f32 v{P+i}, v{P+i}")
    sp, sn = X + 4, X + 6
    e(f"v_pk_add_f32 {vr(sp,2)}, {vr(E,2)}, {vr(E+2,2)}\nv_pk_add_f32 {vr(sn,2)}, {vr(P,2)}, {vr(P+2,2)}")
    for i in range(4, 20, 2): e(f"v_pk_add_f32 {vr(sp,2)}, {vr(sp,2)}, {vr(E+i,2)}\nv_pk_add_f32 {vr(sn,2)}, {vr(sn,2)}, {vr(P+i,2)}")
    e(f"v_add_f32 v{sp}, v{sp}, v{sp+1}\nv_add_f32 v{sn}, v{sn}, v{sn+1}\nv_rcp_f32 v{sp}, v{sp}\nv_rcp_f32 v{sn}, v{sn}")
    for i in range(0, 20, 2): e(f"v_pk_mul_f32 {vr(E+i,2)}, {vr(E+i,2)}, {vr(sp,2)} op_sel_hi:[1,0]")
    for i in range(0, 20, 2): e(f"v_pk_mul_f32 {vr(P+i,2)}, {vr(P+i,2)}, {vr(sn,2)} op_sel_hi:[1,0]")
    for i in range(10): e(f"v_cvt_pk_bf16_f32 v{OUT+i}, v{E+2*i}, v{E+2*i+1}")
    for i in range(10): e(f"v_cvt_pk_bf16_f32 v{OUT+10+i}, v{P+2*i}, v{P+2*i+1}")

def gen(diag=False, D=5, rot=(10, 20, 5, 5), PB=4, **opt):
    e = G(diag, **opt)
    e(f"; @launch grid=(256,1,1) block=(512,1,1) lds={LDS_TOTAL}")
    e(f'.amdgcn_target "amdgcn-amd-amdhsa--gfx950"\n.text\n.globl {NAME}\n.p2align 8\n.type {NAME},@function\n{NAME}:')
    if diag: e("s_memtime s[80:81]")
    e("s_cmp_ge_u32 s2, 256\ns_cbranch_scc1 L_end")
    e("s_load_dwordx16 s[16:31], s[0:1], 0\ns_load_dwordx8 s[32:39], s[0:1], 64\ns_load_dwordx2 s[40:41], s[0:1], 96")
    e(f"v_lshrrev_b32 v1, 6, v0\nv_and_b32 v0, 63, v0")
    e(f"s_and_b32 s70, s2, 7\ns_lshr_b32 s71, s2, 3")
    e(f"v_readfirstlane_b32 s{S_WAVE}, v1")
    e(f"s_and_b32 s72, s70, 1\ns_and_b32 s73, s71, 7\ns_lshl_b32 s74, s72, 3\ns_add_u32 s{S_RB}, s74, s73")
    e(f"s_lshr_b32 s{S_ISQ}, s70, 2\ns_lshr_b32 s74, s70, 1\ns_lshr_b32 s75, s71, 3")
    e(f"s_and_b32 s76, s74, 1\ns_lshl_b32 s76, s76, 2\ns_add_u32 s{S_J}, s76, s75")
    a, b, c, d = rot
    e(f"s_mul_i32 s76, s73, {a}\ns_mul_i32 s77, s75, {b}\ns_add_u32 s76, s76, s77\ns_mul_i32 s77, s74, {c}\ns_add_u32 s76, s76, s77\ns_mul_i32 s77, s72, {d}\ns_add_u32 s76, s76, s77\ns_lshr_b32 s76, s76, 3")
    e(f"s_mul_i32 s77, s76, 6554\ns_lshr_b32 s77, s77, 16\ns_mul_i32 s77, s77, 10\ns_sub_u32 s{S_PH}, s76, s77")
    e(f"s_and_b32 s{S_WV}, s{S_WAVE}, 3")
    e(f"s_cmp_lt_u32 s{S_WAVE}, 4\ns_cbranch_scc1 L_C")
    m_wave(e, PB)
    e("L_C:")
    c_wave(e, D)
    e("L_end:\ns_endpgm")
    e(f""".section .rodata,"a"
.p2align 6
.amdhsa_kernel {NAME}
  .amdhsa_next_free_vgpr 256
  .amdhsa_next_free_sgpr 102
  .amdhsa_accum_offset 256
  .amdhsa_group_segment_fixed_size 0
  .amdhsa_kernarg_size 104
  .amdhsa_user_sgpr_count 2
  .amdhsa_user_sgpr_kernarg_segment_ptr 1
  .amdhsa_system_sgpr_workgroup_id_x 1
.end_amdhsa_kernel""")
    txt, n = hazard.fix("\n".join(e.L), opt.get('verbose', False))
    return txt + "\n"

def m_wave(e, PB):
    VX = [16, 17]; VB = [18, 20, 22, 24]; VS = [26, 27, 28, 29]; VA = [30, 32, 34, 36]
    e(f"v_lshrrev_b32 v2, 3, v0\ns_lshl_b32 s76, s{S_WV}, 4\nv_add_u32 v2, s76, v2")
    e(f"v_lshrrev_b32 v3, 4, v0\nv_xor_b32 v3, v3, v0\nv_and_b32 v3, 7, v3\nv_lshlrev_b32 v3, 4, v3")
    e(f"v_mul_u32_u24 v2, 1280, v2\nv_add_u32 v{VX[0]}, v2, v3")
    e(f"v_xor_b32 v3, 64, v3\nv_add_u32 v2, {8*1280-1024}, v2\nv_add_u32 v{VX[1]}, v2, v3")
    e(f"s_mul_i32 s{S_XOFF}, s{S_RB}, {128*1280}\ns_lshl_b32 s{S_M0X}, s{S_WV}, 11\ns_add_u32 s{S_M0X}, s{S_M0X}, {XBASE}\ns_lshl_b32 s{S_M0W}, s{S_WV}, 12")
    e(f"s_lshl_b32 s{S_XK}, s{S_PH}, 7\ns_lshl_b32 s{S_KK}, s{S_PH}, 1")
    e(f"s_and_b32 s76, s70, 3\ns_lshl_b32 s76, s76, 3\ns_add_u32 s{S_R64}, s76, s73\ns_lshl_b32 s76, s{S_ISQ}, 2\ns_add_u32 s{S_CB}, s76, s75")
    e(f"s_mul_i32 s7, s73, 7\ns_mul_i32 s76, s75, 14\ns_add_u32 s7, s7, s76\ns_lshr_b32 s7, s7, 2")
    e(f"s_lshr_b32 s76, s{S_WV}, 1\ns_lshl_b32 s76, s76, 4\ns_and_b32 s77, s{S_WV}, 1\ns_lshl_b32 s77, s77, 2\ns_add_u32 s78, s76, s77")
    def krow(dst, rho):
        e(f"v_and_b32 v{dst}, 4, v{rho}\nv_add3_u32 v{dst}, v{dst}, v{rho}, s78")
    def panel(dst, ci0, colreg, kv):
        e(f"v_add_u32 v2, {ci0}, v0\nv_mul_u32_u24 v3, 6554, v2\nv_lshrrev_b32 v3, 16, v3\nv_mul_u32_u24 v4, 10, v3\nv_sub_u32 v4, v2, v4")
        if kv: e(f"v_lshrrev_b32 v6, 3, v3\nv_and_b32 v3, 7, v3\nv_mul_u32_u24 v6, 1280, v6\nv_lshl_add_u32 v4, v4, 4, v6")
        else: e(f"v_lshlrev_b32 v4, 4, v4")
        krow(5, 3)
        e(f"v_mul_u32_u24 v5, 3840, v5\nv_add3_u32 v{dst}, v5, v4, s{colreg}")
    def h160(dst, hi0):
        e(f"v_add_u32 v2, {hi0}, v0\nv_min_i32 v2, 159, v2\nv_max_i32 v2, 0, v2\nv_mul_u32_u24 v3, 3277, v2\nv_lshrrev_b32 v3, 16, v3\nv_mul_u32_u24 v4, 20, v3\nv_sub_u32 v4, v2, v4")
        e(f"v_lshrrev_b32 v6, 1, v3\nv_and_b32 v6, 2, v6\nv_xor_b32 v4, v4, v6\nv_min_u32 v4, s77, v4\nv_lshlrev_b32 v4, 4, v4")
        krow(5, 3)
        e(f"v_mul_u32_u24 v5, 3456, v5\nv_add3_u32 v{dst}, v5, v4, s76")
    def addptr(b, off, plo, phi):
        if b: e(f"v_subrev_u32 v{off}, {1024*b}, v{off}\nv_ashrrev_i32 v7, 31, v{off}")
        else: e(f"v_mov_b32 v7, 0")
        e(f"v_add_co_u32 v{VB[b]}, vcc, {plo}, v{off}")
        if phi.startswith('s'): e(f"v_mov_b32 v6, {phi}"); phi = "v6"
        e(f"v_addc_co_u32 v{VB[b]+1}, vcc, {phi}, v7, vcc")
    vm = []
    def emit(lst):
        for tag, txt in lst: e(txt); vm.append(tag)
    def wait_vm(pred):
        idx = max([i for i, t in enumerate(vm) if pred(t)], default=-1)
        if idx >= 0: e(f"s_waitcnt vmcnt({len(vm)-1-idx})"); del vm[:idx+1]
    def dma_w(step):
        pre = "".join(f"v_mad_u64_u32 {vr(VA[b],2)}, vcc, v{VS[b]}, s{S_KK}, {vr(VB[b],2)}\n" for b in range(4))
        pre += f"s_add_u32 m0, s{S_M0W}, {(step % NW)*WSLOT}\ns_add_u32 s{S_KK}, s{S_KK}, 1\ns_cmp_eq_u32 s{S_KK}, 20\ns_cmov_b32 s{S_KK}, 0\n"
        return [(('w', step), (pre if b == 0 else "") + f"global_load_lds_dwordx4 {vr(VA[b],2)}, off offset:{1024*b}") for b in range(4)]
    def dma_x(X, h):
        pre = f"s_add_u32 s76, s{S_XK}, {h*81920}\ns_add_u32 m0, s{S_M0X}, {(X % NX)*XSLOT + h*8192}\ns_add_u32 s76, s76, s{S_XOFF}\n"
        post = f"\ns_add_u32 s{S_XK}, s{S_XK}, 128\ns_cmp_eq_u32 s{S_XK}, 1280\ns_cmov_b32 s{S_XK}, 0" if h else ""
        return [(('x', X), pre + f"buffer_load_dwordx4 v{VX[0]}, {sr(SRD_X)}, s76 offen lds"),
                (('x', X), f"buffer_load_dwordx4 v{VX[1]}, {sr(SRD_X)}, s76 offen offset:1024 lds" + post)]
    O = [8, 9, 10, 11, 12]
    e(f"s_cmp_eq_u32 s{S_ISQ}, 1\ns_cbranch_scc1 L_MQ")
    e(f"s_mul_i32 s76, s{S_J}, 160\ns_add_u32 s76, s76, 1280")
    panel(O[0], 0, 76, True); panel(O[1], 64, 76, True); panel(O[2], 128, 76, True)
    e(f"v_lshrrev_b32 v3, 3, v0\nv_and_b32 v4, 6, v3\nv_xor_b32 v4, v4, v0\nv_and_b32 v4, 7, v4\nv_lshlrev_b32 v4, 4, v4\ns_lshl_b32 s76, s{S_J}, 7")
    krow(5, 3)
    e(f"v_mul_u32_u24 v5, 3456, v5\nv_add3_u32 v{O[3]}, v5, v4, s76")
    e(f"v_subrev_u32 v2, 32, v0\nv_min_u32 v2, 3, v2\nv_lshlrev_b32 v2, 4, v2\nv_cmp_gt_u32 s[74:75], 32, v0")
    e(f"v_mov_b32 v{VS[0]}, {32*3840}\nv_mov_b32 v{VS[1]}, {32*3840}\nv_mov_b32 v{VS[3]}, {32*3456}\nv_cndmask_b32 v{O[2]}, v2, v{O[2]}, s[74:75]\nv_cndmask_b32 v{VS[2]}, 64, v{VS[0]}, s[74:75]")
    e("s_waitcnt lgkmcnt(0)")
    e.srd(SRD_X, S_X, 2048*1280)
    for t, x in dma_x(0, 0) + dma_x(0, 1): e(x)
    addptr(0, O[0], f"s{S_WQKV}", f"s{S_WQKV+1}"); addptr(1, O[1], f"s{S_WQKV}", f"s{S_WQKV+1}"); addptr(3, O[3], f"s{S_W1}", f"s{S_W1+1}")
    e(f"v_mov_b32 v2, s{S_GATE}\nv_mov_b32 v3, s{S_WQKV}\nv_cndmask_b32 v2, v2, v3, s[74:75]\nv_mov_b32 v3, s{S_GATE+1}\nv_mov_b32 v4, s{S_WQKV+1}\nv_cndmask_b32 v3, v3, v4, s[74:75]")
    addptr(2, O[2], "v2", "v3")
    e("s_branch L_Mgo\nL_MQ:")
    e(f"s_mul_i32 s79, s{S_J}, 160\ns_mul_i32 s76, s{S_J}, 320\ns_add_u32 s76, s76, 1024\ns_cmp_eq_u32 s{S_J}, 7\ns_cselect_b32 s77, 11, 19")
    panel(O[0], 0, 79, False); panel(O[1], 64, 79, False); h160(O[4], -16); h160(O[2], 48); h160(O[3], 112)
    e(f"v_cmp_gt_u32 s[74:75], 16, v0\nv_mov_b32 v{VS[0]}, {32*3840}\nv_mov_b32 v{VS[2]}, {32*3456}\nv_mov_b32 v{VS[3]}, {32*3456}")
    e(f"v_cndmask_b32 v{O[1]}, v{O[4]}, v{O[1]}, s[74:75]\nv_cndmask_b32 v{VS[1]}, v{VS[2]}, v{VS[0]}, s[74:75]")
    e("s_waitcnt lgkmcnt(0)")
    e.srd(SRD_X, S_X, 2048*1280)
    emit(dma_x(0, 0) + dma_x(0, 1))
    addptr(0, O[0], f"s{S_WQKV}", f"s{S_WQKV+1}"); addptr(2, O[2], f"s{S_W1}", f"s{S_W1+1}"); addptr(3, O[3], f"s{S_W1}", f"s{S_W1+1}")
    e(f"v_mov_b32 v2, s{S_W1}\nv_mov_b32 v3, s{S_WQKV}\nv_cndmask_b32 v2, v2, v3, s[74:75]\nv_mov_b32 v3, s{S_W1+1}\nv_mov_b32 v4, s{S_WQKV+1}\nv_cndmask_b32 v3, v3, v4, s[74:75]")
    addptr(1, O[1], "v2", "v3")
    e("L_Mgo:")
    emit(dma_w(0))
    e.stamp(1)
    e("s_barrier"); emit(dma_w(1))
    e("s_barrier"); emit(dma_x(1, 0) + dma_x(1, 1)); emit(dma_w(2))
    e("s_barrier"); emit(dma_w(3))
    e.srd(SRD_WS, S_WS, WS_SIZE); e.srd(SRD_D, S_DBG, 256)
    VZ, VL16 = 1, 15
    e(f"v_mov_b32 v{VZ}, 0\nv_lshlrev_b32 v{VL16}, 4, v0")
    VJ = [38, 39, 40, 41, 42]; VJR = 43
    e(f"s_lshl_b32 s70, s{S_WV}, 8\ns_add_u32 s70, s70, s2\ns_lshr_b32 s71, s70, 3\ns_and_b32 s72, s70, 7")
    e(f"s_sub_u32 s76, s71, 54\ns_mul_i32 s77, s76, 6554\ns_lshr_b32 s77, s77, 15\ns_mul_i32 s78, s77, 5\ns_sub_u32 s78, s76, s78")
    e(f"s_mul_i32 s73, s77, 160\ns_lshr_b32 s76, s78, 1\ns_mul_i32 s76, s76, 80\ns_and_b32 s79, s78, 1\ns_lshl_b32 s79, s79, 3\ns_add_u32 s76, s76, s79")
    e(f"s_cmp_eq_u32 s78, 4\ns_cselect_b32 s76, 16, s76\ns_cselect_b32 s75, 80, 4\ns_add_u32 s73, s73, s76\ns_mov_b32 s74, 20")
    e(f"s_lshl_b32 s76, s71, 5\ns_cmp_lt_u32 s71, 54\ns_cselect_b32 s73, s76, s73\ns_cselect_b32 s74, 4, s74\ns_cselect_b32 s75, 16, s75")
    e(f"s_cselect_b32 s{SRD_T}, s{S_W2}, s{S_WO}\ns_cselect_b32 s{SRD_T+1}, s{S_W2+1}, s{S_WO+1}\ns_mov_b32 s{SRD_T+2}, {640*1280}\ns_cmov_b32 s{SRD_T+2}, {1728*1280}\ns_mov_b32 s{SRD_T+3}, 0x20000")
    e(f"s_mul_i32 s12, s73, 1280\ns_mul_i32 s76, s72, 160\ns_add_u32 s12, s12, s76")
    e(f"s_mul_i32 s13, s72, 74\ns_add_u32 s13, s13, s71\ns_mul_i32 s13, s13, 5120\ns_add_u32 s13, s13, {WS_WF}")
    e(f"s_lshl_b32 s14, s72, 7\ns_add_u32 s14, s14, {WS_FL + FL_W*128}")
    e(f"s_cmp_lt_u32 s70, 592\ns_cselect_b32 s15, 1, 0\ns_cselect_b32 s12, s12, {OOB}")
    e(f"s_mul_i32 s3, s{S_WV}, 5120\ns_add_u32 s3, s3, {STG012}\ns_cmp_eq_u32 s{S_WV}, 3\ns_cmov_b32 s3, {STG3}")
    for i in range(5):
        e(f"v_add_u32 v2, {64*i}, v0\nv_mul_u32_u24 v3, 6554, v2\nv_lshrrev_b32 v3, 16, v3\nv_mul_u32_u24 v4, 10, v3\nv_sub_u32 v4, v2, v4")
        e(f"v_bfe_u32 v5, v3, 2, 2\nv_mul_u32_u24 v5, s74, v5\nv_lshrrev_b32 v6, 4, v3\nv_mul_u32_u24 v6, s75, v6\nv_and_b32 v3, 3, v3\nv_add3_u32 v3, v3, v5, v6")
        e(f"v_mul_u32_u24 v3, 1280, v3\nv_lshl_add_u32 v{VJ[i]}, v4, 4, v3")
    e(f"v_lshrrev_b32 v2, 2, v0\nv_mul_u32_u24 v2, 160, v2\nv_and_b32 v3, 3, v0\nv_mul_u32_u24 v3, 40, v3\nv_add3_u32 v{VJR}, v2, v3, s3")
    VP = 14
    for s in range(NSTEP):
        wait_vm(lambda t: t == ('w', s) or t == ('x', s//2) or (s == 19 and t[0] in ('phi', 'init')))
        if s == 19:
            e.poll(SRD_D, "0", NINIT, VZ, VP, first_loaded=True)
        e("s_barrier")
        if s == 0: e.stamp(2)
        X = s//2 + 2
        if X < NSTEP//2: emit(dma_x(X, s % 2))
        if s + 4 < NSTEP: emit(dma_w(s + 4))
        if s == 15:
            txt = (f"s_mul_i32 s76, s{S_J}, 3200\ns_lshl_b32 s77, s{S_WV}, 10\ns_add_u32 m0, s77, {WPHI_LDS}\ns_add_u32 s76, s76, s77\ns_add_u32 s76, s76, s{S_WPHI}\ns_addc_u32 s77, s{S_WPHI+1}, 0\n"
                   f"s_cmp_eq_u32 s{S_WV}, 3\ns_mov_b32 s78, 1008\ns_cmov_b32 s78, 112\nv_min_u32 v2, s78, v{VL16}\nglobal_load_lds_dwordx4 v2, s[76:77]")
            emit([(('phi',), txt)])
        if s == 16:
            emit([(('init',), f"buffer_load_dword v{VP}, v{VZ}, {sr(SRD_D)}, 0 offen sc1")])
            for i in range(5):
                emit([(('job',), f"s_add_u32 m0, s3, {1024*i}\ns_nop 0\nbuffer_load_dwordx4 v{VJ[i]}, {sr(SRD_T)}, s12 offen lds")])
    e.stamp(3)
    JF = 48
    Lskip = e.lab("L_nojob")
    e(f"s_waitcnt vmcnt(0)\ns_cmp_eq_u32 s15, 0\ns_cbranch_scc1 {Lskip}")
    for u in range(5):
        e(f"ds_read_b64_tr_b16 {vr(JF+4*u,2)}, v{VJR} offset:{8*u}\nds_read_b64_tr_b16 {vr(JF+4*u+2,2)}, v{VJR} offset:{8*u + 2560}")
    e(f"v_add_u32 v2, 4096, v{VL16}")
    for u in range(5):
        e(f"s_waitcnt lgkmcnt({8-2*u})")
        if u < 4: e(f"buffer_store_dwordx4 {vr(JF+4*u)}, v{VL16}, {sr(SRD_WS)}, s13 offen offset:{1024*u} sc1")
        else: e(f"buffer_store_dwordx4 {vr(JF+4*u)}, v2, {sr(SRD_WS)}, s13 offen sc1")
    e(f"v_mov_b32 v3, 1\ns_waitcnt vmcnt(0)\ns_mov_b64 exec, 1\nbuffer_atomic_add v3, v{VZ}, {sr(SRD_WS)}, s14 offen sc1\ns_mov_b64 exec, -1\n{Lskip}:")
    p3(e, PB, VZ, VL16)

def p3(e, PB, VZ, VL16):
    ACC = 176; POOL = 16; NPOOL = 40
    VL2, VG, VP = 13, 2, 14
    VGS = [2, 4, 6, 8]
    acc = lambda u, t: ACC + 16*u + 4*t
    e(f"v_add_u32 v{VL2}, 4096, v{VL16}")
    e.srd(SRD_T, S_B2, 1280)
    e(f"v_lshrrev_b32 v10, 4, v0\nv_mul_u32_u24 v10, 40, v10\ns_mul_i32 s70, s{S_CB}, 160\ns_cmp_eq_u32 s{S_WV}, 0\ns_cselect_b32 s70, s70, {OOB}")
    e(f"buffer_load_dwordx4 {vr(POOL)}, v10, {sr(SRD_T)}, s70 offen\nbuffer_load_dwordx4 {vr(POOL+4)}, v10, {sr(SRD_T)}, s70 offen offset:16\nbuffer_load_dwordx2 {vr(POOL+8,2)}, v10, {sr(SRD_T)}, s70 offen offset:32")
    e(f"s_cmp_ge_u32 s{S_WV}, 2\ns_cselect_b32 s70, 13, 14\ns_mul_i32 s71, s{S_WV}, 14\ns_cmp_eq_u32 s{S_WV}, 3\ns_cmov_b32 s71, 41")
    e(f"s_cmp_ge_u32 s7, s70\ns_cselect_b32 s72, s70, 0\ns_sub_u32 s7, s7, s72")
    SA, SAE, SAS, SB, SBE, SBS = 12, 13, 14, 15, 3, 68
    e(f"s_mul_i32 s72, s{S_R64}, 54\ns_add_u32 s72, s72, s71\ns_lshl_b32 s{SAS}, s72, 12\ns_lshl_b32 s73, s70, 12\ns_add_u32 s{SAE}, s{SAS}, s73\ns_lshl_b32 s73, s7, 12\ns_add_u32 s{SA}, s{SAS}, s73")
    e(f"s_mul_i32 s72, s{S_CB}, 74\ns_add_u32 s73, s72, s71\ns_mul_i32 s73, s73, 5120\ns_add_u32 s{SBS}, s73, {WS_WF}\ns_mul_i32 s73, s70, 5120\ns_add_u32 s{SBE}, s{SBS}, s73\ns_mul_i32 s73, s7, 5120\ns_add_u32 s{SB}, s{SBS}, s73")
    SOB, SOA = 69, 4
    e(f"s_mul_i32 s73, s{S_WV}, 5\ns_add_u32 s73, s73, s72\ns_add_u32 s73, s73, 54\ns_mul_i32 s73, s73, 5120\ns_add_u32 s{SOB}, s73, {WS_WF}")
    e(f"s_lshl_b32 s73, s{S_R64}, 3\ns_lshl_b32 s74, s{S_WV}, 1\ns_add_u32 s73, s73, s74\ns_mul_i32 s73, s73, 10240\ns_add_u32 s{SOA}, s73, {WS_OF}")
    e(f"s_lshr_b32 s73, s{S_R64}, 1\ns_lshl_b32 s73, s73, 7\ns_add_u32 s5, s73, {WS_FL + FL_H*128}\ns_add_u32 s6, s73, {WS_FL + FL_O*128}")
    e(f"s_lshl_b32 s73, s{S_CB}, 7\ns_add_u32 s74, s73, {WS_FL + FL_W*128}")
    e("s_waitcnt vmcnt(0)")
    for i in range(10):
        u, r = divmod(2*i, 4)
        e(f"v_lshlrev_b32 v{acc(u,0)+r}, 16, v{POOL+i}\nv_and_b32 v{acc(u,0)+r+1}, 0xffff0000, v{POOL+i}")
    for u in range(5):
        for t in range(1, 4):
            for r in range(0, 4, 2): e(f"v_pk_mul_f32 {vr(acc(u,t)+r,2)}, {vr(acc(u,0)+r,2)}, 1.0 op_sel_hi:[1,0]")
    e.stamp(4)
    e.poll(SRD_WS, "s74", 74, VZ, VP)
    e.stamp(5)
    free = list(range(NPOOL)); frag = {}; vm = []
    NH = 14; NS = NH + 5
    def group(kind, k):
        out = []
        n = 4 if kind == 'A' else 5
        for i in range(n):
            sl = free.pop(0); frag[(kind, k, i)] = POOL + 4*sl; d = vr(POOL + 4*sl)
            pre = post = ""
            if kind == 'A':
                if k < NH:
                    so = f"s{SA}"
                    if k == NH - 1 and i == 0: pre = f"s_cmp_ge_u32 s{S_WV}, 2\ns_cmov_b32 s{SA}, {OOB}\n"
                    if i == 3: post = f"\ns_add_u32 s{SA}, s{SA}, 4096\ns_cmp_eq_u32 s{SA}, s{SAE}\ns_cmov_b32 s{SA}, s{SAS}"
                    txt = f"buffer_load_dwordx4 {d}, v{VL16}, {sr(SRD_WS)}, {so} offen offset:{1024*i} sc1"
                else:
                    kk = k - NH
                    if kk < 4:
                        if i == 0: pre = f"s_add_u32 s70, s{SOA}, {(kk >> 1)*10240 + (kk & 1)*4096}\n"
                        txt = f"buffer_load_dwordx4 {d}, v{VL16}, {sr(SRD_WS)}, s70 offen offset:{1024*i} sc1"
                    else:
                        p, ee = i >> 1, i & 1
                        pre = f"s_add_u32 s70, s{SOA}, {ee*10240 + 8192}\n"
                        txt = f"buffer_load_dwordx4 {d}, v{VL16}, {sr(SRD_WS)}, s70 offen offset:{1024*p} sc1"
            else:
                if k < NH:
                    so = f"s{SB}"
                    if k == NH - 1 and i == 0: pre = f"s_cmp_ge_u32 s{S_WV}, 2\ns_cmov_b32 s{SB}, {OOB}\n"
                    if i == 4: post = f"\ns_add_u32 s{SB}, s{SB}, 5120\ns_cmp_eq_u32 s{SB}, s{SBE}\ns_cmov_b32 s{SB}, s{SBS}"
                else:
                    so = f"s{SOB}"
                    if i == 4: post = f"\ns_add_u32 s{SOB}, s{SOB}, 5120"
                txt = (f"buffer_load_dwordx4 {d}, v{VL16}, {sr(SRD_WS)}, {so} offen offset:{1024*i} sc1" if i < 4 else
                       f"buffer_load_dwordx4 {d}, v{VL2}, {sr(SRD_WS)}, {so} offen sc1")
            out.append(((kind, k), pre + txt + post))
        return out
    def emit1(item): e(item[1]); vm.append(item[0])
    for k in range(PB):
        for it in group('B', k): emit1(it)
    e.poll(SRD_WS, "s5", 16, VZ, VP); vm.clear()
    e.stamp(6)
    e(f"v_and_b32 v10, 15, v0\nv_lshlrev_b32 v10, 2, v10\ns_lshl_b32 s70, s{S_R64}, 8\ns_add_u32 s70, s70, {WS_G}")
    order = []
    for k in range(NS):
        order.append(('A', k))
        if k >= PB: order.append(('B', k))
    pend = []; oi = 0; polled = False; gdone = False
    LOOK = e.opt.get('look', 2)
    def refill(cur):
        nonlocal oi
        while oi < len(order):
            kind, k = order[oi]
            if k > cur + LOOK and not (kind == 'B'):
                break
            if k > cur + LOOK + 3: break
            if kind == 'A' and k >= NH and not polled:
                j = oi + 1
                while j < len(order) and order[j][0] == 'A': j += 1
                if j < len(order) and len(free) >= 5 + 8:
                    order.insert(oi, order.pop(j)); continue
                break
            if len(free) < (4 if kind == 'A' else 5): break
            pend.extend(group(kind, k)); oi += 1
    refill(-1)
    for it in pend: emit1(it)
    pend.clear()
    for t in range(4): emit1((('g',), f"buffer_load_dword v{VGS[t]}, v10, {sr(SRD_WS)}, s70 offen offset:{64*t} sc1"))
    for k in range(NS):
        if k == NH - 1:
            idx = vm.index(('op',)); e(f"s_waitcnt vmcnt({len(vm)-1-idx})"); del vm[:idx+1]
            e.stamp(7)
            e.poll(SRD_WS, "s6", 8, VZ, VP, first_loaded=True)
            e.stamp(8)
            polled = True
        if k == NH:
            for t in range(4): e(f"v_sub_f32 v{VGS[t]}, 1.0, v{VGS[t]}")
            for t in range(4):
                for u in range(5):
                    for r in (0, 2): e(f"v_pk_mul_f32 {vr(acc(u,t)+r,2)}, {vr(acc(u,t)+r,2)}, {vr(VGS[t],2)} op_sel_hi:[1,0]")
        refill(k)
        idx = max([i for i, t in enumerate(vm) if t in (('A', k), ('B', k), ('g',))], default=-1)
        assert all(it[0] not in (('A', k), ('B', k)) for it in pend) or True
        while any(it[0] in (('A', k), ('B', k)) for it in pend): emit1(pend.pop(0))
        idx = max([i for i, t in enumerate(vm) if t in (('A', k), ('B', k)) or (k == NH - 2 and t == ('g',))], default=-1)
        if idx >= 0: e(f"s_waitcnt vmcnt({len(vm)-1-idx})"); del vm[:idx+1]
        if k == NS - 1:
            for p in range(2):
                X, Y = frag[('A', k, 2*p)], frag[('A', k, 2*p+1)]
                e(f"v_swap_b32 v{X+2}, v{Y}\nv_swap_b32 v{X+3}, v{Y+1}")
        cnt = 0
        for t in range(4):
            for u in range(5):
                e(f"v_mfma_f32_16x16x32_bf16 {vr(acc(u,t))}, {vr(frag[('B',k,u)])}, {vr(frag[('A',k,t)])}, {vr(acc(u,t))}")
                cnt += 1
                if cnt % 2 == 0 and pend: emit1(pend.pop(0))
        while pend: emit1(pend.pop(0))
        for i in range(4): free.append((frag[('A', k, i)] - POOL)//4)
        for i in range(5): free.append((frag[('B', k, i)] - POOL)//4)
        if not polled and ('op',) not in vm and all(not (kind == 'A' and kk < NH) for kind, kk in order[oi:]):
            emit1((('op',), f"buffer_load_dword v{VP}, v{VZ}, {sr(SRD_WS)}, s6 offen sc1"))
    assert oi == len(order)
    e.srd(SRD_T, S_OUT, 2048*1280)
    e(f"s_mul_i32 s70, s{S_WV}, 5120\nv_add_u32 v10, s70, v{VL16}\ns_mul_i32 s70, s{S_WV}, 20480\nv_add_u32 v11, s70, v{VL16}\nv_add_u32 v12, 40960, v10")
    e("s_barrier")
    e.dsbatch([f"ds_write_b128 v{10 if t < 2 else 12}, {vr(acc(u,t))} offset:{RED + (t % 2)*20480 + u*1024}" for t in range(4) for u in range(5)])
    e(f"v_and_b32 v2, 15, v0\nv_mul_u32_u24 v2, 1280, v2\nv_lshrrev_b32 v3, 4, v0\nv_mul_u32_u24 v3, 40, v3\nv_add_u32 v2, v2, v3")
    e(f"s_lshl_b32 s70, s{S_R64}, 2\ns_add_u32 s70, s70, s{S_WV}\ns_mul_i32 s70, s70, {16*1280}\ns_mul_i32 s71, s{S_CB}, 160\ns_add_u32 s70, s70, s71")
    e("s_waitcnt lgkmcnt(0)\ns_barrier")
    R = POOL
    e.dsbatch([f"ds_read_b128 {vr(R + 16*u + 4*sw)}, v11 offset:{RED + sw*5120 + u*1024}" for u in range(5) for sw in range(4)])
    for u in range(5):
        if u >= 1: e(f"s_waitcnt lgkmcnt({16 - 4*u})")
        b = R + 16*u
        for r in (0, 2):
            e(f"v_pk_add_f32 {vr(b+r,2)}, {vr(b+r,2)}, {vr(b+4+r,2)}\nv_pk_add_f32 {vr(b+8+r,2)}, {vr(b+8+r,2)}, {vr(b+12+r,2)}")
        for r in (0, 2): e(f"v_pk_add_f32 {vr(b+r,2)}, {vr(b+r,2)}, {vr(b+8+r,2)}")
        e(f"v_cvt_pk_bf16_f32 v{100+2*u}, v{b}, v{b+1}\nv_cvt_pk_bf16_f32 v{101+2*u}, v{b+2}, v{b+3}")
    e(f"buffer_store_dwordx4 v[100:103], v2, {sr(SRD_T)}, s70 offen\nbuffer_store_dwordx4 v[104:107], v2, {sr(SRD_T)}, s70 offen offset:16\nbuffer_store_dwordx2 v[108:109], v2, {sr(SRD_T)}, s70 offen offset:32")
    e.stamps_out()
    e("s_endpgm")

def c_wave(e, D):
    XREG = 224; RING = 192; VXA = [246, 247]; AT = [240, 241]
    VZ, VL16 = 242, 243
    e("v_lshrrev_b32 v1, 4, v0\nv_bfe_u32 v2, v0, 2, 2\nv_and_b32 v3, 3, v0")
    e("v_and_b32 v5, 1, v1\nv_lshl_add_u32 v4, v5, 2, v2\nv_lshrrev_b32 v6, 1, v1\nv_lshlrev_b32 v6, 13, v6")
    e(f"s_lshl_b32 s76, s{S_WV}, 5\nv_and_b32 v7, 15, v0\nv_add_u32 v7, s76, v7")
    e(f"v_lshrrev_b32 v128, 1, v7\nv_xor_b32 v128, v128, v1\nv_and_b32 v128, 7, v128\nv_lshlrev_b32 v128, 4, v128\nv_lshl_add_u32 v128, v7, 7, v128")
    e(f"v_add_u32 v{VXA[0]}, {XBASE}, v128\nv_xor_b32 v{VXA[1]}, 64, v{VXA[0]}")
    e(f"v_mul_u32_u24 v128, 160, v4\nv_mul_u32_u24 v129, 40, v3\nv_add3_u32 v{AT[0]}, v128, v129, v6\nv_add_u32 v{AT[1]}, {3*WSLOT}, v{AT[0]}")
    e(f"v_mov_b32 v{VZ}, 0\nv_lshlrev_b32 v{VL16}, 4, v0\nv_mov_b32 v128, 0\nv_mov_b32 v129, 0\nv_mov_b32 v130, 0\nv_mov_b32 v131, 0")
    e(f"s_lshl_b32 s76, s{S_WV}, 9\ns_add_u32 s76, s76, {ZERO_LDS}\nv_lshl_add_u32 v132, v0, 3, s76\nds_write_b64 v132, v[128:129]")
    e(f"v_lshlrev_b32 v132, 2, v0\nv_add_u32 v132, {CNT_LDS}, v132\nds_write_b32 v132, v128")
    VPH = 244
    e(f"v_mul_u32_u24 v132, 800, v3\nv_mul_u32_u24 v133, 40, v2\nv_add3_u32 v132, v132, v133, s76\nv_cmp_eq_u32 vcc, v1, v3\ns_add_u32 s77, s76, {-WPHI_LDS & 0xffffffff}")
    e(f"v_subrev_u32 v132, s77, v132\nv_mov_b32 v133, {ZERO_LDS}\nv_cndmask_b32 v{VPH}, v133, v132, vcc")
    e(f"s_mov_b32 s{S_C2}, {f2u(GC2)}\ns_mov_b32 s{S_C2+1}, {f2u(GC2)}\ns_mov_b32 s{S_L}, {f2u(LOG2E)}\ns_mov_b32 s{S_L+1}, {f2u(LOG2E)}")
    e("s_waitcnt lgkmcnt(0)")
    e.srd(SRD_WS, S_WS, WS_SIZE); e.srd(SRD_T, S_B1, 3456); e.srd(SRD_D, S_DBG, 256)
    e(f"s_lshl_b32 s76, s2, 2\ns_add_u32 s76, s76, s{S_WV}\ns_lshl_b32 s76, s76, 10\ns_add_u32 s76, s76, {WS_KV}\ns_cmp_lt_u32 s2, {NINIT}\ns_cselect_b32 s76, s76, {OOB}")
    e(f"buffer_store_dwordx4 v[128:131], v{VL16}, {sr(SRD_WS)}, s76 offen sc1")
    S_HO, S_HFL, S_KFL = 12, 13, 14
    e(f"s_lshl_b32 s76, s{S_RB}, 1\ns_lshr_b32 s77, s{S_WV}, 1\ns_add_u32 s15, s76, s77")
    e(f"s_lshl_b32 s76, s{S_RB}, 7\ns_add_u32 s{S_HFL}, s76, {WS_FL + FL_H*128}\ns_lshl_b32 s76, s{S_J}, 7\ns_add_u32 s{S_KFL}, s76, {WS_FL + FL_KV*128}")
    S_GO = 3
    e(f"s_lshl_b32 s76, s{S_J}, 13\ns_lshl_b32 s77, s{S_RB}, 9\ns_add_u32 s76, s76, s77\ns_lshl_b32 s77, s{S_WV}, 7\ns_add_u32 s76, s76, s77\ns_add_u32 s{S_GO}, s76, {WS_G}")
    def after_bar0():
        L = e.lab("L_noinit")
        e(f"s_cmp_ge_u32 s2, {NINIT}\ns_cbranch_scc1 {L}\ns_cmp_lg_u32 s{S_WV}, 0\ns_cbranch_scc1 {L}")
        e(f"s_mov_b64 exec, 1\nv_mov_b32 v128, 1\nbuffer_atomic_add v128, v{VZ}, {sr(SRD_D)}, 0 offen sc1\ns_mov_b64 exec, -1\n{L}:")
        e.stamp(2)
    def bias_init(nu, hacc, colbytes_sreg, zero_lo, zero_hi):
        e(f"v_lshlrev_b32 v132, 3, v1")
        for t in range(nu): e(f"buffer_load_dwordx2 {vr(136+2*t,2)}, v132, {sr(SRD_T)}, s{colbytes_sreg} offen offset:{32*t}")
        e("s_barrier\ns_barrier\ns_barrier")
        for i in list(range(*zero_lo)) + list(range(*zero_hi)): e(f"v_mov_b32 v{i}, 0")
        e("s_waitcnt vmcnt(0)")
        for t in range(nu):
            for m in range(2):
                a = hacc + 8*t + 4*m
                e(f"v_lshlrev_b32 v{a}, 16, v{136+2*t}\nv_and_b32 v{a+1}, 0xffff0000, v{136+2*t}\nv_lshlrev_b32 v{a+2}, 16, v{137+2*t}\nv_and_b32 v{a+3}, 0xffff0000, v{137+2*t}")
        e.stamp(1)
    C1 = 128; T = 130; PK = 140
    def gelu_steps(hacc, nsteps, skip_from=None):
        e(f"v_mov_b32 v{C1}, {f2u(GC1)}\nv_mov_b32 v{C1+1}, {f2u(GC1)}")
        Ls = e.lab("L_hskip")
        for i in range(nsteps):
            if i == skip_from: e(f"s_cmp_eq_u32 s{S_J}, 7\ns_cbranch_scc1 {Ls}")
            for m in range(2):
                d = PK + 4*((2*i + m) % 4)
                a0 = hacc + 16*i + 4*m; a1 = a0 + 8
                gelu_pack(e, [(a0, d), (a0+2, d+1), (a1, d+2), (a1+2, d+3)], T, C1)
                e(f"buffer_store_dwordx4 {vr(d)}, v{VL16}, {sr(SRD_WS)}, s{S_HO} offen offset:{1024*m} sc1")
            e(f"s_add_u32 s{S_HO}, s{S_HO}, 4096")
        e(f"{Ls}:")
    WF_ = 140
    QP = 192
    def phi_stage(P):
        e.dsbatch([f"ds_read_b64_tr_b16 {vr(WF_ + 10*tau + 2*t, 2)}, v{VPH} offset:{160*t + 8*tau}" for tau in range(5) for t in range(5)])
        for m in range(2):
            for t in range(5):
                a = 8 + 8*t + 4*m
                e(f"v_cvt_pk_bf16_f32 v{QP+10*m+2*t}, v{a}, v{a+1}\nv_cvt_pk_bf16_f32 v{QP+10*m+2*t+1}, v{a+2}, v{a+3}")
        e("s_waitcnt lgkmcnt(0)")
        for ks in range(3):
            for m in range(2):
                for tau in range(5):
                    d = vr(P + 20*m + 4*tau); c = "0" if ks == 0 else d
                    if ks < 2: e(f"v_mfma_f32_16x16x32_bf16 {d}, {vr(WF_+10*tau+4*ks)}, {vr(QP+10*m+4*ks)}, {c}")
                    else: e(f"v_mfma_f32_16x16x16_bf16 {d}, {vr(WF_+10*tau+8,2)}, {vr(QP+10*m+8,2)}, {c}")
    e(f"s_cmp_eq_u32 s{S_ISQ}, 1\ns_cbranch_scc1 L_CQ")
    AH = [[248, 249], [250, 251], [252, 253], [254, 255]]; AG = [190, 191]
    e("v_lshrrev_b32 v128, 1, v4\nv_lshlrev_b32 v129, 7, v4\nv_lshl_add_u32 v129, v3, 3, v129\nv_add_u32 v129, v129, v6")
    for t in range(4): e(f"v_xor_b32 v130, {t}, v128\nv_lshl_add_u32 v{AH[t][0]}, v130, 5, v129\nv_add_u32 v{AH[t][1]}, {3*WSLOT}, v{AH[t][0]}")
    e(f"v_lshlrev_b32 v{AG[0]}, 4, v1\nv_add_u32 v{AG[1]}, {3*WSLOT}, v{AG[0]}")
    e(f"s_mul_i32 s76, s15, 54\ns_lshl_b32 s77, s{S_J}, 1\ns_add_u32 s76, s76, s77\ns_lshl_b32 s76, s76, 12\ns_and_b32 s77, s{S_WV}, 1\ns_lshl_b32 s77, s77, 11\ns_add_u32 s{S_HO}, s76, s77")
    e(f"s_lshl_b32 s76, s{S_J}, 7")
    bias_init(4, 88, 76, (8, 88), (120, 128))
    c_main_loop(e, [Unit(AT, 8*t, 8 + 8*t) for t in range(5)] + [Unit(AT, 1280 + 8*t, 48 + 8*t) for t in range(5)]
                + [Unit(AH[t], 3072, 88 + 8*t) for t in range(4)] + [Unit(AG, 2560, 120, gate=True)], XREG, VXA, RING, D, after_bar0)
    e.stamp(3)
    gelu_steps(88, 2)
    for m in range(2): e(f"v_mul_f32 v{130+m}, {f2u(-LOG2E)}, v{120+4*m}")
    for m in range(2): e(f"v_exp_f32 v{130+m}, v{130+m}")
    for m in range(2): e(f"v_add_f32 v{130+m}, 1.0, v{130+m}")
    for m in range(2): e(f"v_rcp_f32 v{130+m}, v{130+m}")
    e(f"v_lshlrev_b32 v132, 2, v0\ns_mov_b64 exec, 0xffff")
    for m in range(2): e(f"buffer_store_dword v{130+m}, v132, {sr(SRD_WS)}, s{S_GO} offen offset:{64*m} sc1")
    e("s_mov_b64 exec, -1")
    e.stamp(4)
    P = 88
    phi_stage(P)
    REC = [8, 212]
    REC = [8, 140]
    EE = 192; XX = 128
    for m in range(2):
        for t in range(5):
            a = 48 + 8*t + 4*m
            e(f"v_cvt_pk_bf16_f32 v{REC[m]+20+2*t}, v{a}, v{a+1}\nv_cvt_pk_bf16_f32 v{REC[m]+21+2*t}, v{a+2}, v{a+3}")
        e(f"v_mov_b32 v{REC[m]+30}, 0x3f80\nv_mov_b32 v{REC[m]+31}, 0")
    e(f"v_and_b32 v172, 15, v0\ns_lshl_b32 s76, s{S_WV}, 5\nv_add_u32 v172, s76, v172\nv_lshlrev_b32 v172, 7, v172\nv_lshl_add_u32 v172, v1, 14, v172\nv_add_u32 v172, {EXCH}, v172\nv_and_b32 v173, 7, v0\nv_lshlrev_b32 v173, 4, v173")
    for i in range(8): e(f"v_xor_b32 v{174+i}, {16*i}, v173\nv_add_u32 v{174+i}, v{174+i}, v172")
    for m in range(2):
        softmax2(e, P + 20*m, EE, REC[m], XX)
        for i in range(8): e(f"ds_write_b128 v{174+i}, {vr(REC[m]+4*i)} offset:{2048*m}")
        if m == 0:
            e("s_waitcnt vmcnt(0)"); e.arrive(0, f"s{S_HFL}", VZ, 136, 137); e.stamp(5)
    e(f"v_lshl_add_u32 v172, v1, 2, v2\nv_and_b32 v173, 7, v172\nv_lshlrev_b32 v172, 7, v172\ns_lshl_b32 s76, s{S_WV}, 14\ns_add_u32 s76, s76, {EXCH}\nv_and_b32 v174, 1, v3\nv_lshl_add_u32 v172, v174, 3, v172\nv_add_u32 v172, s76, v172\nv_lshrrev_b32 v174, 1, v3")
    for i, c0 in enumerate([0, 2, 4, 5]): e(f"v_add_u32 v{176+i}, {c0}, v174\nv_xor_b32 v{176+i}, v{176+i}, v173\nv_lshl_add_u32 v{176+i}, v{176+i}, 4, v172")
    e(f"v_xor_b32 v180, 7, v173\nv_lshl_add_u32 v180, v180, 4, v172")
    e.lsync(1, 136, 137)
    e.stamp(6)
    FR = 8
    e.dsbatch([f"ds_read_b64_tr_b16 {vr(FR + 20*st + 4*i + 2*h, 2)}, v{176+i} offset:{4096*st + 2048*h}" for st in range(4) for i in range(5) for h in range(2)])
    KD = 88
    for st in range(4):
        if st >= 2: e(f"s_waitcnt lgkmcnt({30 - 10*st})")
        for U in range(2):
            for Tt in range(3):
                d = vr(KD + 12*U + 4*Tt)
                e(f"v_mfma_f32_16x16x32_bf16 {d}, {vr(FR+20*st+12+4*U)}, {vr(FR+20*st+4*Tt)}, {'0' if st == 0 else d}")
    e(f"v_mul_u32_u24 v172, 768, v1\nv_and_b32 v173, 15, v0\nv_lshl_add_u32 v172, v173, 2, v172\ns_lshl_b32 s76, s{S_J}, 2\ns_add_u32 s76, s76, s{S_WV}\ns_lshl_b32 s76, s76, 12\ns_add_u32 s76, s76, {WS_KV}")
    for U in range(2):
        for r in range(4):
            if U == 1 and r == 0: e("s_mov_b32 exec_hi, 0")
            if U == 1 and r == 1: e("s_mov_b32 exec_lo, 0xffff")
            for Tt in range(3): e(f"buffer_atomic_add_f32 v{KD + 12*U + 4*Tt + r}, v172, {sr(SRD_WS)}, s76 offen offset:{3072*U + 192*r + 64*Tt}")
    e("s_mov_b64 exec, -1")
    e.stamp(7)
    e("s_waitcnt vmcnt(0)"); e.arrive(2, f"s{S_KFL}", VZ, 136, 137)
    e.stamps_out()
    e("s_endpgm")
    e("L_CQ:")
    AE, AO = [248, 249], [250, 251]
    e(f"v_mul_u32_u24 v128, 320, v4\nv_lshl_add_u32 v128, v3, 3, v128\nv_add_u32 v128, v128, v6\nv_lshlrev_b32 v129, 5, v5")
    e(f"v_add_u32 v{AE[0]}, v128, v129\nv_sub_u32 v{AO[0]}, v128, v129\nv_add_u32 v{AO[0]}, 32, v{AO[0]}\nv_add_u32 v{AE[1]}, {3*WSLOT}, v{AE[0]}\nv_add_u32 v{AO[1]}, {3*WSLOT}, v{AO[0]}")
    e(f"s_mul_i32 s76, s15, 54\ns_mul_i32 s77, s{S_J}, 5\ns_add_u32 s76, s76, s77\ns_add_u32 s76, s76, 16\ns_lshl_b32 s76, s76, 12\ns_and_b32 s77, s{S_WV}, 1\ns_lshl_b32 s77, s77, 11\ns_add_u32 s{S_HO}, s76, s77")
    e(f"s_mul_i32 s76, s{S_J}, 320\ns_add_u32 s76, s76, 1024")
    bias_init(10, 48, 76, (8, 48), (0, 0))
    c_main_loop(e, [Unit(AT, 8*t, 8 + 8*t) for t in range(5)] + [Unit(AE if t % 2 == 0 else AO, 1280 + 32*(t - t % 2), 48 + 8*t) for t in range(10)],
                XREG, VXA, RING, D, after_bar0)
    e.stamp(3)
    gelu_steps(48, 5, skip_from=3)
    e.stamp(4)
    P = 88
    phi_stage(P)
    PHI = [192, 212]
    for m in range(2):
        softmax2(e, P + 20*m, 48, PHI[m], 128)
        if m == 0:
            e("s_waitcnt vmcnt(0)"); e.arrive(0, f"s{S_HFL}", VZ, 136, 137); e.stamp(5)
    for t in range(4):
        e(f"v_add_u32 v48, {64*t}, v0\nv_min_u32 v48, 239, v48\nv_mul_u32_u24 v49, 6554, v48\nv_lshrrev_b32 v49, 16, v49\nv_mul_u32_u24 v50, 10, v49\nv_sub_u32 v50, v48, v50")
        e(f"v_mul_u32_u24 v51, 80, v49\nv_lshl_add_u32 v{56+t}, v50, 3, v51\nv_min_u32 v49, 20, v49\nv_mul_u32_u24 v49, 192, v49\nv_lshl_add_u32 v{52+t}, v50, 4, v49")
    e(f"s_mul_i32 s77, s{S_WV}, 1920\ns_add_u32 s77, s77, {KVT}")
    for t in range(4): e(f"v_add_u32 v{56+t}, s77, v{56+t}")
    e(f"v_mul_u32_u24 v48, 1920, v1\nv_mul_u32_u24 v49, 80, v3\nv_add_u32 v48, v48, v49\nv_add_u32 v48, {KVT}, v48\nv_cmp_eq_u32 vcc, v1, v2\nv_mov_b32 v49, {ZERO_LDS}\nv_cndmask_b32 v60, v49, v48, vcc")
    e(f"s_lshl_b32 s76, s{S_J}, 2\ns_add_u32 s76, s76, s{S_WV}\ns_lshl_b32 s76, s76, 12\ns_add_u32 s4, s76, {WS_KV}")
    e(f"v_and_b32 v61, 15, v0\nv_lshlrev_b32 v61, 2, v61")
    e(f"s_lshl_b32 s76, s15, 3\ns_add_u32 s76, s76, s{S_J}\ns_mul_i32 s76, s76, 10240\ns_add_u32 s76, s76, {WS_OF}\ns_and_b32 s77, s{S_WV}, 1\ns_lshl_b32 s5, s77, 11\ns_add_u32 s5, s5, s76\ns_lshl_b32 s6, s77, 10\ns_add_u32 s6, s6, s76\ns_add_u32 s6, s6, 8192\ns_add_u32 s7, s5, 4096")
    e.stamp(6)
    e.poll(SRD_WS, f"s{S_KFL}", 16, VZ, 136)
    e.stamp(7)
    for t in range(4): e(f"buffer_load_dwordx4 {vr(64+4*t)}, v{52+t}, {sr(SRD_WS)}, s4 offen sc1")
    for m in range(2): e(f"buffer_load_dword v{62+m}, v61, {sr(SRD_WS)}, s{S_GO} offen offset:{64*m} sc1")
    for t in range(4):
        e(f"s_waitcnt vmcnt({5-t})\nv_cvt_pk_bf16_f32 v{80+2*t}, v{64+4*t}, v{65+4*t}\nv_cvt_pk_bf16_f32 v{81+2*t}, v{66+4*t}, v{67+4*t}\nds_write_b64 v{56+t}, {vr(80+2*t,2)}")
    e.lsync(1, 136, 137)
    AF = 64
    seq = [5, 0, 1, 2, 3, 4]
    e.dsbatch([f"ds_read_b128 {vr(AF + 20*n_ + 4*kp)}, v60 offset:{320*u + 16*kp}" for n_, u in enumerate(seq) for kp in range(5)])
    OD = 8
    for n_, u in enumerate(seq):
        if n_ >= 3: e(f"s_waitcnt lgkmcnt({25 - 5*n_})")
        for kp in range(5):
            for m in range(2):
                d = vr(OD + 8*u + 4*m)
                e(f"v_mfma_f32_16x16x32_bf16 {d}, {vr(AF + 20*n_ + 4*kp)}, {vr(PHI[m] + 4*kp)}, {'0' if kp == 0 else d}")
        if n_ == 2:
            e("s_waitcnt vmcnt(0)")
            for m in range(2): e(f"v_add_f32 v{56+2*m}, {f2u(1e-6)}, v{OD+40+4*m}")
            for m in range(2): e(f"v_rcp_f32 v{56+2*m}, v{56+2*m}")
            for m in range(2): e(f"v_mul_f32 v{56+2*m}, v{56+2*m}, v{62+m}")
    OP = 140
    for u in range(5):
        for m in range(2):
            a = OD + 8*u + 4*m
            e(f"v_pk_mul_f32 {vr(a,2)}, {vr(a,2)}, {vr(56+2*m,2)} op_sel_hi:[1,0]\nv_pk_mul_f32 {vr(a+2,2)}, {vr(a+2,2)}, {vr(56+2*m,2)} op_sel_hi:[1,0]")
            d = OP + 8*m + 2*u if u < 4 else OP + 16 + 2*m
            e(f"v_cvt_pk_bf16_f32 v{d}, v{a}, v{a+1}\nv_cvt_pk_bf16_f32 v{d+1}, v{a+2}, v{a+3}")
    for m in range(2):
        e(f"buffer_store_dwordx4 {vr(OP+8*m)}, v{VL16}, {sr(SRD_WS)}, s5 offen offset:{1024*m} sc1\nbuffer_store_dwordx4 {vr(OP+8*m+4)}, v{VL16}, {sr(SRD_WS)}, s7 offen offset:{1024*m} sc1")
    e(f"buffer_store_dwordx4 {vr(OP+16)}, v{VL16}, {sr(SRD_WS)}, s6 offen sc1")
    e(f"s_lshl_b32 s76, s{S_RB}, 7\ns_add_u32 s4, s76, {WS_FL + FL_O*128}")
    e.stamp(8)
    e("s_waitcnt vmcnt(0)"); e.arrive(2, "s4", VZ, 136, 137)
    e.stamps_out()

HEADER = open("gated_mix__linear_kernel_hedgehog__dense_activation_gelu__prompt.s.ref").read().split("; Override launch")[0] if __name__ == "__main__" else ""
if __name__ == "__main__":
    import ast
    kw = ast.literal_eval(sys.argv[2]) if len(sys.argv) > 2 else {}
    open(sys.argv[1], "w").write(HEADER + gen(**kw))
```

```python
import sys
import hazard

NAME = "gated_mix__linear_kernel_hedgehog__dense_activation_gelu__prompt_kernel"
WSLOT = 16384; NW = 6; XBASE = 98304; XSLOT = 16384; NX = 3; NSTEP = 20
SPARE = 147456
WPHI_LDS = SPARE; ZERO_LDS = SPARE + 4096; STG3 = SPARE + 6144; CNT_LDS = SPARE + 11264
STG012 = XBASE + XSLOT
EXCH = 2*WSLOT; KVT = 2*WSLOT; RED = 0
LDS_TOTAL = 163840
WS_HF = 0; WS_OF = 0x700000; WS_WF = 0xA00000; WS_G = 0xD00000; WS_KV = 0xE00000; WS_FL = 0xE20000
WS_SIZE = 0x1000000; WS_STAMP = 0x2000000
FL_H, FL_O, FL_KV, FL_W = 0, 16, 32, 40
NINIT = 36
OOB = 0x40000000
S_X, S_WQKV, S_WPHI, S_WO, S_BX, S_W1, S_B1, S_W2 = 16, 18, 20, 22, 24, 26, 28, 30
S_B2, S_GATE, S_OUT, S_DBG, S_WS = 32, 34, 36, 38, 40
SRD_X, SRD_WS, SRD_T, SRD_D = 44, 48, 52, 56
S_RB, S_J, S_ISQ, S_WAVE, S_PH, S_WV, S_R64, S_CB = 60, 61, 62, 63, 64, 65, 66, 67
S_KK, S_XK, S_XOFF, S_M0X, S_M0W = 68, 69, 4, 5, 6
S_C2, S_L = 8, 10
LOG2E = 1.4426950408889634
import struct, math
def f2u(x): return struct.unpack('<I', struct.pack('<f', x))[0]
GC1 = -2.0 * LOG2E * math.sqrt(2.0 / math.pi); GC2 = GC1 * 0.044715

def vr(b, n=4): return f"v[{b}:{b+n-1}]" if n > 1 else f"v{b}"
def sr(b, n=4): return f"s[{b}:{b+n-1}]"

class G:
    def __init__(self, diag=False, **opt):
        self.L = []; self.diag = diag; self.opt = opt; self.nlab = 0
    def __call__(self, s): self.L.append(s)
    def dsbatch(self, lst):
        for i, x in enumerate(lst):
            if i >= 15 and (i - 15) % 5 == 0: self("s_waitcnt lgkmcnt(10)")
            self(x)
    def lab(self, p="L"): self.nlab += 1; return f"{p}_{self.nlab}"
    def srd(self, R, p, size):
        self(f"s_mov_b32 s{R}, s{p}\ns_mov_b32 s{R+1}, s{p+1}\ns_mov_b32 s{R+2}, {size}\ns_mov_b32 s{R+3}, 0x20000")
    def stamp(self, i):
        if self.diag: self(f"s_waitcnt lgkmcnt(0)\ns_memtime s[{80+2*i}:{81+2*i}]\ns_waitcnt lgkmcnt(0)")
    def stamps_out(self):
        if not self.diag: return
        e = self
        e(f"s_waitcnt vmcnt(0) lgkmcnt(0)")
        e.stamp(9)
        e(f"s_mov_b32 s{SRD_T}, s{S_WS}\ns_mov_b32 s{SRD_T+1}, s{S_WS+1}\ns_mov_b32 s{SRD_T+2}, 0x10000000\ns_mov_b32 s{SRD_T+3}, 0x20000")
        e(f"s_lshl_b32 s70, s2, 3\ns_add_u32 s70, s70, s{S_WAVE}\ns_lshl_b32 s70, s70, 6\ns_add_u32 s70, s70, {WS_STAMP}")
        e("s_mov_b64 exec, 1\nv_mov_b32 v1, 0")
        for i in range(10):
            if i: e(f"s_sub_u32 s71, s{80+2*i}, s80")
            else: e("s_mov_b32 s71, s80")
            e(f"v_mov_b32 v2, s71\nbuffer_store_dword v2, v1, {sr(SRD_T)}, s70 offen offset:{4*i}")
        e("s_waitcnt vmcnt(0)")
        if self.opt.get('dbgrt'):
            e("s_memrealtime s[70:71]\ns_waitcnt lgkmcnt(0)")
            e.srd(SRD_T, S_DBG, 256)
            e(f"v_mov_b32 v2, s70\nbuffer_atomic_umax v2, v1, {sr(SRD_T)}, 0 offen offset:4 sc1")
            e(f"s_not_b32 s71, s100\nv_mov_b32 v2, s71\nbuffer_atomic_umax v2, v1, {sr(SRD_T)}, 0 offen offset:8 sc1")
            for i in range(1, 10):
                e(f"s_sub_u32 s71, s{80+2*i}, s80\ns_cmp_gt_u32 s71, 0x1000000\ns_cmov_b32 s71, 0\nv_mov_b32 v2, s71\nbuffer_atomic_umax v2, v1, {sr(SRD_T)}, 0 offen offset:{8+4*i} sc1")
            e(f"v_mov_b32 v2, s100\nbuffer_atomic_umax v2, v1, {sr(SRD_T)}, 0 offen offset:48 sc1")
            e("s_waitcnt vmcnt(0)")
    def poll(self, srd, soff, target, vz, vt, first_loaded=False):
        e = self; L = e.lab("L_poll"); D = e.lab("L_polld")
        e("s_mov_b32 s79, 0")
        if first_loaded:
            e(f"v_readfirstlane_b32 s78, v{vt}\ns_cmp_ge_u32 s78, {target}\ns_cbranch_scc1 {D}")
        e(f"{L}:")
        e(f"buffer_load_dword v{vt}, v{vz}, {sr(srd)}, {soff} offen sc1\ns_waitcnt vmcnt(0)\nv_readfirstlane_b32 s78, v{vt}")
        e(f"s_cmp_ge_u32 s78, {target}\ns_cbranch_scc1 {D}")
        e(f"s_add_u32 s79, s79, 1\ns_cmp_ge_u32 s79, 0x100000\ns_cbranch_scc1 L_end\ns_sleep 2\ns_branch {L}\n{D}:")
    def arrive(self, cnt, soff, vz, va, vt):
        e = self; D = e.lab("L_arr")
        e(f"s_mov_b64 exec, 1\nv_mov_b32 v{va}, {CNT_LDS + 4*cnt}\nv_mov_b32 v{vt}, 1\nds_add_rtn_u32 v{va}, v{va}, v{vt}\ns_waitcnt lgkmcnt(0)")
        e(f"v_readfirstlane_b32 s78, v{va}\ns_cmp_lg_u32 s78, 3\ns_cbranch_scc1 {D}")
        e(f"buffer_atomic_add v{vt}, v{vz}, {sr(SRD_WS)}, {soff} offen sc1\n{D}:\ns_mov_b64 exec, -1")
    def lsync(self, cnt, va, vt):
        e = self; L = e.lab("L_ls")
        e(f"s_waitcnt lgkmcnt(0)\ns_mov_b64 exec, 1\nv_mov_b32 v{va}, {CNT_LDS + 4*cnt}\nv_mov_b32 v{vt}, 1\nds_add_u32 v{va}, v{vt}\ns_mov_b32 s79, 0\n{L}:")
        e(f"ds_read_b32 v{vt}, v{va}\ns_waitcnt lgkmcnt(0)\nv_readfirstlane_b32 s78, v{vt}\ns_add_u32 s79, s79, 1\ns_cmp_ge_u32 s79, 0x1000000\ns_cbranch_scc1 L_end\ns_cmp_lt_u32 s78, 4\ns_cbranch_scc1 {L}\ns_mov_b64 exec, -1")

class Unit:
    def __init__(self, areg, off, acc, gate=False): self.areg, self.off, self.acc, self.gate = areg, off, acc, gate

def c_main_loop(e, units, xreg, xaddr, ring, D, after_bar0):
    n = len(units); R = D + 2; lg = []; total = NSTEP * n
    def wait_lg(tags):
        idx = max([i for i, t in enumerate(lg) if t in tags], default=-1)
        if idx < 0: return
        cnt = len(lg) - 1 - idx; assert cnt <= 15
        e(f"s_waitcnt lgkmcnt({cnt})"); del lg[:idx + 1]
    def xreads(s, out):
        for m in range(2):
            out.append(f"ds_read_b128 {vr(xreg + 8*(s % 2) + 4*m)}, v{xaddr[s % 2]} offset:{((s//2) % NX)*XSLOT + m*2048}"); lg.append(('x', s))
    def wreads(q, out):
        s, u = divmod(q, n); U = units[u]; r = ring + 4*(q % R); slot = s % NW
        a = U.areg[slot // 3]; o = (slot % 3)*WSLOT + U.off
        if U.gate:
            out.append(f"ds_read_b128 {vr(r)}, v{a} offset:{o}"); lg.append(('w', q)); return
        out.append(f"ds_read_b64_tr_b16 {vr(r,2)}, v{a} offset:{o}"); out.append(f"ds_read_b64_tr_b16 {vr(r+2,2)}, v{a} offset:{o + 4096}")
        lg.extend([('w', q)]*2)
    e("s_barrier"); after_bar0()
    buf = []; xreads(0, buf)
    for q in range(D): wreads(q, buf)
    for b in buf: e(b)
    for q in range(total):
        s, u = divmod(q, n)
        tags = [('w', q), ('x', s)]
        if q % 2 == 0 and q + 1 < total: tags += [('w', q + 1), ('x', (q + 1)//n)]
        wait_lg(tags)
        buf = []; qa = q + D
        if qa < total:
            if qa % n == 0: buf.append("s_barrier"); xreads(qa // n, buf)
            wreads(qa, buf)
        U = units[u]; r = ring + 4*(q % R); half = (len(buf) + 1)//2
        for m in range(2):
            acc = vr(U.acc + 4*m)
            e(f"v_mfma_f32_16x16x32_bf16 {acc}, {vr(r)}, {vr(xreg + 8*(s % 2) + 4*m)}, {acc}")
            for b in (buf[:half] if m == 0 else buf[half:]): e(b)

def gelu_pack(e, jobs, T, C1):
    for i in range(0, len(jobs), 4):
        grp = jobs[i:i+4]
        for k, (s, d) in enumerate(grp): e(f"v_pk_mul_f32 {vr(T+2*k,2)}, {vr(s,2)}, {vr(s,2)}")
        for k, (s, d) in enumerate(grp): e(f"v_pk_fma_f32 {vr(T+2*k,2)}, {vr(T+2*k,2)}, {sr(S_C2,2)}, {vr(C1,2)}")
        for k, (s, d) in enumerate(grp): e(f"v_pk_mul_f32 {vr(T+2*k,2)}, {vr(T+2*k,2)}, {vr(s,2)}")
        for k in range(2*len(grp)): e(f"v_exp_f32 v{T+k}, v{T+k}")
        for k, (s, d) in enumerate(grp): e(f"v_pk_add_f32 {vr(T+2*k,2)}, {vr(T+2*k,2)}, 1.0 op_sel_hi:[1,0]")
        for k in range(2*len(grp)): e(f"v_rcp_f32 v{T+k}, v{T+k}")
        for k, (s, d) in enumerate(grp): e(f"v_pk_mul_f32 {vr(T+2*k,2)}, {vr(T+2*k,2)}, {vr(s,2)}")
        for k, (s, d) in enumerate(grp): e(f"v_cvt_pk_bf16_f32 v{d}, v{T+2*k}, v{T+2*k+1}")

def softmax2(e, P, E, OUT, X):
    mx, mn = X, X + 2
    e(f"v_max3_f32 v{mx}, v{P}, v{P+1}, v{P+2}\nv_min3_f32 v{mn}, v{P}, v{P+1}, v{P+2}")
    for i in range(3, 19, 2): e(f"v_max3_f32 v{mx}, v{mx}, v{P+i}, v{P+i+1}\nv_min3_f32 v{mn}, v{mn}, v{P+i}, v{P+i+1}")
    e(f"v_max_f32 v{mx}, v{mx}, v{P+19}\nv_min_f32 v{mn}, v{mn}, v{P+19}")
    e(f"v_mul_f32 v{mx}, s{S_L}, v{mx}\nv_mul_f32 v{mn}, s{S_L}, v{mn}")
    for i in range(0, 20, 2):
        e(f"v_pk_fma_f32 {vr(E+i,2)}, {vr(P+i,2)}, {sr(S_L,2)}, {vr(mx,2)} op_sel_hi:[1,1,0] neg_lo:[0,0,1] neg_hi:[0,0,1]")
        e(f"v_pk_fma_f32 {vr(P+i,2)}, {vr(P+i,2)}, {sr(S_L,2)}, {vr(mn,2)} op_sel_hi:[1,1,0] neg_lo:[1,0,0] neg_hi:[1,0,0]")
    for i in range(20): e(f"v_exp_f32 v{E+i}, v{E+i}\nv_exp_f32 v{P+i}, v{P+i}")
    sp, sn = X + 4, X + 6
    e(f"v_pk_add_f32 {vr(sp,2)}, {vr(E,2)}, {vr(E+2,2)}\nv_pk_add_f32 {vr(sn,2)}, {vr(P,2)}, {vr(P+2,2)}")
    for i in range(4, 20, 2): e(f"v_pk_add_f32 {vr(sp,2)}, {vr(sp,2)}, {vr(E+i,2)}\nv_pk_add_f32 {vr(sn,2)}, {vr(sn,2)}, {vr(P+i,2)}")
    e(f"v_add_f32 v{sp}, v{sp}, v{sp+1}\nv_add_f32 v{sn}, v{sn}, v{sn+1}\nv_rcp_f32 v{sp}, v{sp}\nv_rcp_f32 v{sn}, v{sn}")
    for i in range(0, 20, 2): e(f"v_pk_mul_f32 {vr(E+i,2)}, {vr(E+i,2)}, {vr(sp,2)} op_sel_hi:[1,0]")
    for i in range(0, 20, 2): e(f"v_pk_mul_f32 {vr(P+i,2)}, {vr(P+i,2)}, {vr(sn,2)} op_sel_hi:[1,0]")
    for i in range(10): e(f"v_cvt_pk_bf16_f32 v{OUT+i}, v{E+2*i}, v{E+2*i+1}")
    for i in range(10): e(f"v_cvt_pk_bf16_f32 v{OUT+10+i}, v{P+2*i}, v{P+2*i+1}")

def gen(diag=False, D=5, rot=(10, 20, 5, 5), PB=4, **opt):
    e = G(diag, **opt)
    e(f"; @launch grid=(256,1,1) block=(512,1,1) lds={LDS_TOTAL}")
    e(f'.amdgcn_target "amdgcn-amd-amdhsa--gfx950"\n.text\n.globl {NAME}\n.p2align 8\n.type {NAME},@function\n{NAME}:')
    if diag: e("s_memtime s[80:81]\ns_memrealtime s[100:101]")
    e("s_cmp_ge_u32 s2, 256\ns_cbranch_scc1 L_end")
    e("s_load_dwordx16 s[16:31], s[0:1], 0\ns_load_dwordx8 s[32:39], s[0:1], 64\ns_load_dwordx2 s[40:41], s[0:1], 96")
    e(f"v_lshrrev_b32 v1, 6, v0\nv_and_b32 v0, 63, v0")
    e(f"s_and_b32 s70, s2, 7\ns_lshr_b32 s71, s2, 3")
    e(f"v_readfirstlane_b32 s{S_WAVE}, v1")
    e(f"s_and_b32 s72, s70, 1\ns_and_b32 s73, s71, 7\ns_lshl_b32 s74, s72, 3\ns_add_u32 s{S_RB}, s74, s73")
    e(f"s_lshr_b32 s{S_ISQ}, s70, 2\ns_lshr_b32 s74, s70, 1\ns_lshr_b32 s75, s71, 3")
    e(f"s_and_b32 s76, s74, 1\ns_lshl_b32 s76, s76, 2\ns_add_u32 s{S_J}, s76, s75")
    a, b, c, d = rot
    e(f"s_mul_i32 s76, s73, {a}\ns_mul_i32 s77, s75, {b}\ns_add_u32 s76, s76, s77\ns_mul_i32 s77, s74, {c}\ns_add_u32 s76, s76, s77\ns_mul_i32 s77, s72, {d}\ns_add_u32 s76, s76, s77\ns_lshr_b32 s76, s76, 3")
    e(f"s_mul_i32 s77, s76, 6554\ns_lshr_b32 s77, s77, 16\ns_mul_i32 s77, s77, 10\ns_sub_u32 s{S_PH}, s76, s77")
    e(f"s_and_b32 s{S_WV}, s{S_WAVE}, 3")
    e(f"s_cmp_lt_u32 s{S_WAVE}, 4\ns_cbranch_scc1 L_C")
    m_wave(e, PB)
    e("L_C:")
    c_wave(e, D)
    e("L_end:\ns_endpgm")
    e(f""".section .rodata,"a"
.p2align 6
.amdhsa_kernel {NAME}
  .amdhsa_next_free_vgpr 256
  .amdhsa_next_free_sgpr 102
  .amdhsa_accum_offset 256
  .amdhsa_group_segment_fixed_size 0
  .amdhsa_kernarg_size 104
  .amdhsa_user_sgpr_count 2
  .amdhsa_user_sgpr_kernarg_segment_ptr 1
  .amdhsa_system_sgpr_workgroup_id_x 1
.end_amdhsa_kernel""")
    txt, n = hazard.fix("\n".join(e.L), opt.get('verbose', False))
    return txt + "\n"

def m_wave(e, PB):
    VX = [16, 17]; VB = [18, 20, 22, 24]; VS = [26, 27, 28, 29]; VA = [30, 32, 34, 36]
    e(f"v_lshrrev_b32 v2, 3, v0\ns_lshl_b32 s76, s{S_WV}, 4\nv_add_u32 v2, s76, v2")
    e(f"v_lshrrev_b32 v3, 4, v0\nv_xor_b32 v3, v3, v0\nv_and_b32 v3, 7, v3\nv_lshlrev_b32 v3, 4, v3")
    e(f"v_mul_u32_u24 v2, 1280, v2\nv_add_u32 v{VX[0]}, v2, v3")
    e(f"v_xor_b32 v3, 64, v3\nv_add_u32 v2, {8*1280-1024}, v2\nv_add_u32 v{VX[1]}, v2, v3")
    e(f"s_mul_i32 s{S_XOFF}, s{S_RB}, {128*1280}\ns_lshl_b32 s{S_M0X}, s{S_WV}, 11\ns_add_u32 s{S_M0X}, s{S_M0X}, {XBASE}\ns_lshl_b32 s{S_M0W}, s{S_WV}, 12")
    e(f"s_lshl_b32 s{S_XK}, s{S_PH}, 7\ns_lshl_b32 s{S_KK}, s{S_PH}, 1")
    e(f"s_and_b32 s76, s70, 3\ns_lshl_b32 s76, s76, 3\ns_add_u32 s{S_R64}, s76, s73\ns_lshl_b32 s76, s{S_ISQ}, 2\ns_add_u32 s{S_CB}, s76, s75")
    e(f"s_mul_i32 s7, s73, 7\ns_mul_i32 s76, s75, 14\ns_add_u32 s7, s7, s76\ns_lshr_b32 s7, s7, 2")
    e(f"s_lshr_b32 s76, s{S_WV}, 1\ns_lshl_b32 s76, s76, 4\ns_and_b32 s77, s{S_WV}, 1\ns_lshl_b32 s77, s77, 2\ns_add_u32 s78, s76, s77")
    def krow(dst, rho):
        e(f"v_and_b32 v{dst}, 4, v{rho}\nv_add3_u32 v{dst}, v{dst}, v{rho}, s78")
    def panel(dst, ci0, colreg, kv):
        e(f"v_add_u32 v2, {ci0}, v0\nv_mul_u32_u24 v3, 6554, v2\nv_lshrrev_b32 v3, 16, v3\nv_mul_u32_u24 v4, 10, v3\nv_sub_u32 v4, v2, v4")
        if kv: e(f"v_lshrrev_b32 v6, 3, v3\nv_and_b32 v3, 7, v3\nv_mul_u32_u24 v6, 1280, v6\nv_lshl_add_u32 v4, v4, 4, v6")
        else: e(f"v_lshlrev_b32 v4, 4, v4")
        krow(5, 3)
        e(f"v_mul_u32_u24 v5, 3840, v5\nv_add3_u32 v{dst}, v5, v4, s{colreg}")
    def h160(dst, hi0):
        e(f"v_add_u32 v2, {hi0}, v0\nv_min_i32 v2, 159, v2\nv_max_i32 v2, 0, v2\nv_mul_u32_u24 v3, 3277, v2\nv_lshrrev_b32 v3, 16, v3\nv_mul_u32_u24 v4, 20, v3\nv_sub_u32 v4, v2, v4")
        e(f"v_lshrrev_b32 v6, 1, v3\nv_and_b32 v6, 2, v6\nv_xor_b32 v4, v4, v6\nv_min_u32 v4, s77, v4\nv_lshlrev_b32 v4, 4, v4")
        krow(5, 3)
        e(f"v_mul_u32_u24 v5, 3456, v5\nv_add3_u32 v{dst}, v5, v4, s76")
    def addptr(b, off, plo, phi):
        if b: e(f"v_subrev_u32 v{off}, {1024*b}, v{off}\nv_ashrrev_i32 v7, 31, v{off}")
        else: e(f"v_mov_b32 v7, 0")
        e(f"v_add_co_u32 v{VB[b]}, vcc, {plo}, v{off}")
        if phi.startswith('s'): e(f"v_mov_b32 v6, {phi}"); phi = "v6"
        e(f"v_addc_co_u32 v{VB[b]+1}, vcc, {phi}, v7, vcc")
    vm = []
    def emit(lst):
        for tag, txt in lst: e(txt); vm.append(tag)
    def wait_vm(pred):
        idx = max([i for i, t in enumerate(vm) if pred(t)], default=-1)
        if idx >= 0: e(f"s_waitcnt vmcnt({len(vm)-1-idx})"); del vm[:idx+1]
    def dma_w(step):
        pre = "".join(f"v_mad_u64_u32 {vr(VA[b],2)}, vcc, v{VS[b]}, s{S_KK}, {vr(VB[b],2)}\n" for b in range(4))
        pre += f"s_add_u32 m0, s{S_M0W}, {(step % NW)*WSLOT}\ns_add_u32 s{S_KK}, s{S_KK}, 1\ns_cmp_eq_u32 s{S_KK}, 20\ns_cmov_b32 s{S_KK}, 0\n"
        return [(('w', step), (pre if b == 0 else "") + f"global_load_lds_dwordx4 {vr(VA[b],2)}, off offset:{1024*b}") for b in range(4)]
    def dma_x(X, h):
        pre = f"s_add_u32 s76, s{S_XK}, {h*81920}\ns_add_u32 m0, s{S_M0X}, {(X % NX)*XSLOT + h*8192}\ns_add_u32 s76, s76, s{S_XOFF}\n"
        post = f"\ns_add_u32 s{S_XK}, s{S_XK}, 128\ns_cmp_eq_u32 s{S_XK}, 1280\ns_cmov_b32 s{S_XK}, 0" if h else ""
        return [(('x', X), pre + f"buffer_load_dwordx4 v{VX[0]}, {sr(SRD_X)}, s76 offen lds"),
                (('x', X), f"buffer_load_dwordx4 v{VX[1]}, {sr(SRD_X)}, s76 offen offset:1024 lds" + post)]
    O = [8, 9, 10, 11, 12]
    e(f"s_cmp_eq_u32 s{S_ISQ}, 1\ns_cbranch_scc1 L_MQ")
    e(f"s_mul_i32 s76, s{S_J}, 160\ns_add_u32 s76, s76, 1280")
    panel(O[0], 0, 76, True); panel(O[1], 64, 76, True); panel(O[2], 128, 76, True)
    e(f"v_lshrrev_b32 v3, 3, v0\nv_and_b32 v4, 6, v3\nv_xor_b32 v4, v4, v0\nv_and_b32 v4, 7, v4\nv_lshlrev_b32 v4, 4, v4\ns_lshl_b32 s76, s{S_J}, 7")
    krow(5, 3)
    e(f"v_mul_u32_u24 v5, 3456, v5\nv_add3_u32 v{O[3]}, v5, v4, s76")
    e(f"v_subrev_u32 v2, 32, v0\nv_min_u32 v2, 3, v2\nv_lshlrev_b32 v2, 4, v2\nv_cmp_gt_u32 s[74:75], 32, v0")
    e(f"v_mov_b32 v{VS[0]}, {32*3840}\nv_mov_b32 v{VS[1]}, {32*3840}\nv_mov_b32 v{VS[3]}, {32*3456}\nv_cndmask_b32 v{O[2]}, v2, v{O[2]}, s[74:75]\nv_cndmask_b32 v{VS[2]}, 64, v{VS[0]}, s[74:75]")
    e("s_waitcnt lgkmcnt(0)")
    e.srd(SRD_X, S_X, 2048*1280)
    for t, x in dma_x(0, 0) + dma_x(0, 1): e(x)
    addptr(0, O[0], f"s{S_WQKV}", f"s{S_WQKV+1}"); addptr(1, O[1], f"s{S_WQKV}", f"s{S_WQKV+1}"); addptr(3, O[3], f"s{S_W1}", f"s{S_W1+1}")
    e(f"v_mov_b32 v2, s{S_GATE}\nv_mov_b32 v3, s{S_WQKV}\nv_cndmask_b32 v2, v2, v3, s[74:75]\nv_mov_b32 v3, s{S_GATE+1}\nv_mov_b32 v4, s{S_WQKV+1}\nv_cndmask_b32 v3, v3, v4, s[74:75]")
    addptr(2, O[2], "v2", "v3")
    e("s_branch L_Mgo\nL_MQ:")
    e(f"s_mul_i32 s79, s{S_J}, 160\ns_mul_i32 s76, s{S_J}, 320\ns_add_u32 s76, s76, 1024\ns_cmp_eq_u32 s{S_J}, 7\ns_cselect_b32 s77, 11, 19")
    panel(O[0], 0, 79, False); panel(O[1], 64, 79, False); h160(O[4], -16); h160(O[2], 48); h160(O[3], 112)
    e(f"v_cmp_gt_u32 s[74:75], 16, v0\nv_mov_b32 v{VS[0]}, {32*3840}\nv_mov_b32 v{VS[2]}, {32*3456}\nv_mov_b32 v{VS[3]}, {32*3456}")
    e(f"v_cndmask_b32 v{O[1]}, v{O[4]}, v{O[1]}, s[74:75]\nv_cndmask_b32 v{VS[1]}, v{VS[2]}, v{VS[0]}, s[74:75]")
    e("s_waitcnt lgkmcnt(0)")
    e.srd(SRD_X, S_X, 2048*1280)
    emit(dma_x(0, 0) + dma_x(0, 1))
    addptr(0, O[0], f"s{S_WQKV}", f"s{S_WQKV+1}"); addptr(2, O[2], f"s{S_W1}", f"s{S_W1+1}"); addptr(3, O[3], f"s{S_W1}", f"s{S_W1+1}")
    e(f"v_mov_b32 v2, s{S_W1}\nv_mov_b32 v3, s{S_WQKV}\nv_cndmask_b32 v2, v2, v3, s[74:75]\nv_mov_b32 v3, s{S_W1+1}\nv_mov_b32 v4, s{S_WQKV+1}\nv_cndmask_b32 v3, v3, v4, s[74:75]")
    addptr(1, O[1], "v2", "v3")
    e("L_Mgo:")
    emit(dma_w(0))
    e.stamp(1)
    e("s_barrier"); emit(dma_w(1))
    e("s_barrier"); emit(dma_x(1, 0) + dma_x(1, 1)); emit(dma_w(2))
    e("s_barrier"); emit(dma_w(3))
    e.srd(SRD_WS, S_WS, WS_SIZE); e.srd(SRD_D, S_DBG, 256)
    VZ, VL16 = 1, 15
    e(f"v_mov_b32 v{VZ}, 0\nv_lshlrev_b32 v{VL16}, 4, v0")
    VJ = [38, 39, 40, 41, 42]; VJR = 43
    e(f"s_lshl_b32 s70, s{S_WV}, 8\ns_add_u32 s70, s70, s2\ns_lshr_b32 s71, s70, 3\ns_and_b32 s72, s70, 7")
    e(f"s_sub_u32 s76, s71, 54\ns_mul_i32 s77, s76, 6554\ns_lshr_b32 s77, s77, 15\ns_mul_i32 s78, s77, 5\ns_sub_u32 s78, s76, s78")
    e(f"s_mul_i32 s73, s77, 160\ns_lshr_b32 s76, s78, 1\ns_mul_i32 s76, s76, 80\ns_and_b32 s79, s78, 1\ns_lshl_b32 s79, s79, 3\ns_add_u32 s76, s76, s79")
    e(f"s_cmp_eq_u32 s78, 4\ns_cselect_b32 s76, 16, s76\ns_cselect_b32 s75, 80, 4\ns_add_u32 s73, s73, s76\ns_mov_b32 s74, 20")
    e(f"s_lshl_b32 s76, s71, 5\ns_cmp_lt_u32 s71, 54\ns_cselect_b32 s73, s76, s73\ns_cselect_b32 s74, 4, s74\ns_cselect_b32 s75, 16, s75")
    e(f"s_cselect_b32 s{SRD_T}, s{S_W2}, s{S_WO}\ns_cselect_b32 s{SRD_T+1}, s{S_W2+1}, s{S_WO+1}\ns_mov_b32 s{SRD_T+2}, {640*1280}\ns_cmov_b32 s{SRD_T+2}, {1728*1280}\ns_mov_b32 s{SRD_T+3}, 0x20000")
    e(f"s_mul_i32 s12, s73, 1280\ns_mul_i32 s76, s72, 160\ns_add_u32 s12, s12, s76")
    e(f"s_mul_i32 s13, s72, 74\ns_add_u32 s13, s13, s71\ns_mul_i32 s13, s13, 5120\ns_add_u32 s13, s13, {WS_WF}")
    e(f"s_lshl_b32 s14, s72, 7\ns_add_u32 s14, s14, {WS_FL + FL_W*128}")
    e(f"s_cmp_lt_u32 s70, 592\ns_cselect_b32 s15, 1, 0\ns_cselect_b32 s12, s12, {OOB}")
    e(f"s_mul_i32 s3, s{S_WV}, 5120\ns_add_u32 s3, s3, {STG012}\ns_cmp_eq_u32 s{S_WV}, 3\ns_cmov_b32 s3, {STG3}")
    for i in range(5):
        e(f"v_add_u32 v2, {64*i}, v0\nv_mul_u32_u24 v3, 6554, v2\nv_lshrrev_b32 v3, 16, v3\nv_mul_u32_u24 v4, 10, v3\nv_sub_u32 v4, v2, v4")
        e(f"v_bfe_u32 v5, v3, 2, 2\nv_mul_u32_u24 v5, s74, v5\nv_lshrrev_b32 v6, 4, v3\nv_mul_u32_u24 v6, s75, v6\nv_and_b32 v3, 3, v3\nv_add3_u32 v3, v3, v5, v6")
        e(f"v_mul_u32_u24 v3, 1280, v3\nv_lshl_add_u32 v{VJ[i]}, v4, 4, v3")
    e(f"v_lshrrev_b32 v2, 2, v0\nv_mul_u32_u24 v2, 160, v2\nv_and_b32 v3, 3, v0\nv_mul_u32_u24 v3, 40, v3\nv_add3_u32 v{VJR}, v2, v3, s3")
    VP = 14
    for s in range(NSTEP):
        wait_vm(lambda t: t == ('w', s) or t == ('x', s//2) or (s == 19 and t[0] in ('phi', 'init')))
        if s == 19:
            e.poll(SRD_D, "0", NINIT, VZ, VP, first_loaded=True)
        e("s_barrier")
        if s == 0: e.stamp(2)
        X = s//2 + 2
        if X < NSTEP//2: emit(dma_x(X, s % 2))
        if s + 4 < NSTEP: emit(dma_w(s + 4))
        if s == 15:
            txt = (f"s_mul_i32 s76, s{S_J}, 3200\ns_lshl_b32 s77, s{S_WV}, 10\ns_add_u32 m0, s77, {WPHI_LDS}\ns_add_u32 s76, s76, s77\ns_add_u32 s76, s76, s{S_WPHI}\ns_addc_u32 s77, s{S_WPHI+1}, 0\n"
                   f"s_cmp_eq_u32 s{S_WV}, 3\ns_mov_b32 s78, 1008\ns_cmov_b32 s78, 112\nv_min_u32 v2, s78, v{VL16}\nglobal_load_lds_dwordx4 v2, s[76:77]")
            emit([(('phi',), txt)])
        if s == 16:
            emit([(('init',), f"buffer_load_dword v{VP}, v{VZ}, {sr(SRD_D)}, 0 offen sc1")])
            for i in range(5):
                emit([(('job',), f"s_add_u32 m0, s3, {1024*i}\ns_nop 0\nbuffer_load_dwordx4 v{VJ[i]}, {sr(SRD_T)}, s12 offen lds")])
    e.stamp(3)
    JF = 48
    Lskip = e.lab("L_nojob")
    e(f"s_waitcnt vmcnt(0)\ns_cmp_eq_u32 s15, 0\ns_cbranch_scc1 {Lskip}")
    for u in range(5):
        e(f"ds_read_b64_tr_b16 {vr(JF+4*u,2)}, v{VJR} offset:{8*u}\nds_read_b64_tr_b16 {vr(JF+4*u+2,2)}, v{VJR} offset:{8*u + 2560}")
    e(f"v_add_u32 v2, 4096, v{VL16}")
    for u in range(5):
        e(f"s_waitcnt lgkmcnt({8-2*u})")
        if u < 4: e(f"buffer_store_dwordx4 {vr(JF+4*u)}, v{VL16}, {sr(SRD_WS)}, s13 offen offset:{1024*u} sc1")
        else: e(f"buffer_store_dwordx4 {vr(JF+4*u)}, v2, {sr(SRD_WS)}, s13 offen sc1")
    e(f"v_mov_b32 v3, 1\ns_waitcnt vmcnt(0)\ns_mov_b64 exec, 1\nbuffer_atomic_add v3, v{VZ}, {sr(SRD_WS)}, s14 offen sc1\ns_mov_b64 exec, -1\n{Lskip}:")
    p3(e, PB, VZ, VL16)

def p3(e, PB, VZ, VL16):
    ACC = 176; POOL = 16; NPOOL = 40
    VL2, VG, VP = 13, 2, 14
    VGS = [2, 4, 6, 8]
    acc = lambda u, t: ACC + 16*u + 4*t
    e(f"v_add_u32 v{VL2}, 4096, v{VL16}")
    e.srd(SRD_T, S_B2, 1280)
    e(f"v_lshrrev_b32 v10, 4, v0\nv_mul_u32_u24 v10, 40, v10\ns_mul_i32 s70, s{S_CB}, 160\ns_cmp_eq_u32 s{S_WV}, 0\ns_cselect_b32 s70, s70, {OOB}")
    e(f"buffer_load_dwordx4 {vr(POOL)}, v10, {sr(SRD_T)}, s70 offen\nbuffer_load_dwordx4 {vr(POOL+4)}, v10, {sr(SRD_T)}, s70 offen offset:16\nbuffer_load_dwordx2 {vr(POOL+8,2)}, v10, {sr(SRD_T)}, s70 offen offset:32")
    e(f"s_cmp_ge_u32 s{S_WV}, 2\ns_cselect_b32 s70, 13, 14\ns_mul_i32 s71, s{S_WV}, 14\ns_cmp_eq_u32 s{S_WV}, 3\ns_cmov_b32 s71, 41")
    e(f"s_cmp_ge_u32 s7, s70\ns_cselect_b32 s72, s70, 0\ns_sub_u32 s7, s7, s72")
    SA, SAE, SAS, SB, SBE, SBS = 12, 13, 14, 15, 3, 68
    e(f"s_mul_i32 s72, s{S_R64}, 54\ns_add_u32 s72, s72, s71\ns_lshl_b32 s{SAS}, s72, 12\ns_lshl_b32 s73, s70, 12\ns_add_u32 s{SAE}, s{SAS}, s73\ns_lshl_b32 s73, s7, 12\ns_add_u32 s{SA}, s{SAS}, s73")
    e(f"s_mul_i32 s72, s{S_CB}, 74\ns_add_u32 s73, s72, s71\ns_mul_i32 s73, s73, 5120\ns_add_u32 s{SBS}, s73, {WS_WF}\ns_mul_i32 s73, s70, 5120\ns_add_u32 s{SBE}, s{SBS}, s73\ns_mul_i32 s73, s7, 5120\ns_add_u32 s{SB}, s{SBS}, s73")
    SOB, SOA = 69, 4
    e(f"s_mul_i32 s73, s{S_WV}, 5\ns_add_u32 s73, s73, s72\ns_add_u32 s73, s73, 54\ns_mul_i32 s73, s73, 5120\ns_add_u32 s{SOB}, s73, {WS_WF}")
    e(f"s_lshl_b32 s73, s{S_R64}, 3\ns_lshl_b32 s74, s{S_WV}, 1\ns_add_u32 s73, s73, s74\ns_mul_i32 s73, s73, 10240\ns_add_u32 s{SOA}, s73, {WS_OF}")
    e(f"s_lshr_b32 s73, s{S_R64}, 1\ns_lshl_b32 s73, s73, 7\ns_add_u32 s5, s73, {WS_FL + FL_H*128}\ns_add_u32 s6, s73, {WS_FL + FL_O*128}")
    e(f"s_lshl_b32 s73, s{S_CB}, 7\ns_add_u32 s74, s73, {WS_FL + FL_W*128}")
    e("s_waitcnt vmcnt(0)")
    for i in range(10):
        u, r = divmod(2*i, 4)
        e(f"v_lshlrev_b32 v{acc(u,0)+r}, 16, v{POOL+i}\nv_and_b32 v{acc(u,0)+r+1}, 0xffff0000, v{POOL+i}")
    for u in range(5):
        for t in range(1, 4):
            for r in range(0, 4, 2): e(f"v_pk_mul_f32 {vr(acc(u,t)+r,2)}, {vr(acc(u,0)+r,2)}, 1.0 op_sel_hi:[1,0]")
    e.stamp(4)
    e.poll(SRD_WS, "s74", 74, VZ, VP)
    e.stamp(5)
    free = list(range(NPOOL)); frag = {}; vm = []
    NH = 14; NS = NH + 5
    def group(kind, k):
        out = []
        n = 4 if kind == 'A' else 5
        for i in range(n):
            sl = free.pop(0); frag[(kind, k, i)] = POOL + 4*sl; d = vr(POOL + 4*sl)
            pre = post = ""
            if kind == 'A':
                if k < NH:
                    so = f"s{SA}"
                    if k == NH - 1 and i == 0: pre = f"s_cmp_ge_u32 s{S_WV}, 2\ns_cmov_b32 s{SA}, {OOB}\n"
                    if i == 3: post = f"\ns_add_u32 s{SA}, s{SA}, 4096\ns_cmp_eq_u32 s{SA}, s{SAE}\ns_cmov_b32 s{SA}, s{SAS}"
                    txt = f"buffer_load_dwordx4 {d}, v{VL16}, {sr(SRD_WS)}, {so} offen offset:{1024*i} sc1"
                else:
                    kk = k - NH
                    if kk < 4:
                        if i == 0: pre = f"s_add_u32 s70, s{SOA}, {(kk >> 1)*10240 + (kk & 1)*4096}\n"
                        txt = f"buffer_load_dwordx4 {d}, v{VL16}, {sr(SRD_WS)}, s70 offen offset:{1024*i} sc1"
                    else:
                        p, ee = i >> 1, i & 1
                        pre = f"s_add_u32 s70, s{SOA}, {ee*10240 + 8192}\n"
                        txt = f"buffer_load_dwordx4 {d}, v{VL16}, {sr(SRD_WS)}, s70 offen offset:{1024*p} sc1"
            else:
                if k < NH:
                    so = f"s{SB}"
                    if k == NH - 1 and i == 0: pre = f"s_cmp_ge_u32 s{S_WV}, 2\ns_cmov_b32 s{SB}, {OOB}\n"
                    if i == 4: post = f"\ns_add_u32 s{SB}, s{SB}, 5120\ns_cmp_eq_u32 s{SB}, s{SBE}\ns_cmov_b32 s{SB}, s{SBS}"
                else:
                    so = f"s{SOB}"
                    if i == 4: post = f"\ns_add_u32 s{SOB}, s{SOB}, 5120"
                txt = (f"buffer_load_dwordx4 {d}, v{VL16}, {sr(SRD_WS)}, {so} offen offset:{1024*i} sc1" if i < 4 else
                       f"buffer_load_dwordx4 {d}, v{VL2}, {sr(SRD_WS)}, {so} offen sc1")
            out.append(((kind, k), pre + txt + post))
        return out
    def emit1(item): e(item[1]); vm.append(item[0])
    for k in range(PB):
        for it in group('B', k): emit1(it)
    e.poll(SRD_WS, "s5", 16, VZ, VP); vm.clear()
    e.stamp(6)
    e(f"v_and_b32 v10, 15, v0\nv_lshlrev_b32 v10, 2, v10\ns_lshl_b32 s70, s{S_R64}, 8\ns_add_u32 s70, s70, {WS_G}")
    order = []
    for k in range(NS):
        order.append(('A', k))
        if k >= PB: order.append(('B', k))
    pend = []; oi = 0; polled = False; gdone = False
    LOOK = e.opt.get('look', 2)
    def refill(cur):
        nonlocal oi
        while oi < len(order):
            kind, k = order[oi]
            if k > cur + LOOK and not (kind == 'B'):
                break
            if k > cur + LOOK + 3: break
            if kind == 'A' and k >= NH and not polled:
                j = oi + 1
                while j < len(order) and order[j][0] == 'A': j += 1
                if j < len(order) and len(free) >= 5 + 8:
                    order.insert(oi, order.pop(j)); continue
                break
            if len(free) < (4 if kind == 'A' else 5): break
            pend.extend(group(kind, k)); oi += 1
    refill(-1)
    for it in pend: emit1(it)
    pend.clear()
    for t in range(4): emit1((('g',), f"buffer_load_dword v{VGS[t]}, v10, {sr(SRD_WS)}, s70 offen offset:{64*t} sc1"))
    for k in range(NS):
        if k == NH - 1:
            idx = vm.index(('op',)); e(f"s_waitcnt vmcnt({len(vm)-1-idx})"); del vm[:idx+1]
            e.stamp(7)
            e.poll(SRD_WS, "s6", 8, VZ, VP, first_loaded=True)
            e.stamp(8)
            polled = True
        if k == NH:
            for t in range(4): e(f"v_sub_f32 v{VGS[t]}, 1.0, v{VGS[t]}")
            for t in range(4):
                for u in range(5):
                    for r in (0, 2): e(f"v_pk_mul_f32 {vr(acc(u,t)+r,2)}, {vr(acc(u,t)+r,2)}, {vr(VGS[t],2)} op_sel_hi:[1,0]")
        refill(k)
        idx = max([i for i, t in enumerate(vm) if t in (('A', k), ('B', k), ('g',))], default=-1)
        assert all(it[0] not in (('A', k), ('B', k)) for it in pend) or True
        while any(it[0] in (('A', k), ('B', k)) for it in pend): emit1(pend.pop(0))
        idx = max([i for i, t in enumerate(vm) if t in (('A', k), ('B', k)) or (k == NH - 2 and t == ('g',))], default=-1)
        if idx >= 0: e(f"s_waitcnt vmcnt({len(vm)-1-idx})"); del vm[:idx+1]
        if k == NS - 1:
            for p in range(2):
                X, Y = frag[('A', k, 2*p)], frag[('A', k, 2*p+1)]
                e(f"v_swap_b32 v{X+2}, v{Y}\nv_swap_b32 v{X+3}, v{Y+1}")
        cnt = 0
        for t in range(4):
            for u in range(5):
                e(f"v_mfma_f32_16x16x32_bf16 {vr(acc(u,t))}, {vr(frag[('B',k,u)])}, {vr(frag[('A',k,t)])}, {vr(acc(u,t))}")
                cnt += 1
                if cnt % 2 == 0 and pend: emit1(pend.pop(0))
        while pend: emit1(pend.pop(0))
        for i in range(4): free.append((frag[('A', k, i)] - POOL)//4)
        for i in range(5): free.append((frag[('B', k, i)] - POOL)//4)
        if not polled and ('op',) not in vm and all(not (kind == 'A' and kk < NH) for kind, kk in order[oi:]):
            emit1((('op',), f"buffer_load_dword v{VP}, v{VZ}, {sr(SRD_WS)}, s6 offen sc1"))
    assert oi == len(order)
    e.srd(SRD_T, S_OUT, 2048*1280)
    e(f"s_mul_i32 s70, s{S_WV}, 5120\nv_add_u32 v10, s70, v{VL16}\ns_mul_i32 s70, s{S_WV}, 20480\nv_add_u32 v11, s70, v{VL16}\nv_add_u32 v12, 40960, v10")
    e("s_barrier")
    e.dsbatch([f"ds_write_b128 v{10 if t < 2 else 12}, {vr(acc(u,t))} offset:{RED + (t % 2)*20480 + u*1024}" for t in range(4) for u in range(5)])
    e(f"v_and_b32 v2, 15, v0\nv_mul_u32_u24 v2, 1280, v2\nv_lshrrev_b32 v3, 4, v0\nv_mul_u32_u24 v3, 40, v3\nv_add_u32 v2, v2, v3")
    e(f"s_lshl_b32 s70, s{S_R64}, 2\ns_add_u32 s70, s70, s{S_WV}\ns_mul_i32 s70, s70, {16*1280}\ns_mul_i32 s71, s{S_CB}, 160\ns_add_u32 s70, s70, s71")
    e("s_waitcnt lgkmcnt(0)\ns_barrier")
    R = POOL
    e.dsbatch([f"ds_read_b128 {vr(R + 16*u + 4*sw)}, v11 offset:{RED + sw*5120 + u*1024}" for u in range(5) for sw in range(4)])
    for u in range(5):
        if u >= 1: e(f"s_waitcnt lgkmcnt({16 - 4*u})")
        b = R + 16*u
        for r in (0, 2):
            e(f"v_pk_add_f32 {vr(b+r,2)}, {vr(b+r,2)}, {vr(b+4+r,2)}\nv_pk_add_f32 {vr(b+8+r,2)}, {vr(b+8+r,2)}, {vr(b+12+r,2)}")
        for r in (0, 2): e(f"v_pk_add_f32 {vr(b+r,2)}, {vr(b+r,2)}, {vr(b+8+r,2)}")
        e(f"v_cvt_pk_bf16_f32 v{100+2*u}, v{b}, v{b+1}\nv_cvt_pk_bf16_f32 v{101+2*u}, v{b+2}, v{b+3}")
    e(f"buffer_store_dwordx4 v[100:103], v2, {sr(SRD_T)}, s70 offen\nbuffer_store_dwordx4 v[104:107], v2, {sr(SRD_T)}, s70 offen offset:16\nbuffer_store_dwordx2 v[108:109], v2, {sr(SRD_T)}, s70 offen offset:32")
    e.stamps_out()
    e("s_endpgm")

def c_wave(e, D):
    XREG = 224; RING = 192; VXA = [246, 247]; AT = [240, 241]
    VZ, VL16 = 242, 243
    e("v_lshrrev_b32 v1, 4, v0\nv_bfe_u32 v2, v0, 2, 2\nv_and_b32 v3, 3, v0")
    e("v_and_b32 v5, 1, v1\nv_lshl_add_u32 v4, v5, 2, v2\nv_lshrrev_b32 v6, 1, v1\nv_lshlrev_b32 v6, 13, v6")
    e(f"s_lshl_b32 s76, s{S_WV}, 5\nv_and_b32 v7, 15, v0\nv_add_u32 v7, s76, v7")
    e(f"v_lshrrev_b32 v128, 1, v7\nv_xor_b32 v128, v128, v1\nv_and_b32 v128, 7, v128\nv_lshlrev_b32 v128, 4, v128\nv_lshl_add_u32 v128, v7, 7, v128")
    e(f"v_add_u32 v{VXA[0]}, {XBASE}, v128\nv_xor_b32 v{VXA[1]}, 64, v{VXA[0]}")
    e(f"v_mul_u32_u24 v128, 160, v4\nv_mul_u32_u24 v129, 40, v3\nv_add3_u32 v{AT[0]}, v128, v129, v6\nv_add_u32 v{AT[1]}, {3*WSLOT}, v{AT[0]}")
    e(f"v_mov_b32 v{VZ}, 0\nv_lshlrev_b32 v{VL16}, 4, v0\nv_mov_b32 v128, 0\nv_mov_b32 v129, 0\nv_mov_b32 v130, 0\nv_mov_b32 v131, 0")
    e(f"s_lshl_b32 s76, s{S_WV}, 9\ns_add_u32 s76, s76, {ZERO_LDS}\nv_lshl_add_u32 v132, v0, 3, s76\nds_write_b64 v132, v[128:129]")
    e(f"v_lshlrev_b32 v132, 2, v0\nv_add_u32 v132, {CNT_LDS}, v132\nds_write_b32 v132, v128")
    VPH = 244
    e(f"v_mul_u32_u24 v132, 800, v3\nv_mul_u32_u24 v133, 40, v2\nv_add3_u32 v132, v132, v133, s76\nv_cmp_eq_u32 vcc, v1, v3\ns_add_u32 s77, s76, {-WPHI_LDS & 0xffffffff}")
    e(f"v_subrev_u32 v132, s77, v132\nv_mov_b32 v133, {ZERO_LDS}\nv_cndmask_b32 v{VPH}, v133, v132, vcc")
    e(f"s_mov_b32 s{S_C2}, {f2u(GC2)}\ns_mov_b32 s{S_C2+1}, {f2u(GC2)}\ns_mov_b32 s{S_L}, {f2u(LOG2E)}\ns_mov_b32 s{S_L+1}, {f2u(LOG2E)}")
    e("s_waitcnt lgkmcnt(0)")
    e.srd(SRD_WS, S_WS, WS_SIZE); e.srd(SRD_T, S_B1, 3456); e.srd(SRD_D, S_DBG, 256)
    e(f"s_lshl_b32 s76, s2, 2\ns_add_u32 s76, s76, s{S_WV}\ns_lshl_b32 s76, s76, 10\ns_add_u32 s76, s76, {WS_KV}\ns_cmp_lt_u32 s2, {NINIT}\ns_cselect_b32 s76, s76, {OOB}")
    e(f"buffer_store_dwordx4 v[128:131], v{VL16}, {sr(SRD_WS)}, s76 offen sc1")
    S_HO, S_HFL, S_KFL = 12, 13, 14
    e(f"s_lshl_b32 s76, s{S_RB}, 1\ns_lshr_b32 s77, s{S_WV}, 1\ns_add_u32 s15, s76, s77")
    e(f"s_lshl_b32 s76, s{S_RB}, 7\ns_add_u32 s{S_HFL}, s76, {WS_FL + FL_H*128}\ns_lshl_b32 s76, s{S_J}, 7\ns_add_u32 s{S_KFL}, s76, {WS_FL + FL_KV*128}")
    S_GO = 3
    e(f"s_lshl_b32 s76, s{S_J}, 13\ns_lshl_b32 s77, s{S_RB}, 9\ns_add_u32 s76, s76, s77\ns_lshl_b32 s77, s{S_WV}, 7\ns_add_u32 s76, s76, s77\ns_add_u32 s{S_GO}, s76, {WS_G}")
    def after_bar0():
        L = e.lab("L_noinit")
        e(f"s_cmp_ge_u32 s2, {NINIT}\ns_cbranch_scc1 {L}\ns_cmp_lg_u32 s{S_WV}, 0\ns_cbranch_scc1 {L}")
        e(f"s_mov_b64 exec, 1\nv_mov_b32 v128, 1\nbuffer_atomic_add v128, v{VZ}, {sr(SRD_D)}, 0 offen sc1\ns_mov_b64 exec, -1\n{L}:")
        e.stamp(2)
    def bias_init(nu, hacc, colbytes_sreg, zero_lo, zero_hi):
        e(f"v_lshlrev_b32 v132, 3, v1")
        for t in range(nu): e(f"buffer_load_dwordx2 {vr(136+2*t,2)}, v132, {sr(SRD_T)}, s{colbytes_sreg} offen offset:{32*t}")
        e("s_barrier\ns_barrier\ns_barrier")
        for i in list(range(*zero_lo)) + list(range(*zero_hi)): e(f"v_mov_b32 v{i}, 0")
        e("s_waitcnt vmcnt(0)")
        for t in range(nu):
            for m in range(2):
                a = hacc + 8*t + 4*m
                e(f"v_lshlrev_b32 v{a}, 16, v{136+2*t}\nv_and_b32 v{a+1}, 0xffff0000, v{136+2*t}\nv_lshlrev_b32 v{a+2}, 16, v{137+2*t}\nv_and_b32 v{a+3}, 0xffff0000, v{137+2*t}")
        e.stamp(1)
    C1 = 128; T = 130; PK = 140
    def gelu_steps(hacc, nsteps, skip_from=None):
        e(f"v_mov_b32 v{C1}, {f2u(GC1)}\nv_mov_b32 v{C1+1}, {f2u(GC1)}")
        Ls = e.lab("L_hskip")
        for i in range(nsteps):
            if i == skip_from: e(f"s_cmp_eq_u32 s{S_J}, 7\ns_cbranch_scc1 {Ls}")
            for m in range(2):
                d = PK + 4*((2*i + m) % 4)
                a0 = hacc + 16*i + 4*m; a1 = a0 + 8
                gelu_pack(e, [(a0, d), (a0+2, d+1), (a1, d+2), (a1+2, d+3)], T, C1)
                e(f"buffer_store_dwordx4 {vr(d)}, v{VL16}, {sr(SRD_WS)}, s{S_HO} offen offset:{1024*m} sc1")
            e(f"s_add_u32 s{S_HO}, s{S_HO}, 4096")
        e(f"{Ls}:")
    WF_ = 140
    QP = 192
    def phi_stage(P):
        e.dsbatch([f"ds_read_b64_tr_b16 {vr(WF_ + 10*tau + 2*t, 2)}, v{VPH} offset:{160*t + 8*tau}" for tau in range(5) for t in range(5)])
        for m in range(2):
            for t in range(5):
                a = 8 + 8*t + 4*m
                e(f"v_cvt_pk_bf16_f32 v{QP+10*m+2*t}, v{a}, v{a+1}\nv_cvt_pk_bf16_f32 v{QP+10*m+2*t+1}, v{a+2}, v{a+3}")
        e("s_waitcnt lgkmcnt(0)")
        for ks in range(3):
            for m in range(2):
                for tau in range(5):
                    d = vr(P + 20*m + 4*tau); c = "0" if ks == 0 else d
                    if ks < 2: e(f"v_mfma_f32_16x16x32_bf16 {d}, {vr(WF_+10*tau+4*ks)}, {vr(QP+10*m+4*ks)}, {c}")
                    else: e(f"v_mfma_f32_16x16x16_bf16 {d}, {vr(WF_+10*tau+8,2)}, {vr(QP+10*m+8,2)}, {c}")
    e(f"s_cmp_eq_u32 s{S_ISQ}, 1\ns_cbranch_scc1 L_CQ")
    AH = [[248, 249], [250, 251], [252, 253], [254, 255]]; AG = [190, 191]
    e("v_lshrrev_b32 v128, 1, v4\nv_lshlrev_b32 v129, 7, v4\nv_lshl_add_u32 v129, v3, 3, v129\nv_add_u32 v129, v129, v6")
    for t in range(4): e(f"v_xor_b32 v130, {t}, v128\nv_lshl_add_u32 v{AH[t][0]}, v130, 5, v129\nv_add_u32 v{AH[t][1]}, {3*WSLOT}, v{AH[t][0]}")
    e(f"v_lshlrev_b32 v{AG[0]}, 4, v1\nv_add_u32 v{AG[1]}, {3*WSLOT}, v{AG[0]}")
    e(f"s_mul_i32 s76, s15, 54\ns_lshl_b32 s77, s{S_J}, 1\ns_add_u32 s76, s76, s77\ns_lshl_b32 s76, s76, 12\ns_and_b32 s77, s{S_WV}, 1\ns_lshl_b32 s77, s77, 11\ns_add_u32 s{S_HO}, s76, s77")
    e(f"s_lshl_b32 s76, s{S_J}, 7")
    bias_init(4, 88, 76, (8, 88), (120, 128))
    c_main_loop(e, [Unit(AT, 8*t, 8 + 8*t) for t in range(5)] + [Unit(AT, 1280 + 8*t, 48 + 8*t) for t in range(5)]
                + [Unit(AH[t], 3072, 88 + 8*t) for t in range(4)] + [Unit(AG, 2560, 120, gate=True)], XREG, VXA, RING, D, after_bar0)
    e.stamp(3)
    gelu_steps(88, 2)
    for m in range(2): e(f"v_mul_f32 v{130+m}, {f2u(-LOG2E)}, v{120+4*m}")
    for m in range(2): e(f"v_exp_f32 v{130+m}, v{130+m}")
    for m in range(2): e(f"v_add_f32 v{130+m}, 1.0, v{130+m}")
    for m in range(2): e(f"v_rcp_f32 v{130+m}, v{130+m}")
    e(f"v_lshlrev_b32 v132, 2, v0\ns_mov_b64 exec, 0xffff")
    for m in range(2): e(f"buffer_store_dword v{130+m}, v132, {sr(SRD_WS)}, s{S_GO} offen offset:{64*m} sc1")
    e("s_mov_b64 exec, -1")
    e.stamp(4)
    P = 88
    phi_stage(P)
    REC = [8, 212]
    REC = [8, 140]
    EE = 192; XX = 128
    for m in range(2):
        for t in range(5):
            a = 48 + 8*t + 4*m
            e(f"v_cvt_pk_bf16_f32 v{REC[m]+20+2*t}, v{a}, v{a+1}\nv_cvt_pk_bf16_f32 v{REC[m]+21+2*t}, v{a+2}, v{a+3}")
        e(f"v_mov_b32 v{REC[m]+30}, 0x3f80\nv_mov_b32 v{REC[m]+31}, 0")
    e(f"v_and_b32 v172, 15, v0\ns_lshl_b32 s76, s{S_WV}, 5\nv_add_u32 v172, s76, v172\nv_lshlrev_b32 v172, 7, v172\nv_lshl_add_u32 v172, v1, 14, v172\nv_add_u32 v172, {EXCH}, v172\nv_and_b32 v173, 7, v0\nv_lshlrev_b32 v173, 4, v173")
    for i in range(8): e(f"v_xor_b32 v{174+i}, {16*i}, v173\nv_add_u32 v{174+i}, v{174+i}, v172")
    for m in range(2):
        softmax2(e, P + 20*m, EE, REC[m], XX)
        for i in range(8): e(f"ds_write_b128 v{174+i}, {vr(REC[m]+4*i)} offset:{2048*m}")
        if m == 0:
            e("s_waitcnt vmcnt(0)"); e.arrive(0, f"s{S_HFL}", VZ, 136, 137); e.stamp(5)
    e(f"v_lshl_add_u32 v172, v1, 2, v2\nv_and_b32 v173, 7, v172\nv_lshlrev_b32 v172, 7, v172\ns_lshl_b32 s76, s{S_WV}, 14\ns_add_u32 s76, s76, {EXCH}\nv_and_b32 v174, 1, v3\nv_lshl_add_u32 v172, v174, 3, v172\nv_add_u32 v172, s76, v172\nv_lshrrev_b32 v174, 1, v3")
    for i, c0 in enumerate([0, 2, 4, 5]): e(f"v_add_u32 v{176+i}, {c0}, v174\nv_xor_b32 v{176+i}, v{176+i}, v173\nv_lshl_add_u32 v{176+i}, v{176+i}, 4, v172")
    e(f"v_xor_b32 v180, 7, v173\nv_lshl_add_u32 v180, v180, 4, v172")
    e.lsync(1, 136, 137)
    e.stamp(6)
    FR = 8
    e.dsbatch([f"ds_read_b64_tr_b16 {vr(FR + 20*st + 4*i + 2*h, 2)}, v{176+i} offset:{4096*st + 2048*h}" for st in range(4) for i in range(5) for h in range(2)])
    KD = 88
    for st in range(4):
        if st >= 2: e(f"s_waitcnt lgkmcnt({30 - 10*st})")
        for U in range(2):
            for Tt in range(3):
                d = vr(KD + 12*U + 4*Tt)
                e(f"v_mfma_f32_16x16x32_bf16 {d}, {vr(FR+20*st+12+4*U)}, {vr(FR+20*st+4*Tt)}, {'0' if st == 0 else d}")
    e(f"v_mul_u32_u24 v172, 768, v1\nv_and_b32 v173, 15, v0\nv_lshl_add_u32 v172, v173, 2, v172\ns_lshl_b32 s76, s{S_J}, 2\ns_add_u32 s76, s76, s{S_WV}\ns_lshl_b32 s76, s76, 12\ns_add_u32 s76, s76, {WS_KV}")
    for U in range(2):
        for r in range(4):
            if U == 1 and r == 0: e("s_mov_b32 exec_hi, 0")
            if U == 1 and r == 1: e("s_mov_b32 exec_lo, 0xffff")
            for Tt in range(3): e(f"buffer_atomic_add_f32 v{KD + 12*U + 4*Tt + r}, v172, {sr(SRD_WS)}, s76 offen offset:{3072*U + 192*r + 64*Tt}")
    e("s_mov_b64 exec, -1")
    e.stamp(7)
    e("s_waitcnt vmcnt(0)"); e.arrive(2, f"s{S_KFL}", VZ, 136, 137)
    e.stamps_out()
    e("s_endpgm")
    e("L_CQ:")
    AE, AO = [248, 249], [250, 251]
    e(f"v_mul_u32_u24 v128, 320, v4\nv_lshl_add_u32 v128, v3, 3, v128\nv_add_u32 v128, v128, v6\nv_lshlrev_b32 v129, 5, v5")
    e(f"v_add_u32 v{AE[0]}, v128, v129\nv_sub_u32 v{AO[0]}, v128, v129\nv_add_u32 v{AO[0]}, 32, v{AO[0]}\nv_add_u32 v{AE[1]}, {3*WSLOT}, v{AE[0]}\nv_add_u32 v{AO[1]}, {3*WSLOT}, v{AO[0]}")
    e(f"s_mul_i32 s76, s15, 54\ns_mul_i32 s77, s{S_J}, 5\ns_add_u32 s76, s76, s77\ns_add_u32 s76, s76, 16\ns_lshl_b32 s76, s76, 12\ns_and_b32 s77, s{S_WV}, 1\ns_lshl_b32 s77, s77, 11\ns_add_u32 s{S_HO}, s76, s77")
    e(f"s_mul_i32 s76, s{S_J}, 320\ns_add_u32 s76, s76, 1024")
    bias_init(10, 48, 76, (8, 48), (0, 0))
    c_main_loop(e, [Unit(AT, 8*t, 8 + 8*t) for t in range(5)] + [Unit(AE if t % 2 == 0 else AO, 1280 + 32*(t - t % 2), 48 + 8*t) for t in range(10)],
                XREG, VXA, RING, D, after_bar0)
    e.stamp(3)
    gelu_steps(48, 5, skip_from=3)
    e.stamp(4)
    P = 88
    phi_stage(P)
    PHI = [192, 212]
    for m in range(2):
        softmax2(e, P + 20*m, 48, PHI[m], 128)
        if m == 0:
            e("s_waitcnt vmcnt(0)"); e.arrive(0, f"s{S_HFL}", VZ, 136, 137); e.stamp(5)
    for t in range(4):
        e(f"v_add_u32 v48, {64*t}, v0\nv_min_u32 v48, 239, v48\nv_mul_u32_u24 v49, 6554, v48\nv_lshrrev_b32 v49, 16, v49\nv_mul_u32_u24 v50, 10, v49\nv_sub_u32 v50, v48, v50")
        e(f"v_mul_u32_u24 v51, 80, v49\nv_lshl_add_u32 v{56+t}, v50, 3, v51\nv_min_u32 v49, 20, v49\nv_mul_u32_u24 v49, 192, v49\nv_lshl_add_u32 v{52+t}, v50, 4, v49")
    e(f"s_mul_i32 s77, s{S_WV}, 1920\ns_add_u32 s77, s77, {KVT}")
    for t in range(4): e(f"v_add_u32 v{56+t}, s77, v{56+t}")
    e(f"v_mul_u32_u24 v48, 1920, v1\nv_mul_u32_u24 v49, 80, v3\nv_add_u32 v48, v48, v49\nv_add_u32 v48, {KVT}, v48\nv_cmp_eq_u32 vcc, v1, v2\nv_mov_b32 v49, {ZERO_LDS}\nv_cndmask_b32 v60, v49, v48, vcc")
    e(f"s_lshl_b32 s76, s{S_J}, 2\ns_add_u32 s76, s76, s{S_WV}\ns_lshl_b32 s76, s76, 12\ns_add_u32 s4, s76, {WS_KV}")
    e(f"v_and_b32 v61, 15, v0\nv_lshlrev_b32 v61, 2, v61")
    e(f"s_lshl_b32 s76, s15, 3\ns_add_u32 s76, s76, s{S_J}\ns_mul_i32 s76, s76, 10240\ns_add_u32 s76, s76, {WS_OF}\ns_and_b32 s77, s{S_WV}, 1\ns_lshl_b32 s5, s77, 11\ns_add_u32 s5, s5, s76\ns_lshl_b32 s6, s77, 10\ns_add_u32 s6, s6, s76\ns_add_u32 s6, s6, 8192\ns_add_u32 s7, s5, 4096")
    e.stamp(6)
    e.poll(SRD_WS, f"s{S_KFL}", 16, VZ, 136)
    e.stamp(7)
    for t in range(4): e(f"buffer_load_dwordx4 {vr(64+4*t)}, v{52+t}, {sr(SRD_WS)}, s4 offen sc1")
    for m in range(2): e(f"buffer_load_dword v{62+m}, v61, {sr(SRD_WS)}, s{S_GO} offen offset:{64*m} sc1")
    for t in range(4):
        e(f"s_waitcnt vmcnt({5-t})\nv_cvt_pk_bf16_f32 v{80+2*t}, v{64+4*t}, v{65+4*t}\nv_cvt_pk_bf16_f32 v{81+2*t}, v{66+4*t}, v{67+4*t}\nds_write_b64 v{56+t}, {vr(80+2*t,2)}")
    e.lsync(1, 136, 137)
    AF = 64
    seq = [5, 0, 1, 2, 3, 4]
    e.dsbatch([f"ds_read_b128 {vr(AF + 20*n_ + 4*kp)}, v60 offset:{320*u + 16*kp}" for n_, u in enumerate(seq) for kp in range(5)])
    OD = 8
    for n_, u in enumerate(seq):
        if n_ >= 3: e(f"s_waitcnt lgkmcnt({25 - 5*n_})")
        for kp in range(5):
            for m in range(2):
                d = vr(OD + 8*u + 4*m)
                e(f"v_mfma_f32_16x16x32_bf16 {d}, {vr(AF + 20*n_ + 4*kp)}, {vr(PHI[m] + 4*kp)}, {'0' if kp == 0 else d}")
        if n_ == 2:
            e("s_waitcnt vmcnt(0)")
            for m in range(2): e(f"v_add_f32 v{56+2*m}, {f2u(1e-6)}, v{OD+40+4*m}")
            for m in range(2): e(f"v_rcp_f32 v{56+2*m}, v{56+2*m}")
            for m in range(2): e(f"v_mul_f32 v{56+2*m}, v{56+2*m}, v{62+m}")
    OP = 140
    for u in range(5):
        for m in range(2):
            a = OD + 8*u + 4*m
            e(f"v_pk_mul_f32 {vr(a,2)}, {vr(a,2)}, {vr(56+2*m,2)} op_sel_hi:[1,0]\nv_pk_mul_f32 {vr(a+2,2)}, {vr(a+2,2)}, {vr(56+2*m,2)} op_sel_hi:[1,0]")
            d = OP + 8*m + 2*u if u < 4 else OP + 16 + 2*m
            e(f"v_cvt_pk_bf16_f32 v{d}, v{a}, v{a+1}\nv_cvt_pk_bf16_f32 v{d+1}, v{a+2}, v{a+3}")
    for m in range(2):
        e(f"buffer_store_dwordx4 {vr(OP+8*m)}, v{VL16}, {sr(SRD_WS)}, s5 offen offset:{1024*m} sc1\nbuffer_store_dwordx4 {vr(OP+8*m+4)}, v{VL16}, {sr(SRD_WS)}, s7 offen offset:{1024*m} sc1")
    e(f"buffer_store_dwordx4 {vr(OP+16)}, v{VL16}, {sr(SRD_WS)}, s6 offen sc1")
    e(f"s_lshl_b32 s76, s{S_RB}, 7\ns_add_u32 s4, s76, {WS_FL + FL_O*128}")
    e.stamp(8)
    e("s_waitcnt vmcnt(0)"); e.arrive(2, "s4", VZ, 136, 137)
    e.stamps_out()

HEADER = open("gated_mix__linear_kernel_hedgehog__dense_activation_gelu__prompt.s.ref").read().split("; Override launch")[0] if __name__ == "__main__" else ""
if __name__ == "__main__":
    import ast
    kw = ast.literal_eval(sys.argv[2]) if len(sys.argv) > 2 else {}
    open(sys.argv[1], "w").write(HEADER + gen(**kw))
```

```python
import sys
import hazard

NAME = "gated_mix__linear_kernel_hedgehog__dense_activation_gelu__prompt_kernel"
WSLOT = 16384; NW = 5; XBASE = NW*WSLOT; XSLOT = 16384; NX = 3; NSTEP = 20
SPARE = XBASE + NX*XSLOT
ZERO_LDS = SPARE; CNT_LDS = SPARE + 2048; WPHI_LDS = SPARE + 2304; KVT = WPHI_LDS; STG = WPHI_LDS + 8192
EXCH_H3 = XBASE + 2*XSLOT; PARK = 3*WSLOT
assert STG + 4*5120 <= 163840
LDS_TOTAL = 163840
WS_HF = 0; WS_OF = 0x700000; WS_WF = 0xA00000; WS_G = 0xD00000; WS_KV = 0xE00000; WS_FL = 0xE20000; WS_KP = 0x1000000
WS_SIZE = 0x1400000; WS_STAMP = 0x2000000
FL_H, FL_HK, FL_O, FL_KV, FL_KP, FL_W = 0, 256, 512, 768, 896, 1024
NINIT = 5
OOB = 0x40000000
S_X, S_WQKV, S_WPHI, S_WO, S_BX, S_W1, S_B1, S_W2 = 16, 18, 20, 22, 24, 26, 28, 30
S_B2, S_GATE, S_OUT, S_DBG, S_WS = 32, 34, 36, 38, 40
SRD_X, SRD_WS, SRD_T, SRD_D = 44, 48, 52, 56
S_RB, S_J, S_ISQ, S_WAVE, S_PH, S_WV, S_R64, S_CB = 60, 61, 62, 63, 64, 65, 66, 67
S_KK, S_XK, S_XOFF, S_M0X, S_M0W = 68, 69, 4, 5, 6
S_C2, S_L = 8, 10
LOG2E = 1.4426950408889634
import struct, math
def f2u(x): return struct.unpack('<I', struct.pack('<f', x))[0]
GC1 = -2.0 * LOG2E * math.sqrt(2.0 / math.pi); GC2 = GC1 * 0.044715

def vr(b, n=4): return f"v[{b}:{b+n-1}]" if n > 1 else f"v{b}"
def sr(b, n=4): return f"s[{b}:{b+n-1}]"

class G:
    def __init__(self, diag=False, **opt):
        self.L = []; self.diag = diag; self.opt = opt; self.nlab = 0
    def __call__(self, s): self.L.append(s)
    def dsbatch(self, lst):
        for i, x in enumerate(lst):
            if i >= 15 and (i - 15) % 5 == 0: self("s_waitcnt lgkmcnt(10)")
            self(x)
    def lab(self, p="L"): self.nlab += 1; return f"{p}_{self.nlab}"
    def srd(self, R, p, size):
        self(f"s_mov_b32 s{R}, s{p}\ns_mov_b32 s{R+1}, s{p+1}\ns_mov_b32 s{R+2}, {size}\ns_mov_b32 s{R+3}, 0x20000")
    def fstamp(self, i):
        if self.opt.get('fine'): self(f"s_memtime s[{80+2*i}:{81+2*i}]")
    def stamp(self, i):
        if self.opt.get('fine') and 3 <= i <= 8: return
        if self.diag and (i == 9 or not self.opt.get('lite')): self(f"s_waitcnt lgkmcnt(0)\ns_memtime s[{80+2*i}:{81+2*i}]\ns_waitcnt lgkmcnt(0)")
    def stamps_out(self):
        if not self.diag: return
        e = self
        e(f"s_waitcnt vmcnt(0) lgkmcnt(0)")
        e.stamp(9)
        e("s_memrealtime s[72:73]\ns_waitcnt lgkmcnt(0)")
        e(f"s_mov_b32 s{SRD_T}, s{S_WS}\ns_mov_b32 s{SRD_T+1}, s{S_WS+1}\ns_mov_b32 s{SRD_T+2}, 0x10000000\ns_mov_b32 s{SRD_T+3}, 0x20000")
        e(f"s_lshl_b32 s70, s2, 3\ns_add_u32 s70, s70, s{S_WAVE}\ns_lshl_b32 s70, s70, 6\ns_add_u32 s70, s70, {WS_STAMP}")
        e("s_mov_b64 exec, 1\nv_mov_b32 v1, 0")
        for i in range(10):
            if i: e(f"s_sub_u32 s71, s{80+2*i}, s80")
            else: e("s_mov_b32 s71, s80")
            e(f"v_mov_b32 v2, s71\nbuffer_store_dword v2, v1, {sr(SRD_T)}, s70 offen offset:{4*i}")
        e(f"v_mov_b32 v2, s100\nbuffer_store_dword v2, v1, {sr(SRD_T)}, s70 offen offset:40\nv_mov_b32 v2, s72\nbuffer_store_dword v2, v1, {sr(SRD_T)}, s70 offen offset:44")
        e("s_waitcnt vmcnt(0)")
        if self.opt.get('dbgrt'):
            e("s_memrealtime s[70:71]\ns_waitcnt lgkmcnt(0)")
            e.srd(SRD_T, S_DBG, 256)
            e(f"v_mov_b32 v2, s70\nbuffer_atomic_umax v2, v1, {sr(SRD_T)}, 0 offen offset:4 sc1")
            e(f"s_not_b32 s71, s100\nv_mov_b32 v2, s71\nbuffer_atomic_umax v2, v1, {sr(SRD_T)}, 0 offen offset:8 sc1")
            for i in range(1, 10):
                e(f"s_sub_u32 s71, s{80+2*i}, s80\ns_cmp_gt_u32 s71, 0x1000000\ns_cmov_b32 s71, 0\nv_mov_b32 v2, s71\nbuffer_atomic_umax v2, v1, {sr(SRD_T)}, 0 offen offset:{8+4*i} sc1")
            e(f"v_mov_b32 v2, s100\nbuffer_atomic_umax v2, v1, {sr(SRD_T)}, 0 offen offset:48 sc1")
            e("s_waitcnt vmcnt(0)")
    def wsptr(self, d, soff):
        self(f"s_add_u32 s{d}, s{S_WS}, {soff}\ns_addc_u32 s{d+1}, s{S_WS+1}, 0")
    def sprobe(self, base, dst):
        for i, d in enumerate(dst): self(f"s_load_dword s{d}, s[{base}:{base+1}], {128*i} glc")
    def spoll(self, base, dst, probed=False, sleep=1, least=None):
        e = self; L = e.lab("L_sp"); C = e.lab("L_spc"); D = e.lab("L_spd")
        e("s_mov_b32 s79, 0")
        if probed: e(f"s_branch {C}") if False else None
        def chk():
            e("s_waitcnt lgkmcnt(0)")
            if least is not None: e(f"s_cmp_ge_u32 s{dst[0]}, {least}")
            elif len(dst) == 1: e(f"s_cmp_lg_u32 s{dst[0]}, 0")
            else:
                for d in dst[1:]: e(f"s_and_b32 s{dst[0]}, s{dst[0]}, s{d}")
            e(f"s_cbranch_scc1 {D}")
        if probed: chk()
        e(f"{L}:"); e.sprobe(base, dst); chk()
        e(f"s_add_u32 s79, s79, 1\ns_cmp_ge_u32 s79, 0x200000\ns_cbranch_scc1 L_end")
        if sleep: e(f"s_sleep {sleep}")
        e(f"s_branch {L}\n{D}:")
    def arrive(self, cnt, va, vt, then):
        e = self; D = e.lab("L_arr")
        e(f"s_mov_b64 exec, 1\nv_mov_b32 v{va}, {CNT_LDS + 4*cnt}\nv_mov_b32 v{vt}, 1\nds_add_rtn_u32 v{va}, v{va}, v{vt}\ns_waitcnt lgkmcnt(0)")
        e(f"v_readfirstlane_b32 s78, v{va}\ns_mov_b64 exec, -1\ns_cmp_lg_u32 s78, 3\ns_cbranch_scc1 {D}")
        then(D)
        e(f"{D}:")
    def signal(self, base):
        def f(D):
            for i in range(16): self(f"s_mov_b32 s{16+i}, 1\ns_atomic_add s{16+i}, s[{base}:{base+1}], {128*i} glc")
        return f
    def vpoll(self, srd, soff, target, vz, vt):
        e = self; L = e.lab("L_vp"); D = e.lab("L_vpd")
        e(f"s_mov_b32 s79, 0\n{L}:\nv_cmp_gt_u32 vcc, {target}, v{vt}\ns_cmp_eq_u64 vcc, 0\ns_cbranch_scc1 {D}")
        e(f"s_add_u32 s79, s79, 1\ns_cmp_ge_u32 s79, 0x100000\ns_cbranch_scc1 L_end\ns_sleep 2")
        e(f"buffer_load_dword v{vt}, v{vz}, {sr(srd)}, {soff} offen sc1\ns_waitcnt vmcnt(0)\ns_branch {L}\n{D}:")
    def lpost(self, cnt, va, vt):
        self(f"s_mov_b64 exec, 1\nv_mov_b32 v{va}, {CNT_LDS + 4*cnt}\nv_mov_b32 v{vt}, 1\nds_add_u32 v{va}, v{vt}\ns_mov_b64 exec, -1")
    def lwait(self, cnt, va, vt, sleep=1):
        e = self; L = e.lab("L_lw"); D = e.lab("L_lwd")
        e(f"v_mov_b32 v{va}, {CNT_LDS + 4*cnt}\ns_mov_b32 s79, 0\n{L}:\nds_read_b32 v{vt}, v{va}\ns_waitcnt lgkmcnt(0)\nv_readfirstlane_b32 s78, v{vt}\ns_cmp_ge_u32 s78, 4\ns_cbranch_scc1 {D}")
        e(f"s_add_u32 s79, s79, 1\ns_cmp_ge_u32 s79, 0x1000000\ns_cbranch_scc1 L_end\n" + (f"s_sleep {sleep}\n" if sleep else "") + f"s_branch {L}\n{D}:")
    def busy(self, d, va, vt, w=''):
        if w in self.opt.get('yld', 'abcd'): self(f"s_mov_b64 exec, 1\nv_mov_b32 v{va}, {CNT_LDS + 4*11}\nv_mov_b32 v{vt}, {d}\nds_add_u32 v{va}, v{vt}\ns_mov_b64 exec, -1")
    def lsync(self, cnt, va, vt):
        e = self; L = e.lab("L_ls")
        e(f"s_waitcnt lgkmcnt(0)\ns_mov_b64 exec, 1\nv_mov_b32 v{va}, {CNT_LDS + 4*cnt}\nv_mov_b32 v{vt}, 1\nds_add_u32 v{va}, v{vt}\ns_mov_b32 s79, 0\n{L}:")
        e(f"ds_read_b32 v{vt}, v{va}\ns_waitcnt lgkmcnt(0)\nv_readfirstlane_b32 s78, v{vt}\ns_add_u32 s79, s79, 1\ns_cmp_ge_u32 s79, 0x1000000\ns_cbranch_scc1 L_end\ns_cmp_lt_u32 s78, 4\ns_cbranch_scc1 {L}\ns_mov_b64 exec, -1")

SA, SAE, SAS, SB, SBE, SBS, SA2, SB2, SOA, SOB, SG, SPK = 16, 17, 18, 19, 24, 25, 26, 27, 28, 29, 10, 11
SFH, SFW = 34, 8
SPD = [20]
P3_ACC = 176; P3_B2 = 100; P3_VT = [10, 11, 12, 3]; P3_VL2 = 13; P3_VLB = 5; P3_VF = 171
p3acc = lambda u, t: P3_ACC + 16*u + 4*t

class Unit:
    def __init__(self, areg, off, acc, gate=False): self.areg, self.off, self.acc, self.gate = areg, off, acc, gate

def c_main_loop(e, units, xreg, xaddr, ring, D, after_bar0, tail=()):
    tail = list(tail)
    n = len(units); R = D + 2; lg = []; total = NSTEP * n
    def wait_lg(tags):
        idx = max([i for i, t in enumerate(lg) if t in tags], default=-1)
        if idx < 0: return
        cnt = len(lg) - 1 - idx; assert cnt <= 15
        e(f"s_waitcnt lgkmcnt({cnt})"); del lg[:idx + 1]
    def xreads(s, out):
        for m in range(2):
            out.append(f"ds_read_b128 {vr(xreg + 8*(s % 2) + 4*m)}, v{xaddr[s % 2]} offset:{((s//2) % NX)*XSLOT + m*2048}"); lg.append(('x', s))
    def wreads(q, out):
        s, u = divmod(q, n); U = units[u]; r = ring + 4*(q % R); slot = s % NW
        a = U.areg[slot // 3]; o = (slot % 3)*WSLOT + U.off
        if U.gate:
            out.append(f"ds_read_b128 {vr(r)}, v{a} offset:{o}"); lg.append(('w', q)); return
        out.append(f"ds_read_b64_tr_b16 {vr(r,2)}, v{a} offset:{o}"); out.append(f"ds_read_b64_tr_b16 {vr(r+2,2)}, v{a} offset:{o + 4096}")
        lg.extend([('w', q)]*2)
    e("s_barrier"); after_bar0()
    buf = []; xreads(0, buf)
    for q in range(D): wreads(q, buf)
    for b in buf: e(b)
    for q in range(total):
        s, u = divmod(q, n)
        tags = [('w', q), ('x', s)]
        if q % 2 == 0 and q + 1 < total: tags += [('w', q + 1), ('x', (q + 1)//n)]
        wait_lg(tags)
        buf = []; qa = q + D
        if qa < total:
            if qa % n == 0: buf.append("s_barrier"); xreads(qa // n, buf)
            wreads(qa, buf)
        elif tail:
            k_ = -(-len(tail) // (total - q))
            for x in tail[:k_]:
                if len(lg) >= 15: buf.append("s_waitcnt lgkmcnt(10)"); del lg[:len(lg) - 10]
                buf.append(x); lg.append(('t',))
            del tail[:k_]
        U = units[u]; r = ring + 4*(q % R); half = (len(buf) + 1)//2
        for m in range(2):
            acc = vr(U.acc + 4*m)
            e(f"v_mfma_f32_16x16x32_bf16 {acc}, {vr(r)}, {vr(xreg + 8*(s % 2) + 4*m)}, {acc}")
            for b in (buf[:half] if m == 0 else buf[half:]): e(b)

def gelu_pack(e, jobs, T, C1):
    for i in range(0, len(jobs), 4):
        grp = jobs[i:i+4]
        for k, (s, d) in enumerate(grp): e(f"v_pk_mul_f32 {vr(T+2*k,2)}, {vr(s,2)}, {vr(s,2)}")
        for k, (s, d) in enumerate(grp): e(f"v_pk_fma_f32 {vr(T+2*k,2)}, {vr(T+2*k,2)}, {sr(S_C2,2)}, {vr(C1,2)}")
        for k, (s, d) in enumerate(grp): e(f"v_pk_mul_f32 {vr(T+2*k,2)}, {vr(T+2*k,2)}, {vr(s,2)}")
        for k in range(2*len(grp)): e(f"v_exp_f32 v{T+k}, v{T+k}")
        for k, (s, d) in enumerate(grp): e(f"v_pk_add_f32 {vr(T+2*k,2)}, {vr(T+2*k,2)}, 1.0 op_sel_hi:[1,0]")
        for k in range(2*len(grp)): e(f"v_rcp_f32 v{T+k}, v{T+k}")
        for k, (s, d) in enumerate(grp): e(f"v_pk_mul_f32 {vr(T+2*k,2)}, {vr(T+2*k,2)}, {vr(s,2)}")
        for k, (s, d) in enumerate(grp): e(f"v_cvt_pk_bf16_f32 v{d}, v{T+2*k}, v{T+2*k+1}")

def softmax2(e, P, E, OUT, X, fill=(), wr=None):
    B = []; o = lambda t: B.extend(t.split("\n"))
    mx, mn = X, X + 2
    o(f"v_max3_f32 v{mx}, v{P}, v{P+1}, v{P+2}\nv_min3_f32 v{mn}, v{P}, v{P+1}, v{P+2}")
    for i in range(3, 19, 2): o(f"v_max3_f32 v{mx}, v{mx}, v{P+i}, v{P+i+1}\nv_min3_f32 v{mn}, v{mn}, v{P+i}, v{P+i+1}")
    o(f"v_max_f32 v{mx}, v{mx}, v{P+19}\nv_min_f32 v{mn}, v{mn}, v{P+19}")
    o(f"v_mul_f32 v{mx}, s{S_L}, v{mx}\nv_mul_f32 v{mn}, s{S_L}, v{mn}")
    for i in range(0, 20, 2):
        o(f"v_pk_fma_f32 {vr(E+i,2)}, {vr(P+i,2)}, {sr(S_L,2)}, {vr(mx,2)} op_sel_hi:[1,1,0] neg_lo:[0,0,1] neg_hi:[0,0,1]")
        o(f"v_pk_fma_f32 {vr(P+i,2)}, {vr(P+i,2)}, {sr(S_L,2)}, {vr(mn,2)} op_sel_hi:[1,1,0] neg_lo:[1,0,0] neg_hi:[1,0,0]")
    for i in range(20): o(f"v_exp_f32 v{E+i}, v{E+i}\nv_exp_f32 v{P+i}, v{P+i}")
    sp, sn = X + 4, X + 6
    o(f"v_pk_add_f32 {vr(sp,2)}, {vr(E,2)}, {vr(E+2,2)}\nv_pk_add_f32 {vr(sn,2)}, {vr(P,2)}, {vr(P+2,2)}")
    for i in range(4, 20, 2): o(f"v_pk_add_f32 {vr(sp,2)}, {vr(sp,2)}, {vr(E+i,2)}\nv_pk_add_f32 {vr(sn,2)}, {vr(sn,2)}, {vr(P+i,2)}")
    o(f"v_add_f32 v{sp}, v{sp}, v{sp+1}\nv_add_f32 v{sn}, v{sn}, v{sn+1}\nv_rcp_f32 v{sp}, v{sp}\nv_rcp_f32 v{sn}, v{sn}")
    fill = list(fill); step = len(B) // (len(fill) + 1)
    for i, x in enumerate(B):
        e(x)
        if fill and (i + 1) % step == 0: e(fill.pop(0))
    for src, sc, half in ((E, sp, 0), (P, sn, 1)):
        for i in range(10):
            e(f"v_pk_mul_f32 {vr(src+2*i,2)}, {vr(src+2*i,2)}, {vr(sc,2)} op_sel_hi:[1,0]")
            if i >= 1: e(f"v_cvt_pk_bf16_f32 v{OUT+10*half+i-1}, v{src+2*i-2}, v{src+2*i-1}")
            done = 10*half + i
            if wr and i >= 1 and done % 4 == 0: wr(done // 4 - 1)
        e(f"v_cvt_pk_bf16_f32 v{OUT+10*half+9}, v{src+18}, v{src+19}")
    if wr: wr(4)

def weave(e, main, fill, per=2):
    fill = [x for t in fill for x in t.split("\n")]
    for x in main:
        e(x)
        for _ in range(per):
            if fill: e(fill.pop(0))
    for x in fill: e(x)

def gen(diag=False, D=5, rot=(10, 20, 5, 5), PB=5, **opt):
    e = G(diag, **opt)
    e(f"; @launch grid=(256,1,1) block=(512,1,1) lds={LDS_TOTAL}")
    e(f'.amdgcn_target "amdgcn-amd-amdhsa--gfx950"\n.text\n.globl {NAME}\n.p2align 8\n.type {NAME},@function\n{NAME}:')
    if diag: e("s_memtime s[80:81]\ns_memrealtime s[100:101]")
    e("s_cmp_ge_u32 s2, 256\ns_cbranch_scc1 L_end")
    e("s_load_dwordx16 s[16:31], s[0:1], 0\ns_load_dwordx8 s[32:39], s[0:1], 64\ns_load_dwordx2 s[40:41], s[0:1], 96")
    if opt.get('epf', False):
        e(f"s_getpc_b64 s[12:13]\nL_pc0:\nv_lshlrev_b32 v2, 4, v0\nv_and_b32 v2, 0xc00, v2\nv_and_b32 v3, 7, v0\nv_lshl_add_u32 v2, v3, 7, v2")
        e(f"v_mov_b32 v3, L_C-L_pc0\nv_cmp_gt_u32 vcc, 256, v0\nv_cndmask_b32 v3, 0, v3, vcc\nv_add_u32 v2, v2, v3\ns_mov_b64 exec, 0xff\nglobal_load_dword v186, v2, s[12:13]\ns_mov_b64 exec, -1")
    e(f"v_lshrrev_b32 v1, 6, v0\nv_and_b32 v0, 63, v0")
    e(f"s_and_b32 s70, s2, 7\ns_lshr_b32 s71, s2, 3")
    e(f"v_readfirstlane_b32 s{S_WAVE}, v1")
    e(f"s_and_b32 s72, s70, 1\ns_and_b32 s73, s71, 7\ns_lshl_b32 s74, s72, 3\ns_add_u32 s{S_RB}, s74, s73")
    if opt.get('mix', True):
        e(f"s_lshr_b32 s{S_ISQ}, s71, 4\ns_lshr_b32 s74, s70, 1\ns_lshr_b32 s75, s71, 3")
        e(f"s_and_b32 s76, s75, 1\ns_lshl_b32 s77, s74, 1\ns_add_u32 s{S_J}, s76, s77")
    else:
        e(f"s_lshr_b32 s{S_ISQ}, s70, 2\ns_lshr_b32 s74, s70, 1\ns_lshr_b32 s75, s71, 3")
        e(f"s_and_b32 s76, s74, 1\ns_lshl_b32 s76, s76, 2\ns_add_u32 s{S_J}, s76, s75")
    a, b, c, d = rot
    e(f"s_mul_i32 s76, s73, {a}\ns_mul_i32 s77, s75, {b}\ns_add_u32 s76, s76, s77\ns_mul_i32 s77, s74, {c}\ns_add_u32 s76, s76, s77\ns_mul_i32 s77, s72, {d}\ns_add_u32 s76, s76, s77\ns_lshr_b32 s76, s76, 3")
    e(f"s_mul_i32 s77, s76, 6554\ns_lshr_b32 s77, s77, 16\ns_mul_i32 s77, s77, 10\ns_sub_u32 s{S_PH}, s76, s77")
    e(f"s_and_b32 s{S_WV}, s{S_WAVE}, 3")
    e.fstamp(3)
    e(f"s_cmp_lt_u32 s{S_WAVE}, 4\ns_cbranch_scc1 L_C")
    m_wave(e, PB)
    e("L_C:")
    c_wave(e, D)
    e("L_end:\ns_endpgm")
    e(f""".section .rodata,"a"
.p2align 6
.amdhsa_kernel {NAME}
  .amdhsa_next_free_vgpr 256
  .amdhsa_next_free_sgpr 102
  .amdhsa_accum_offset 256
  .amdhsa_group_segment_fixed_size 0
  .amdhsa_kernarg_size 104
  .amdhsa_user_sgpr_count 2
  .amdhsa_user_sgpr_kernarg_segment_ptr 1
  .amdhsa_system_sgpr_workgroup_id_x 1
.end_amdhsa_kernel""")
    txt, n = hazard.fix("\n".join(e.L), opt.get('verbose', False))
    return txt + "\n"

def x_setup(e, VX):
    e(f"v_lshrrev_b32 v2, 3, v0\ns_lshl_b32 s76, s{S_WV}, 4\nv_add_u32 v2, s76, v2")
    e(f"v_lshrrev_b32 v3, 4, v0\nv_xor_b32 v3, v3, v0\nv_and_b32 v3, 7, v3\nv_lshlrev_b32 v3, 4, v3")
    e(f"v_mul_u32_u24 v2, 1280, v2\nv_add_u32 v{VX[0]}, v2, v3")
    e(f"v_xor_b32 v3, 64, v3\nv_add_u32 v2, {8*1280-1024}, v2\nv_add_u32 v{VX[1]}, v2, v3")
    e(f"s_mul_i32 s{S_XOFF}, s{S_RB}, {128*1280}\ns_lshl_b32 s{S_M0X}, s{S_WV}, 11\ns_add_u32 s{S_M0X}, s{S_M0X}, {XBASE}\ns_lshl_b32 s{S_XK}, s{S_PH}, 7")
XADV = f"s_add_u32 s{S_XK}, s{S_XK}, 128\ns_cmp_eq_u32 s{S_XK}, 1280\ns_cmov_b32 s{S_XK}, 0"
def dma_x_ops(VX, X, h):
    pre = f"s_add_u32 s76, s{S_XK}, {h*81920}\ns_add_u32 m0, s{S_M0X}, {(X % NX)*XSLOT + h*8192}\ns_add_u32 s76, s76, s{S_XOFF}\n"
    return [(('x', X), pre + f"buffer_load_dwordx4 v{VX[0]}, {sr(SRD_X)}, s76 offen lds"),
            (('x', X), f"buffer_load_dwordx4 v{VX[1]}, {sr(SRD_X)}, s76 offen offset:1024 lds" + ("\n" + XADV if h else ""))]

def m_wave(e, PB):
    e("s_setprio 3")
    VX = [16, 17]; VB = [18, 20, 22, 24]; VS = [26, 27, 28, 29]; VA = [30, 32, 34, 36]
    e(f"s_lshl_b32 s{S_M0W}, s{S_WV}, 12\ns_lshl_b32 s{S_KK}, s{S_PH}, 1")
    e(f"s_lshr_b32 s76, s{S_WV}, 1\ns_lshl_b32 s76, s76, 4\ns_and_b32 s77, s{S_WV}, 1\ns_lshl_b32 s77, s77, 2\ns_add_u32 s78, s76, s77")
    def krow(dst, rho):
        e(f"v_and_b32 v{dst}, 4, v{rho}\nv_add3_u32 v{dst}, v{dst}, v{rho}, s78")
    def panel(dst, ci0, colreg, kv):
        e(f"v_add_u32 v2, {ci0}, v0\nv_mul_u32_u24 v3, 6554, v2\nv_lshrrev_b32 v3, 16, v3\nv_mul_u32_u24 v4, 10, v3\nv_sub_u32 v4, v2, v4")
        if kv: e(f"v_lshrrev_b32 v6, 3, v3\nv_and_b32 v3, 7, v3\nv_mul_u32_u24 v6, 1280, v6\nv_lshl_add_u32 v4, v4, 4, v6")
        else: e(f"v_lshlrev_b32 v4, 4, v4")
        krow(5, 3)
        e(f"v_mul_u32_u24 v5, 3840, v5\nv_add3_u32 v{dst}, v5, v4, s{colreg}")
    def h160(dst, hi0):
        e(f"v_add_u32 v2, {hi0}, v0\nv_min_i32 v2, 159, v2\nv_max_i32 v2, 0, v2\nv_mul_u32_u24 v3, 3277, v2\nv_lshrrev_b32 v3, 16, v3\nv_mul_u32_u24 v4, 20, v3\nv_sub_u32 v4, v2, v4")
        e(f"v_lshrrev_b32 v6, 1, v3\nv_and_b32 v6, 2, v6\nv_xor_b32 v4, v4, v6\nv_min_u32 v4, s77, v4\nv_lshlrev_b32 v4, 4, v4")
        krow(5, 3)
        e(f"v_mul_u32_u24 v5, 3456, v5\nv_add3_u32 v{dst}, v5, v4, s76")
    def addptr(b, off, plo, phi):
        if b: e(f"v_subrev_u32 v{off}, {1024*b}, v{off}\nv_ashrrev_i32 v7, 31, v{off}")
        else: e(f"v_mov_b32 v7, 0")
        e(f"v_add_co_u32 v{VB[b]}, vcc, {plo}, v{off}")
        if phi.startswith('s'): e(f"v_mov_b32 v6, {phi}"); phi = "v6"
        e(f"v_addc_co_u32 v{VB[b]+1}, vcc, {phi}, v7, vcc")
    vm = [('pf',)] if e.opt.get('epf', False) else []
    def emit(lst):
        for tag, txt in lst: e(txt); vm.append(tag)
    def wait_vm(pred):
        idx = max([i for i, t in enumerate(vm) if pred(t)], default=-1)
        if idx >= 0: e(f"s_waitcnt vmcnt({len(vm)-1-idx})"); del vm[:idx+1]
    def dma_w(step):
        pre = "".join(f"v_mad_u64_u32 {vr(VA[b],2)}, vcc, v{VS[b]}, s{S_KK}, {vr(VB[b],2)}\n" for b in range(4))
        pre += f"s_add_u32 m0, s{S_M0W}, {(step % NW)*WSLOT}\ns_add_u32 s{S_KK}, s{S_KK}, 1\ns_cmp_eq_u32 s{S_KK}, 20\ns_cmov_b32 s{S_KK}, 0\n"
        return [(('w', step), (pre if b == 0 else "") + f"global_load_lds_dwordx4 {vr(VA[b],2)}, off offset:{1024*b}") for b in range(4)]
    dma_x = lambda X, h: dma_x_ops(VX, X, h)
    O = [8, 46, 10, 11, 12]
    e(f"s_cmp_eq_u32 s{S_ISQ}, 1\ns_cbranch_scc1 L_MQ")
    e(f"s_mul_i32 s76, s{S_J}, 160\ns_add_u32 s76, s76, 1280")
    panel(O[0], 0, 76, True); panel(O[1], 64, 76, True); panel(O[2], 128, 76, True)
    e(f"v_lshrrev_b32 v3, 3, v0\nv_and_b32 v4, 6, v3\nv_xor_b32 v4, v4, v0\nv_and_b32 v4, 7, v4\nv_lshlrev_b32 v4, 4, v4\ns_lshl_b32 s76, s{S_J}, 7")
    krow(5, 3)
    e(f"v_mul_u32_u24 v5, 3456, v5\nv_add3_u32 v{O[3]}, v5, v4, s76")
    e(f"v_subrev_u32 v2, 32, v0\nv_min_u32 v2, 3, v2\nv_lshlrev_b32 v2, 4, v2\nv_cmp_gt_u32 s[14:15], 32, v0")
    e(f"v_mov_b32 v{VS[0]}, {32*3840}\nv_mov_b32 v{VS[1]}, {32*3840}\nv_mov_b32 v{VS[3]}, {32*3456}\nv_cndmask_b32 v{O[2]}, v2, v{O[2]}, s[14:15]\nv_cndmask_b32 v{VS[2]}, 64, v{VS[0]}, s[14:15]")
    e.fstamp(4)
    e("s_waitcnt lgkmcnt(0)")
    e.fstamp(5)
    addptr(0, O[0], f"s{S_WQKV}", f"s{S_WQKV+1}"); addptr(1, O[1], f"s{S_WQKV}", f"s{S_WQKV+1}"); addptr(3, O[3], f"s{S_W1}", f"s{S_W1+1}")
    e(f"v_mov_b32 v2, s{S_GATE}\nv_mov_b32 v3, s{S_WQKV}\nv_cndmask_b32 v2, v2, v3, s[14:15]\nv_mov_b32 v3, s{S_GATE+1}\nv_mov_b32 v4, s{S_WQKV+1}\nv_cndmask_b32 v3, v3, v4, s[14:15]")
    addptr(2, O[2], "v2", "v3")
    e("s_branch L_Mgo\nL_MQ:")
    e(f"s_mul_i32 s79, s{S_J}, 160\ns_mul_i32 s76, s{S_J}, 320\ns_add_u32 s76, s76, 1024\ns_cmp_eq_u32 s{S_J}, 7\ns_cselect_b32 s77, 11, 19")
    panel(O[0], 0, 79, False); panel(O[1], 64, 79, False); h160(O[4], -16); h160(O[2], 48); h160(O[3], 112)
    e(f"v_cmp_gt_u32 s[14:15], 16, v0\nv_mov_b32 v{VS[0]}, {32*3840}\nv_mov_b32 v{VS[2]}, {32*3456}\nv_mov_b32 v{VS[3]}, {32*3456}")
    e(f"v_cndmask_b32 v{O[1]}, v{O[4]}, v{O[1]}, s[14:15]\nv_cndmask_b32 v{VS[1]}, v{VS[2]}, v{VS[0]}, s[14:15]")
    e.fstamp(4)
    e("s_waitcnt lgkmcnt(0)")
    e.fstamp(5)
    addptr(0, O[0], f"s{S_WQKV}", f"s{S_WQKV+1}"); addptr(2, O[2], f"s{S_W1}", f"s{S_W1+1}"); addptr(3, O[3], f"s{S_W1}", f"s{S_W1+1}")
    e(f"v_mov_b32 v2, s{S_W1}\nv_mov_b32 v3, s{S_WQKV}\nv_cndmask_b32 v2, v2, v3, s[14:15]\nv_mov_b32 v3, s{S_W1+1}\nv_mov_b32 v4, s{S_WQKV+1}\nv_cndmask_b32 v3, v3, v4, s[14:15]")
    addptr(1, O[1], "v2", "v3")
    e("L_Mgo:")
    LA = e.opt.get('LA', 2); JS = e.opt.get('JS', 8)
    emit(dma_w(0))
    e.stamp(1)
    emit(dma_w(1))
    x_setup(e, VX); e.srd(SRD_X, S_X, 2048*1280); e(XADV)
    if LA >= 3: emit(dma_x(1, 0)); emit(dma_w(2))
    e(f"s_setprio {e.opt.get('mprio', 0)}")
    e(f"s_and_b32 s76, s70, 3\ns_lshl_b32 s76, s76, 3\ns_add_u32 s{S_R64}, s76, s73\ns_and_b32 s76, s70, 4\ns_add_u32 s{S_CB}, s76, s75")
    e(f"s_mul_i32 s7, s73, 5\ns_mul_i32 s76, s75, 10\ns_add_u32 s7, s7, s76\ns_lshr_b32 s7, s7, 2")
    VZ, VL16 = 1, 15
    VJ = [38, 39, 40, 41, 42]; VJR = 43; VP = 14; JF = 48
    chunks = {}
    def c0():
        e.srd(SRD_WS, S_WS, WS_SIZE); e.srd(SRD_D, S_DBG, 256)
        e(f"v_mov_b32 v{VZ}, 0\nv_lshlrev_b32 v{VL16}, 4, v0")
        e(f"s_mul_i32 s70, s2, 37\ns_add_u32 s71, s70, 37\ns_lshr_b32 s70, s70, 4\ns_lshr_b32 s71, s71, 4\ns_add_u32 s72, s70, s{S_WV}\ns_sub_u32 s70, s72, s71\ns_lshr_b32 s71, s72, 3\ns_and_b32 s72, s72, 7")
        e(f"s_sub_u32 s73, s71, 54\ns_mul_i32 s77, s73, 6554\ns_lshr_b32 s77, s77, 15\ns_mul_i32 s78, s77, 5\ns_sub_u32 s78, s73, s78")
        e(f"s_mul_i32 s73, s77, 160\ns_lshr_b32 s77, s78, 1\ns_mul_i32 s77, s77, 80\ns_and_b32 s79, s78, 1\ns_lshl_b32 s79, s79, 3\ns_add_u32 s77, s77, s79")
        e(f"s_cmp_eq_u32 s78, 4\ns_cselect_b32 s77, 16, s77\ns_cselect_b32 s75, 80, 4\ns_add_u32 s73, s73, s77\ns_mov_b32 s74, 20")
    def c1():
        e(f"s_lshl_b32 s77, s71, 5\ns_cmp_lt_u32 s71, 54\ns_cselect_b32 s73, s77, s73\ns_cselect_b32 s74, 4, s74\ns_cselect_b32 s75, 16, s75")
        e(f"s_cselect_b32 s{SRD_T}, s{S_W2}, s{S_WO}\ns_cselect_b32 s{SRD_T+1}, s{S_W2+1}, s{S_WO+1}\ns_mov_b32 s{SRD_T+2}, {640*1280}\ns_cmov_b32 s{SRD_T+2}, {1728*1280}\ns_mov_b32 s{SRD_T+3}, 0x20000")
        e(f"s_mul_i32 s12, s73, 1280\ns_mul_i32 s77, s72, 160\ns_add_u32 s12, s12, s77")
        e(f"s_mul_i32 s13, s72, 74\ns_add_u32 s13, s13, s71\ns_mul_i32 s13, s13, 5120\ns_add_u32 s13, s13, {WS_WF}")
        e(f"s_and_b32 s77, s2, 7\ns_lshl_b32 s77, s77, 7\ns_add_u32 s77, s77, {WS_FL + FL_W*128}"); e.wsptr(14, "s77")
        e(f"s_cmp_lt_i32 s70, 0\ns_cselect_b32 s12, s12, {OOB}\ns_cselect_b32 s13, s13, {OOB}")
        e(f"s_mul_i32 s3, s{S_WV}, 5120\ns_add_u32 s3, s3, {STG}")
        e(f"v_lshrrev_b32 v2, 2, v0\nv_mul_u32_u24 v2, 160, v2\nv_and_b32 v3, 3, v0\nv_mul_u32_u24 v3, 40, v3\nv_add3_u32 v{VJR}, v2, v3, s3\nv_add_u32 v44, 4096, v{VL16}")
    def cj(i0, i1):
        def f():
            for i in range(i0, i1):
                e(f"v_add_u32 v2, {64*i}, v0\nv_mul_u32_u24 v3, 6554, v2\nv_lshrrev_b32 v3, 16, v3\nv_mul_u32_u24 v4, 10, v3\nv_sub_u32 v4, v2, v4")
                e(f"v_bfe_u32 v5, v3, 2, 2\nv_mul_u32_u24 v5, s74, v5\nv_lshrrev_b32 v6, 4, v3\nv_mul_u32_u24 v6, s75, v6\nv_and_b32 v3, 3, v3\nv_add3_u32 v3, v3, v5, v6")
                e(f"v_mul_u32_u24 v3, 1280, v3\nv_lshl_add_u32 v{VJ[i]}, v4, 4, v3")
        return f
    def c8():
        e(f"s_cmp_ge_u32 s{S_WV}, 2\ns_cselect_b32 s70, 9, 10\ns_mul_i32 s71, s{S_WV}, 10\ns_cmp_eq_u32 s{S_WV}, 3\ns_cmov_b32 s71, 29\ns_add_u32 s71, s71, 16")
        e(f"s_cmp_ge_u32 s7, s70\ns_cselect_b32 s72, s70, 0\ns_sub_u32 s7, s7, s72")
        e(f"s_mul_i32 s74, s{S_R64}, 54\ns_add_u32 s72, s74, s71\ns_lshl_b32 s{SAS}, s72, 12\ns_lshl_b32 s73, s70, 12\ns_add_u32 s{SAE}, s{SAS}, s73\ns_lshl_b32 s73, s7, 12\ns_add_u32 s{SA}, s{SAS}, s73")
        e(f"s_mul_i32 s75, s{S_CB}, 74\ns_add_u32 s73, s75, s71\ns_mul_i32 s73, s73, 5120\ns_add_u32 s{SBS}, s73, {WS_WF}\ns_mul_i32 s73, s70, 5120\ns_add_u32 s{SBE}, s{SBS}, s73\ns_mul_i32 s73, s7, 5120\ns_add_u32 s{SB}, s{SBS}, s73")
    def c9():
        e(f"s_lshl_b32 s70, s{S_WV}, 2\ns_add_u32 s71, s74, s70\ns_lshl_b32 s{SA2}, s71, 12\ns_add_u32 s71, s75, s70\ns_mul_i32 s71, s71, 5120\ns_add_u32 s{SB2}, s71, {WS_WF}")
        e(f"s_mul_i32 s70, s{S_WV}, 5\ns_add_u32 s70, s70, s75\ns_add_u32 s70, s70, 54\ns_mul_i32 s70, s70, 5120\ns_add_u32 s{SOB}, s70, {WS_WF}")
        e(f"s_mul_i32 s70, s{S_R64}, 81920\ns_add_u32 s{SOA}, s70, {WS_OF}")
        e(f"s_lshl_b32 s70, s{S_R64}, 3\ns_add_u32 s70, s70, s{S_CB}\ns_lshl_b32 s70, s70, 7\ns_add_u32 s70, s70, {WS_FL + FL_H*128}"); e.wsptr(SFH, "s70")
        e(f"s_mov_b32 s{SFW}, {WS_FL + FL_W*128 + 1024}")
        e(f"s_lshl_b32 s70, s{S_R64}, 8\ns_add_u32 s{SG}, s70, {WS_G}")
    def c10():
        e(f"s_mul_i32 s{SPK}, s{S_WV}, 20480\ns_add_u32 s{SPK}, s{SPK}, {PARK}\ns_cmp_eq_u32 s{S_WV}, 3\ns_cmov_b32 s{SPK}, {STG}")
        e(f"v_add_u32 v{P3_VL2}, 4096, v{VL16}")
        for t in range(4): e(f"s_xor_b32 s70, s{S_WV}, {t}\ns_lshl_b32 s70, s70, 10\nv_add_u32 v{P3_VT[t]}, s70, v{VL16}")
        e(f"v_lshrrev_b32 v4, 4, v0\nv_mul_u32_u24 v4, 40, v4\ns_mul_i32 s70, s{S_CB}, 160\nv_add_u32 v4, s70, v4")
        e(f"s_cmp_eq_u32 s{S_WV}, 0\ns_cselect_b32 s42, 1.0, 0\ns_cselect_b32 s43, 1.0, 0\nv_and_b32 v8, 7, v0\nv_lshlrev_b32 v8, 7, v8")
    def b2_unpack(u):
        for i in (2*u, 2*u + 1):
            r = (2*i) % 4
            e(f"v_lshlrev_b32 v{p3acc(u,0)+r}, 16, v{P3_B2+i}\nv_and_b32 v{p3acc(u,0)+r+1}, 0xffff0000, v{P3_B2+i}")
        if True:
            for t in (1, 2, 3, 0):
                for r in range(4): e(f"v_mul_f32 v{p3acc(u,t)+r}, s42, v{p3acc(u,0)+r}")
    JL = e.opt.get('JL', 0); JR = e.opt.get('JR', 3); JS = e.opt.get('JS', JR); JSP = e.opt.get('JSP', 5); JA = e.opt.get('JA', 9); ZA = 3; pre = e.opt.get('pre', 0)
    for c_ in (c0, c1, cj(0, 5), c8, c9, c10): c_()
    e(f"s_lshl_b32 s76, s2, 2\ns_add_u32 s76, s76, s{S_WV}\ns_lshl_b32 s76, s76, 13\ns_add_u32 s76, s76, {WS_FL}\nv_lshlrev_b32 v2, 7, v0\ns_cmp_lt_u32 s2, {NINIT}\ns_cselect_b32 s76, s76, {OOB}")
    e("v_mov_b32 v168, 0\nv_mov_b32 v169, 0\nv_mov_b32 v170, 0\nv_mov_b32 v171, 0")
    emit([(('zero',), f"buffer_store_dwordx4 v[168:171], v2, {sr(SRD_WS)}, s76 offen sc1")])
    emit([(('b2',), f"global_load_dwordx4 {vr(P3_B2)}, v4, s[{S_B2}:{S_B2+1}]"), (('b2',), f"global_load_dwordx4 {vr(P3_B2+4)}, v4, s[{S_B2}:{S_B2+1}] offset:16"),
          (('b2',), f"global_load_dwordx2 {vr(P3_B2+8,2)}, v4, s[{S_B2}:{S_B2+1}] offset:32")])
    txt = (f"s_mul_i32 s76, s{S_J}, 3200\ns_lshl_b32 s77, s{S_WV}, 10\ns_add_u32 m0, s77, {WPHI_LDS}\ns_add_u32 s76, s76, s77\ns_add_u32 s76, s76, s{S_WPHI}\ns_addc_u32 s77, s{S_WPHI+1}, 0\n"
           f"s_cmp_eq_u32 s{S_WV}, 3\ns_mov_b32 s78, 1008\ns_cmov_b32 s78, 112\nv_min_u32 v6, s78, v{VL16}\nglobal_load_lds_dwordx4 v6, s[76:77]")
    emit([(('phi',), txt)])
    def job_loads():
        for i in range(5):
            emit([(('job',), f"s_add_u32 m0, s3, {1024*i}\ns_nop 0\nbuffer_load_dwordx4 v{VJ[i]}, {sr(SRD_T)}, s12 offen lds")])
    if JL < 0: job_loads()
    P3S = P3(e, PB, VZ, VL16, vm)
    for s in range(NSTEP):
        wait_vm(lambda t: t == ('w', s) or t == ('x', s//2))
        e("s_barrier")
        if s == 0: e.stamp(2)
        if e.opt.get('steps'): e(f"s_memtime s[76:77]\ns_waitcnt lgkmcnt(0)\ns_sub_u32 s76, s76, s80\nv_writelane_b32 v9, s76, {s}")
        n_list = [2, 3] if (LA == 2 and s == 0) else [s + 3]
        for n_ in n_list:
            if n_ < NSTEP: emit(dma_x(n_ // 2, n_ % 2))
        if s + LA < NSTEP: emit(dma_w(s + LA))
        if s == ZA:
            wait_vm(lambda t: t[0] in ('zero', 'b2', 'phi'))
            def init_sig(D): e(f"s_cmp_ge_u32 s2, {NINIT}\ns_cbranch_scc1 {D}\ns_mov_b32 s21, 1\ns_atomic_add s21, s[{S_DBG}:{S_DBG+1}], 0 glc")
            e.arrive(10, 174, 175, init_sig)
        if ZA + 1 <= s < ZA + 6: b2_unpack(s - ZA - 1)
        if s == JL: job_loads()
        if s == JR:
            wait_vm(lambda t: t[0] == 'job')
            for u in range(5):
                e(f"ds_read_b64_tr_b16 {vr(JF+4*u,2)}, v{VJR} offset:{8*u}\nds_read_b64_tr_b16 {vr(JF+4*u+2,2)}, v{VJR} offset:{8*u + 2560}")
            e("s_waitcnt lgkmcnt(0)")
        if True:
            for u in range(5):
                if s != JS + u // JSP: continue
                if u < 4: emit([(('jst',), f"buffer_store_dwordx4 {vr(JF+4*u)}, v{VL16}, {sr(SRD_WS)}, s13 offen offset:{1024*u} sc1")])
                else: emit([(('jst',), f"buffer_store_dwordx4 {vr(JF+4*u)}, v44, {sr(SRD_WS)}, s13 offen sc1")])
        IC = min(JA, 15)
        if s == IC - 2: emit([(('init',), f"buffer_load_dword v{VP}, v{VZ}, {sr(SRD_D)}, 0 offen sc1")])
        if s == IC:
            wait_vm(lambda t: t[0] == 'init'); e.vpoll(SRD_D, "0", NINIT, VZ, VP)
        if s == JA:
            wait_vm(lambda t: t[0] == 'jst'); e("s_mov_b32 s22, 0")
            e.arrive(3, 174, 175, lambda D: e(f"s_mov_b32 s22, 1\ns_atomic_add s22, s[14:15], 0 glc"))
        if s == JA + 1:
            Lw = e.lab("L_w2")
            e(f"s_waitcnt lgkmcnt(0)\ns_cmp_lg_u32 s22, 31\ns_cbranch_scc1 {Lw}\ns_mov_b32 s23, 1\ns_atomic_add s23, s[14:15], 1024 glc\n{Lw}:")
        if JA < 19:
            if s == (17 if pre else 18): emit([(('wp',), f"buffer_load_dword v{VP}, v8, {sr(SRD_WS)}, s{SFW} offen sc1")])
            if s == 18 and pre:
                wait_vm(lambda t: t[0] == 'wp'); e.vpoll(SRD_WS, f"s{SFW}", 1, 8, VP)
                for _ in range(pre): P3S.prefetch()
    e.stamp(3)
    if JA >= 19:
        wait_vm(lambda t: True)
        def w_sig(D): e(f"s_mov_b32 s22, 1\ns_atomic_add s22, s[14:15], 0 glc\ns_waitcnt lgkmcnt(0)\ns_cmp_lg_u32 s22, 31\ns_cbranch_scc1 {D}\ns_mov_b32 s23, 1\ns_atomic_add s23, s[14:15], 1024 glc")
        e.arrive(3, 174, 175, w_sig)
        e(f"v_mov_b32 v{VP}, 0")
        e.vpoll(SRD_WS, f"s{SFW}", 1, 8, VP)
    elif not pre:
        wait_vm(lambda t: t[0] == 'wp'); e.vpoll(SRD_WS, f"s{SFW}", 1, 8, VP)
    e.stamp(4)
    P3S.begin()
    while P3S.npre < PB:
        if P3S.npre >= e.opt.get('free', 2):
            if not P3S.ring: e.lwait(8, 174, 175); P3S.ring = True
            P3S.yield_()
        P3S.prefetch()
        if len(vm) > P3S.THR: e(f"s_waitcnt vmcnt({P3S.THR})"); del vm[:len(vm) - P3S.THR]
    P3S.run()

def P3(e, PB, VZ, VL16, vm):
    class S: pass
    S.npre = 0
    opt = e.opt
    ACC = 176; POOL = 16; NPOOL = 39
    VL2, VP = 13, 14; VGO = 173; VY = 172
    VT = P3_VT
    VG = 2
    acc = lambda u, t: ACC + 16*u + 4*t
    NQ, NK = 10, 4; NS = NQ + NK
    def pst(i):
        if opt.get('steps'): e(f"s_waitcnt lgkmcnt(0)\ns_memtime s[76:77]\ns_waitcnt lgkmcnt(0)\ns_sub_u32 s76, s76, s80\nv_writelane_b32 v9, s76, {i}")
    free = list(range(NPOOL)); frag = {}
    def emit1(item): e(item[1]); vm.append(item[0])
    def waitvm(pred):
        idx = max([i for i, t in enumerate(vm) if pred(t)], default=-1)
        if idx >= 0: e(f"s_waitcnt vmcnt({len(vm)-1-idx})"); del vm[:idx+1]
    def ld(d, v, so, off): return f"buffer_load_dwordx4 {d}, v{v}, {sr(SRD_WS)}, {so} offen" + (f" offset:{off}" if off else "") + " sc1"
    def group(kind, k):
        out = []
        for i in range(4 if kind == 'A' else 5):
            sl = free.pop(0); frag[(kind, k, i)] = POOL + 4*sl; d = vr(POOL + 4*sl)
            pre = post = ""
            if kind == 'A':
                if k < NQ:
                    if k == NQ - 1 and i == 0: pre = f"s_cmp_ge_u32 s{S_WV}, 2\ns_cmov_b32 s{SA}, {OOB}\n"
                    if i == 3: post = f"\ns_add_u32 s{SA}, s{SA}, 4096\ns_cmp_eq_u32 s{SA}, s{SAE}\ns_cmov_b32 s{SA}, s{SAS}"
                    txt = ld(d, VT[i], f"s{SA}", 0)
                else:
                    txt = ld(d, VT[i], f"s{SA2}", 0)
                    if i == 3: post = f"\ns_add_u32 s{SA2}, s{SA2}, 4096"
            else:
                if k < NQ:
                    so = f"s{SB}"
                    if k == NQ - 1 and i == 0: pre = f"s_cmp_ge_u32 s{S_WV}, 2\ns_cmov_b32 s{SB}, {OOB}\n"
                    if i == 4: post = f"\ns_add_u32 s{SB}, s{SB}, 5120\ns_cmp_eq_u32 s{SB}, s{SBE}\ns_cmov_b32 s{SB}, s{SBS}"
                else:
                    so = f"s{SB2}"
                    if i == 4: post = f"\ns_add_u32 s{SB2}, s{SB2}, 5120"
                txt = ld(d, VL16, so, 1024*i) if i < 4 else ld(d, VL2, so, 0)
            out.append(((kind, k), pre + txt + post))
        return out
    THR = opt.get('thr', 10)
    YLD = opt.get('yld', 'abcd')
    def yield_(pre_read=False):
        if not YLD: return
        L = e.lab("L_y"); D = e.lab("L_yd")
        if not pre_read: e(f"ds_read_b32 v{VP}, v{VY}")
        e(f"s_mov_b32 s79, 0\n{L}:\ns_waitcnt lgkmcnt(0)\nv_readfirstlane_b32 s78, v{VP}\ns_cmp_eq_u32 s78, 0\ns_cbranch_scc1 {D}")
        e(f"s_add_u32 s79, s79, 1\ns_cmp_ge_u32 s79, 0x1000000\ns_cbranch_scc1 L_end\ns_sleep 1\nds_read_b32 v{VP}, v{VY}\ns_branch {L}\n{D}:")
    def prefetch():
        for it in group('B', S.npre): emit1(it)
        S.npre += 1
    S.prefetch = prefetch; S.THR = THR
    def msync(cnt):
        e.lpost(cnt, 174, 175); e.lwait(cnt, 174, 175, sleep=0)
    S.ring = False; S.yield_ = yield_
    S.begin = lambda: e(f"v_mov_b32 v{VY}, {CNT_LDS + 4*11}")
    def run():
        if not S.ring: e.lwait(8, 174, 175)
        e.stamp(5)
        for j in range(4):
            e(f"s_add_u32 s70, s{S_R64}, {j}\ns_and_b32 s70, s70, 3\ns_mul_i32 s71, s70, 5120\ns_add_u32 s76, s71, s{SOB}\ns_add_u32 s71, s71, s{SPK}")
            yield_()
            for i in range(5):
                e(f"s_add_u32 m0, s71, {1024*i}\ns_add_u32 s77, s76, {1024*i}")
                emit1((('L',), f"buffer_load_dwordx4 v{VL16}, {sr(SRD_WS)}, s77 offen sc1 lds"))
            if len(vm) > THR: e(f"s_waitcnt vmcnt({THR})"); del vm[:len(vm) - THR]
        e.spoll(SFH, SPD, sleep=opt.get('slh', 1), least=8)
        e.stamp(6)
        order = []
        for k in range(NS):
            order.append(('A', k))
            if k >= PB: order.append(('B', k))
        pend = []; gate = [False]
        LOOK = opt.get('look', 2)
        def refill(cur):
            i = 0
            while i < len(order):
                kind, k = order[i]
                if kind == 'A' and k >= NQ and not gate[0]: i += 1; continue
                lim = cur + LOOK + (2 if kind == 'B' and i > 0 else 0)
                if k > lim or len(free) < (4 if kind == 'A' else 5) + (8 if i > 0 else 0): break
                pend.extend(group(kind, k)); order.pop(i)
        yield_()
        refill(-1)
        for it in pend: emit1(it)
        pend.clear()
        nxtflag = f"s_add_u32 s{SFH}, s{SFH}, {256*128}\ns_addc_u32 s{SFH+1}, s{SFH+1}, 0"
        GK = NQ - opt.get('gk', LOOK)
        for k in range(NS):
            if k == GK:
                e.spoll(SFH, SPD, probed=True, sleep=opt.get('slo', 1), least=8); gate[0] = True
                e(f"v_and_b32 v{VGO}, 15, v0\nv_lshlrev_b32 v{VGO}, 2, v{VGO}\ns_lshl_b32 s76, s{S_WV}, 6\ns_add_u32 s76, s76, s{SG}")
                emit1((('g',), f"buffer_load_dword v{VG}, v{VGO}, {sr(SRD_WS)}, s76 offen sc1"))
            refill(k)
            while any(it[0] in (('A', k), ('B', k)) for it in pend): emit1(pend.pop(0))
            waitvm(lambda t: t in (('A', k), ('B', k)))
            if pend and k != GK - 1: yield_(pre_read=k > 0 and k != GK)
            pst(24 + k)
            last = k == NS - 1
            if last:
                for t in range(1, 4):
                    e(f"s_xor_b32 s76, s{S_WV}, {t}\ns_mul_i32 s77, s76, 15360\ns_cmp_eq_u32 s76, 3\ns_cmov_b32 s77, {EXCH_H3}\nv_add_u32 v{VT[t]}, s77, v{VL16}")
                e(f"s_mul_i32 s77, s{S_WV}, 15360\ns_cmp_eq_u32 s{S_WV}, 3\ns_cmov_b32 s77, {EXCH_H3}\nv_add_u32 v5, s77, v{VL16}")
                e.lwait(12, 174, 175)
            cnt = 0; wq = []
            for t in ([1, 2, 3, 0] if last else range(4)):
                for u in range(5):
                    e(f"v_mfma_f32_16x16x32_bf16 {vr(acc(u,t))}, {vr(frag[('B',k,u)])}, {vr(frag[('A',k,t)])}, {vr(acc(u,t))}")
                    cnt += 1
                    if cnt % 2 == 0 and pend: emit1(pend.pop(0))
                    if last:
                        if t: wq.append((cnt, f"ds_write_b128 v{VT[t]}, {vr(acc(u,t))} offset:{5120*(t-1) + 1024*u}"))
                        if wq and cnt - wq[0][0] >= 5: e(wq.pop(0)[1])
            for c_, x in wq: e(x)
            while pend: emit1(pend.pop(0))
            for i in range(4): free.append((frag[('A', k, i)] - POOL)//4)
            for i in range(5): free.append((frag[('B', k, i)] - POOL)//4)
            if k == GK - 2: e(nxtflag); e.sprobe(SFH, SPD)
            elif YLD and k + 1 < NS and k + 1 != GK: e(f"ds_read_b32 v{VP}, v{VY}")
        assert not order
        pst(38)
        e(nxtflag)
        waitvm(lambda t: True)
        e("s_waitcnt lgkmcnt(0)"); msync(13)
        pst(39)
        R = POOL
        for u in range(5):
            for sw in range(3): e(f"ds_read_b128 {vr(R + 12*u + 4*sw)}, v5 offset:{sw*5120 + u*1024}")
        e(f"v_sub_f32 v{VG}, 1.0, v{VG}")
        for u in range(5):
            e(f"s_waitcnt lgkmcnt({12 - 3*u})")
            b = R + 12*u; a = acc(u, 0)
            for r in (0, 2): e(f"v_pk_add_f32 {vr(a+r,2)}, {vr(a+r,2)}, {vr(b+r,2)}\nv_pk_add_f32 {vr(b+4+r,2)}, {vr(b+4+r,2)}, {vr(b+8+r,2)}")
            for r in (0, 2): e(f"v_pk_add_f32 {vr(a+r,2)}, {vr(a+r,2)}, {vr(b+4+r,2)}")
            for r in (0, 2): e(f"v_pk_mul_f32 {vr(a+r,2)}, {vr(a+r,2)}, {vr(VG,2)} op_sel_hi:[1,0]")
        msync(14)
        for i in range(5):
            e(f"s_mul_i32 s76, s{S_WV}, 5120\ns_add_u32 m0, s76, {1024*i}\ns_add_u32 s77, s{SOB}, {4*5120 + 1024*i}")
            emit1((('L',), f"buffer_load_dwordx4 v{VL16}, {sr(SRD_WS)}, s77 offen sc1 lds"))
        AO = POOL
        BP = [96 + 4*i for i in range(19)] + [acc(u, t) for u in range(5) for t in (1, 2, 3)]
        VB4 = [3, 4, 5, 6]; VH4 = [7, 8, 11, 12]; VHA = 173
        for mm in range(4):
            e(f"s_add_u32 s70, s{S_CB}, {mm}\ns_and_b32 s70, s70, 3\ns_mul_i32 s71, s70, 20480\ns_add_u32 s{72+mm}, s71, s{SOA}\ns_add_u32 s71, s71, {PARK}\ns_cmp_eq_u32 s70, 3\ns_cmov_b32 s71, {STG}\nv_add_u32 v{VB4[mm]}, s71, v{VL16}\ns_mul_i32 s71, s70, 5120\nv_add_u32 v{VH4[mm]}, s71, v{VL16}")
        e(f"s_lshr_b32 s70, s{S_WV}, 1\ns_lshl_b32 s70, s70, 10\ns_and_b32 s71, s{S_WV}, 1\ns_lshl_b32 s71, s71, 3\ns_add_u32 s70, s70, s71\ns_add_u32 s70, s70, 8192\nv_add_u32 v{VHA}, s70, v{VL16}")
        steps = [(mm, i) for mm in range(4) for i in range(4)] + [(mm, 4) for mm in range(4)]
        bfree = list(BP); bq = []; bfr = {}
        for n_, (mm, i) in enumerate(steps):
            for u in range(5): bq.append((n_, u, f"v{VB4[mm]} offset:{5120*i + 1024*u}" if i < 4 else f"v{VH4[mm]} offset:{1024*u}"))
        lg = []
        def bread():
            n_, u, ad = bq.pop(0); r = bfree.pop(0); bfr[(n_, u)] = r
            if len(lg) >= 15: e("s_waitcnt lgkmcnt(10)"); del lg[:len(lg) - 10]
            e(f"ds_read_b128 {vr(r)}, {ad}"); lg.append(n_)
        e.srd(SRD_T, S_OUT, 2048*1280)
        e(f"v_and_b32 v2, 15, v0\nv_mul_u32_u24 v2, 1280, v2\nv_lshrrev_b32 v14, 4, v0\nv_mul_u32_u24 v14, 40, v14\nv_add_u32 v2, v2, v14")
        e(f"s_lshl_b32 s70, s{S_R64}, 2\ns_add_u32 s70, s70, s{S_WV}\ns_mul_i32 s70, s70, {16*1280}\ns_mul_i32 s71, s{S_CB}, 160\ns_add_u32 s21, s70, s71")
        e.sprobe(SFH, SPD)
        while len(bfree) >= 5:
            for _ in range(5): bread()
        pst(40)
        e.stamp(7)
        e.spoll(SFH, SPD, probed=True, sleep=0, least=8); lg.clear()
        e.stamp(8)
        pst(41)
        for n_, (mm, i) in enumerate(steps):
            d = AO + 4*n_
            if i < 4: emit1((n_, f"s_add_u32 s76, s{72+mm}, {(i >> 1)*10240 + (i & 1)*4096}\n" + ld(vr(d), VT[0], "s76", 0)))
            else:
                for ee in range(2): emit1((n_, f"s_add_u32 s76, s{72+mm}, {ee*10240}\nbuffer_load_dwordx2 {vr(d+2*ee,2)}, v{VHA}, {sr(SRD_WS)}, s76 offen sc1"))
        synced = False
        for n_ in range(20):
            waitvm(lambda t: t == n_)
            if n_ == 0: e.lpost(15, 174, 175); lg.append(-1)
            idx = max([i for i, t in enumerate(lg) if t == n_], default=-1)
            if idx >= 0: e(f"s_waitcnt lgkmcnt({len(lg)-1-idx})"); del lg[:idx+1]
            for u in range(5):
                e(f"v_mfma_f32_16x16x32_bf16 {vr(acc(u,0))}, {vr(bfr[(n_,u)])}, {vr(AO + 4*n_)}, {vr(acc(u,0))}")
                if u: bfree.append(bfr[(n_, u-1)])
                if bq and bfree:
                    if bq[0][0] >= 16 and not synced:
                        e.lwait(15, 174, 175, sleep=0); lg.clear(); synced = True
                    bread()
            bfree.append(bfr[(n_, 4)])
        pst(42)
        for u in range(5):
            a = acc(u, 0)
            e(f"v_cvt_pk_bf16_f32 v{100+2*u}, v{a}, v{a+1}\nv_cvt_pk_bf16_f32 v{101+2*u}, v{a+2}, v{a+3}")
        fl = opt.get('outfl', '')
        e(f"buffer_store_dwordx4 v[100:103], v2, {sr(SRD_T)}, s21 offen {fl}\nbuffer_store_dwordx4 v[104:107], v2, {sr(SRD_T)}, s21 offen offset:16 {fl}\nbuffer_store_dwordx2 v[108:109], v2, {sr(SRD_T)}, s21 offen offset:32 {fl}")
        pst(43)
        if opt.get('steps'):
            e("s_waitcnt vmcnt(0)"); pst(44)
            e(f"s_lshl_b32 s70, s2, 2\ns_add_u32 s70, s70, s{S_WV}\ns_lshl_b32 s70, s70, 8\ns_add_u32 s70, s70, 0xF00000\nv_lshlrev_b32 v2, 2, v0\nbuffer_store_dword v9, v2, {sr(SRD_WS)}, s70 offen\ns_waitcnt vmcnt(0)")
        e.stamps_out()
        e("s_endpgm")
    S.run = run
    return S

def c_wave(e, D):
    XREG = 224; RING = 192; VXA = [246, 247]; AT = [240, 241]
    VZ, VL16 = 242, 243
    x_setup(e, [128, 129])
    e("s_waitcnt lgkmcnt(0)")
    e.srd(SRD_X, S_X, 2048*1280)
    for t, x in dma_x_ops([128, 129], 0, 0) + dma_x_ops([128, 129], 0, 1): e(x)
    e.srd(SRD_T, S_B1, 3456)
    e(f"s_lshl_b32 s76, s{S_J}, 7\ns_mul_i32 s77, s{S_J}, 320\ns_add_u32 s77, s77, 1024\ns_cmp_eq_u32 s{S_ISQ}, 1\ns_cselect_b32 s76, s77, s76\ns_cselect_b32 s77, s77, {OOB}\nv_lshrrev_b32 v132, 4, v0\nv_lshlrev_b32 v132, 3, v132")
    for t in range(10): e(f"buffer_load_dwordx2 {vr(136+2*t,2)}, v132, {sr(SRD_T)}, s{76 if t < 4 else 77} offen offset:{32*t}")
    e.fstamp(6)
    e("v_lshrrev_b32 v1, 4, v0\nv_bfe_u32 v2, v0, 2, 2\nv_and_b32 v3, 3, v0")
    e("v_and_b32 v5, 1, v1\nv_lshl_add_u32 v4, v5, 2, v2\nv_lshrrev_b32 v6, 1, v1\nv_lshlrev_b32 v6, 13, v6")
    e(f"s_lshl_b32 s76, s{S_WV}, 5\nv_and_b32 v7, 15, v0\nv_add_u32 v7, s76, v7")
    e(f"v_lshrrev_b32 v128, 1, v7\nv_xor_b32 v128, v128, v1\nv_and_b32 v128, 7, v128\nv_lshlrev_b32 v128, 4, v128\nv_lshl_add_u32 v128, v7, 7, v128")
    e(f"v_add_u32 v{VXA[0]}, {XBASE}, v128\nv_xor_b32 v{VXA[1]}, 64, v{VXA[0]}")
    e(f"v_mul_u32_u24 v128, 160, v4\nv_mul_u32_u24 v129, 40, v3\nv_add3_u32 v{AT[0]}, v128, v129, v6\nv_add_u32 v{AT[1]}, {3*WSLOT}, v{AT[0]}")
    e(f"v_mov_b32 v{VZ}, 0\nv_lshlrev_b32 v{VL16}, 4, v0\nv_mov_b32 v128, 0\nv_mov_b32 v129, 0\nv_mov_b32 v130, 0\nv_mov_b32 v131, 0")
    e(f"s_lshl_b32 s76, s{S_WV}, 9\ns_add_u32 s76, s76, {ZERO_LDS}\nv_lshl_add_u32 v132, v0, 3, s76\nds_write_b64 v132, v[128:129]")
    e(f"v_lshlrev_b32 v132, 2, v0\nv_add_u32 v132, {CNT_LDS}, v132\nds_write_b32 v132, v128")
    VPH = 244
    e(f"v_mul_u32_u24 v132, 800, v3\nv_mul_u32_u24 v133, 40, v2\nv_add3_u32 v132, v132, v133, s76\nv_cmp_eq_u32 vcc, v1, v3\ns_add_u32 s77, s76, {-WPHI_LDS & 0xffffffff}")
    e(f"v_subrev_u32 v132, s77, v132\nv_mov_b32 v133, {ZERO_LDS}\nv_cndmask_b32 v{VPH}, v133, v132, vcc")
    e(f"s_mov_b32 s{S_C2}, {f2u(GC2)}\ns_mov_b32 s{S_C2+1}, {f2u(GC2)}\ns_mov_b32 s{S_L}, {f2u(LOG2E)}\ns_mov_b32 s{S_L+1}, {f2u(LOG2E)}")
    e.fstamp(4)
    e("s_waitcnt lgkmcnt(0)")
    e.fstamp(5)
    e.srd(SRD_WS, S_WS, WS_SIZE)
    S_HO, S_HFL, S_KFL = 12, 72, 74
    e(f"s_lshl_b32 s76, s{S_RB}, 1\ns_lshr_b32 s77, s{S_WV}, 1\ns_add_u32 s15, s76, s77")
    e(f"s_lshl_b32 s76, s{S_RB}, 11\ns_add_u32 s76, s76, {WS_FL + FL_H*128}"); e.wsptr(S_HFL, "s76")
    e(f"s_lshl_b32 s76, s{S_J}, 11\ns_add_u32 s76, s76, {WS_FL + FL_KV*128}"); e.wsptr(S_KFL, "s76")
    S_GO = 3
    e(f"s_lshl_b32 s76, s{S_J}, 13\ns_lshl_b32 s77, s{S_RB}, 9\ns_add_u32 s76, s76, s77\ns_lshl_b32 s77, s{S_WV}, 7\ns_add_u32 s76, s76, s77\ns_add_u32 s{S_GO}, s76, {WS_G}")
    def after_bar0(): e.stamp(2)
    def bias_init(nu, hacc, zero_lo, zero_hi):
        e.fstamp(7)
        for i in list(range(*zero_lo)) + list(range(*zero_hi)): e(f"v_mov_b32 v{i}, 0")
        e("s_waitcnt vmcnt(0)")
        for t in range(nu):
            for m in range(2):
                a = hacc + 8*t + 4*m
                e(f"v_lshlrev_b32 v{a}, 16, v{136+2*t}\nv_and_b32 v{a+1}, 0xffff0000, v{136+2*t}\nv_lshlrev_b32 v{a+2}, 16, v{137+2*t}\nv_and_b32 v{a+3}, 0xffff0000, v{137+2*t}")
        e.stamp(1)
    C1 = 128; T = 130; PK = 140
    def gelu_steps(hacc, nsteps, PK, VL16, skip_from=None, mid=None):
        e(f"v_mov_b32 v{C1}, {f2u(GC1)}\nv_mov_b32 v{C1+1}, {f2u(GC1)}")
        Ls = e.lab("L_hskip")
        for i in range(nsteps):
            if i == skip_from: e(f"s_cmp_eq_u32 s{S_J}, 7\ns_cbranch_scc1 {Ls}")
            for m in range(2):
                d = PK + 4*((2*i + m) % 4)
                a0 = hacc + 16*i + 4*m; a1 = a0 + 8
                gelu_pack(e, [(a0, d), (a0+2, d+1), (a1, d+2), (a1+2, d+3)], T, C1)
                e(f"buffer_store_dwordx4 {vr(d)}, v{VL16}, {sr(SRD_WS)}, s{S_HO} offen offset:{1024*m} sc1")
            e(f"s_add_u32 s{S_HO}, s{S_HO}, 4096")
            if mid and i == 0: mid()
        e(f"{Ls}:")
    WF_ = 140
    QP = 192
    PHR = [f"ds_read_b64_tr_b16 {vr(WF_ + 10*tau + 2*t, 2)}, v{VPH} offset:{160*t + 8*tau}" for tau in range(5) for t in range(5)]
    def phi_stage(P, fill=()):
        for m in range(2):
            for t in range(5):
                a = 8 + 8*t + 4*m
                e(f"v_cvt_pk_bf16_f32 v{QP+10*m+2*t}, v{a}, v{a+1}\nv_cvt_pk_bf16_f32 v{QP+10*m+2*t+1}, v{a+2}, v{a+3}")
        e("s_waitcnt lgkmcnt(0)")
        mf = []
        for ks in range(3):
            for m in range(2):
                for tau in range(5):
                    d = vr(P + 20*m + 4*tau); c = "0" if ks == 0 else d
                    if ks < 2: mf.append(f"v_mfma_f32_16x16x32_bf16 {d}, {vr(WF_+10*tau+4*ks)}, {vr(QP+10*m+4*ks)}, {c}")
                    else: mf.append(f"v_mfma_f32_16x16x16_bf16 {d}, {vr(WF_+10*tau+8,2)}, {vr(QP+10*m+8,2)}, {c}")
        weave(e, mf, fill)
    e(f"s_cmp_eq_u32 s{S_ISQ}, 1\ns_cbranch_scc1 L_CQ")
    AH = [[248, 249], [250, 251], [252, 253], [254, 255]]; AG = [190, 191]
    e("v_lshrrev_b32 v128, 1, v4\nv_lshlrev_b32 v129, 7, v4\nv_lshl_add_u32 v129, v3, 3, v129\nv_add_u32 v129, v129, v6")
    for t in range(4): e(f"v_xor_b32 v130, {t}, v128\nv_lshl_add_u32 v{AH[t][0]}, v130, 5, v129\nv_add_u32 v{AH[t][1]}, {3*WSLOT}, v{AH[t][0]}")
    e(f"v_lshlrev_b32 v{AG[0]}, 4, v1\nv_add_u32 v{AG[1]}, {3*WSLOT}, v{AG[0]}")
    e(f"s_mul_i32 s76, s15, 54\ns_lshl_b32 s77, s{S_J}, 1\ns_add_u32 s76, s76, s77\ns_lshl_b32 s76, s76, 12\ns_and_b32 s77, s{S_WV}, 1\ns_lshl_b32 s77, s77, 11\ns_add_u32 s{S_HO}, s76, s77")
    bias_init(4, 88, (8, 88), (120, 128))
    c_main_loop(e, [Unit(AT, 8*t, 8 + 8*t) for t in range(5)] + [Unit(AT, 1280 + 8*t, 48 + 8*t) for t in range(5)]
                + [Unit(AH[t], 3072, 88 + 8*t) for t in range(4)] + [Unit(AG, 2560, 120, gate=True)], XREG, VXA, RING, D, after_bar0, PHR)
    e.stamp(3)
    if e.opt.get('cprio'): e(f"s_setprio {e.opt['cprio']}")
    e(f"v_mov_b32 v4, 0\nv_mov_b32 v5, v{VL16}")
    VZ0, VL0 = VZ, VL16; VZ, VL16 = 4, 5
    e.lpost(8, 136, 137)
    P = 212; RV = [8, 20]; RP = [140, 160]; EE = 192; XX = 128; AW = 32; AR = 40; AA = [45, 46, 47]
    F = []; f = F.append
    f(f"v_mov_b32 v138, {EXCH_H3 // 16384}\nv_and_b32 v136, 15, v0\ns_lshl_b32 s76, s{S_WV}, 5\nv_add_u32 v136, s76, v136\nv_cmp_eq_u32 vcc, 3, v1\nv_lshlrev_b32 v136, 7, v136\nv_and_b32 v139, 7, v0\nv_cndmask_b32 v137, v1, v138, vcc\nv_lshlrev_b32 v139, 4, v139\nv_lshl_add_u32 v136, v137, 14, v136")
    for m in range(2):
        for t in range(5):
            a = 48 + 8*t + 4*m
            f(f"v_cvt_pk_bf16_f32 v{RV[m]+2*t}, v{a}, v{a+1}\nv_cvt_pk_bf16_f32 v{RV[m]+1+2*t}, v{a+2}, v{a+3}")
        f(f"v_mov_b32 v{RV[m]+10}, 0x3f80\nv_mov_b32 v{RV[m]+11}, 0")
    for i in range(8): f(f"v_xor_b32 v{AW+i}, {16*i}, v139\nv_add_u32 v{AW+i}, v{AW+i}, v136")
    f("\n".join(f"v_mul_f32 v{130+m}, {f2u(-LOG2E)}, v{120+4*m}" for m in range(2)))
    f("\n".join(f"v_exp_f32 v{130+m}, v{130+m}" for m in range(2)))
    f("\n".join(f"v_add_f32 v{130+m}, 1.0, v{130+m}" for m in range(2)))
    f("\n".join(f"v_rcp_f32 v{130+m}, v{130+m}" for m in range(2)) + "\nv_lshlrev_b32 v132, 2, v0")
    phi_stage(P, F)
    e(f"s_mov_b64 exec, 0xffff")
    for m in range(2): e(f"buffer_store_dword v{130+m}, v132, {sr(SRD_WS)}, s{S_GO} offen offset:{64*m} sc1")
    e("s_mov_b64 exec, -1")
    e.stamp(4)
    softmax2(e, P, EE, RP[0], XX, fill=[f"ds_write_b128 v{AW+5+i}, {vr(RV[m]+4*i)} offset:{2048*m}" for m in range(2) for i in range(3)],
             wr=lambda i: e(f"ds_write_b128 v{AW+i}, {vr(RP[0]+4*i)}"))
    e(f"v_lshl_add_u32 v136, v1, 2, v2\nv_and_b32 v137, 7, v136\nv_lshlrev_b32 v136, 7, v136\ns_lshl_b32 s76, s{S_WV}, 14\ns_cmp_eq_u32 s{S_WV}, 3\ns_cmov_b32 s76, {EXCH_H3}\nv_and_b32 v138, 1, v3\nv_lshl_add_u32 v136, v138, 3, v136\nv_add_u32 v136, s76, v136\nv_lshrrev_b32 v138, 1, v3")
    for i, c0 in enumerate([0, 2, 4, 5]): e(f"v_add_u32 v{AR+i}, {c0}, v138\nv_xor_b32 v{AR+i}, v{AR+i}, v137\nv_lshl_add_u32 v{AR+i}, v{AR+i}, 4, v136")
    e(f"v_xor_b32 v{AR+4}, 7, v137\nv_lshl_add_u32 v{AR+4}, v{AR+4}, 4, v136")
    e(f"v_mov_b32 v136, {OOB}\nv_and_b32 v137, 15, v0\nv_cmp_gt_u32 vcc, 32, v0\nv_cndmask_b32 v{AA[0]}, v136, v{VL16}, vcc\nv_cmp_gt_u32 vcc, 5, v137\nv_cndmask_b32 v{AA[1]}, v136, v{VL16}, vcc\nv_cndmask_b32 v{AA[2]}, v136, v{AA[0]}, vcc")
    e(f"s_lshl_b32 s76, s{S_J}, 6\ns_add_u32 s76, s76, s{S_WV}\ns_mul_i32 s76, s76, 6144\ns_add_u32 s4, s76, {WS_KP}\ns_mul_i32 s76, s{S_RB}, 24576\ns_add_u32 s5, s4, s76\ns_add_u32 s6, s5, 4096")
    softmax2(e, P + 20, EE, RP[1], XX, wr=lambda i: e(f"ds_write_b128 v{AW+i}, {vr(RP[1]+4*i)} offset:2048"))
    e.stamp(5)
    e.busy(1, 136, 137, 'a')
    e.lsync(1, 136, 137)
    e.stamp(6)
    FR = lambda st: (48 + 20*st) if st < 2 else (140 + 20*(st - 2))
    KD = 212
    rd = [f"ds_read_b64_tr_b16 {vr(FR(st) + 4*i + 2*h, 2)}, v{AR+i} offset:{4096*st + 2048*h}" for st in range(4) for i in range(5) for h in range(2)]
    for x in rd[:14]: e(x)
    nxt = 14
    for st in range(4):
        need = 10*(st + 1)
        while nxt < need: e(rd[nxt]); nxt += 1
        e(f"s_waitcnt lgkmcnt({nxt - need})")
        for U in range(2):
            for Tt in range(3):
                d = vr(KD + 12*U + 4*Tt)
                e(f"v_mfma_f32_16x16x32_bf16 {d}, {vr(FR(st)+4*Tt)}, {vr(FR(st)+12+4*U)}, {'0' if st == 0 else d}")
                for _ in range(2):
                    if nxt < min(40, need + 14): e(rd[nxt]); nxt += 1
    e.lpost(12, 136, 137)
    e(f"s_mul_i32 s76, s{S_RB}, 14\nv_add_u32 v8, s76, v0\nv_mul_u32_u24 v9, 3121, v8\nv_lshrrev_b32 v9, 16, v9\nv_mul_u32_u24 v10, 21, v9\nv_sub_u32 v10, v8, v10")
    e(f"v_lshrrev_b32 v11, 2, v9\nv_lshrrev_b32 v12, 4, v10\nv_lshl_add_u32 v11, v11, 1, v12\nv_and_b32 v12, 3, v9\nv_and_b32 v13, 15, v10\nv_lshl_add_u32 v12, v12, 4, v13\nv_lshlrev_b32 v12, 4, v12\nv_lshl_add_u32 v11, v11, 10, v12")
    for Tt in range(3):
        for U in range(2):
            av = [[VL16, AA[1]], [VL16, AA[1]], [AA[0], AA[2]]][Tt][U]; ti = 2*Tt + U
            e(f"buffer_store_dwordx4 {vr(KD + 12*U + 4*Tt)}, v{av}, {sr(SRD_WS)}, s{5 if ti < 4 else 6} offen offset:{1024*(ti % 4)} sc1")
    e(f"v_mul_u32_u24 v12, 24, v9\nv_add_lshl_u32 v12, v12, v10, 3\nv_cmp_gt_u32 s[76:77], 14, v0\nv_cmp_gt_u32 vcc, 210, v8\ns_and_b64 vcc, vcc, s[76:77]\nv_mov_b32 v13, {OOB}\nv_cndmask_b32 v11, v13, v11, vcc\nv_cndmask_b32 v12, v13, v12, vcc")
    e(f"s_lshl_b32 s76, s{S_J}, 2\ns_add_u32 s76, s76, s{S_WV}\ns_lshl_b32 s76, s76, 11\ns_add_u32 s7, s76, {WS_KV}")
    e(f"s_add_u32 s68, s{S_KFL}, {(FL_KP - FL_KV)*128}\ns_addc_u32 s69, s{S_KFL+1}, 0")
    e.stamp(7)
    def mid(): e("s_waitcnt vmcnt(2)"); e.busy(-1, 136, 137, 'a'); e.arrive(2, 136, 137, e.signal(68))
    gelu_steps(88, 2, 192, VL16, mid=mid)
    e(f"s_lshl_b32 s76, s{S_RB}, 7\ns_add_u32 s68, s68, s76\ns_addc_u32 s69, s69, 0")
    e.busy(1, 136, 137, 'b')
    e(f"s_add_u32 s{S_HFL}, s{S_HFL}, {(FL_HK - FL_H)*128}\ns_addc_u32 s{S_HFL+1}, s{S_HFL+1}, 0\ns_waitcnt vmcnt(0)")
    e.arrive(0, 136, 137, e.signal(S_HFL))
    e.spoll(68, [34], sleep=e.opt.get('slk', 1), least=16)
    e.busy(1, 136, 137, 'B')
    e.stamp(8)
    SL = 16
    for p in range(16): e(f"buffer_load_dwordx4 {vr(SL + 4*p)}, v11, {sr(SRD_WS)}, s4 offen sc1\ns_add_u32 s4, s4, 24576")
    for p in range(1, 16):
        if p in (1, 4, 8, 12): e(f"s_waitcnt vmcnt({ {1: 12, 4: 8, 8: 4, 12: 0}[p] })")
        e(f"v_pk_add_f32 {vr(SL,2)}, {vr(SL,2)}, {vr(SL+4*p,2)}\nv_pk_add_f32 {vr(SL+2,2)}, {vr(SL+2,2)}, {vr(SL+4*p+2,2)}")
    e(f"v_cvt_pk_bf16_f32 v14, v{SL}, v{SL+1}\nv_cvt_pk_bf16_f32 v15, v{SL+2}, v{SL+3}\nbuffer_store_dwordx2 v[14:15], v12, {sr(SRD_WS)}, s7 offen sc1")
    e("s_waitcnt vmcnt(0)"); e.busy(-1, 136, 137, 'b'); e.busy(-1, 136, 137, 'B')
    e.arrive(4, 136, 137, e.signal(S_KFL))
    e.stamps_out()
    e("s_endpgm")
    VZ, VL16 = VZ0, VL0
    e("L_CQ:")
    AE, AO = [248, 249], [250, 251]
    e(f"v_mul_u32_u24 v128, 320, v4\nv_lshl_add_u32 v128, v3, 3, v128\nv_add_u32 v128, v128, v6\nv_lshlrev_b32 v129, 5, v5")
    e(f"v_add_u32 v{AE[0]}, v128, v129\nv_sub_u32 v{AO[0]}, v128, v129\nv_add_u32 v{AO[0]}, 32, v{AO[0]}\nv_add_u32 v{AE[1]}, {3*WSLOT}, v{AE[0]}\nv_add_u32 v{AO[1]}, {3*WSLOT}, v{AO[0]}")
    e(f"s_mul_i32 s76, s15, 54\ns_mul_i32 s77, s{S_J}, 5\ns_add_u32 s76, s76, s77\ns_add_u32 s76, s76, 16\ns_lshl_b32 s76, s76, 12\ns_and_b32 s77, s{S_WV}, 1\ns_lshl_b32 s77, s77, 11\ns_add_u32 s{S_HO}, s76, s77")
    bias_init(10, 48, (8, 48), (0, 0))
    c_main_loop(e, [Unit(AT, 8*t, 8 + 8*t) for t in range(5)] + [Unit(AE if t % 2 == 0 else AO, 1280 + 32*(t - t % 2), 48 + 8*t) for t in range(10)],
                XREG, VXA, RING, D, after_bar0, PHR)
    e.stamp(3)
    if e.opt.get('cprio'): e(f"s_setprio {e.opt['cprio']}")
    e.busy(1, 136, 137, 'd'); e.lpost(8, 136, 137); e.lpost(12, 136, 137)
    gelu_steps(48, 5, 212, VL16, skip_from=3)
    e.busy(-1, 136, 137, 'd')
    e.stamp(4)
    P = 88
    F = []; f = F.append
    f(f"v_lshlrev_b32 v68, 11, v1\nv_add_u32 v68, {KVT}, v68\nv_cmp_eq_u32 vcc, v1, v2\nv_lshl_add_u32 v69, v3, 3, v68\nv_mov_b32 v70, {ZERO_LDS}\nv_cndmask_b32 v240, v70, v69, vcc\nv_cndmask_b32 v239, v70, v68, vcc")
    f(f"v_and_b32 v241, 15, v0\nv_lshlrev_b32 v241, 2, v241")
    phi_stage(P, F)
    PHI = [192, 212]
    hq = e.opt.get('hq', 0)
    def harr(): e("s_waitcnt vmcnt(0)"); e.arrive(0, 136, 137, e.signal(S_HFL)); e.stamp(5)
    for m in range(2):
        if m == hq: harr()
        softmax2(e, P + 20*m, 48, PHI[m], 128)
    e(f"s_lshl_b32 s76, s{S_J}, 2\ns_add_u32 s76, s76, s{S_WV}\ns_lshl_b32 s76, s76, 11\ns_add_u32 s4, s76, {WS_KV}\ns_lshl_b32 s76, s{S_WV}, 11\ns_add_u32 m0, s76, {KVT}")
    e(f"s_lshl_b32 s76, s15, 3\ns_add_u32 s76, s76, s{S_J}\ns_mul_i32 s76, s76, 10240\ns_add_u32 s76, s76, {WS_OF}\ns_and_b32 s77, s{S_WV}, 1\ns_lshl_b32 s5, s77, 11\ns_add_u32 s5, s5, s76\ns_lshl_b32 s6, s77, 10\ns_add_u32 s6, s6, s76\ns_add_u32 s6, s6, 8192\ns_add_u32 s7, s5, 4096")
    e.stamp(6)
    e(f"s_lshl_b32 s76, s{S_RB}, 7\ns_add_u32 s{S_KFL}, s{S_KFL}, s76\ns_addc_u32 s{S_KFL+1}, s{S_KFL+1}, 0")
    e.spoll(S_KFL, [34], sleep=e.opt.get('slk', 1), least=16)
    e.stamp(7)
    if e.opt.get('oprio', 3): e(f"s_setprio {e.opt.get('oprio', 3)}")
    for t in range(2): e(f"buffer_load_dwordx4 v{VL16}, {sr(SRD_WS)}, s4 offen offset:{1024*t} sc1 lds")
    e.busy(1, 136, 137, 'c')
    for m in range(2): e(f"buffer_load_dword v{62+m}, v241, {sr(SRD_WS)}, s{S_GO} offen offset:{64*m} sc1")
    e("s_waitcnt vmcnt(2)")
    e.lsync(1, 136, 137)
    AF = 64
    seq = [5, 0, 1, 2, 3, 4]
    rd = [f"ds_read2_b64 {vr(AF + 20*n_ + 4*kp)}, v{240 if u < 5 else 239} offset0:{48*kp + 4*u} offset1:{48*kp + 4*u + 24}" for n_, u in enumerate(seq) for kp in range(5)]
    for x in rd[:10]: e(x)
    nxt = 10
    OD = 8
    for n_, u in enumerate(seq):
        e(f"s_waitcnt lgkmcnt({nxt - 5*(n_+1)})")
        F = []
        for _ in range(5):
            if nxt < 30: F.append(rd[nxt]); nxt += 1
        if n_ == 2:
            F.append("s_waitcnt vmcnt(0)")
            F += [f"v_add_f32 v{56+2*m}, {f2u(1e-6)}, v{OD+40+4*m}" for m in range(2)] + [f"v_rcp_f32 v{56+2*m}, v{56+2*m}" for m in range(2)] + [f"v_mul_f32 v{56+2*m}, v{56+2*m}, v{62+m}" for m in range(2)]
        if n_ >= 4:
            for uu in ([0, 1] if n_ == 4 else [2]):
                for m in range(2):
                    a = OD + 8*uu + 4*m
                    F += [f"v_mul_f32 v{a+r}, v{56+2*m}, v{a+r}" for r in range(4)]
                    F += [f"v_cvt_pk_bf16_f32 v{232+8*0 + 0}, v{a}, v{a+1}".replace(f"v{232}", f"v{[184,188][m] + 2*uu if uu < 2 else [244,248][m]}"),
                          f"v_cvt_pk_bf16_f32 v{([184,188][m] + 2*uu if uu < 2 else [244,248][m]) + 1}, v{a+2}, v{a+3}"]
        weave(e, [f"v_mfma_f32_16x16x32_bf16 {vr(OD + 8*u + 4*m)}, {vr(AF + 20*n_ + 4*kp)}, {vr(PHI[m] + 4*kp)}, {'0' if kp == 0 else vr(OD + 8*u + 4*m)}" for kp in range(5) for m in range(2)], F)
        if n_ == 4:
            for m in range(2): e(f"buffer_store_dwordx4 {vr([184,188][m])}, v{VL16}, {sr(SRD_WS)}, s5 offen offset:{1024*m} sc1")
    for uu in (3, 4):
        for m in range(2):
            a = OD + 8*uu + 4*m
            e(f"v_pk_mul_f32 {vr(a,2)}, {vr(a,2)}, {vr(56+2*m,2)} op_sel_hi:[1,0]\nv_pk_mul_f32 {vr(a+2,2)}, {vr(a+2,2)}, {vr(56+2*m,2)} op_sel_hi:[1,0]")
            d = [244, 248][m] + 2 if uu == 3 else 252 + 2*m
            e(f"v_cvt_pk_bf16_f32 v{d}, v{a}, v{a+1}\nv_cvt_pk_bf16_f32 v{d+1}, v{a+2}, v{a+3}")
        if uu == 3:
            for m in range(2): e(f"buffer_store_dwordx4 {vr([244,248][m])}, v{VL16}, {sr(SRD_WS)}, s7 offen offset:{1024*m} sc1")
    e(f"buffer_store_dwordx4 v[252:255], v{VL16}, {sr(SRD_WS)}, s6 offen sc1")
    e(f"s_add_u32 s{S_HFL}, s{S_HFL}, {(FL_O - FL_H)*128}\ns_addc_u32 s{S_HFL+1}, s{S_HFL+1}, 0")
    e.stamp(8)
    e("s_waitcnt vmcnt(0)"); e.busy(-1, 136, 137, 'c'); e.arrive(2, 136, 137, e.signal(S_HFL))
    e.stamps_out()

HEADER = open("gated_mix__linear_kernel_hedgehog__dense_activation_gelu__prompt.s.ref").read().split("; Override launch")[0] if __name__ == "__main__" else ""
if __name__ == "__main__":
    import ast
    kw = ast.literal_eval(sys.argv[2]) if len(sys.argv) > 2 else {}
    open(sys.argv[1], "w").write(HEADER + gen(**kw))
```

```python
import sys
import hazard

NAME = "gated_mix__linear_kernel_hedgehog__dense_activation_gelu__prompt_kernel"
WSLOT = 16384; NW = 5; XBASE = NW*WSLOT; XSLOT = 16384; NX = 3; NSTEP = 20
SPARE = XBASE + NX*XSLOT
ZERO_LDS = SPARE; CNT_LDS = SPARE + 2048; WPHI_LDS = SPARE + 2304; KVT = WPHI_LDS; STG = WPHI_LDS + 8192
EXCH_H3 = XBASE + 2*XSLOT; PARK = 3*WSLOT
assert STG + 4*5120 <= 163840
LDS_TOTAL = 163840
WS_HF = 0; WS_OF = 0x700000; WS_WF = 0xA00000; WS_G = 0xD00000; WS_KV = 0xE00000; WS_FL = 0xE20000; WS_KP = 0x1000000
WS_SIZE = 0x1400000; WS_STAMP = 0x2000000
FL_H, FL_HK, FL_O, FL_KV, FL_KP, FL_W = 0, 256, 512, 768, 896, 1024
NINIT = 5
OOB = 0x40000000
S_X, S_WQKV, S_WPHI, S_WO, S_BX, S_W1, S_B1, S_W2 = 16, 18, 20, 22, 24, 26, 28, 30
S_B2, S_GATE, S_OUT, S_DBG, S_WS = 32, 34, 36, 38, 40
SRD_X, SRD_WS, SRD_T, SRD_D = 44, 48, 52, 56
S_RB, S_J, S_ISQ, S_WAVE, S_PH, S_WV, S_R64, S_CB = 60, 61, 62, 63, 64, 65, 66, 67
S_KK, S_XK, S_XOFF, S_M0X, S_M0W = 68, 69, 4, 5, 6
S_C2, S_L = 8, 10
LOG2E = 1.4426950408889634
import struct, math
def f2u(x): return struct.unpack('<I', struct.pack('<f', x))[0]
GC1 = -2.0 * LOG2E * math.sqrt(2.0 / math.pi); GC2 = GC1 * 0.044715

def vr(b, n=4): return f"v[{b}:{b+n-1}]" if n > 1 else f"v{b}"
def sr(b, n=4): return f"s[{b}:{b+n-1}]"

class G:
    def __init__(self, diag=False, **opt):
        self.L = []; self.diag = diag; self.opt = opt; self.nlab = 0
    def __call__(self, s): self.L.append(s)
    def dsbatch(self, lst):
        for i, x in enumerate(lst):
            if i >= 15 and (i - 15) % 5 == 0: self("s_waitcnt lgkmcnt(10)")
            self(x)
    def lab(self, p="L"): self.nlab += 1; return f"{p}_{self.nlab}"
    def srd(self, R, p, size):
        self(f"s_mov_b32 s{R}, s{p}\ns_mov_b32 s{R+1}, s{p+1}\ns_mov_b32 s{R+2}, {size}\ns_mov_b32 s{R+3}, 0x20000")
    def fstamp(self, i):
        if self.opt.get('fine'): self(f"s_memtime s[{80+2*i}:{81+2*i}]")
    def stamp(self, i):
        if self.opt.get('fine') and 3 <= i <= 8: return
        if self.diag and (i == 9 or not self.opt.get('lite')): self(f"s_waitcnt lgkmcnt(0)\ns_memtime s[{80+2*i}:{81+2*i}]\ns_waitcnt lgkmcnt(0)")
    def stamps_out(self):
        if not self.diag: return
        e = self
        e(f"s_waitcnt vmcnt(0) lgkmcnt(0)")
        e.stamp(9)
        e("s_memrealtime s[72:73]\ns_waitcnt lgkmcnt(0)")
        e(f"s_mov_b32 s{SRD_T}, s{S_WS}\ns_mov_b32 s{SRD_T+1}, s{S_WS+1}\ns_mov_b32 s{SRD_T+2}, 0x10000000\ns_mov_b32 s{SRD_T+3}, 0x20000")
        e(f"s_lshl_b32 s70, s2, 3\ns_add_u32 s70, s70, s{S_WAVE}\ns_lshl_b32 s70, s70, 6\ns_add_u32 s70, s70, {WS_STAMP}")
        e("s_mov_b64 exec, 1\nv_mov_b32 v1, 0")
        for i in range(10):
            if i: e(f"s_sub_u32 s71, s{80+2*i}, s80")
            else: e("s_mov_b32 s71, s80")
            e(f"v_mov_b32 v2, s71\nbuffer_store_dword v2, v1, {sr(SRD_T)}, s70 offen offset:{4*i}")
        e(f"v_mov_b32 v2, s100\nbuffer_store_dword v2, v1, {sr(SRD_T)}, s70 offen offset:40\nv_mov_b32 v2, s72\nbuffer_store_dword v2, v1, {sr(SRD_T)}, s70 offen offset:44")
        e("s_waitcnt vmcnt(0)")
        if self.opt.get('dbgrt'):
            e("s_memrealtime s[70:71]\ns_waitcnt lgkmcnt(0)")
            e.srd(SRD_T, S_DBG, 256)
            e(f"v_mov_b32 v2, s70\nbuffer_atomic_umax v2, v1, {sr(SRD_T)}, 0 offen offset:4 sc1")
            e(f"s_not_b32 s71, s100\nv_mov_b32 v2, s71\nbuffer_atomic_umax v2, v1, {sr(SRD_T)}, 0 offen offset:8 sc1")
            for i in range(1, 10):
                e(f"s_sub_u32 s71, s{80+2*i}, s80\ns_cmp_gt_u32 s71, 0x1000000\ns_cmov_b32 s71, 0\nv_mov_b32 v2, s71\nbuffer_atomic_umax v2, v1, {sr(SRD_T)}, 0 offen offset:{8+4*i} sc1")
            e(f"v_mov_b32 v2, s100\nbuffer_atomic_umax v2, v1, {sr(SRD_T)}, 0 offen offset:48 sc1")
            e("s_waitcnt vmcnt(0)")
    def wsptr(self, d, soff):
        self(f"s_add_u32 s{d}, s{S_WS}, {soff}\ns_addc_u32 s{d+1}, s{S_WS+1}, 0")
    def sprobe(self, base, dst):
        for i, d in enumerate(dst): self(f"s_load_dword s{d}, s[{base}:{base+1}], {128*i} glc")
    def spoll(self, base, dst, probed=False, sleep=1, least=None):
        e = self; L = e.lab("L_sp"); C = e.lab("L_spc"); D = e.lab("L_spd")
        e("s_mov_b32 s79, 0")
        if probed: e(f"s_branch {C}") if False else None
        def chk():
            e("s_waitcnt lgkmcnt(0)")
            if least is not None: e(f"s_cmp_ge_u32 s{dst[0]}, {least}")
            elif len(dst) == 1: e(f"s_cmp_lg_u32 s{dst[0]}, 0")
            else:
                for d in dst[1:]: e(f"s_and_b32 s{dst[0]}, s{dst[0]}, s{d}")
            e(f"s_cbranch_scc1 {D}")
        if probed: chk()
        e(f"{L}:"); e.sprobe(base, dst); chk()
        e(f"s_add_u32 s79, s79, 1\ns_cmp_ge_u32 s79, 0x200000\ns_cbranch_scc1 L_end")
        if sleep: e(f"s_sleep {sleep}")
        e(f"s_branch {L}\n{D}:")
    def arrive(self, cnt, va, vt, then):
        e = self; D = e.lab("L_arr")
        e(f"s_mov_b64 exec, 1\nv_mov_b32 v{va}, {CNT_LDS + 4*cnt}\nv_mov_b32 v{vt}, 1\nds_add_rtn_u32 v{va}, v{va}, v{vt}\ns_waitcnt lgkmcnt(0)")
        e(f"v_readfirstlane_b32 s78, v{va}\ns_mov_b64 exec, -1\ns_cmp_lg_u32 s78, 3\ns_cbranch_scc1 {D}")
        then(D)
        e(f"{D}:")
    def signal(self, base):
        def f(D):
            for i in range(16): self(f"s_mov_b32 s{16+i}, 1\ns_atomic_add s{16+i}, s[{base}:{base+1}], {128*i} glc")
        return f
    def vpoll(self, srd, soff, target, vz, vt):
        e = self; L = e.lab("L_vp"); D = e.lab("L_vpd")
        e(f"s_mov_b32 s79, 0\n{L}:\nv_cmp_gt_u32 vcc, {target}, v{vt}\ns_cmp_eq_u64 vcc, 0\ns_cbranch_scc1 {D}")
        e(f"s_add_u32 s79, s79, 1\ns_cmp_ge_u32 s79, 0x100000\ns_cbranch_scc1 L_end\ns_sleep 2")
        e(f"buffer_load_dword v{vt}, v{vz}, {sr(srd)}, {soff} offen sc1\ns_waitcnt vmcnt(0)\ns_branch {L}\n{D}:")
    def lpost(self, cnt, va, vt):
        self(f"s_mov_b64 exec, 1\nv_mov_b32 v{va}, {CNT_LDS + 4*cnt}\nv_mov_b32 v{vt}, 1\nds_add_u32 v{va}, v{vt}\ns_mov_b64 exec, -1")
    def lwait(self, cnt, va, vt, sleep=1):
        e = self; L = e.lab("L_lw"); D = e.lab("L_lwd")
        e(f"v_mov_b32 v{va}, {CNT_LDS + 4*cnt}\ns_mov_b32 s79, 0\n{L}:\nds_read_b32 v{vt}, v{va}\ns_waitcnt lgkmcnt(0)\nv_readfirstlane_b32 s78, v{vt}\ns_cmp_ge_u32 s78, 4\ns_cbranch_scc1 {D}")
        e(f"s_add_u32 s79, s79, 1\ns_cmp_ge_u32 s79, 0x1000000\ns_cbranch_scc1 L_end\n" + (f"s_sleep {sleep}\n" if sleep else "") + f"s_branch {L}\n{D}:")
    def busy(self, d, va, vt, w=''):
        if w in self.opt.get('yld', ''): self(f"s_mov_b64 exec, 1\nv_mov_b32 v{va}, {CNT_LDS + 4*11}\nv_mov_b32 v{vt}, {d}\nds_add_u32 v{va}, v{vt}\ns_mov_b64 exec, -1")
    def lsync(self, cnt, va, vt):
        e = self; L = e.lab("L_ls")
        e(f"s_waitcnt lgkmcnt(0)\ns_mov_b64 exec, 1\nv_mov_b32 v{va}, {CNT_LDS + 4*cnt}\nv_mov_b32 v{vt}, 1\nds_add_u32 v{va}, v{vt}\ns_mov_b32 s79, 0\n{L}:")
        e(f"ds_read_b32 v{vt}, v{va}\ns_waitcnt lgkmcnt(0)\nv_readfirstlane_b32 s78, v{vt}\ns_add_u32 s79, s79, 1\ns_cmp_ge_u32 s79, 0x1000000\ns_cbranch_scc1 L_end\ns_cmp_lt_u32 s78, 4\ns_cbranch_scc1 {L}\ns_mov_b64 exec, -1")

SA, SAE, SAS, SB, SBE, SBS, SA2, SB2, SOA, SOB, SG, SPK = 16, 17, 18, 19, 24, 25, 26, 27, 28, 29, 10, 11
SFH, SFW = 34, 8
SPD = [20]
P3_ACC = 176; P3_B2 = 100; P3_VT = [10, 11, 12, 3]; P3_VL2 = 13; P3_VLB = 5; P3_VF = 171
p3acc = lambda u, t: P3_ACC + 16*u + 4*t

class Unit:
    def __init__(self, areg, off, acc, gate=False): self.areg, self.off, self.acc, self.gate = areg, off, acc, gate

def c_main_loop(e, units, xreg, xaddr, ring, D, after_bar0, tail=()):
    tail = list(tail)
    n = len(units); R = D + 2; lg = []; total = NSTEP * n
    def wait_lg(tags):
        idx = max([i for i, t in enumerate(lg) if t in tags], default=-1)
        if idx < 0: return
        cnt = len(lg) - 1 - idx; assert cnt <= 15
        e(f"s_waitcnt lgkmcnt({cnt})"); del lg[:idx + 1]
    def xreads(s, out):
        for m in range(2):
            out.append(f"ds_read_b128 {vr(xreg + 8*(s % 2) + 4*m)}, v{xaddr[s % 2]} offset:{((s//2) % NX)*XSLOT + m*2048}"); lg.append(('x', s))
    def wreads(q, out):
        s, u = divmod(q, n); U = units[u]; r = ring + 4*(q % R); slot = s % NW
        a = U.areg[slot // 3]; o = (slot % 3)*WSLOT + U.off
        if U.gate:
            out.append(f"ds_read_b128 {vr(r)}, v{a} offset:{o}"); lg.append(('w', q)); return
        out.append(f"ds_read_b64_tr_b16 {vr(r,2)}, v{a} offset:{o}"); out.append(f"ds_read_b64_tr_b16 {vr(r+2,2)}, v{a} offset:{o + 4096}")
        lg.extend([('w', q)]*2)
    e("s_barrier"); after_bar0()
    buf = []; xreads(0, buf)
    for q in range(D): wreads(q, buf)
    for b in buf: e(b)
    for q in range(total):
        s, u = divmod(q, n)
        tags = [('w', q), ('x', s)]
        if q % 2 == 0 and q + 1 < total: tags += [('w', q + 1), ('x', (q + 1)//n)]
        wait_lg(tags)
        buf = []; qa = q + D
        if qa < total:
            if qa % n == 0: buf.append("s_barrier"); xreads(qa // n, buf)
            wreads(qa, buf)
        elif tail:
            k_ = -(-len(tail) // (total - q))
            for x in tail[:k_]:
                if len(lg) >= 15: buf.append("s_waitcnt lgkmcnt(10)"); del lg[:len(lg) - 10]
                buf.append(x); lg.append(('t',))
            del tail[:k_]
        U = units[u]; r = ring + 4*(q % R); half = (len(buf) + 1)//2
        for m in range(2):
            acc = vr(U.acc + 4*m)
            e(f"v_mfma_f32_16x16x32_bf16 {acc}, {vr(r)}, {vr(xreg + 8*(s % 2) + 4*m)}, {acc}")
            for b in (buf[:half] if m == 0 else buf[half:]): e(b)

def gelu_pack(e, jobs, T, C1):
    for i in range(0, len(jobs), 4):
        grp = jobs[i:i+4]
        for k, (s, d) in enumerate(grp): e(f"v_pk_mul_f32 {vr(T+2*k,2)}, {vr(s,2)}, {vr(s,2)}")
        for k, (s, d) in enumerate(grp): e(f"v_pk_fma_f32 {vr(T+2*k,2)}, {vr(T+2*k,2)}, {sr(S_C2,2)}, {vr(C1,2)}")
        for k, (s, d) in enumerate(grp): e(f"v_pk_mul_f32 {vr(T+2*k,2)}, {vr(T+2*k,2)}, {vr(s,2)}")
        for k in range(2*len(grp)): e(f"v_exp_f32 v{T+k}, v{T+k}")
        for k, (s, d) in enumerate(grp): e(f"v_pk_add_f32 {vr(T+2*k,2)}, {vr(T+2*k,2)}, 1.0 op_sel_hi:[1,0]")
        for k in range(2*len(grp)): e(f"v_rcp_f32 v{T+k}, v{T+k}")
        for k, (s, d) in enumerate(grp): e(f"v_pk_mul_f32 {vr(T+2*k,2)}, {vr(T+2*k,2)}, {vr(s,2)}")
        for k, (s, d) in enumerate(grp): e(f"v_cvt_pk_bf16_f32 v{d}, v{T+2*k}, v{T+2*k+1}")

def softmax2(e, P, E, OUT, X, fill=(), wr=None):
    B = []; o = lambda t: B.extend(t.split("\n"))
    mx, mn = X, X + 2
    o(f"v_max3_f32 v{mx}, v{P}, v{P+1}, v{P+2}\nv_min3_f32 v{mn}, v{P}, v{P+1}, v{P+2}")
    for i in range(3, 19, 2): o(f"v_max3_f32 v{mx}, v{mx}, v{P+i}, v{P+i+1}\nv_min3_f32 v{mn}, v{mn}, v{P+i}, v{P+i+1}")
    o(f"v_max_f32 v{mx}, v{mx}, v{P+19}\nv_min_f32 v{mn}, v{mn}, v{P+19}")
    o(f"v_mul_f32 v{mx}, s{S_L}, v{mx}\nv_mul_f32 v{mn}, s{S_L}, v{mn}")
    for i in range(0, 20, 2):
        o(f"v_pk_fma_f32 {vr(E+i,2)}, {vr(P+i,2)}, {sr(S_L,2)}, {vr(mx,2)} op_sel_hi:[1,1,0] neg_lo:[0,0,1] neg_hi:[0,0,1]")
        o(f"v_pk_fma_f32 {vr(P+i,2)}, {vr(P+i,2)}, {sr(S_L,2)}, {vr(mn,2)} op_sel_hi:[1,1,0] neg_lo:[1,0,0] neg_hi:[1,0,0]")
    for i in range(20): o(f"v_exp_f32 v{E+i}, v{E+i}\nv_exp_f32 v{P+i}, v{P+i}")
    sp, sn = X + 4, X + 6
    o(f"v_pk_add_f32 {vr(sp,2)}, {vr(E,2)}, {vr(E+2,2)}\nv_pk_add_f32 {vr(sn,2)}, {vr(P,2)}, {vr(P+2,2)}")
    for i in range(4, 20, 2): o(f"v_pk_add_f32 {vr(sp,2)}, {vr(sp,2)}, {vr(E+i,2)}\nv_pk_add_f32 {vr(sn,2)}, {vr(sn,2)}, {vr(P+i,2)}")
    o(f"v_add_f32 v{sp}, v{sp}, v{sp+1}\nv_add_f32 v{sn}, v{sn}, v{sn+1}\nv_rcp_f32 v{sp}, v{sp}\nv_rcp_f32 v{sn}, v{sn}")
    fill = list(fill); step = len(B) // (len(fill) + 1)
    for i, x in enumerate(B):
        e(x)
        if fill and (i + 1) % step == 0: e(fill.pop(0))
    for src, sc, half in ((E, sp, 0), (P, sn, 1)):
        for i in range(10):
            e(f"v_pk_mul_f32 {vr(src+2*i,2)}, {vr(src+2*i,2)}, {vr(sc,2)} op_sel_hi:[1,0]")
            if i >= 1: e(f"v_cvt_pk_bf16_f32 v{OUT+10*half+i-1}, v{src+2*i-2}, v{src+2*i-1}")
            done = 10*half + i
            if wr and i >= 1 and done % 4 == 0: wr(done // 4 - 1)
        e(f"v_cvt_pk_bf16_f32 v{OUT+10*half+9}, v{src+18}, v{src+19}")
    if wr: wr(4)

def weave(e, main, fill, per=2):
    fill = [x for t in fill for x in t.split("\n")]
    for x in main:
        e(x)
        for _ in range(per):
            if fill: e(fill.pop(0))
    for x in fill: e(x)

def gen(diag=False, D=5, rot=(10, 20, 5, 5), PB=5, **opt):
    e = G(diag, **opt)
    e(f"; @launch grid=(256,1,1) block=(512,1,1) lds={LDS_TOTAL}")
    e(f'.amdgcn_target "amdgcn-amd-amdhsa--gfx950"\n.text\n.globl {NAME}\n.p2align 8\n.type {NAME},@function\n{NAME}:')
    if diag: e("s_memtime s[80:81]\ns_memrealtime s[100:101]")
    e("s_cmp_ge_u32 s2, 256\ns_cbranch_scc1 L_end")
    e("s_load_dwordx16 s[16:31], s[0:1], 0\ns_load_dwordx8 s[32:39], s[0:1], 64\ns_load_dwordx2 s[40:41], s[0:1], 96")
    if opt.get('epf', False):
        e(f"s_getpc_b64 s[12:13]\nL_pc0:\nv_lshlrev_b32 v2, 4, v0\nv_and_b32 v2, 0xc00, v2\nv_and_b32 v3, 7, v0\nv_lshl_add_u32 v2, v3, 7, v2")
        e(f"v_mov_b32 v3, L_C-L_pc0\nv_cmp_gt_u32 vcc, 256, v0\nv_cndmask_b32 v3, 0, v3, vcc\nv_add_u32 v2, v2, v3\ns_mov_b64 exec, 0xff\nglobal_load_dword v186, v2, s[12:13]\ns_mov_b64 exec, -1")
    e(f"v_lshrrev_b32 v1, 6, v0\nv_and_b32 v0, 63, v0")
    e(f"s_and_b32 s70, s2, 7\ns_lshr_b32 s71, s2, 3")
    e(f"v_readfirstlane_b32 s{S_WAVE}, v1")
    e(f"s_and_b32 s72, s70, 1\ns_and_b32 s73, s71, 7\ns_lshl_b32 s74, s72, 3\ns_add_u32 s{S_RB}, s74, s73")
    if opt.get('mix', True):
        e(f"s_lshr_b32 s{S_ISQ}, s71, 4\ns_lshr_b32 s74, s70, 1\ns_lshr_b32 s75, s71, 3")
        e(f"s_and_b32 s76, s75, 1\ns_lshl_b32 s77, s74, 1\ns_add_u32 s{S_J}, s76, s77")
    else:
        e(f"s_lshr_b32 s{S_ISQ}, s70, 2\ns_lshr_b32 s74, s70, 1\ns_lshr_b32 s75, s71, 3")
        e(f"s_and_b32 s76, s74, 1\ns_lshl_b32 s76, s76, 2\ns_add_u32 s{S_J}, s76, s75")
    a, b, c, d = rot
    e(f"s_mul_i32 s76, s73, {a}\ns_mul_i32 s77, s75, {b}\ns_add_u32 s76, s76, s77\ns_mul_i32 s77, s74, {c}\ns_add_u32 s76, s76, s77\ns_mul_i32 s77, s72, {d}\ns_add_u32 s76, s76, s77\ns_lshr_b32 s76, s76, 3")
    e(f"s_mul_i32 s77, s76, 6554\ns_lshr_b32 s77, s77, 16\ns_mul_i32 s77, s77, 10\ns_sub_u32 s{S_PH}, s76, s77")
    e(f"s_and_b32 s{S_WV}, s{S_WAVE}, 3")
    e.fstamp(3)
    e(f"s_cmp_lt_u32 s{S_WAVE}, 4\ns_cbranch_scc1 L_C")
    m_wave(e, PB)
    e("L_C:")
    c_wave(e, D)
    e("L_end:\ns_endpgm")
    e(f""".section .rodata,"a"
.p2align 6
.amdhsa_kernel {NAME}
  .amdhsa_next_free_vgpr 256
  .amdhsa_next_free_sgpr 102
  .amdhsa_accum_offset 256
  .amdhsa_group_segment_fixed_size 0
  .amdhsa_kernarg_size 104
  .amdhsa_user_sgpr_count 2
  .amdhsa_user_sgpr_kernarg_segment_ptr 1
  .amdhsa_system_sgpr_workgroup_id_x 1
.end_amdhsa_kernel""")
    txt, n = hazard.fix("\n".join(e.L), opt.get('verbose', False))
    return txt + "\n"

def x_setup(e, VX):
    e(f"v_lshrrev_b32 v2, 3, v0\ns_lshl_b32 s76, s{S_WV}, 4\nv_add_u32 v2, s76, v2")
    e(f"v_lshrrev_b32 v3, 4, v0\nv_xor_b32 v3, v3, v0\nv_and_b32 v3, 7, v3\nv_lshlrev_b32 v3, 4, v3")
    e(f"v_mul_u32_u24 v2, 1280, v2\nv_add_u32 v{VX[0]}, v2, v3")
    e(f"v_xor_b32 v3, 64, v3\nv_add_u32 v2, {8*1280-1024}, v2\nv_add_u32 v{VX[1]}, v2, v3")
    e(f"s_mul_i32 s{S_XOFF}, s{S_RB}, {128*1280}\ns_lshl_b32 s{S_M0X}, s{S_WV}, 11\ns_add_u32 s{S_M0X}, s{S_M0X}, {XBASE}\ns_lshl_b32 s{S_XK}, s{S_PH}, 7")
XADV = f"s_add_u32 s{S_XK}, s{S_XK}, 128\ns_cmp_eq_u32 s{S_XK}, 1280\ns_cmov_b32 s{S_XK}, 0"
def dma_x_ops(VX, X, h):
    pre = f"s_add_u32 s76, s{S_XK}, {h*81920}\ns_add_u32 m0, s{S_M0X}, {(X % NX)*XSLOT + h*8192}\ns_add_u32 s76, s76, s{S_XOFF}\n"
    return [(('x', X), pre + f"buffer_load_dwordx4 v{VX[0]}, {sr(SRD_X)}, s76 offen lds"),
            (('x', X), f"buffer_load_dwordx4 v{VX[1]}, {sr(SRD_X)}, s76 offen offset:1024 lds" + ("\n" + XADV if h else ""))]

def m_wave(e, PB):
    e("s_setprio 3")
    VX = [16, 17]; VB = [18, 20, 22, 24]; VS = [26, 27, 28, 29]; VA = [30, 32, 34, 36]
    e(f"s_lshl_b32 s{S_M0W}, s{S_WV}, 12\ns_lshl_b32 s{S_KK}, s{S_PH}, 1")
    e(f"s_lshr_b32 s76, s{S_WV}, 1\ns_lshl_b32 s76, s76, 4\ns_and_b32 s77, s{S_WV}, 1\ns_lshl_b32 s77, s77, 2\ns_add_u32 s78, s76, s77")
    def krow(dst, rho):
        e(f"v_and_b32 v{dst}, 4, v{rho}\nv_add3_u32 v{dst}, v{dst}, v{rho}, s78")
    def panel(dst, ci0, colreg, kv):
        e(f"v_add_u32 v2, {ci0}, v0\nv_mul_u32_u24 v3, 6554, v2\nv_lshrrev_b32 v3, 16, v3\nv_mul_u32_u24 v4, 10, v3\nv_sub_u32 v4, v2, v4")
        if kv: e(f"v_lshrrev_b32 v6, 3, v3\nv_and_b32 v3, 7, v3\nv_mul_u32_u24 v6, 1280, v6\nv_lshl_add_u32 v4, v4, 4, v6")
        else: e(f"v_lshlrev_b32 v4, 4, v4")
        krow(5, 3)
        e(f"v_mul_u32_u24 v5, 3840, v5\nv_add3_u32 v{dst}, v5, v4, s{colreg}")
    def h160(dst, hi0):
        e(f"v_add_u32 v2, {hi0}, v0\nv_min_i32 v2, 159, v2\nv_max_i32 v2, 0, v2\nv_mul_u32_u24 v3, 3277, v2\nv_lshrrev_b32 v3, 16, v3\nv_mul_u32_u24 v4, 20, v3\nv_sub_u32 v4, v2, v4")
        e(f"v_lshrrev_b32 v6, 1, v3\nv_and_b32 v6, 2, v6\nv_xor_b32 v4, v4, v6\nv_min_u32 v4, s77, v4\nv_lshlrev_b32 v4, 4, v4")
        krow(5, 3)
        e(f"v_mul_u32_u24 v5, 3456, v5\nv_add3_u32 v{dst}, v5, v4, s76")
    def addptr(b, off, plo, phi):
        if b: e(f"v_subrev_u32 v{off}, {1024*b}, v{off}\nv_ashrrev_i32 v7, 31, v{off}")
        else: e(f"v_mov_b32 v7, 0")
        e(f"v_add_co_u32 v{VB[b]}, vcc, {plo}, v{off}")
        if phi.startswith('s'): e(f"v_mov_b32 v6, {phi}"); phi = "v6"
        e(f"v_addc_co_u32 v{VB[b]+1}, vcc, {phi}, v7, vcc")
    vm = [('pf',)] if e.opt.get('epf', False) else []
    def emit(lst):
        for tag, txt in lst: e(txt); vm.append(tag)
    def wait_vm(pred):
        idx = max([i for i, t in enumerate(vm) if pred(t)], default=-1)
        if idx >= 0: e(f"s_waitcnt vmcnt({len(vm)-1-idx})"); del vm[:idx+1]
    def dma_w(step):
        pre = "".join(f"v_mad_u64_u32 {vr(VA[b],2)}, vcc, v{VS[b]}, s{S_KK}, {vr(VB[b],2)}\n" for b in range(4))
        pre += f"s_add_u32 m0, s{S_M0W}, {(step % NW)*WSLOT}\ns_add_u32 s{S_KK}, s{S_KK}, 1\ns_cmp_eq_u32 s{S_KK}, 20\ns_cmov_b32 s{S_KK}, 0\n"
        return [(('w', step), (pre if b == 0 else "") + f"global_load_lds_dwordx4 {vr(VA[b],2)}, off offset:{1024*b}") for b in range(4)]
    dma_x = lambda X, h: dma_x_ops(VX, X, h)
    O = [8, 46, 10, 11, 12]
    e(f"s_cmp_eq_u32 s{S_ISQ}, 1\ns_cbranch_scc1 L_MQ")
    e(f"s_mul_i32 s76, s{S_J}, 160\ns_add_u32 s76, s76, 1280")
    panel(O[0], 0, 76, True); panel(O[1], 64, 76, True); panel(O[2], 128, 76, True)
    e(f"v_lshrrev_b32 v3, 3, v0\nv_and_b32 v4, 6, v3\nv_xor_b32 v4, v4, v0\nv_and_b32 v4, 7, v4\nv_lshlrev_b32 v4, 4, v4\ns_lshl_b32 s76, s{S_J}, 7")
    krow(5, 3)
    e(f"v_mul_u32_u24 v5, 3456, v5\nv_add3_u32 v{O[3]}, v5, v4, s76")
    e(f"v_subrev_u32 v2, 32, v0\nv_min_u32 v2, 3, v2\nv_lshlrev_b32 v2, 4, v2\nv_cmp_gt_u32 s[14:15], 32, v0")
    e(f"v_mov_b32 v{VS[0]}, {32*3840}\nv_mov_b32 v{VS[1]}, {32*3840}\nv_mov_b32 v{VS[3]}, {32*3456}\nv_cndmask_b32 v{O[2]}, v2, v{O[2]}, s[14:15]\nv_cndmask_b32 v{VS[2]}, 64, v{VS[0]}, s[14:15]")
    e.fstamp(4)
    e("s_waitcnt lgkmcnt(0)")
    e.fstamp(5)
    addptr(0, O[0], f"s{S_WQKV}", f"s{S_WQKV+1}"); addptr(1, O[1], f"s{S_WQKV}", f"s{S_WQKV+1}"); addptr(3, O[3], f"s{S_W1}", f"s{S_W1+1}")
    e(f"v_mov_b32 v2, s{S_GATE}\nv_mov_b32 v3, s{S_WQKV}\nv_cndmask_b32 v2, v2, v3, s[14:15]\nv_mov_b32 v3, s{S_GATE+1}\nv_mov_b32 v4, s{S_WQKV+1}\nv_cndmask_b32 v3, v3, v4, s[14:15]")
    addptr(2, O[2], "v2", "v3")
    e("s_branch L_Mgo\nL_MQ:")
    e(f"s_mul_i32 s79, s{S_J}, 160\ns_mul_i32 s76, s{S_J}, 320\ns_add_u32 s76, s76, 1024\ns_cmp_eq_u32 s{S_J}, 7\ns_cselect_b32 s77, 11, 19")
    panel(O[0], 0, 79, False); panel(O[1], 64, 79, False); h160(O[4], -16); h160(O[2], 48); h160(O[3], 112)
    e(f"v_cmp_gt_u32 s[14:15], 16, v0\nv_mov_b32 v{VS[0]}, {32*3840}\nv_mov_b32 v{VS[2]}, {32*3456}\nv_mov_b32 v{VS[3]}, {32*3456}")
    e(f"v_cndmask_b32 v{O[1]}, v{O[4]}, v{O[1]}, s[14:15]\nv_cndmask_b32 v{VS[1]}, v{VS[2]}, v{VS[0]}, s[14:15]")
    e.fstamp(4)
    e("s_waitcnt lgkmcnt(0)")
    e.fstamp(5)
    addptr(0, O[0], f"s{S_WQKV}", f"s{S_WQKV+1}"); addptr(2, O[2], f"s{S_W1}", f"s{S_W1+1}"); addptr(3, O[3], f"s{S_W1}", f"s{S_W1+1}")
    e(f"v_mov_b32 v2, s{S_W1}\nv_mov_b32 v3, s{S_WQKV}\nv_cndmask_b32 v2, v2, v3, s[14:15]\nv_mov_b32 v3, s{S_W1+1}\nv_mov_b32 v4, s{S_WQKV+1}\nv_cndmask_b32 v3, v3, v4, s[14:15]")
    addptr(1, O[1], "v2", "v3")
    e("L_Mgo:")
    LA = e.opt.get('LA', 2); JS = e.opt.get('JS', 8)
    emit(dma_w(0))
    e.stamp(1)
    emit(dma_w(1))
    x_setup(e, VX); e.srd(SRD_X, S_X, 2048*1280); e(XADV)
    if LA >= 3: emit(dma_x(1, 0)); emit(dma_w(2))
    e(f"s_setprio {e.opt.get('mprio', 0)}")
    e(f"s_and_b32 s76, s70, 3\ns_lshl_b32 s76, s76, 3\ns_add_u32 s{S_R64}, s76, s73\ns_and_b32 s76, s70, 4\ns_add_u32 s{S_CB}, s76, s75")
    e(f"s_mul_i32 s7, s73, 5\ns_mul_i32 s76, s75, 10\ns_add_u32 s7, s7, s76\ns_lshr_b32 s7, s7, 2")
    VZ, VL16 = 1, 15
    VJ = [38, 39, 40, 41, 42]; VJR = 43; VP = 14; JF = 48
    chunks = {}
    def c0():
        e.srd(SRD_WS, S_WS, WS_SIZE); e.srd(SRD_D, S_DBG, 256)
        e(f"v_mov_b32 v{VZ}, 0\nv_lshlrev_b32 v{VL16}, 4, v0")
        e(f"s_mul_i32 s70, s2, 37\ns_add_u32 s71, s70, 37\ns_lshr_b32 s70, s70, 4\ns_lshr_b32 s71, s71, 4\ns_add_u32 s72, s70, s{S_WV}\ns_sub_u32 s70, s72, s71\ns_lshr_b32 s71, s72, 3\ns_and_b32 s72, s72, 7")
        e(f"s_sub_u32 s73, s71, 54\ns_mul_i32 s77, s73, 6554\ns_lshr_b32 s77, s77, 15\ns_mul_i32 s78, s77, 5\ns_sub_u32 s78, s73, s78")
        e(f"s_mul_i32 s73, s77, 160\ns_lshr_b32 s77, s78, 1\ns_mul_i32 s77, s77, 80\ns_and_b32 s79, s78, 1\ns_lshl_b32 s79, s79, 3\ns_add_u32 s77, s77, s79")
        e(f"s_cmp_eq_u32 s78, 4\ns_cselect_b32 s77, 16, s77\ns_cselect_b32 s75, 80, 4\ns_add_u32 s73, s73, s77\ns_mov_b32 s74, 20")
    def c1():
        e(f"s_lshl_b32 s77, s71, 5\ns_cmp_lt_u32 s71, 54\ns_cselect_b32 s73, s77, s73\ns_cselect_b32 s74, 4, s74\ns_cselect_b32 s75, 16, s75")
        e(f"s_cselect_b32 s{SRD_T}, s{S_W2}, s{S_WO}\ns_cselect_b32 s{SRD_T+1}, s{S_W2+1}, s{S_WO+1}\ns_mov_b32 s{SRD_T+2}, {640*1280}\ns_cmov_b32 s{SRD_T+2}, {1728*1280}\ns_mov_b32 s{SRD_T+3}, 0x20000")
        e(f"s_mul_i32 s12, s73, 1280\ns_mul_i32 s77, s72, 160\ns_add_u32 s12, s12, s77")
        e(f"s_mul_i32 s13, s72, 74\ns_add_u32 s13, s13, s71\ns_mul_i32 s13, s13, 5120\ns_add_u32 s13, s13, {WS_WF}")
        e(f"s_and_b32 s77, s2, 7\ns_lshl_b32 s77, s77, 7\ns_add_u32 s77, s77, {WS_FL + FL_W*128}"); e.wsptr(14, "s77")
        e(f"s_cmp_lt_i32 s70, 0\ns_cselect_b32 s12, s12, {OOB}\ns_cselect_b32 s13, s13, {OOB}")
        e(f"s_mul_i32 s3, s{S_WV}, 5120\ns_add_u32 s3, s3, {STG}")
        e(f"v_lshrrev_b32 v2, 2, v0\nv_mul_u32_u24 v2, 160, v2\nv_and_b32 v3, 3, v0\nv_mul_u32_u24 v3, 40, v3\nv_add3_u32 v{VJR}, v2, v3, s3\nv_add_u32 v44, 4096, v{VL16}")
    def cj(i0, i1):
        def f():
            for i in range(i0, i1):
                e(f"v_add_u32 v2, {64*i}, v0\nv_mul_u32_u24 v3, 6554, v2\nv_lshrrev_b32 v3, 16, v3\nv_mul_u32_u24 v4, 10, v3\nv_sub_u32 v4, v2, v4")
                e(f"v_bfe_u32 v5, v3, 2, 2\nv_mul_u32_u24 v5, s74, v5\nv_lshrrev_b32 v6, 4, v3\nv_mul_u32_u24 v6, s75, v6\nv_and_b32 v3, 3, v3\nv_add3_u32 v3, v3, v5, v6")
                e(f"v_mul_u32_u24 v3, 1280, v3\nv_lshl_add_u32 v{VJ[i]}, v4, 4, v3")
        return f
    def c8():
        e(f"s_cmp_ge_u32 s{S_WV}, 2\ns_cselect_b32 s70, 9, 10\ns_mul_i32 s71, s{S_WV}, 10\ns_cmp_eq_u32 s{S_WV}, 3\ns_cmov_b32 s71, 29\ns_add_u32 s71, s71, 16")
        e(f"s_cmp_ge_u32 s7, s70\ns_cselect_b32 s72, s70, 0\ns_sub_u32 s7, s7, s72")
        e(f"s_mul_i32 s74, s{S_R64}, 54\ns_add_u32 s72, s74, s71\ns_lshl_b32 s{SAS}, s72, 12\ns_lshl_b32 s73, s70, 12\ns_add_u32 s{SAE}, s{SAS}, s73\ns_lshl_b32 s73, s7, 12\ns_add_u32 s{SA}, s{SAS}, s73")
        e(f"s_mul_i32 s75, s{S_CB}, 74\ns_add_u32 s73, s75, s71\ns_mul_i32 s73, s73, 5120\ns_add_u32 s{SBS}, s73, {WS_WF}\ns_mul_i32 s73, s70, 5120\ns_add_u32 s{SBE}, s{SBS}, s73\ns_mul_i32 s73, s7, 5120\ns_add_u32 s{SB}, s{SBS}, s73")
    def c9():
        e(f"s_lshl_b32 s70, s{S_WV}, 2\ns_add_u32 s71, s74, s70\ns_lshl_b32 s{SA2}, s71, 12\ns_add_u32 s71, s75, s70\ns_mul_i32 s71, s71, 5120\ns_add_u32 s{SB2}, s71, {WS_WF}")
        e(f"s_mul_i32 s70, s{S_WV}, 5\ns_add_u32 s70, s70, s75\ns_add_u32 s70, s70, 54\ns_mul_i32 s70, s70, 5120\ns_add_u32 s{SOB}, s70, {WS_WF}")
        e(f"s_mul_i32 s70, s{S_R64}, 81920\ns_add_u32 s{SOA}, s70, {WS_OF}")
        e(f"s_lshl_b32 s70, s{S_R64}, 3\ns_add_u32 s70, s70, s{S_CB}\ns_lshl_b32 s70, s70, 7\ns_add_u32 s70, s70, {WS_FL + FL_H*128}"); e.wsptr(SFH, "s70")
        e(f"s_mov_b32 s{SFW}, {WS_FL + FL_W*128 + 1024}")
        e(f"s_lshl_b32 s70, s{S_R64}, 8\ns_add_u32 s{SG}, s70, {WS_G}")
    def c10():
        e(f"s_mul_i32 s{SPK}, s{S_WV}, 20480\ns_add_u32 s{SPK}, s{SPK}, {PARK}\ns_cmp_eq_u32 s{S_WV}, 3\ns_cmov_b32 s{SPK}, {STG}")
        e(f"v_add_u32 v{P3_VL2}, 4096, v{VL16}")
        for t in range(4): e(f"s_xor_b32 s70, s{S_WV}, {t}\ns_lshl_b32 s70, s70, 10\nv_add_u32 v{P3_VT[t]}, s70, v{VL16}")
        e(f"v_lshrrev_b32 v4, 4, v0\nv_mul_u32_u24 v4, 40, v4\ns_mul_i32 s70, s{S_CB}, 160\nv_add_u32 v4, s70, v4")
        e(f"s_cmp_eq_u32 s{S_WV}, 0\ns_cselect_b32 s42, 1.0, 0\ns_cselect_b32 s43, 1.0, 0\nv_and_b32 v8, 7, v0\nv_lshlrev_b32 v8, 7, v8")
    def b2_unpack(u):
        for i in (2*u, 2*u + 1):
            r = (2*i) % 4
            e(f"v_lshlrev_b32 v{p3acc(u,0)+r}, 16, v{P3_B2+i}\nv_and_b32 v{p3acc(u,0)+r+1}, 0xffff0000, v{P3_B2+i}")
        if True:
            for t in (1, 2, 3, 0):
                for r in range(4): e(f"v_mul_f32 v{p3acc(u,t)+r}, s42, v{p3acc(u,0)+r}")
    JL = e.opt.get('JL', 0); JR = e.opt.get('JR', 3); JS = e.opt.get('JS', JR); JSP = e.opt.get('JSP', 5); JA = e.opt.get('JA', 9); ZA = 3; pre = e.opt.get('pre', 0)
    for c_ in (c0, c1, cj(0, 5), c8, c9, c10): c_()
    e(f"s_lshl_b32 s76, s2, 2\ns_add_u32 s76, s76, s{S_WV}\ns_lshl_b32 s76, s76, 13\ns_add_u32 s76, s76, {WS_FL}\nv_lshlrev_b32 v2, 7, v0\ns_cmp_lt_u32 s2, {NINIT}\ns_cselect_b32 s76, s76, {OOB}")
    e("v_mov_b32 v168, 0\nv_mov_b32 v169, 0\nv_mov_b32 v170, 0\nv_mov_b32 v171, 0")
    emit([(('zero',), f"buffer_store_dwordx4 v[168:171], v2, {sr(SRD_WS)}, s76 offen sc1")])
    emit([(('b2',), f"global_load_dwordx4 {vr(P3_B2)}, v4, s[{S_B2}:{S_B2+1}]"), (('b2',), f"global_load_dwordx4 {vr(P3_B2+4)}, v4, s[{S_B2}:{S_B2+1}] offset:16"),
          (('b2',), f"global_load_dwordx2 {vr(P3_B2+8,2)}, v4, s[{S_B2}:{S_B2+1}] offset:32")])
    txt = (f"s_mul_i32 s76, s{S_J}, 3200\ns_lshl_b32 s77, s{S_WV}, 10\ns_add_u32 m0, s77, {WPHI_LDS}\ns_add_u32 s76, s76, s77\ns_add_u32 s76, s76, s{S_WPHI}\ns_addc_u32 s77, s{S_WPHI+1}, 0\n"
           f"s_cmp_eq_u32 s{S_WV}, 3\ns_mov_b32 s78, 1008\ns_cmov_b32 s78, 112\nv_min_u32 v6, s78, v{VL16}\nglobal_load_lds_dwordx4 v6, s[76:77]")
    emit([(('phi',), txt)])
    if e.opt.get('cpf'):
        e(f"s_getpc_b64 s[76:77]\nL_pc:\ns_sub_u32 s76, s76, L_pc-{NAME}\ns_subb_u32 s77, s77, 0")
        e(f"s_lshr_b32 s78, s2, 3\ns_lshl_b32 s78, s78, 2\ns_add_u32 s78, s78, s{S_WV}\ns_lshl_b32 s78, s78, 9\nv_and_b32 v6, 3, v0\nv_lshl_add_u32 v6, v6, 7, s78")
        emit([(('pf',), f"s_mov_b32 s78, L_end-{NAME}\nv_min_u32 v6, s78, v6\ns_mov_b64 exec, 15\nglobal_load_dword v167, v6, s[76:77]\ns_mov_b64 exec, -1")])
    def job_loads():
        for i in range(5):
            emit([(('job',), f"s_add_u32 m0, s3, {1024*i}\ns_nop 0\nbuffer_load_dwordx4 v{VJ[i]}, {sr(SRD_T)}, s12 offen lds")])
    if JL < 0: job_loads()
    P3S = P3(e, PB, VZ, VL16, vm)
    for s in range(NSTEP):
        wait_vm(lambda t: t == ('w', s) or t == ('x', s//2))
        e("s_barrier")
        if s == 0: e.stamp(2)
        if e.opt.get('steps'): e(f"s_memtime s[76:77]\ns_waitcnt lgkmcnt(0)\ns_sub_u32 s76, s76, s80\nv_writelane_b32 v9, s76, {s}")
        n_list = [2, 3] if (LA == 2 and s == 0) else [s + 3]
        for n_ in n_list:
            if n_ < NSTEP: emit(dma_x(n_ // 2, n_ % 2))
        if s + LA < NSTEP: emit(dma_w(s + LA))
        if s == ZA:
            wait_vm(lambda t: t[0] in ('zero', 'b2', 'phi'))
            def init_sig(D): e(f"s_cmp_ge_u32 s2, {NINIT}\ns_cbranch_scc1 {D}\ns_mov_b32 s21, 1\ns_atomic_add s21, s[{S_DBG}:{S_DBG+1}], 0 glc")
            e.arrive(10, 174, 175, init_sig)
        if ZA + 1 <= s < ZA + 6: b2_unpack(s - ZA - 1)
        if s == JL: job_loads()
        if s == JR:
            wait_vm(lambda t: t[0] == 'job')
            for u in range(5):
                e(f"ds_read_b64_tr_b16 {vr(JF+4*u,2)}, v{VJR} offset:{8*u}\nds_read_b64_tr_b16 {vr(JF+4*u+2,2)}, v{VJR} offset:{8*u + 2560}")
            e("s_waitcnt lgkmcnt(0)")
        if True:
            for u in range(5):
                if s != JS + u // JSP: continue
                if u < 4: emit([(('jst',), f"buffer_store_dwordx4 {vr(JF+4*u)}, v{VL16}, {sr(SRD_WS)}, s13 offen offset:{1024*u} sc1")])
                else: emit([(('jst',), f"buffer_store_dwordx4 {vr(JF+4*u)}, v44, {sr(SRD_WS)}, s13 offen sc1")])
        IC = min(JA, 15)
        if s == IC - 2: emit([(('init',), f"buffer_load_dword v{VP}, v{VZ}, {sr(SRD_D)}, 0 offen sc1")])
        if s == IC:
            wait_vm(lambda t: t[0] == 'init'); e.vpoll(SRD_D, "0", NINIT, VZ, VP)
        if s == JA:
            wait_vm(lambda t: t[0] == 'jst'); e("s_mov_b32 s22, 0")
            e.arrive(3, 174, 175, lambda D: e(f"s_mov_b32 s22, 1\ns_atomic_add s22, s[14:15], 0 glc"))
        if s == JA + 1:
            Lw = e.lab("L_w2")
            e(f"s_waitcnt lgkmcnt(0)\ns_cmp_lg_u32 s22, 31\ns_cbranch_scc1 {Lw}\ns_mov_b32 s23, 1\ns_atomic_add s23, s[14:15], 1024 glc\n{Lw}:")
        if JA < 19:
            if s == (17 if pre else 18): emit([(('wp',), f"buffer_load_dword v{VP}, v8, {sr(SRD_WS)}, s{SFW} offen sc1")])
            if s == 18 and pre:
                wait_vm(lambda t: t[0] == 'wp'); e.vpoll(SRD_WS, f"s{SFW}", 1, 8, VP)
                for _ in range(pre): P3S.prefetch()
    e.stamp(3)
    if JA >= 19:
        wait_vm(lambda t: True)
        def w_sig(D): e(f"s_mov_b32 s22, 1\ns_atomic_add s22, s[14:15], 0 glc\ns_waitcnt lgkmcnt(0)\ns_cmp_lg_u32 s22, 31\ns_cbranch_scc1 {D}\ns_mov_b32 s23, 1\ns_atomic_add s23, s[14:15], 1024 glc")
        e.arrive(3, 174, 175, w_sig)
        e(f"v_mov_b32 v{VP}, 0")
        e.vpoll(SRD_WS, f"s{SFW}", 1, 8, VP)
    elif not pre:
        wait_vm(lambda t: t[0] == 'wp'); e.vpoll(SRD_WS, f"s{SFW}", 1, 8, VP)
    e.stamp(4)
    P3S.begin()
    while P3S.npre < PB:
        if P3S.npre >= e.opt.get('free', 2):
            if not P3S.ring: e.lwait(8, 174, 175); P3S.ring = True
            P3S.yield_()
        P3S.prefetch()
        if len(vm) > P3S.THR: e(f"s_waitcnt vmcnt({P3S.THR})"); del vm[:len(vm) - P3S.THR]
    P3S.run()

def P3(e, PB, VZ, VL16, vm):
    class S: pass
    S.npre = 0
    opt = e.opt
    ACC = 176; POOL = 16; NPOOL = 39
    VL2, VP = 13, 14; VGO = 173; VY = 172
    VT = P3_VT
    VG = 2
    acc = lambda u, t: ACC + 16*u + 4*t
    NQ, NK = 10, 4; NS = NQ + NK
    def pst(i):
        if opt.get('steps'): e(f"s_waitcnt lgkmcnt(0)\ns_memtime s[76:77]\ns_waitcnt lgkmcnt(0)\ns_sub_u32 s76, s76, s80\nv_writelane_b32 v9, s76, {i}")
    free = list(range(NPOOL)); frag = {}
    def emit1(item): e(item[1]); vm.append(item[0])
    def waitvm(pred):
        idx = max([i for i, t in enumerate(vm) if pred(t)], default=-1)
        if idx >= 0: e(f"s_waitcnt vmcnt({len(vm)-1-idx})"); del vm[:idx+1]
    def ld(d, v, so, off): return f"buffer_load_dwordx4 {d}, v{v}, {sr(SRD_WS)}, {so} offen" + (f" offset:{off}" if off else "") + " sc1"
    def group(kind, k):
        out = []
        for i in range(4 if kind == 'A' else 5):
            sl = free.pop(0); frag[(kind, k, i)] = POOL + 4*sl; d = vr(POOL + 4*sl)
            pre = post = ""
            if kind == 'A':
                if k < NQ:
                    if k == NQ - 1 and i == 0: pre = f"s_cmp_ge_u32 s{S_WV}, 2\ns_cmov_b32 s{SA}, {OOB}\n"
                    if i == 3: post = f"\ns_add_u32 s{SA}, s{SA}, 4096\ns_cmp_eq_u32 s{SA}, s{SAE}\ns_cmov_b32 s{SA}, s{SAS}"
                    txt = ld(d, VT[i], f"s{SA}", 0)
                else:
                    txt = ld(d, VT[i], f"s{SA2}", 0)
                    if i == 3: post = f"\ns_add_u32 s{SA2}, s{SA2}, 4096"
            else:
                if k < NQ:
                    so = f"s{SB}"
                    if k == NQ - 1 and i == 0: pre = f"s_cmp_ge_u32 s{S_WV}, 2\ns_cmov_b32 s{SB}, {OOB}\n"
                    if i == 4: post = f"\ns_add_u32 s{SB}, s{SB}, 5120\ns_cmp_eq_u32 s{SB}, s{SBE}\ns_cmov_b32 s{SB}, s{SBS}"
                else:
                    so = f"s{SB2}"
                    if i == 4: post = f"\ns_add_u32 s{SB2}, s{SB2}, 5120"
                txt = ld(d, VL16, so, 1024*i) if i < 4 else ld(d, VL2, so, 0)
            out.append(((kind, k), pre + txt + post))
        return out
    THR = opt.get('thr', 10)
    YLD = opt.get('yld', '')
    def yield_(pre_read=False):
        if not YLD: return
        L = e.lab("L_y"); D = e.lab("L_yd")
        if not pre_read: e(f"ds_read_b32 v{VP}, v{VY}")
        e(f"s_mov_b32 s79, 0\n{L}:\ns_waitcnt lgkmcnt(0)\nv_readfirstlane_b32 s78, v{VP}\ns_cmp_eq_u32 s78, 0\ns_cbranch_scc1 {D}")
        e(f"s_add_u32 s79, s79, 1\ns_cmp_ge_u32 s79, 0x1000000\ns_cbranch_scc1 L_end\ns_sleep 1\nds_read_b32 v{VP}, v{VY}\ns_branch {L}\n{D}:")
    def prefetch():
        for it in group('B', S.npre): emit1(it)
        S.npre += 1
    S.prefetch = prefetch; S.THR = THR
    def msync(cnt):
        e.lpost(cnt, 174, 175); e.lwait(cnt, 174, 175, sleep=0)
    S.ring = False; S.yield_ = yield_
    S.begin = lambda: e(f"v_mov_b32 v{VY}, {CNT_LDS + 4*11}")
    def run():
        if not S.ring: e.lwait(8, 174, 175)
        e.stamp(5)
        for j in range(4):
            e(f"s_add_u32 s70, s{S_R64}, {j}\ns_and_b32 s70, s70, 3\ns_mul_i32 s71, s70, 5120\ns_add_u32 s76, s71, s{SOB}\ns_add_u32 s71, s71, s{SPK}")
            yield_()
            for i in range(5):
                e(f"s_add_u32 m0, s71, {1024*i}\ns_add_u32 s77, s76, {1024*i}")
                emit1((('L',), f"buffer_load_dwordx4 v{VL16}, {sr(SRD_WS)}, s77 offen sc1 lds"))
            if len(vm) > THR: e(f"s_waitcnt vmcnt({THR})"); del vm[:len(vm) - THR]
        e.spoll(SFH, SPD, sleep=opt.get('slh', 1), least=8)
        e.stamp(6)
        order = []
        for k in range(NS):
            order.append(('A', k))
            if k >= PB: order.append(('B', k))
        pend = []; gate = [False]
        LOOK = opt.get('look', 2)
        def refill(cur):
            i = 0
            while i < len(order):
                kind, k = order[i]
                if kind == 'A' and k >= NQ and not gate[0]: i += 1; continue
                lim = cur + LOOK + (2 if kind == 'B' and i > 0 else 0)
                if k > lim or len(free) < (4 if kind == 'A' else 5) + (8 if i > 0 else 0): break
                pend.extend(group(kind, k)); order.pop(i)
        yield_()
        refill(-1)
        for it in pend: emit1(it)
        pend.clear()
        nxtflag = f"s_add_u32 s{SFH}, s{SFH}, {256*128}\ns_addc_u32 s{SFH+1}, s{SFH+1}, 0"
        GK = NQ - opt.get('gk', LOOK)
        for k in range(NS):
            if k == GK:
                e.spoll(SFH, SPD, probed=True, sleep=opt.get('slo', 1), least=8); gate[0] = True
                e(f"v_and_b32 v{VGO}, 15, v0\nv_lshlrev_b32 v{VGO}, 2, v{VGO}\ns_lshl_b32 s76, s{S_WV}, 6\ns_add_u32 s76, s76, s{SG}")
                emit1((('g',), f"buffer_load_dword v{VG}, v{VGO}, {sr(SRD_WS)}, s76 offen sc1"))
            refill(k)
            while any(it[0] in (('A', k), ('B', k)) for it in pend): emit1(pend.pop(0))
            waitvm(lambda t: t in (('A', k), ('B', k)))
            if pend and k != GK - 1: yield_(pre_read=k > 0 and k != GK)
            pst(24 + k)
            last = k == NS - 1
            if last:
                for t in range(1, 4):
                    e(f"s_xor_b32 s76, s{S_WV}, {t}\ns_mul_i32 s77, s76, 15360\ns_cmp_eq_u32 s76, 3\ns_cmov_b32 s77, {EXCH_H3}\nv_add_u32 v{VT[t]}, s77, v{VL16}")
                e(f"s_mul_i32 s77, s{S_WV}, 15360\ns_cmp_eq_u32 s{S_WV}, 3\ns_cmov_b32 s77, {EXCH_H3}\nv_add_u32 v5, s77, v{VL16}")
                e.lwait(12, 174, 175)
            cnt = 0; wq = []
            for t in ([1, 2, 3, 0] if last else range(4)):
                for u in range(5):
                    e(f"v_mfma_f32_16x16x32_bf16 {vr(acc(u,t))}, {vr(frag[('B',k,u)])}, {vr(frag[('A',k,t)])}, {vr(acc(u,t))}")
                    cnt += 1
                    if cnt % 2 == 0 and pend: emit1(pend.pop(0))
                    if last:
                        if t: wq.append((cnt, f"ds_write_b128 v{VT[t]}, {vr(acc(u,t))} offset:{5120*(t-1) + 1024*u}"))
                        if wq and cnt - wq[0][0] >= 5: e(wq.pop(0)[1])
            for c_, x in wq: e(x)
            while pend: emit1(pend.pop(0))
            for i in range(4): free.append((frag[('A', k, i)] - POOL)//4)
            for i in range(5): free.append((frag[('B', k, i)] - POOL)//4)
            if k == GK - 2: e(nxtflag); e.sprobe(SFH, SPD)
            elif YLD and k + 1 < NS and k + 1 != GK: e(f"ds_read_b32 v{VP}, v{VY}")
        assert not order
        pst(38)
        e(nxtflag)
        waitvm(lambda t: True)
        e("s_waitcnt lgkmcnt(0)"); msync(13)
        pst(39)
        R = POOL
        for u in range(5):
            for sw in range(3): e(f"ds_read_b128 {vr(R + 12*u + 4*sw)}, v5 offset:{sw*5120 + u*1024}")
        e(f"v_sub_f32 v{VG}, 1.0, v{VG}")
        for u in range(5):
            e(f"s_waitcnt lgkmcnt({12 - 3*u})")
            b = R + 12*u; a = acc(u, 0)
            for r in (0, 2): e(f"v_pk_add_f32 {vr(a+r,2)}, {vr(a+r,2)}, {vr(b+r,2)}\nv_pk_add_f32 {vr(b+4+r,2)}, {vr(b+4+r,2)}, {vr(b+8+r,2)}")
            for r in (0, 2): e(f"v_pk_add_f32 {vr(a+r,2)}, {vr(a+r,2)}, {vr(b+4+r,2)}")
            for r in (0, 2): e(f"v_pk_mul_f32 {vr(a+r,2)}, {vr(a+r,2)}, {vr(VG,2)} op_sel_hi:[1,0]")
        msync(14)
        for i in range(5):
            e(f"s_mul_i32 s76, s{S_WV}, 5120\ns_add_u32 m0, s76, {1024*i}\ns_add_u32 s77, s{SOB}, {4*5120 + 1024*i}")
            emit1((('L',), f"buffer_load_dwordx4 v{VL16}, {sr(SRD_WS)}, s77 offen sc1 lds"))
        AO = POOL
        BP = [96 + 4*i for i in range(19)] + [acc(u, t) for u in range(5) for t in (1, 2, 3)]
        VB4 = [3, 4, 5, 6]; VH4 = [7, 8, 11, 12]; VHA = 173
        for mm in range(4):
            e(f"s_add_u32 s70, s{S_CB}, {mm}\ns_and_b32 s70, s70, 3\ns_mul_i32 s71, s70, 20480\ns_add_u32 s{72+mm}, s71, s{SOA}\ns_add_u32 s71, s71, {PARK}\ns_cmp_eq_u32 s70, 3\ns_cmov_b32 s71, {STG}\nv_add_u32 v{VB4[mm]}, s71, v{VL16}\ns_mul_i32 s71, s70, 5120\nv_add_u32 v{VH4[mm]}, s71, v{VL16}")
        e(f"s_lshr_b32 s70, s{S_WV}, 1\ns_lshl_b32 s70, s70, 10\ns_and_b32 s71, s{S_WV}, 1\ns_lshl_b32 s71, s71, 3\ns_add_u32 s70, s70, s71\ns_add_u32 s70, s70, 8192\nv_add_u32 v{VHA}, s70, v{VL16}")
        steps = [(mm, i) for mm in range(4) for i in range(4)] + [(mm, 4) for mm in range(4)]
        bfree = list(BP); bq = []; bfr = {}
        for n_, (mm, i) in enumerate(steps):
            for u in range(5): bq.append((n_, u, f"v{VB4[mm]} offset:{5120*i + 1024*u}" if i < 4 else f"v{VH4[mm]} offset:{1024*u}"))
        lg = []
        def bread():
            n_, u, ad = bq.pop(0); r = bfree.pop(0); bfr[(n_, u)] = r
            if len(lg) >= 15: e("s_waitcnt lgkmcnt(10)"); del lg[:len(lg) - 10]
            e(f"ds_read_b128 {vr(r)}, {ad}"); lg.append(n_)
        e.srd(SRD_T, S_OUT, 2048*1280)
        e(f"v_and_b32 v2, 15, v0\nv_mul_u32_u24 v2, 1280, v2\nv_lshrrev_b32 v14, 4, v0\nv_mul_u32_u24 v14, 40, v14\nv_add_u32 v2, v2, v14")
        e(f"s_lshl_b32 s70, s{S_R64}, 2\ns_add_u32 s70, s70, s{S_WV}\ns_mul_i32 s70, s70, {16*1280}\ns_mul_i32 s71, s{S_CB}, 160\ns_add_u32 s21, s70, s71")
        e.sprobe(SFH, SPD)
        while len(bfree) >= 5:
            for _ in range(5): bread()
        pst(40)
        e.stamp(7)
        e.spoll(SFH, SPD, probed=True, sleep=0, least=8); lg.clear()
        e.stamp(8)
        pst(41)
        for n_, (mm, i) in enumerate(steps):
            d = AO + 4*n_
            if i < 4: emit1((n_, f"s_add_u32 s76, s{72+mm}, {(i >> 1)*10240 + (i & 1)*4096}\n" + ld(vr(d), VT[0], "s76", 0)))
            else:
                for ee in range(2): emit1((n_, f"s_add_u32 s76, s{72+mm}, {ee*10240}\nbuffer_load_dwordx2 {vr(d+2*ee,2)}, v{VHA}, {sr(SRD_WS)}, s76 offen sc1"))
        synced = False
        for n_ in range(20):
            waitvm(lambda t: t == n_)
            if n_ == 0: e.lpost(15, 174, 175); lg.append(-1)
            idx = max([i for i, t in enumerate(lg) if t == n_], default=-1)
            if idx >= 0: e(f"s_waitcnt lgkmcnt({len(lg)-1-idx})"); del lg[:idx+1]
            for u in range(5):
                e(f"v_mfma_f32_16x16x32_bf16 {vr(acc(u,0))}, {vr(bfr[(n_,u)])}, {vr(AO + 4*n_)}, {vr(acc(u,0))}")
                if u: bfree.append(bfr[(n_, u-1)])
                if bq and bfree:
                    if bq[0][0] >= 16 and not synced:
                        e.lwait(15, 174, 175, sleep=0); lg.clear(); synced = True
                    bread()
            bfree.append(bfr[(n_, 4)])
        pst(42)
        for u in range(5):
            a = acc(u, 0)
            e(f"v_cvt_pk_bf16_f32 v{100+2*u}, v{a}, v{a+1}\nv_cvt_pk_bf16_f32 v{101+2*u}, v{a+2}, v{a+3}")
        fl = opt.get('outfl', '')
        e(f"buffer_store_dwordx4 v[100:103], v2, {sr(SRD_T)}, s21 offen {fl}\nbuffer_store_dwordx4 v[104:107], v2, {sr(SRD_T)}, s21 offen offset:16 {fl}\nbuffer_store_dwordx2 v[108:109], v2, {sr(SRD_T)}, s21 offen offset:32 {fl}")
        pst(43)
        if opt.get('steps'):
            e("s_waitcnt vmcnt(0)"); pst(44)
            e(f"s_lshl_b32 s70, s2, 2\ns_add_u32 s70, s70, s{S_WV}\ns_lshl_b32 s70, s70, 8\ns_add_u32 s70, s70, 0xF00000\nv_lshlrev_b32 v2, 2, v0\nbuffer_store_dword v9, v2, {sr(SRD_WS)}, s70 offen\ns_waitcnt vmcnt(0)")
        e.stamps_out()
        e("s_endpgm")
    S.run = run
    return S

def c_wave(e, D):
    XREG = 224; RING = 192; VXA = [246, 247]; AT = [240, 241]
    VZ, VL16 = 242, 243
    x_setup(e, [128, 129])
    e("s_waitcnt lgkmcnt(0)")
    e.srd(SRD_X, S_X, 2048*1280)
    for t, x in dma_x_ops([128, 129], 0, 0) + dma_x_ops([128, 129], 0, 1): e(x)
    e.srd(SRD_T, S_B1, 3456)
    e(f"s_lshl_b32 s76, s{S_J}, 7\ns_mul_i32 s77, s{S_J}, 320\ns_add_u32 s77, s77, 1024\ns_cmp_eq_u32 s{S_ISQ}, 1\ns_cselect_b32 s76, s77, s76\ns_cselect_b32 s77, s77, {OOB}\nv_lshrrev_b32 v132, 4, v0\nv_lshlrev_b32 v132, 3, v132")
    for t in range(10): e(f"buffer_load_dwordx2 {vr(136+2*t,2)}, v132, {sr(SRD_T)}, s{76 if t < 4 else 77} offen offset:{32*t}")
    e.fstamp(6)
    e("v_lshrrev_b32 v1, 4, v0\nv_bfe_u32 v2, v0, 2, 2\nv_and_b32 v3, 3, v0")
    e("v_and_b32 v5, 1, v1\nv_lshl_add_u32 v4, v5, 2, v2\nv_lshrrev_b32 v6, 1, v1\nv_lshlrev_b32 v6, 13, v6")
    e(f"s_lshl_b32 s76, s{S_WV}, 5\nv_and_b32 v7, 15, v0\nv_add_u32 v7, s76, v7")
    e(f"v_lshrrev_b32 v128, 1, v7\nv_xor_b32 v128, v128, v1\nv_and_b32 v128, 7, v128\nv_lshlrev_b32 v128, 4, v128\nv_lshl_add_u32 v128, v7, 7, v128")
    e(f"v_add_u32 v{VXA[0]}, {XBASE}, v128\nv_xor_b32 v{VXA[1]}, 64, v{VXA[0]}")
    e(f"v_mul_u32_u24 v128, 160, v4\nv_mul_u32_u24 v129, 40, v3\nv_add3_u32 v{AT[0]}, v128, v129, v6\nv_add_u32 v{AT[1]}, {3*WSLOT}, v{AT[0]}")
    e(f"v_mov_b32 v{VZ}, 0\nv_lshlrev_b32 v{VL16}, 4, v0\nv_mov_b32 v128, 0\nv_mov_b32 v129, 0\nv_mov_b32 v130, 0\nv_mov_b32 v131, 0")
    e(f"s_lshl_b32 s76, s{S_WV}, 9\ns_add_u32 s76, s76, {ZERO_LDS}\nv_lshl_add_u32 v132, v0, 3, s76\nds_write_b64 v132, v[128:129]")
    e(f"v_lshlrev_b32 v132, 2, v0\nv_add_u32 v132, {CNT_LDS}, v132\nds_write_b32 v132, v128")
    VPH = 244
    e(f"v_mul_u32_u24 v132, 800, v3\nv_mul_u32_u24 v133, 40, v2\nv_add3_u32 v132, v132, v133, s76\nv_cmp_eq_u32 vcc, v1, v3\ns_add_u32 s77, s76, {-WPHI_LDS & 0xffffffff}")
    e(f"v_subrev_u32 v132, s77, v132\nv_mov_b32 v133, {ZERO_LDS}\nv_cndmask_b32 v{VPH}, v133, v132, vcc")
    e(f"s_mov_b32 s{S_C2}, {f2u(GC2)}\ns_mov_b32 s{S_C2+1}, {f2u(GC2)}\ns_mov_b32 s{S_L}, {f2u(LOG2E)}\ns_mov_b32 s{S_L+1}, {f2u(LOG2E)}")
    e.fstamp(4)
    e("s_waitcnt lgkmcnt(0)")
    e.fstamp(5)
    e.srd(SRD_WS, S_WS, WS_SIZE)
    S_HO, S_HFL, S_KFL = 12, 72, 74
    e(f"s_lshl_b32 s76, s{S_RB}, 1\ns_lshr_b32 s77, s{S_WV}, 1\ns_add_u32 s15, s76, s77")
    e(f"s_lshl_b32 s76, s{S_RB}, 11\ns_add_u32 s76, s76, {WS_FL + FL_H*128}"); e.wsptr(S_HFL, "s76")
    e(f"s_lshl_b32 s76, s{S_J}, 11\ns_add_u32 s76, s76, {WS_FL + FL_KV*128}"); e.wsptr(S_KFL, "s76")
    S_GO = 3
    e(f"s_lshl_b32 s76, s{S_J}, 13\ns_lshl_b32 s77, s{S_RB}, 9\ns_add_u32 s76, s76, s77\ns_lshl_b32 s77, s{S_WV}, 7\ns_add_u32 s76, s76, s77\ns_add_u32 s{S_GO}, s76, {WS_G}")
    def after_bar0(): e.stamp(2)
    def bias_init(nu, hacc, zero_lo, zero_hi):
        e.fstamp(7)
        for i in list(range(*zero_lo)) + list(range(*zero_hi)): e(f"v_mov_b32 v{i}, 0")
        e("s_waitcnt vmcnt(0)")
        for t in range(nu):
            for m in range(2):
                a = hacc + 8*t + 4*m
                e(f"v_lshlrev_b32 v{a}, 16, v{136+2*t}\nv_and_b32 v{a+1}, 0xffff0000, v{136+2*t}\nv_lshlrev_b32 v{a+2}, 16, v{137+2*t}\nv_and_b32 v{a+3}, 0xffff0000, v{137+2*t}")
        e.stamp(1)
    C1 = 128; T = 130; PK = 140
    def gelu_steps(hacc, nsteps, PK, VL16, skip_from=None, mid=None):
        e(f"v_mov_b32 v{C1}, {f2u(GC1)}\nv_mov_b32 v{C1+1}, {f2u(GC1)}")
        Ls = e.lab("L_hskip")
        for i in range(nsteps):
            if i == skip_from: e(f"s_cmp_eq_u32 s{S_J}, 7\ns_cbranch_scc1 {Ls}")
            for m in range(2):
                d = PK + 4*((2*i + m) % 4)
                a0 = hacc + 16*i + 4*m; a1 = a0 + 8
                gelu_pack(e, [(a0, d), (a0+2, d+1), (a1, d+2), (a1+2, d+3)], T, C1)
                e(f"buffer_store_dwordx4 {vr(d)}, v{VL16}, {sr(SRD_WS)}, s{S_HO} offen offset:{1024*m} sc1")
            e(f"s_add_u32 s{S_HO}, s{S_HO}, 4096")
            if mid and i == 0: mid()
        e(f"{Ls}:")
    WF_ = 140
    QP = 192
    PHR = [f"ds_read_b64_tr_b16 {vr(WF_ + 10*tau + 2*t, 2)}, v{VPH} offset:{160*t + 8*tau}" for tau in range(5) for t in range(5)]
    def phi_stage(P, fill=()):
        for m in range(2):
            for t in range(5):
                a = 8 + 8*t + 4*m
                e(f"v_cvt_pk_bf16_f32 v{QP+10*m+2*t}, v{a}, v{a+1}\nv_cvt_pk_bf16_f32 v{QP+10*m+2*t+1}, v{a+2}, v{a+3}")
        e("s_waitcnt lgkmcnt(0)")
        mf = []
        for ks in range(3):
            for m in range(2):
                for tau in range(5):
                    d = vr(P + 20*m + 4*tau); c = "0" if ks == 0 else d
                    if ks < 2: mf.append(f"v_mfma_f32_16x16x32_bf16 {d}, {vr(WF_+10*tau+4*ks)}, {vr(QP+10*m+4*ks)}, {c}")
                    else: mf.append(f"v_mfma_f32_16x16x16_bf16 {d}, {vr(WF_+10*tau+8,2)}, {vr(QP+10*m+8,2)}, {c}")
        weave(e, mf, fill)
    e(f"s_cmp_eq_u32 s{S_ISQ}, 1\ns_cbranch_scc1 L_CQ")
    AH = [[248, 249], [250, 251], [252, 253], [254, 255]]; AG = [190, 191]
    e("v_lshrrev_b32 v128, 1, v4\nv_lshlrev_b32 v129, 7, v4\nv_lshl_add_u32 v129, v3, 3, v129\nv_add_u32 v129, v129, v6")
    for t in range(4): e(f"v_xor_b32 v130, {t}, v128\nv_lshl_add_u32 v{AH[t][0]}, v130, 5, v129\nv_add_u32 v{AH[t][1]}, {3*WSLOT}, v{AH[t][0]}")
    e(f"v_lshlrev_b32 v{AG[0]}, 4, v1\nv_add_u32 v{AG[1]}, {3*WSLOT}, v{AG[0]}")
    e(f"s_mul_i32 s76, s15, 54\ns_lshl_b32 s77, s{S_J}, 1\ns_add_u32 s76, s76, s77\ns_lshl_b32 s76, s76, 12\ns_and_b32 s77, s{S_WV}, 1\ns_lshl_b32 s77, s77, 11\ns_add_u32 s{S_HO}, s76, s77")
    bias_init(4, 88, (8, 88), (120, 128))
    c_main_loop(e, [Unit(AT, 8*t, 8 + 8*t) for t in range(5)] + [Unit(AT, 1280 + 8*t, 48 + 8*t) for t in range(5)]
                + [Unit(AH[t], 3072, 88 + 8*t) for t in range(4)] + [Unit(AG, 2560, 120, gate=True)], XREG, VXA, RING, D, after_bar0, PHR)
    e.stamp(3)
    if e.opt.get('cprio'): e(f"s_setprio {e.opt['cprio']}")
    e(f"v_mov_b32 v4, 0\nv_mov_b32 v5, v{VL16}")
    VZ0, VL0 = VZ, VL16; VZ, VL16 = 4, 5
    e.lpost(8, 136, 137)
    P = 212; RV = [8, 20]; RP = [140, 160]; EE = 192; XX = 128; AW = 32; AR = 40; AA = [45, 46, 47]
    F = []; f = F.append
    f(f"v_mov_b32 v138, {EXCH_H3 // 16384}\nv_and_b32 v136, 15, v0\ns_lshl_b32 s76, s{S_WV}, 5\nv_add_u32 v136, s76, v136\nv_cmp_eq_u32 vcc, 3, v1\nv_lshlrev_b32 v136, 7, v136\nv_and_b32 v139, 7, v0\nv_cndmask_b32 v137, v1, v138, vcc\nv_lshlrev_b32 v139, 4, v139\nv_lshl_add_u32 v136, v137, 14, v136")
    for m in range(2):
        for t in range(5):
            a = 48 + 8*t + 4*m
            f(f"v_cvt_pk_bf16_f32 v{RV[m]+2*t}, v{a}, v{a+1}\nv_cvt_pk_bf16_f32 v{RV[m]+1+2*t}, v{a+2}, v{a+3}")
        f(f"v_mov_b32 v{RV[m]+10}, 0x3f80\nv_mov_b32 v{RV[m]+11}, 0")
    for i in range(8): f(f"v_xor_b32 v{AW+i}, {16*i}, v139\nv_add_u32 v{AW+i}, v{AW+i}, v136")
    f("\n".join(f"v_mul_f32 v{130+m}, {f2u(-LOG2E)}, v{120+4*m}" for m in range(2)))
    f("\n".join(f"v_exp_f32 v{130+m}, v{130+m}" for m in range(2)))
    f("\n".join(f"v_add_f32 v{130+m}, 1.0, v{130+m}" for m in range(2)))
    f("\n".join(f"v_rcp_f32 v{130+m}, v{130+m}" for m in range(2)) + "\nv_lshlrev_b32 v132, 2, v0")
    phi_stage(P, F)
    e(f"s_mov_b64 exec, 0xffff")
    for m in range(2): e(f"buffer_store_dword v{130+m}, v132, {sr(SRD_WS)}, s{S_GO} offen offset:{64*m} sc1")
    e("s_mov_b64 exec, -1")
    e.stamp(4)
    softmax2(e, P, EE, RP[0], XX, fill=[f"ds_write_b128 v{AW+5+i}, {vr(RV[m]+4*i)} offset:{2048*m}" for m in range(2) for i in range(3)],
             wr=lambda i: e(f"ds_write_b128 v{AW+i}, {vr(RP[0]+4*i)}"))
    e(f"v_lshl_add_u32 v136, v1, 2, v2\nv_and_b32 v137, 7, v136\nv_lshlrev_b32 v136, 7, v136\ns_lshl_b32 s76, s{S_WV}, 14\ns_cmp_eq_u32 s{S_WV}, 3\ns_cmov_b32 s76, {EXCH_H3}\nv_and_b32 v138, 1, v3\nv_lshl_add_u32 v136, v138, 3, v136\nv_add_u32 v136, s76, v136\nv_lshrrev_b32 v138, 1, v3")
    for i, c0 in enumerate([0, 2, 4, 5]): e(f"v_add_u32 v{AR+i}, {c0}, v138\nv_xor_b32 v{AR+i}, v{AR+i}, v137\nv_lshl_add_u32 v{AR+i}, v{AR+i}, 4, v136")
    e(f"v_xor_b32 v{AR+4}, 7, v137\nv_lshl_add_u32 v{AR+4}, v{AR+4}, 4, v136")
    e(f"v_mov_b32 v136, {OOB}\nv_and_b32 v137, 15, v0\nv_cmp_gt_u32 vcc, 32, v0\nv_cndmask_b32 v{AA[0]}, v136, v{VL16}, vcc\nv_cmp_gt_u32 vcc, 5, v137\nv_cndmask_b32 v{AA[1]}, v136, v{VL16}, vcc\nv_cndmask_b32 v{AA[2]}, v136, v{AA[0]}, vcc")
    e(f"s_lshl_b32 s76, s{S_J}, 6\ns_add_u32 s76, s76, s{S_WV}\ns_mul_i32 s76, s76, 6144\ns_add_u32 s4, s76, {WS_KP}\ns_mul_i32 s76, s{S_RB}, 24576\ns_add_u32 s5, s4, s76\ns_add_u32 s6, s5, 4096")
    softmax2(e, P + 20, EE, RP[1], XX, wr=lambda i: e(f"ds_write_b128 v{AW+i}, {vr(RP[1]+4*i)} offset:2048"))
    e.stamp(5)
    e.busy(1, 136, 137, 'a')
    e.lsync(1, 136, 137)
    e.stamp(6)
    FR = lambda st: (48 + 20*st) if st < 2 else (140 + 20*(st - 2))
    KD = 212
    rd = [f"ds_read_b64_tr_b16 {vr(FR(st) + 4*i + 2*h, 2)}, v{AR+i} offset:{4096*st + 2048*h}" for st in range(4) for i in range(5) for h in range(2)]
    for x in rd[:14]: e(x)
    nxt = 14
    for st in range(4):
        need = 10*(st + 1)
        while nxt < need: e(rd[nxt]); nxt += 1
        e(f"s_waitcnt lgkmcnt({nxt - need})")
        for U in range(2):
            for Tt in range(3):
                d = vr(KD + 12*U + 4*Tt)
                e(f"v_mfma_f32_16x16x32_bf16 {d}, {vr(FR(st)+4*Tt)}, {vr(FR(st)+12+4*U)}, {'0' if st == 0 else d}")
                for _ in range(2):
                    if nxt < min(40, need + 14): e(rd[nxt]); nxt += 1
    e.lpost(12, 136, 137)
    e(f"s_mul_i32 s76, s{S_RB}, 14\nv_add_u32 v8, s76, v0\nv_mul_u32_u24 v9, 3121, v8\nv_lshrrev_b32 v9, 16, v9\nv_mul_u32_u24 v10, 21, v9\nv_sub_u32 v10, v8, v10")
    e(f"v_lshrrev_b32 v11, 2, v9\nv_lshrrev_b32 v12, 4, v10\nv_lshl_add_u32 v11, v11, 1, v12\nv_and_b32 v12, 3, v9\nv_and_b32 v13, 15, v10\nv_lshl_add_u32 v12, v12, 4, v13\nv_lshlrev_b32 v12, 4, v12\nv_lshl_add_u32 v11, v11, 10, v12")
    for Tt in range(3):
        for U in range(2):
            av = [[VL16, AA[1]], [VL16, AA[1]], [AA[0], AA[2]]][Tt][U]; ti = 2*Tt + U
            e(f"buffer_store_dwordx4 {vr(KD + 12*U + 4*Tt)}, v{av}, {sr(SRD_WS)}, s{5 if ti < 4 else 6} offen offset:{1024*(ti % 4)} sc1")
    e(f"v_mul_u32_u24 v12, 24, v9\nv_add_lshl_u32 v12, v12, v10, 3\nv_cmp_gt_u32 s[76:77], 14, v0\nv_cmp_gt_u32 vcc, 210, v8\ns_and_b64 vcc, vcc, s[76:77]\nv_mov_b32 v13, {OOB}\nv_cndmask_b32 v11, v13, v11, vcc\nv_cndmask_b32 v12, v13, v12, vcc")
    e(f"s_lshl_b32 s76, s{S_J}, 2\ns_add_u32 s76, s76, s{S_WV}\ns_lshl_b32 s76, s76, 11\ns_add_u32 s7, s76, {WS_KV}")
    e(f"s_add_u32 s68, s{S_KFL}, {(FL_KP - FL_KV)*128}\ns_addc_u32 s69, s{S_KFL+1}, 0")
    e.stamp(7)
    def mid(): e("s_waitcnt vmcnt(2)"); e.busy(-1, 136, 137, 'a'); e.arrive(2, 136, 137, e.signal(68))
    gelu_steps(88, 2, 192, VL16, mid=mid)
    e(f"s_lshl_b32 s76, s{S_RB}, 7\ns_add_u32 s68, s68, s76\ns_addc_u32 s69, s69, 0")
    e.busy(1, 136, 137, 'b')
    e(f"s_add_u32 s{S_HFL}, s{S_HFL}, {(FL_HK - FL_H)*128}\ns_addc_u32 s{S_HFL+1}, s{S_HFL+1}, 0\ns_waitcnt vmcnt(0)")
    e.arrive(0, 136, 137, e.signal(S_HFL))
    e.spoll(68, [34], sleep=e.opt.get('slk', 1), least=16)
    e.busy(1, 136, 137, 'B')
    e.stamp(8)
    SL = 16
    for p in range(16): e(f"buffer_load_dwordx4 {vr(SL + 4*p)}, v11, {sr(SRD_WS)}, s4 offen sc1\ns_add_u32 s4, s4, 24576")
    for p in range(1, 16):
        if p in (1, 4, 8, 12): e(f"s_waitcnt vmcnt({ {1: 12, 4: 8, 8: 4, 12: 0}[p] })")
        e(f"v_pk_add_f32 {vr(SL,2)}, {vr(SL,2)}, {vr(SL+4*p,2)}\nv_pk_add_f32 {vr(SL+2,2)}, {vr(SL+2,2)}, {vr(SL+4*p+2,2)}")
    e(f"v_cvt_pk_bf16_f32 v14, v{SL}, v{SL+1}\nv_cvt_pk_bf16_f32 v15, v{SL+2}, v{SL+3}\nbuffer_store_dwordx2 v[14:15], v12, {sr(SRD_WS)}, s7 offen sc1")
    e("s_waitcnt vmcnt(0)"); e.busy(-1, 136, 137, 'b'); e.busy(-1, 136, 137, 'B')
    e.arrive(4, 136, 137, e.signal(S_KFL))
    e.stamps_out()
    e("s_endpgm")
    VZ, VL16 = VZ0, VL0
    e("L_CQ:")
    AE, AO = [248, 249], [250, 251]
    e(f"v_mul_u32_u24 v128, 320, v4\nv_lshl_add_u32 v128, v3, 3, v128\nv_add_u32 v128, v128, v6\nv_lshlrev_b32 v129, 5, v5")
    e(f"v_add_u32 v{AE[0]}, v128, v129\nv_sub_u32 v{AO[0]}, v128, v129\nv_add_u32 v{AO[0]}, 32, v{AO[0]}\nv_add_u32 v{AE[1]}, {3*WSLOT}, v{AE[0]}\nv_add_u32 v{AO[1]}, {3*WSLOT}, v{AO[0]}")
    e(f"s_mul_i32 s76, s15, 54\ns_mul_i32 s77, s{S_J}, 5\ns_add_u32 s76, s76, s77\ns_add_u32 s76, s76, 16\ns_lshl_b32 s76, s76, 12\ns_and_b32 s77, s{S_WV}, 1\ns_lshl_b32 s77, s77, 11\ns_add_u32 s{S_HO}, s76, s77")
    bias_init(10, 48, (8, 48), (0, 0))
    c_main_loop(e, [Unit(AT, 8*t, 8 + 8*t) for t in range(5)] + [Unit(AE if t % 2 == 0 else AO, 1280 + 32*(t - t % 2), 48 + 8*t) for t in range(10)],
                XREG, VXA, RING, D, after_bar0, PHR)
    e.stamp(3)
    if e.opt.get('cprio'): e(f"s_setprio {e.opt['cprio']}")
    e.busy(1, 136, 137, 'd'); e.lpost(8, 136, 137); e.lpost(12, 136, 137)
    gelu_steps(48, 5, 212, VL16, skip_from=3)
    e.busy(-1, 136, 137, 'd')
    e.stamp(4)
    P = 88
    F = []; f = F.append
    f(f"v_lshlrev_b32 v68, 11, v1\nv_add_u32 v68, {KVT}, v68\nv_cmp_eq_u32 vcc, v1, v2\nv_lshl_add_u32 v69, v3, 3, v68\nv_mov_b32 v70, {ZERO_LDS}\nv_cndmask_b32 v240, v70, v69, vcc\nv_cndmask_b32 v239, v70, v68, vcc")
    f(f"v_and_b32 v241, 15, v0\nv_lshlrev_b32 v241, 2, v241")
    phi_stage(P, F)
    PHI = [192, 212]
    hq = e.opt.get('hq', 0)
    def harr(): e("s_waitcnt vmcnt(0)"); e.arrive(0, 136, 137, e.signal(S_HFL)); e.stamp(5)
    for m in range(2):
        if m == hq: harr()
        softmax2(e, P + 20*m, 48, PHI[m], 128)
    e(f"s_lshl_b32 s76, s{S_J}, 2\ns_add_u32 s76, s76, s{S_WV}\ns_lshl_b32 s76, s76, 11\ns_add_u32 s4, s76, {WS_KV}\ns_lshl_b32 s76, s{S_WV}, 11\ns_add_u32 m0, s76, {KVT}")
    e(f"s_lshl_b32 s76, s15, 3\ns_add_u32 s76, s76, s{S_J}\ns_mul_i32 s76, s76, 10240\ns_add_u32 s76, s76, {WS_OF}\ns_and_b32 s77, s{S_WV}, 1\ns_lshl_b32 s5, s77, 11\ns_add_u32 s5, s5, s76\ns_lshl_b32 s6, s77, 10\ns_add_u32 s6, s6, s76\ns_add_u32 s6, s6, 8192\ns_add_u32 s7, s5, 4096")
    e.stamp(6)
    e(f"s_lshl_b32 s76, s{S_RB}, 7\ns_add_u32 s{S_KFL}, s{S_KFL}, s76\ns_addc_u32 s{S_KFL+1}, s{S_KFL+1}, 0")
    e.spoll(S_KFL, [34], sleep=e.opt.get('slk', 1), least=16)
    e.stamp(7)
    if e.opt.get('oprio', 3): e(f"s_setprio {e.opt.get('oprio', 3)}")
    for t in range(2): e(f"buffer_load_dwordx4 v{VL16}, {sr(SRD_WS)}, s4 offen offset:{1024*t} sc1 lds")
    e.busy(1, 136, 137, 'c')
    for m in range(2): e(f"buffer_load_dword v{62+m}, v241, {sr(SRD_WS)}, s{S_GO} offen offset:{64*m} sc1")
    e("s_waitcnt vmcnt(2)")
    e.lsync(1, 136, 137)
    AF = 64
    seq = [5, 0, 1, 2, 3, 4]
    rd = [f"ds_read2_b64 {vr(AF + 20*n_ + 4*kp)}, v{240 if u < 5 else 239} offset0:{48*kp + 4*u} offset1:{48*kp + 4*u + 24}" for n_, u in enumerate(seq) for kp in range(5)]
    for x in rd[:10]: e(x)
    nxt = 10
    OD = 8
    for n_, u in enumerate(seq):
        e(f"s_waitcnt lgkmcnt({nxt - 5*(n_+1)})")
        F = []
        for _ in range(5):
            if nxt < 30: F.append(rd[nxt]); nxt += 1
        if n_ == 2:
            F.append("s_waitcnt vmcnt(0)")
            F += [f"v_add_f32 v{56+2*m}, {f2u(1e-6)}, v{OD+40+4*m}" for m in range(2)] + [f"v_rcp_f32 v{56+2*m}, v{56+2*m}" for m in range(2)] + [f"v_mul_f32 v{56+2*m}, v{56+2*m}, v{62+m}" for m in range(2)]
        if n_ >= 4:
            for uu in ([0, 1] if n_ == 4 else [2]):
                for m in range(2):
                    a = OD + 8*uu + 4*m
                    F += [f"v_mul_f32 v{a+r}, v{56+2*m}, v{a+r}" for r in range(4)]
                    F += [f"v_cvt_pk_bf16_f32 v{232+8*0 + 0}, v{a}, v{a+1}".replace(f"v{232}", f"v{[184,188][m] + 2*uu if uu < 2 else [244,248][m]}"),
                          f"v_cvt_pk_bf16_f32 v{([184,188][m] + 2*uu if uu < 2 else [244,248][m]) + 1}, v{a+2}, v{a+3}"]
        weave(e, [f"v_mfma_f32_16x16x32_bf16 {vr(OD + 8*u + 4*m)}, {vr(AF + 20*n_ + 4*kp)}, {vr(PHI[m] + 4*kp)}, {'0' if kp == 0 else vr(OD + 8*u + 4*m)}" for kp in range(5) for m in range(2)], F)
        if n_ == 4:
            for m in range(2): e(f"buffer_store_dwordx4 {vr([184,188][m])}, v{VL16}, {sr(SRD_WS)}, s5 offen offset:{1024*m} sc1")
    for uu in (3, 4):
        for m in range(2):
            a = OD + 8*uu + 4*m
            e(f"v_pk_mul_f32 {vr(a,2)}, {vr(a,2)}, {vr(56+2*m,2)} op_sel_hi:[1,0]\nv_pk_mul_f32 {vr(a+2,2)}, {vr(a+2,2)}, {vr(56+2*m,2)} op_sel_hi:[1,0]")
            d = [244, 248][m] + 2 if uu == 3 else 252 + 2*m
            e(f"v_cvt_pk_bf16_f32 v{d}, v{a}, v{a+1}\nv_cvt_pk_bf16_f32 v{d+1}, v{a+2}, v{a+3}")
        if uu == 3:
            for m in range(2): e(f"buffer_store_dwordx4 {vr([244,248][m])}, v{VL16}, {sr(SRD_WS)}, s7 offen offset:{1024*m} sc1")
    e(f"buffer_store_dwordx4 v[252:255], v{VL16}, {sr(SRD_WS)}, s6 offen sc1")
    e(f"s_add_u32 s{S_HFL}, s{S_HFL}, {(FL_O - FL_H)*128}\ns_addc_u32 s{S_HFL+1}, s{S_HFL+1}, 0")
    e.stamp(8)
    e("s_waitcnt vmcnt(0)"); e.busy(-1, 136, 137, 'c'); e.arrive(2, 136, 137, e.signal(S_HFL))
    e.stamps_out()

HEADER = open("gated_mix__linear_kernel_hedgehog__dense_activation_gelu__prompt.s.ref").read().split("; Override launch")[0] if __name__ == "__main__" else ""
if __name__ == "__main__":
    import ast
    kw = ast.literal_eval(sys.argv[2]) if len(sys.argv) > 2 else {}
    open(sys.argv[1], "w").write(HEADER + gen(**kw))
```

```python
import sys
import hazard

NAME = "gated_mix__linear_kernel_hedgehog__dense_activation_gelu__prompt_kernel"
WSLOT = 16384; NW = 5; XBASE = NW*WSLOT; XSLOT = 16384; NX = 3; NSTEP = 20
SPARE = XBASE + NX*XSLOT
ZERO_LDS = SPARE; CNT_LDS = SPARE + 2048; WPHI_LDS = SPARE + 2304; KVT = WPHI_LDS; STG = WPHI_LDS + 8192
EXCH_H3 = XBASE + 2*XSLOT; PARK = 3*WSLOT
assert STG + 4*5120 <= 163840
LDS_TOTAL = 163840
WS_HF = 0; WS_OF = 0x700000; WS_WF = 0xA00000; WS_G = 0xD00000; WS_KV = 0xE00000; WS_FL = 0xE20000; WS_KP = 0x1000000
WS_SIZE = 0x1400000; WS_STAMP = 0x2000000
FL_H, FL_KV, FL_KP, FL_W = 0, 256, 384, 512
NINIT = 128
OOB = 0x40000000
S_X, S_WQKV, S_WPHI, S_WO, S_BX, S_W1, S_B1, S_W2 = 16, 18, 20, 22, 24, 26, 28, 30
S_B2, S_GATE, S_OUT, S_DBG, S_WS = 32, 34, 36, 38, 40
SRD_X, SRD_WS, SRD_T, SRD_D = 44, 48, 52, 56
S_RB, S_J, S_ISQ, S_WAVE, S_PH, S_WV, S_R64, S_CB = 60, 61, 62, 63, 64, 65, 66, 67
S_KK, S_XK, S_XOFF, S_M0X, S_M0W = 68, 69, 4, 5, 6
S_C2, S_L = 8, 10
LOG2E = 1.4426950408889634
import struct, math
def f2u(x): return struct.unpack('<I', struct.pack('<f', x))[0]
GC1 = -2.0 * LOG2E * math.sqrt(2.0 / math.pi); GC2 = GC1 * 0.044715

def vr(b, n=4): return f"v[{b}:{b+n-1}]" if n > 1 else f"v{b}"
def sr(b, n=4): return f"s[{b}:{b+n-1}]"

class G:
    def __init__(self, diag=False, **opt):
        self.L = []; self.diag = diag; self.opt = opt; self.nlab = 0
    def __call__(self, s): self.L.append(s)
    def dsbatch(self, lst):
        for i, x in enumerate(lst):
            if i >= 15 and (i - 15) % 5 == 0: self("s_waitcnt lgkmcnt(10)")
            self(x)
    def lab(self, p="L"): self.nlab += 1; return f"{p}_{self.nlab}"
    def srd(self, R, p, size):
        self(f"s_mov_b32 s{R}, s{p}\ns_mov_b32 s{R+1}, s{p+1}\ns_mov_b32 s{R+2}, {size}\ns_mov_b32 s{R+3}, 0x20000")
    def fstamp(self, i):
        if self.opt.get('fine'): self(f"s_memtime s[{80+2*i}:{81+2*i}]")
    def f2(self, i):
        if self.opt.get('fine2'): self(f"s_waitcnt lgkmcnt(0)\ns_memtime s[{80+2*i}:{81+2*i}]\ns_waitcnt lgkmcnt(0)")
    def stamp(self, i, m=False):
        if self.opt.get('fine') and 3 <= i <= 8: return
        if self.opt.get('fine2') and m: return
        if self.diag and (i == 9 or not self.opt.get('lite')): self(f"s_waitcnt lgkmcnt(0)\ns_memtime s[{80+2*i}:{81+2*i}]\ns_waitcnt lgkmcnt(0)")
    def stamps_out(self):
        if not self.diag: return
        e = self
        e(f"s_waitcnt vmcnt(0) lgkmcnt(0)")
        e.stamp(9)
        e("s_memrealtime s[72:73]\ns_waitcnt lgkmcnt(0)")
        e(f"s_mov_b32 s{SRD_T}, s{S_WS}\ns_mov_b32 s{SRD_T+1}, s{S_WS+1}\ns_mov_b32 s{SRD_T+2}, 0x10000000\ns_mov_b32 s{SRD_T+3}, 0x20000")
        e(f"s_lshl_b32 s70, s2, 3\ns_add_u32 s70, s70, s{S_WAVE}\ns_lshl_b32 s70, s70, 6\ns_add_u32 s70, s70, {WS_STAMP}")
        e("s_mov_b64 exec, 1\nv_mov_b32 v1, 0")
        for i in range(10):
            if i: e(f"s_sub_u32 s71, s{80+2*i}, s80")
            else: e("s_mov_b32 s71, s80")
            e(f"v_mov_b32 v2, s71\nbuffer_store_dword v2, v1, {sr(SRD_T)}, s70 offen offset:{4*i}")
        e(f"v_mov_b32 v2, s100\nbuffer_store_dword v2, v1, {sr(SRD_T)}, s70 offen offset:40\nv_mov_b32 v2, s72\nbuffer_store_dword v2, v1, {sr(SRD_T)}, s70 offen offset:44")
        e("s_waitcnt vmcnt(0)")
        if self.opt.get('dbgrt'):
            e("s_memrealtime s[70:71]\ns_waitcnt lgkmcnt(0)")
            e.srd(SRD_T, S_DBG, 256)
            e(f"v_mov_b32 v2, s70\nbuffer_atomic_umax v2, v1, {sr(SRD_T)}, 0 offen offset:4 sc1")
            e(f"s_not_b32 s71, s100\nv_mov_b32 v2, s71\nbuffer_atomic_umax v2, v1, {sr(SRD_T)}, 0 offen offset:8 sc1")
            for i in range(1, 10):
                e(f"s_sub_u32 s71, s{80+2*i}, s80\ns_cmp_gt_u32 s71, 0x1000000\ns_cmov_b32 s71, 0\nv_mov_b32 v2, s71\nbuffer_atomic_umax v2, v1, {sr(SRD_T)}, 0 offen offset:{8+4*i} sc1")
            e(f"v_mov_b32 v2, s100\nbuffer_atomic_umax v2, v1, {sr(SRD_T)}, 0 offen offset:48 sc1")
            e("s_waitcnt vmcnt(0)")
    def wsptr(self, d, soff):
        self(f"s_add_u32 s{d}, s{S_WS}, {soff}\ns_addc_u32 s{d+1}, s{S_WS+1}, 0")
    def sprobe(self, base, dst):
        for i, d in enumerate(dst): self(f"s_load_dword s{d}, s[{base}:{base+1}], {128*i} glc")
    def spoll(self, base, dst, probed=False, sleep=1, least=None):
        e = self; L = e.lab("L_sp"); C = e.lab("L_spc"); D = e.lab("L_spd")
        e("s_mov_b32 s79, 0")
        if probed: e(f"s_branch {C}") if False else None
        def chk():
            e("s_waitcnt lgkmcnt(0)")
            if least is not None: e(f"s_cmp_ge_u32 s{dst[0]}, {least}")
            elif len(dst) == 1: e(f"s_cmp_lg_u32 s{dst[0]}, 0")
            else:
                for d in dst[1:]: e(f"s_and_b32 s{dst[0]}, s{dst[0]}, s{d}")
            e(f"s_cbranch_scc1 {D}")
        if probed: chk()
        e(f"{L}:"); e.sprobe(base, dst); chk()
        e(f"s_add_u32 s79, s79, 1\ns_cmp_ge_u32 s79, 0x200000\ns_cbranch_scc1 L_end")
        if sleep: e(f"s_sleep {sleep}")
        e(f"s_branch {L}\n{D}:")
    def lpoll(self, cnt, base, d, least, va, vt, probed=False, sleep=0, hp=None):
        e = self; F = e.lab("L_lf"); D = e.lab("L_lpd"); S = e.lab("L_lps"); L = e.lab("L_lpl")
        if hp is not None: e(f"s_setprio {hp[0]}")
        e(f"v_mov_b32 v{va}, {CNT_LDS + 4*cnt}\ns_mov_b32 s79, 0")
        if probed: e(f"s_waitcnt lgkmcnt(0)\ns_cmp_ge_u32 s{d}, {least}\ns_cbranch_scc1 {S}")
        e(f"s_cmp_lg_u32 s{S_WV}, 0\ns_cbranch_scc1 {F}\n{L}:\ns_load_dword s{d}, s[{base}:{base+1}], 0 glc\ns_waitcnt lgkmcnt(0)\ns_cmp_ge_u32 s{d}, {least}\ns_cbranch_scc1 {S}")
        e(f"s_add_u32 s79, s79, 1\ns_cmp_ge_u32 s79, 0x200000\ns_cbranch_scc1 L_end\n" + (f"s_sleep {sleep}\n" if sleep else "") + f"s_branch {L}")
        e(f"{F}:\nds_read_b32 v{vt}, v{va}\ns_waitcnt lgkmcnt(0)\nv_readfirstlane_b32 s78, v{vt}\ns_cmp_lg_u32 s78, 0\ns_cbranch_scc1 {D}")
        e(f"s_add_u32 s79, s79, 1\ns_cmp_ge_u32 s79, 0x1000000\ns_cbranch_scc1 L_end\ns_branch {F}")
        e(f"{S}:\nv_mov_b32 v{vt}, 1\nds_write_b32 v{va}, v{vt}\n{D}:")
        if hp is not None: e(f"s_setprio {hp[1]}")
    def arrive(self, cnt, va, vt, then):
        e = self; D = e.lab("L_arr")
        e(f"s_mov_b64 exec, 1\nv_mov_b32 v{va}, {CNT_LDS + 4*cnt}\nv_mov_b32 v{vt}, 1\nds_add_rtn_u32 v{va}, v{va}, v{vt}\ns_waitcnt lgkmcnt(0)")
        e(f"v_readfirstlane_b32 s78, v{va}\ns_mov_b64 exec, -1\ns_cmp_lg_u32 s78, 3\ns_cbranch_scc1 {D}")
        then(D)
        e(f"{D}:")
    def signal(self, base, word=0):
        def f(D):
            for i in range(16): self(f"s_mov_b32 s{16+i}, 1\ns_atomic_add s{16+i}, s[{base}:{base+1}], {128*i + 4*word} glc")
        return f
    def vpoll(self, srd, soff, target, vz, vt):
        e = self; L = e.lab("L_vp"); D = e.lab("L_vpd")
        e(f"s_mov_b32 s79, 0\n{L}:\nv_cmp_gt_u32 vcc, {target}, v{vt}\ns_cmp_eq_u64 vcc, 0\ns_cbranch_scc1 {D}")
        e(f"s_add_u32 s79, s79, 1\ns_cmp_ge_u32 s79, 0x100000\ns_cbranch_scc1 L_end\ns_sleep 2")
        e(f"buffer_load_dword v{vt}, v{vz}, {sr(srd)}, {soff} offen sc1\ns_waitcnt vmcnt(0)\ns_branch {L}\n{D}:")
    def lpost(self, cnt, va, vt):
        self(f"s_mov_b64 exec, 1\nv_mov_b32 v{va}, {CNT_LDS + 4*cnt}\nv_mov_b32 v{vt}, 1\nds_add_u32 v{va}, v{vt}\ns_mov_b64 exec, -1")
    def lwait(self, cnt, va, vt, sleep=1):
        e = self; L = e.lab("L_lw"); D = e.lab("L_lwd")
        e(f"s_setprio {e.opt.get('hp', 3)}")
        e(f"v_mov_b32 v{va}, {CNT_LDS + 4*cnt}\ns_mov_b32 s79, 0\n{L}:\nds_read_b32 v{vt}, v{va}\ns_waitcnt lgkmcnt(0)\nv_readfirstlane_b32 s78, v{vt}\ns_cmp_ge_u32 s78, 4\ns_cbranch_scc1 {D}")
        e(f"s_add_u32 s79, s79, 1\ns_cmp_ge_u32 s79, 0x1000000\ns_cbranch_scc1 L_end\n" + (f"s_sleep {sleep}\n" if sleep else "") + f"s_branch {L}\n{D}:\ns_setprio {e.opt.get('mprio', 0)}")
    def busy(self, d, va, vt, w=''):
        if w in self.opt.get('yld', ''): self(f"s_mov_b64 exec, 1\nv_mov_b32 v{va}, {CNT_LDS + 4*11}\nv_mov_b32 v{vt}, {d}\nds_add_u32 v{va}, v{vt}\ns_mov_b64 exec, -1")
    def lsync(self, cnt, va, vt):
        e = self; L = e.lab("L_ls")
        e(f"s_waitcnt lgkmcnt(0)\ns_mov_b64 exec, 1\nv_mov_b32 v{va}, {CNT_LDS + 4*cnt}\nv_mov_b32 v{vt}, 1\nds_add_u32 v{va}, v{vt}\ns_mov_b32 s79, 0\n{L}:")
        e(f"ds_read_b32 v{vt}, v{va}\ns_waitcnt lgkmcnt(0)\nv_readfirstlane_b32 s78, v{vt}\ns_add_u32 s79, s79, 1\ns_cmp_ge_u32 s79, 0x1000000\ns_cbranch_scc1 L_end\ns_cmp_lt_u32 s78, 4\ns_cbranch_scc1 {L}\ns_mov_b64 exec, -1")

SA, SAE, SAS, SB, SBE, SBS, SA2, SB2, SOA, SOB, SG, SPK = 16, 17, 18, 19, 24, 25, 26, 27, 28, 29, 10, 11
SFH, SFW = 34, 8
SPD = [20]; S_TL = 43
P3_ACC = 176; P3_B2 = 100; P3_VT = [10, 11, 12, 3]; P3_VL2 = 13; P3_VLB = 5; P3_VF = 171
p3acc = lambda u, t: P3_ACC + 16*u + 4*t

class Unit:
    def __init__(self, areg, off, acc, gate=False): self.areg, self.off, self.acc, self.gate = areg, off, acc, gate

def c_main_loop(e, units, xreg, xaddr, ring, D, after_bar0, tail=()):
    tail = list(tail)
    n = len(units); R = D + 2; lg = []; total = NSTEP * n
    def wait_lg(tags):
        idx = max([i for i, t in enumerate(lg) if t in tags], default=-1)
        if idx < 0: return
        cnt = len(lg) - 1 - idx; assert cnt <= 15
        e(f"s_waitcnt lgkmcnt({cnt})"); del lg[:idx + 1]
    def xreads(s, out):
        for m in range(2):
            out.append(f"ds_read_b128 {vr(xreg + 8*(s % 2) + 4*m)}, v{xaddr[s % 2]} offset:{((s//2) % NX)*XSLOT + m*2048}"); lg.append(('x', s))
    def wreads(q, out):
        s, u = divmod(q, n); U = units[u]; r = ring + 4*(q % R); slot = s % NW
        a = U.areg[slot // 3]; o = (slot % 3)*WSLOT + U.off
        if U.gate:
            out.append(f"ds_read_b128 {vr(r)}, v{a} offset:{o}"); lg.append(('w', q)); return
        out.append(f"ds_read_b64_tr_b16 {vr(r,2)}, v{a} offset:{o}"); out.append(f"ds_read_b64_tr_b16 {vr(r+2,2)}, v{a} offset:{o + 4096}")
        lg.extend([('w', q)]*2)
    e("s_barrier"); after_bar0()
    buf = []; xreads(0, buf)
    for q in range(D): wreads(q, buf)
    for b in buf: e(b)
    for q in range(total):
        s, u = divmod(q, n)
        tags = [('w', q), ('x', s)]
        if q % 2 == 0 and q + 1 < total: tags += [('w', q + 1), ('x', (q + 1)//n)]
        wait_lg(tags)
        buf = []; qa = q + D
        if qa < total:
            if qa % n == 0: buf.append("s_barrier"); xreads(qa // n, buf)
            wreads(qa, buf)
        elif tail:
            k_ = -(-len(tail) // (total - q))
            for x in tail[:k_]:
                if len(lg) >= 15: buf.append("s_waitcnt lgkmcnt(10)"); del lg[:len(lg) - 10]
                buf.append(x); lg.append(('t',))
            del tail[:k_]
        U = units[u]; r = ring + 4*(q % R); half = (len(buf) + 1)//2
        for m in range(2):
            acc = vr(U.acc + 4*m)
            e(f"v_mfma_f32_16x16x32_bf16 {acc}, {vr(r)}, {vr(xreg + 8*(s % 2) + 4*m)}, {acc}")
            for b in (buf[:half] if m == 0 else buf[half:]): e(b)

def gelu_pack(e, jobs, T, C1):
    for i in range(0, len(jobs), 4):
        grp = jobs[i:i+4]
        for k, (s, d) in enumerate(grp): e(f"v_pk_mul_f32 {vr(T+2*k,2)}, {vr(s,2)}, {vr(s,2)}")
        for k, (s, d) in enumerate(grp): e(f"v_pk_fma_f32 {vr(T+2*k,2)}, {vr(T+2*k,2)}, {sr(S_C2,2)}, {vr(C1,2)}")
        for k, (s, d) in enumerate(grp): e(f"v_pk_mul_f32 {vr(T+2*k,2)}, {vr(T+2*k,2)}, {vr(s,2)}")
        for k in range(2*len(grp)): e(f"v_exp_f32 v{T+k}, v{T+k}")
        for k, (s, d) in enumerate(grp): e(f"v_pk_add_f32 {vr(T+2*k,2)}, {vr(T+2*k,2)}, 1.0 op_sel_hi:[1,0]")
        for k in range(2*len(grp)): e(f"v_rcp_f32 v{T+k}, v{T+k}")
        for k, (s, d) in enumerate(grp): e(f"v_pk_mul_f32 {vr(T+2*k,2)}, {vr(T+2*k,2)}, {vr(s,2)}")
        for k, (s, d) in enumerate(grp): e(f"v_cvt_pk_bf16_f32 v{d}, v{T+2*k}, v{T+2*k+1}")

def softmax2(e, P, E, OUT, X, fill=(), wr=None):
    B = []; o = lambda t: B.extend(t.split("\n"))
    mx, mn = X, X + 2
    o(f"v_max3_f32 v{mx}, v{P}, v{P+1}, v{P+2}\nv_min3_f32 v{mn}, v{P}, v{P+1}, v{P+2}")
    for i in range(3, 19, 2): o(f"v_max3_f32 v{mx}, v{mx}, v{P+i}, v{P+i+1}\nv_min3_f32 v{mn}, v{mn}, v{P+i}, v{P+i+1}")
    o(f"v_max_f32 v{mx}, v{mx}, v{P+19}\nv_min_f32 v{mn}, v{mn}, v{P+19}")
    o(f"v_mul_f32 v{mx}, s{S_L}, v{mx}\nv_mul_f32 v{mn}, s{S_L}, v{mn}")
    for i in range(0, 20, 2):
        o(f"v_pk_fma_f32 {vr(E+i,2)}, {vr(P+i,2)}, {sr(S_L,2)}, {vr(mx,2)} op_sel_hi:[1,1,0] neg_lo:[0,0,1] neg_hi:[0,0,1]")
        o(f"v_pk_fma_f32 {vr(P+i,2)}, {vr(P+i,2)}, {sr(S_L,2)}, {vr(mn,2)} op_sel_hi:[1,1,0] neg_lo:[1,0,0] neg_hi:[1,0,0]")
    for i in range(20): o(f"v_exp_f32 v{E+i}, v{E+i}\nv_exp_f32 v{P+i}, v{P+i}")
    sp, sn = X + 4, X + 6
    o(f"v_pk_add_f32 {vr(sp,2)}, {vr(E,2)}, {vr(E+2,2)}\nv_pk_add_f32 {vr(sn,2)}, {vr(P,2)}, {vr(P+2,2)}")
    for i in range(4, 20, 2): o(f"v_pk_add_f32 {vr(sp,2)}, {vr(sp,2)}, {vr(E+i,2)}\nv_pk_add_f32 {vr(sn,2)}, {vr(sn,2)}, {vr(P+i,2)}")
    o(f"v_add_f32 v{sp}, v{sp}, v{sp+1}\nv_add_f32 v{sn}, v{sn}, v{sn+1}\nv_rcp_f32 v{sp}, v{sp}\nv_rcp_f32 v{sn}, v{sn}")
    fill = list(fill); step = len(B) // (len(fill) + 1)
    for i, x in enumerate(B):
        e(x)
        if fill and (i + 1) % step == 0: e(fill.pop(0))
    for src, sc, half in ((E, sp, 0), (P, sn, 1)):
        for i in range(10):
            e(f"v_pk_mul_f32 {vr(src+2*i,2)}, {vr(src+2*i,2)}, {vr(sc,2)} op_sel_hi:[1,0]")
            if i >= 1: e(f"v_cvt_pk_bf16_f32 v{OUT+10*half+i-1}, v{src+2*i-2}, v{src+2*i-1}")
            done = 10*half + i
            if wr and i >= 1 and done % 4 == 0: wr(done // 4 - 1)
        e(f"v_cvt_pk_bf16_f32 v{OUT+10*half+9}, v{src+18}, v{src+19}")
    if wr: wr(4)

def weave(e, main, fill, per=2):
    fill = [x for t in fill for x in t.split("\n")]
    for x in main:
        e(x)
        for _ in range(per):
            if fill: e(fill.pop(0))
    for x in fill: e(x)

def gen(diag=False, D=5, rot=(10, 40, 20, 5), PB=5, **opt):
    e = G(diag, **opt)
    e(f"; @launch grid=(256,1,1) block=(512,1,1) lds={LDS_TOTAL}")
    e(f'.amdgcn_target "amdgcn-amd-amdhsa--gfx950"\n.text\n.globl {NAME}\n.p2align 8\n.type {NAME},@function\n{NAME}:')
    if diag: e("s_memtime s[80:81]\ns_memrealtime s[100:101]")
    e("s_cmp_ge_u32 s2, 256\ns_cbranch_scc1 L_end")
    e("s_load_dwordx16 s[16:31], s[0:1], 0\ns_load_dwordx8 s[32:39], s[0:1], 64\ns_load_dwordx2 s[40:41], s[0:1], 96")
    if opt.get('epf', True):
        e(f"s_getpc_b64 s[12:13]\nL_pc0:\nv_lshlrev_b32 v2, 4, v0\nv_and_b32 v2, 0xc00, v2\nv_and_b32 v3, 7, v0\nv_lshl_add_u32 v2, v3, 7, v2")
        e(f"v_mov_b32 v3, L_C-L_pc0\nv_cmp_gt_u32 vcc, 256, v0\nv_cndmask_b32 v3, 0, v3, vcc\nv_add_u32 v2, v2, v3\ns_mov_b64 exec, 0xff\nglobal_load_dword v186, v2, s[12:13]\ns_mov_b64 exec, -1")
    e(f"v_lshrrev_b32 v1, 6, v0\nv_and_b32 v0, 63, v0")
    e(f"s_and_b32 s70, s2, 7\ns_lshr_b32 s71, s2, 3")
    e(f"v_readfirstlane_b32 s{S_WAVE}, v1")
    e(f"s_and_b32 s72, s70, 1\ns_and_b32 s73, s71, 7\ns_lshl_b32 s74, s72, 3\ns_add_u32 s{S_RB}, s74, s73")
    if opt.get('mix', True):
        e(f"s_lshr_b32 s{S_ISQ}, s71, 4\ns_lshr_b32 s74, s70, 1\ns_lshr_b32 s75, s71, 3")
        e(f"s_and_b32 s76, s75, 1\ns_lshl_b32 s77, s74, 1\ns_add_u32 s{S_J}, s76, s77")
    else:
        e(f"s_lshr_b32 s{S_ISQ}, s70, 2\ns_lshr_b32 s74, s70, 1\ns_lshr_b32 s75, s71, 3")
        e(f"s_and_b32 s76, s74, 1\ns_lshl_b32 s76, s76, 2\ns_add_u32 s{S_J}, s76, s75")
    a, b, c, d = rot
    e(f"s_mul_i32 s76, s73, {a}\ns_mul_i32 s77, s75, {b}\ns_add_u32 s76, s76, s77\ns_mul_i32 s77, s74, {c}\ns_add_u32 s76, s76, s77\ns_mul_i32 s77, s72, {d}\ns_add_u32 s76, s76, s77\ns_lshr_b32 s76, s76, 3")
    e(f"s_mul_i32 s77, s76, 6554\ns_lshr_b32 s77, s77, 16\ns_mul_i32 s77, s77, 10\ns_sub_u32 s{S_PH}, s76, s77")
    e(f"s_and_b32 s{S_WV}, s{S_WAVE}, 3")
    e.fstamp(3)
    e(f"s_cmp_lt_u32 s{S_WAVE}, 4\ns_cbranch_scc1 L_C")
    m_wave(e, PB)
    e("L_C:")
    c_wave(e, D)
    e("L_end:\ns_endpgm")
    e(f""".section .rodata,"a"
.p2align 6
.amdhsa_kernel {NAME}
  .amdhsa_next_free_vgpr 256
  .amdhsa_next_free_sgpr 102
  .amdhsa_accum_offset 256
  .amdhsa_group_segment_fixed_size 0
  .amdhsa_kernarg_size 104
  .amdhsa_user_sgpr_count 2
  .amdhsa_user_sgpr_kernarg_segment_ptr 1
  .amdhsa_system_sgpr_workgroup_id_x 1
.end_amdhsa_kernel""")
    txt, n = hazard.fix("\n".join(e.L), opt.get('verbose', False))
    return txt + "\n"

def x_setup(e, VX):
    e(f"v_lshrrev_b32 v2, 3, v0\ns_lshl_b32 s76, s{S_WV}, 4\nv_add_u32 v2, s76, v2")
    e(f"v_lshrrev_b32 v3, 4, v0\nv_xor_b32 v3, v3, v0\nv_and_b32 v3, 7, v3\nv_lshlrev_b32 v3, 4, v3")
    e(f"v_mul_u32_u24 v2, 1280, v2\nv_add_u32 v{VX[0]}, v2, v3")
    e(f"v_xor_b32 v3, 64, v3\nv_add_u32 v2, {8*1280-1024}, v2\nv_add_u32 v{VX[1]}, v2, v3")
    e(f"s_mul_i32 s{S_XOFF}, s{S_RB}, {128*1280}\ns_lshl_b32 s{S_M0X}, s{S_WV}, 11\ns_add_u32 s{S_M0X}, s{S_M0X}, {XBASE}\ns_lshl_b32 s{S_XK}, s{S_PH}, 7")
XADV = f"s_add_u32 s{S_XK}, s{S_XK}, 128\ns_cmp_eq_u32 s{S_XK}, 1280\ns_cmov_b32 s{S_XK}, 0"
def dma_x_ops(VX, X, h):
    pre = f"s_add_u32 s76, s{S_XK}, {h*81920}\ns_add_u32 m0, s{S_M0X}, {(X % NX)*XSLOT + h*8192}\ns_add_u32 s76, s76, s{S_XOFF}\n"
    return [(('x', X), pre + f"buffer_load_dwordx4 v{VX[0]}, {sr(SRD_X)}, s76 offen lds"),
            (('x', X), f"buffer_load_dwordx4 v{VX[1]}, {sr(SRD_X)}, s76 offen offset:1024 lds" + ("\n" + XADV if h else ""))]

def m_wave(e, PB):
    e("s_setprio 3")
    VX = [16, 17]; VB = [18, 20, 22, 24]; VS = [26, 27, 28, 29]; VA = [30, 32, 34, 36]
    e(f"s_lshl_b32 s{S_M0W}, s{S_WV}, 12\ns_lshl_b32 s{S_KK}, s{S_PH}, 1")
    e(f"s_lshr_b32 s76, s{S_WV}, 1\ns_lshl_b32 s76, s76, 4\ns_and_b32 s77, s{S_WV}, 1\ns_lshl_b32 s77, s77, 2\ns_add_u32 s78, s76, s77")
    def krow(dst, rho):
        e(f"v_and_b32 v{dst}, 4, v{rho}\nv_add3_u32 v{dst}, v{dst}, v{rho}, s78")
    def panel(dst, ci0, colreg, kv):
        e(f"v_add_u32 v2, {ci0}, v0\nv_mul_u32_u24 v3, 6554, v2\nv_lshrrev_b32 v3, 16, v3\nv_mul_u32_u24 v4, 10, v3\nv_sub_u32 v4, v2, v4")
        if kv: e(f"v_lshrrev_b32 v6, 3, v3\nv_and_b32 v3, 7, v3\nv_mul_u32_u24 v6, 1280, v6\nv_lshl_add_u32 v4, v4, 4, v6")
        else: e(f"v_lshlrev_b32 v4, 4, v4")
        krow(5, 3)
        e(f"v_mul_u32_u24 v5, 3840, v5\nv_add3_u32 v{dst}, v5, v4, s{colreg}")
    def h160(dst, hi0):
        e(f"v_add_u32 v2, {hi0}, v0\nv_min_i32 v2, 159, v2\nv_max_i32 v2, 0, v2\nv_mul_u32_u24 v3, 3277, v2\nv_lshrrev_b32 v3, 16, v3\nv_mul_u32_u24 v4, 20, v3\nv_sub_u32 v4, v2, v4")
        e(f"v_lshrrev_b32 v6, 1, v3\nv_and_b32 v6, 2, v6\nv_xor_b32 v4, v4, v6\nv_min_u32 v4, s77, v4\nv_lshlrev_b32 v4, 4, v4")
        krow(5, 3)
        e(f"v_mul_u32_u24 v5, 3456, v5\nv_add3_u32 v{dst}, v5, v4, s76")
    def addptr(b, off, plo, phi):
        if b: e(f"v_subrev_u32 v{off}, {1024*b}, v{off}\nv_ashrrev_i32 v7, 31, v{off}")
        else: e(f"v_mov_b32 v7, 0")
        e(f"v_add_co_u32 v{VB[b]}, vcc, {plo}, v{off}")
        if phi.startswith('s'): e(f"v_mov_b32 v6, {phi}"); phi = "v6"
        e(f"v_addc_co_u32 v{VB[b]+1}, vcc, {phi}, v7, vcc")
    vm = [('pf',)] if e.opt.get('epf', True) else []
    def emit(lst):
        for tag, txt in lst: e(txt); vm.append(tag)
    def wait_vm(pred):
        idx = max([i for i, t in enumerate(vm) if pred(t)], default=-1)
        if idx >= 0: e(f"s_waitcnt vmcnt({len(vm)-1-idx})"); del vm[:idx+1]
    def dma_w(step):
        pre = "".join(f"v_mad_u64_u32 {vr(VA[b],2)}, vcc, v{VS[b]}, s{S_KK}, {vr(VB[b],2)}\n" for b in range(4))
        pre += f"s_add_u32 m0, s{S_M0W}, {(step % NW)*WSLOT}\ns_add_u32 s{S_KK}, s{S_KK}, 1\ns_cmp_eq_u32 s{S_KK}, 20\ns_cmov_b32 s{S_KK}, 0\n"
        return [(('w', step), (pre if b == 0 else "") + f"global_load_lds_dwordx4 {vr(VA[b],2)}, off offset:{1024*b}") for b in range(4)]
    dma_x = lambda X, h: dma_x_ops(VX, X, h)
    O = [8, 46, 10, 11, 12]
    e(f"s_cmp_eq_u32 s{S_ISQ}, 1\ns_cbranch_scc1 L_MQ")
    e(f"s_mul_i32 s76, s{S_J}, 160\ns_add_u32 s76, s76, 1280")
    panel(O[0], 0, 76, True); panel(O[1], 64, 76, True); panel(O[2], 128, 76, True)
    e(f"v_lshrrev_b32 v3, 3, v0\nv_and_b32 v4, 6, v3\nv_xor_b32 v4, v4, v0\nv_and_b32 v4, 7, v4\nv_lshlrev_b32 v4, 4, v4\ns_lshl_b32 s76, s{S_J}, 7")
    krow(5, 3)
    e(f"v_mul_u32_u24 v5, 3456, v5\nv_add3_u32 v{O[3]}, v5, v4, s76")
    e(f"v_subrev_u32 v2, 32, v0\nv_min_u32 v2, 3, v2\nv_lshlrev_b32 v2, 4, v2\nv_cmp_gt_u32 s[14:15], 32, v0")
    e(f"v_mov_b32 v{VS[0]}, {32*3840}\nv_mov_b32 v{VS[1]}, {32*3840}\nv_mov_b32 v{VS[3]}, {32*3456}\nv_cndmask_b32 v{O[2]}, v2, v{O[2]}, s[14:15]\nv_cndmask_b32 v{VS[2]}, 64, v{VS[0]}, s[14:15]")
    e.fstamp(4)
    e("s_waitcnt lgkmcnt(0)")
    e.fstamp(5)
    addptr(0, O[0], f"s{S_WQKV}", f"s{S_WQKV+1}"); addptr(1, O[1], f"s{S_WQKV}", f"s{S_WQKV+1}"); addptr(3, O[3], f"s{S_W1}", f"s{S_W1+1}")
    e(f"v_mov_b32 v2, s{S_GATE}\nv_mov_b32 v3, s{S_WQKV}\nv_cndmask_b32 v2, v2, v3, s[14:15]\nv_mov_b32 v3, s{S_GATE+1}\nv_mov_b32 v4, s{S_WQKV+1}\nv_cndmask_b32 v3, v3, v4, s[14:15]")
    addptr(2, O[2], "v2", "v3")
    e("s_branch L_Mgo\nL_MQ:")
    e(f"s_mul_i32 s79, s{S_J}, 160\ns_mul_i32 s76, s{S_J}, 320\ns_add_u32 s76, s76, 1024\ns_cmp_eq_u32 s{S_J}, 7\ns_cselect_b32 s77, 11, 19")
    panel(O[0], 0, 79, False); panel(O[1], 64, 79, False); h160(O[4], -16); h160(O[2], 48); h160(O[3], 112)
    e(f"v_cmp_gt_u32 s[14:15], 16, v0\nv_mov_b32 v{VS[0]}, {32*3840}\nv_mov_b32 v{VS[2]}, {32*3456}\nv_mov_b32 v{VS[3]}, {32*3456}")
    e(f"v_cndmask_b32 v{O[1]}, v{O[4]}, v{O[1]}, s[14:15]\nv_cndmask_b32 v{VS[1]}, v{VS[2]}, v{VS[0]}, s[14:15]")
    e.fstamp(4)
    e("s_waitcnt lgkmcnt(0)")
    e.fstamp(5)
    addptr(0, O[0], f"s{S_WQKV}", f"s{S_WQKV+1}"); addptr(2, O[2], f"s{S_W1}", f"s{S_W1+1}"); addptr(3, O[3], f"s{S_W1}", f"s{S_W1+1}")
    e(f"v_mov_b32 v2, s{S_W1}\nv_mov_b32 v3, s{S_WQKV}\nv_cndmask_b32 v2, v2, v3, s[14:15]\nv_mov_b32 v3, s{S_W1+1}\nv_mov_b32 v4, s{S_WQKV+1}\nv_cndmask_b32 v3, v3, v4, s[14:15]")
    addptr(1, O[1], "v2", "v3")
    e("L_Mgo:")
    LA = e.opt.get('LA', 2); JS = e.opt.get('JS', 8)
    if e.opt.get('linbar'): e("s_barrier")
    emit(dma_w(0))
    e.stamp(1)
    emit(dma_w(1))
    x_setup(e, VX); e.srd(SRD_X, S_X, 2048*1280); e(XADV)
    if LA >= 3: emit(dma_x(1, 0)); emit(dma_w(2))
    e(f"s_setprio {e.opt.get('lprio', 0)}")
    e(f"s_and_b32 s76, s70, 3\ns_lshl_b32 s76, s76, 3\ns_add_u32 s{S_R64}, s76, s73\ns_and_b32 s76, s70, 4\ns_add_u32 s{S_CB}, s76, s75")
    e(f"s_mul_i32 s7, s73, 5\ns_mul_i32 s76, s75, 10\ns_add_u32 s7, s7, s76\ns_lshr_b32 s7, s7, 2")
    VZ, VL16 = 1, 15
    VJ = [38, 39, 40, 41, 42]; VJR = 43; VP = 14; JF = 48
    chunks = {}
    def c0():
        e.srd(SRD_WS, S_WS, WS_SIZE); e.srd(SRD_D, S_DBG, 256)
        e(f"v_mov_b32 v{VZ}, 0\nv_lshlrev_b32 v{VL16}, 4, v0")
        if e.opt.get('tail', False):
            e(f"s_lshl_b32 s70, s{S_J}, 4\ns_add_u32 s70, s70, s{S_RB}\ns_lshl_b32 s71, s70, 2\ns_add_u32 s71, s71, s{S_WV}\ns_lshl_b32 s72, s{S_WV}, 7\ns_add_u32 s72, s72, s70\ns_add_u32 s72, s72, 432")
            e(f"s_cmp_eq_u32 s{S_ISQ}, 1\ns_cselect_b32 s72, s72, s71\ns_mov_b32 s71, 432\ns_cmov_b32 s71, 592\ns_sub_u32 s70, s72, s71\ns_lshr_b32 s71, s72, 3\ns_and_b32 s72, s72, 7")
        else:
            e(f"s_mul_i32 s70, s2, 37\ns_add_u32 s71, s70, 37\ns_lshr_b32 s70, s70, 4\ns_lshr_b32 s71, s71, 4\ns_add_u32 s72, s70, s{S_WV}\ns_sub_u32 s70, s72, s71\ns_lshr_b32 s71, s72, 3\ns_and_b32 s72, s72, 7")
        e(f"s_sub_u32 s73, s71, 54\ns_mul_i32 s77, s73, 6554\ns_lshr_b32 s77, s77, 15\ns_mul_i32 s78, s77, 5\ns_sub_u32 s78, s73, s78")
        e(f"s_mul_i32 s73, s77, 160\ns_lshr_b32 s77, s78, 1\ns_mul_i32 s77, s77, 80\ns_and_b32 s79, s78, 1\ns_lshl_b32 s79, s79, 3\ns_add_u32 s77, s77, s79")
        e(f"s_cmp_eq_u32 s78, 4\ns_cselect_b32 s77, 16, s77\ns_cselect_b32 s75, 80, 4\ns_add_u32 s73, s73, s77\ns_mov_b32 s74, 20")
    def c1():
        e(f"s_lshl_b32 s77, s71, 5\ns_cmp_lt_u32 s71, 54\ns_cselect_b32 s73, s77, s73\ns_cselect_b32 s74, 4, s74\ns_cselect_b32 s75, 16, s75")
        e(f"s_cselect_b32 s{SRD_T}, s{S_W2}, s{S_WO}\ns_cselect_b32 s{SRD_T+1}, s{S_W2+1}, s{S_WO+1}\ns_mov_b32 s{SRD_T+2}, {640*1280}\ns_cmov_b32 s{SRD_T+2}, {1728*1280}\ns_mov_b32 s{SRD_T+3}, 0x20000")
        e(f"s_mul_i32 s12, s73, 1280\ns_mul_i32 s77, s72, 160\ns_add_u32 s12, s12, s77")
        e(f"s_mul_i32 s13, s72, 74\ns_add_u32 s13, s13, s71\ns_mul_i32 s13, s13, 5120\ns_add_u32 s13, s13, {WS_WF}")
        e(f"s_and_b32 s77, s{S_RB}, 3\ns_lshl_b32 s78, s{S_ISQ}, 2\ns_add_u32 s77, s77, s78\ns_lshl_b32 s77, s77, 7\ns_add_u32 s77, s77, {WS_FL + FL_W*128}"); e.wsptr(14, "s77")
        e(f"s_cmp_lt_i32 s70, 0\ns_cselect_b32 s12, s12, {OOB}\ns_cselect_b32 s13, s13, {OOB}")
        e(f"s_mul_i32 s3, s{S_WV}, 5120\ns_add_u32 s3, s3, {STG}")
        e(f"v_lshrrev_b32 v2, 2, v0\nv_mul_u32_u24 v2, 160, v2\nv_and_b32 v3, 3, v0\nv_mul_u32_u24 v3, 40, v3\nv_add3_u32 v{VJR}, v2, v3, s3\nv_add_u32 v44, 4096, v{VL16}")
    def cj(i0, i1):
        def f():
            for i in range(i0, i1):
                e(f"v_add_u32 v2, {64*i}, v0\nv_mul_u32_u24 v3, 6554, v2\nv_lshrrev_b32 v3, 16, v3\nv_mul_u32_u24 v4, 10, v3\nv_sub_u32 v4, v2, v4")
                e(f"v_bfe_u32 v5, v3, 2, 2\nv_mul_u32_u24 v5, s74, v5\nv_lshrrev_b32 v6, 4, v3\nv_mul_u32_u24 v6, s75, v6\nv_and_b32 v3, 3, v3\nv_add3_u32 v3, v3, v5, v6")
                e(f"v_mul_u32_u24 v3, 1280, v3\nv_lshl_add_u32 v{VJ[i]}, v4, 4, v3")
        return f
    def c8():
        e(f"s_cmp_ge_u32 s{S_WV}, 2\ns_cselect_b32 s70, 9, 10\ns_mul_i32 s71, s{S_WV}, 10\ns_cmp_eq_u32 s{S_WV}, 3\ns_cmov_b32 s71, 29\ns_add_u32 s71, s71, 16")
        e(f"s_cmp_ge_u32 s7, s70\ns_cselect_b32 s72, s70, 0\ns_sub_u32 s7, s7, s72")
        e(f"s_mul_i32 s74, s{S_R64}, 54\ns_add_u32 s72, s74, s71\ns_lshl_b32 s{SAS}, s72, 12\ns_lshl_b32 s73, s70, 12\ns_add_u32 s{SAE}, s{SAS}, s73\ns_lshl_b32 s73, s7, 12\ns_add_u32 s{SA}, s{SAS}, s73")
        e(f"s_mul_i32 s75, s{S_CB}, 74\ns_add_u32 s73, s75, s71\ns_mul_i32 s73, s73, 5120\ns_add_u32 s{SBS}, s73, {WS_WF}\ns_mul_i32 s73, s70, 5120\ns_add_u32 s{SBE}, s{SBS}, s73\ns_mul_i32 s73, s7, 5120\ns_add_u32 s{SB}, s{SBS}, s73")
    def c9():
        e(f"s_lshl_b32 s70, s{S_WV}, 2\ns_add_u32 s71, s74, s70\ns_lshl_b32 s{SA2}, s71, 12\ns_add_u32 s71, s75, s70\ns_mul_i32 s71, s71, 5120\ns_add_u32 s{SB2}, s71, {WS_WF}")
        e(f"s_mul_i32 s70, s{S_WV}, 5\ns_add_u32 s70, s70, s75\ns_add_u32 s70, s70, 54\ns_mul_i32 s70, s70, 5120\ns_add_u32 s{SOB}, s70, {WS_WF}")
        e(f"s_mul_i32 s70, s{S_R64}, 81920\ns_add_u32 s{SOA}, s70, {WS_OF}")
        e(f"s_lshl_b32 s70, s{S_R64}, 3\ns_add_u32 s70, s70, s{S_CB}\ns_lshl_b32 s70, s70, 5\ns_add_u32 s70, s70, s{S_WV}\ns_lshl_b32 s70, s70, 2\ns_add_u32 s70, s70, {WS_FL + FL_H*128}"); e.wsptr(SFH, "s70")
        e(f"s_mov_b32 s{SFW}, {WS_FL + FL_W*128 + 1024}")
        e(f"s_lshl_b32 s70, s{S_R64}, 8\ns_lshl_b32 s71, s{S_WV}, 14\ns_add_u32 s70, s70, s71\ns_add_u32 s{SG}, s70, {WS_G}")
    def c10():
        e(f"s_mul_i32 s{SPK}, s{S_WV}, 20480\ns_add_u32 s{SPK}, s{SPK}, {PARK}\ns_cmp_eq_u32 s{S_WV}, 3\ns_cmov_b32 s{SPK}, {STG}")
        e(f"v_add_u32 v{P3_VL2}, 4096, v{VL16}")
        e(f"s_and_b32 s70, s{S_CB}, {3 if e.opt.get('trot', True) else 0}\ns_xor_b32 s{S_TL}, s70, s{S_WV}")
        for t in range(4): e(f"s_xor_b32 s70, s{S_TL}, {t}\ns_lshl_b32 s70, s70, 10\nv_add_u32 v{P3_VT[t]}, s70, v{VL16}")
        e(f"v_lshrrev_b32 v4, 4, v0\nv_mul_u32_u24 v4, 40, v4\ns_mul_i32 s70, s{S_CB}, 160\nv_add_u32 v4, s70, v4")
        e(f"s_cmp_eq_u32 s{S_WV}, 0\ns_cselect_b32 s42, 1.0, 0\nv_and_b32 v8, 7, v0\nv_lshlrev_b32 v8, 7, v8")
    def b2_unpack(u):
        for i in (2*u, 2*u + 1):
            r = (2*i) % 4
            e(f"v_lshlrev_b32 v{p3acc(u,0)+r}, 16, v{P3_B2+i}\nv_and_b32 v{p3acc(u,0)+r+1}, 0xffff0000, v{P3_B2+i}")
        if True:
            for t in (1, 2, 3, 0):
                for r in range(4): e(f"v_mul_f32 v{p3acc(u,t)+r}, s42, v{p3acc(u,0)+r}")
    TAIL = e.opt.get('tail', False)
    JL = e.opt.get('JL', 17 if TAIL else 4); JR = e.opt.get('JR', 20 if TAIL else 7); JS = e.opt.get('JS', JR); JSP = e.opt.get('JSP', 5); JA = e.opt.get('JA', 20 if TAIL else 12); assert JA != 19; ZA = 3; pre = e.opt.get('pre', 0)
    for c_ in (c0, c1, cj(0, 5), c8, c9, c10): c_()
    e(f"s_lshl_b32 s76, s{S_R64}, 3\ns_add_u32 s76, s76, s{S_CB}\ns_lshl_b32 s76, s76, 7\nv_mov_b32 v2, {OOB}\nv_mov_b32 v168, 0\nv_writelane_b32 v2, s76, 0\ns_add_u32 s76, s76, 16\nv_writelane_b32 v2, s76, 3\ns_add_u32 s76, s76, 16\nv_writelane_b32 v2, s76, 4")
    e(f"s_lshl_b32 s76, s{S_J}, 4\ns_add_u32 s76, s76, s{S_RB}\ns_cmp_eq_u32 s{S_ISQ}, 1\ns_mov_b32 s77, {FL_KP}\ns_cmov_b32 s77, {FL_KV}\ns_add_u32 s76, s76, s77\ns_lshl_b32 s76, s76, 7\nv_mov_b32 v169, 0\nv_writelane_b32 v2, s76, 1")
    e(f"s_add_u32 s76, s2, {FL_W}\ns_lshl_b32 s76, s76, 7\ns_cmp_lt_u32 s2, 16\ns_cselect_b32 s76, s76, {OOB}\nv_mov_b32 v170, 0\nv_writelane_b32 v2, s76, 2")
    e(f"s_cmp_eq_u32 s{S_WV}, 0\ns_mov_b32 s76, {OOB}\ns_cmov_b32 s76, {WS_FL}\nv_mov_b32 v171, 0\nv_and_b32 v47, 1, v0\nv_lshlrev_b32 v47, 7, v47")
    emit([(('zero',), f"buffer_store_dwordx4 v[168:171], v2, {sr(SRD_WS)}, s76 offen sc1")])
    emit([(('b2',), f"global_load_dwordx4 {vr(P3_B2)}, v4, s[{S_B2}:{S_B2+1}]"), (('b2',), f"global_load_dwordx4 {vr(P3_B2+4)}, v4, s[{S_B2}:{S_B2+1}] offset:16"),
          (('b2',), f"global_load_dwordx2 {vr(P3_B2+8,2)}, v4, s[{S_B2}:{S_B2+1}] offset:32")])
    txt = (f"s_mul_i32 s76, s{S_J}, 3200\ns_lshl_b32 s77, s{S_WV}, 10\ns_add_u32 m0, s77, {WPHI_LDS}\ns_add_u32 s76, s76, s77\ns_add_u32 s76, s76, s{S_WPHI}\ns_addc_u32 s77, s{S_WPHI+1}, 0\n"
           f"s_cmp_eq_u32 s{S_WV}, 3\ns_mov_b32 s78, 1008\ns_cmov_b32 s78, 112\nv_min_u32 v6, s78, v{VL16}\nglobal_load_lds_dwordx4 v6, s[76:77]")
    emit([(('phi',), txt)])
    if e.opt.get('cpf', True):
        e(f"s_getpc_b64 s[76:77]\nL_pc:\ns_sub_u32 s76, s76, L_pc-{NAME}\ns_subb_u32 s77, s77, 0")
        e(f"s_lshr_b32 s78, s2, 3\ns_lshl_b32 s78, s78, 2\ns_add_u32 s78, s78, s{S_WV}\ns_lshl_b32 s78, s78, 9\nv_and_b32 v6, 3, v0\nv_lshl_add_u32 v6, v6, 7, s78")
        emit([(('pf',), f"s_mov_b32 s78, L_end-{NAME}\nv_min_u32 v6, s78, v6\ns_mov_b64 exec, 15\nglobal_load_dword v167, v6, s[76:77]\ns_mov_b64 exec, -1")])
    def job_loads():
        for i in range(5):
            emit([(('job',), f"s_add_u32 m0, s3, {1024*i}\ns_nop 0\nbuffer_load_dwordx4 v{VJ[i]}, {sr(SRD_T)}, s12 offen lds")])
    if JL < 0: job_loads()
    P3S = P3(e, PB, VZ, VL16, vm)
    for s in range(NSTEP):
        wait_vm(lambda t: t == ('w', s) or t == ('x', s//2))
        e("s_barrier")
        if s == 0: e.stamp(2)
        if e.opt.get('steps'): e(f"s_memtime s[76:77]\ns_waitcnt lgkmcnt(0)\ns_sub_u32 s76, s76, s80\nv_writelane_b32 v9, s76, {s}")
        n_list = [2, 3] if (LA == 2 and s == 0) else [s + 3]
        for n_ in n_list:
            if n_ < NSTEP: emit(dma_x(n_ // 2, n_ % 2))
        if s + LA < NSTEP: emit(dma_w(s + LA))
        if s == ZA:
            wait_vm(lambda t: t[0] in ('zero', 'b2', 'phi'))
            Li = e.lab("L_ini")
            e(f"s_cmp_lg_u32 s{S_WV}, 0\ns_cbranch_scc1 {Li}\ns_lshr_b32 s76, s2, 7\ns_lshl_b32 s76, s76, 7\ns_mov_b32 s21, 1\ns_atomic_add s21, s[{S_DBG}:{S_DBG+1}], s76 glc\n{Li}:")
        if ZA + 1 <= s < ZA + 6: b2_unpack(s - ZA - 1)
        if s == JL: job_loads()
        if s == JR:
            wait_vm(lambda t: t[0] == 'job')
            for u in range(5):
                e(f"ds_read_b64_tr_b16 {vr(JF+4*u,2)}, v{VJR} offset:{8*u}\nds_read_b64_tr_b16 {vr(JF+4*u+2,2)}, v{VJR} offset:{8*u + 2560}")
            e("s_waitcnt lgkmcnt(0)")
        if True:
            for u in range(5):
                if s != JS + u // JSP: continue
                if u < 4: emit([(('jst',), f"buffer_store_dwordx4 {vr(JF+4*u)}, v{VL16}, {sr(SRD_WS)}, s13 offen offset:{1024*u} sc1")])
                else: emit([(('jst',), f"buffer_store_dwordx4 {vr(JF+4*u)}, v44, {sr(SRD_WS)}, s13 offen sc1")])
        IC = min(JA, 15)
        if s == IC - 2: emit([(('init',), f"buffer_load_dword v{VP}, v47, {sr(SRD_D)}, 0 offen sc1")])
        if s == IC:
            wait_vm(lambda t: t[0] == 'init'); e.vpoll(SRD_D, "0", NINIT, 47, VP)
        if s == JA:
            wait_vm(lambda t: t[0] == 'jst'); e("s_mov_b32 s22, 0")
            e.arrive(3, 174, 175, lambda D: e(f"s_mov_b32 s22, 1\ns_atomic_add s22, s[14:15], 0 glc"))
        if s == JA + 1:
            Lw = e.lab("L_w2")
            e(f"s_waitcnt lgkmcnt(0)\ns_cmp_lg_u32 s22, 31\ns_cbranch_scc1 {Lw}\ns_mov_b32 s23, 1\ns_atomic_add s23, s[14:15], 1024 glc\n{Lw}:")
        if JA < 19:
            if s == (17 if pre else 18): emit([(('wp',), f"buffer_load_dword v{VP}, v8, {sr(SRD_WS)}, s{SFW} offen sc1")])
            if s == 18 and pre:
                wait_vm(lambda t: t[0] == 'wp'); e.vpoll(SRD_WS, f"s{SFW}", 1, 8, VP)
                for _ in range(pre): P3S.prefetch()
    e.stamp(3)
    HP = e.opt.get('hp', 3)
    e(f"s_setprio {HP}")
    if JR >= NSTEP:
        wait_vm(lambda t: t[0] == 'job')
        e.f2(5)
        for u in range(5):
            e(f"ds_read_b64_tr_b16 {vr(JF+4*u,2)}, v{VJR} offset:{8*u}\nds_read_b64_tr_b16 {vr(JF+4*u+2,2)}, v{VJR} offset:{8*u + 2560}")
    if JS >= NSTEP:
        for u in range(5):
            e(f"s_waitcnt lgkmcnt({8-2*u})")
            if u < 4: emit([(('jst',), f"buffer_store_dwordx4 {vr(JF+4*u)}, v{VL16}, {sr(SRD_WS)}, s13 offen offset:{1024*u} sc1")])
            else: emit([(('jst',), f"buffer_store_dwordx4 {vr(JF+4*u)}, v44, {sr(SRD_WS)}, s13 offen sc1")])
    if JA >= 19:
        e.f2(6)
        wait_vm(lambda t: True)
        e.f2(7)
        def w_sig(D): e(f"s_mov_b32 s22, 1\ns_atomic_add s22, s[14:15], 0 glc\ns_waitcnt lgkmcnt(0)\ns_cmp_lg_u32 s22, 31\ns_cbranch_scc1 {D}\ns_mov_b32 s23, 1\ns_atomic_add s23, s[14:15], 1024 glc")
        e.arrive(3, 174, 175, w_sig)
        e.f2(8)
        e(f"v_mov_b32 v{VP}, 0")
        if TAIL: e("v_and_b32 v8, 0x180, v8")
        e.vpoll(SRD_WS, f"s{SFW}", 1, 8, VP)
    elif not pre:
        wait_vm(lambda t: t[0] == 'wp'); e.vpoll(SRD_WS, f"s{SFW}", 1, 8, VP)
    e(f"s_setprio {e.opt.get('mprio', 0)}")
    e.stamp(4)
    if e.opt.get('nop3'):
        e.stamps_out(); e("s_endpgm"); return
    P3S.begin()
    while P3S.npre < PB:
        if P3S.npre >= e.opt.get('free', 2):
            if not P3S.ring: e.lwait(8, 174, 175); P3S.ring = True
            P3S.yield_()
        P3S.prefetch()
        if len(vm) > P3S.THR: e(f"s_waitcnt vmcnt({P3S.THR})"); del vm[:len(vm) - P3S.THR]
    P3S.run()

def P3(e, PB, VZ, VL16, vm):
    class S: pass
    S.npre = 0
    opt = e.opt
    ACC = 176; POOL = 16; NPOOL = 38
    VL2, VP = 13, 14; VGO = 173; VY = 9 if not opt.get('steps') else 169
    VT = P3_VT
    VG = 2
    acc = lambda u, t: ACC + 16*u + 4*t
    NQ, NK = 10, 4; NS = NQ + NK; HPM = (opt.get('hp', 3), opt.get('mprio', 0))
    def pst(i):
        if opt.get('steps'): e(f"s_waitcnt lgkmcnt(0)\ns_memtime s[76:77]\ns_waitcnt lgkmcnt(0)\ns_sub_u32 s76, s76, s80\nv_writelane_b32 v9, s76, {i}")
    free = list(range(NPOOL)); frag = {}
    def emit1(item): e(item[1]); vm.append(item[0])
    def waitvm(pred):
        idx = max([i for i, t in enumerate(vm) if pred(t)], default=-1)
        if idx >= 0: e(f"s_waitcnt vmcnt({len(vm)-1-idx})"); del vm[:idx+1]
    def ld(d, v, so, off): return f"buffer_load_dwordx4 {d}, v{v}, {sr(SRD_WS)}, {so} offen" + (f" offset:{off}" if off else "") + " sc1"
    def take(k): return free.pop(0)
    def group(kind, k):
        out = []
        for i in range(4 if kind == 'A' else 5):
            sl = take(k); frag[(kind, k, i)] = POOL + 4*sl; d = vr(POOL + 4*sl)
            pre = post = ""
            if kind == 'A':
                if k < NQ:
                    if k == NQ - 1 and i == 0: pre = f"s_cmp_ge_u32 s{S_WV}, 2\ns_cmov_b32 s{SA}, {OOB}\n"
                    if i == 3: post = f"\ns_add_u32 s{SA}, s{SA}, 4096\ns_cmp_eq_u32 s{SA}, s{SAE}\ns_cmov_b32 s{SA}, s{SAS}"
                    txt = ld(d, VT[i], f"s{SA}", 0)
                else:
                    txt = ld(d, VT[i], f"s{SA2}", 0)
                    if i == 3: post = f"\ns_add_u32 s{SA2}, s{SA2}, 4096"
            else:
                if k < NQ:
                    so = f"s{SB}"
                    if k == NQ - 1 and i == 0: pre = f"s_cmp_ge_u32 s{S_WV}, 2\ns_cmov_b32 s{SB}, {OOB}\n"
                    if i == 4: post = f"\ns_add_u32 s{SB}, s{SB}, 5120\ns_cmp_eq_u32 s{SB}, s{SBE}\ns_cmov_b32 s{SB}, s{SBS}"
                else:
                    so = f"s{SB2}"
                    if i == 4: post = f"\ns_add_u32 s{SB2}, s{SB2}, 5120"
                txt = ld(d, VL16, so, 1024*i) if i < 4 else ld(d, VL2, so, 0)
            out.append(((kind, k), pre + txt + post))
        return out
    THR = opt.get('thr', 10)
    YLD = opt.get('yld', '')
    def yield_(pre_read=False):
        if not YLD: return
        L = e.lab("L_y"); D = e.lab("L_yd")
        if not pre_read: e(f"ds_read_b32 v{VP}, v{VY}")
        e(f"s_setprio {opt.get('hp', 3)}\ns_mov_b32 s79, 0\n{L}:\ns_waitcnt lgkmcnt(0)\nv_readfirstlane_b32 s78, v{VP}\ns_cmp_eq_u32 s78, 0\ns_cbranch_scc1 {D}")
        e(f"s_add_u32 s79, s79, 1\ns_cmp_ge_u32 s79, 0x1000000\ns_cbranch_scc1 L_end\ns_sleep 1\nds_read_b32 v{VP}, v{VY}\ns_branch {L}\n{D}:\ns_setprio {opt.get('mprio', 0)}")
    def prefetch():
        for it in group('B', S.npre): emit1(it)
        S.npre += 1
    S.prefetch = prefetch; S.THR = THR
    def msync(cnt):
        e.lpost(cnt, 174, 175); e.lwait(cnt, 174, 175, sleep=0)
    S.ring = False; S.yield_ = yield_
    S.begin = lambda: e(f"v_mov_b32 v{VY}, {CNT_LDS + 4*11}")
    def run():
        if not S.ring: e.lwait(8, 174, 175)
        if opt.get('tail', False):
            e(f"s_setprio {opt.get('hp', 3)}\nv_or_b32 v8, 0x200, v8\nbuffer_load_dword v{VP}, v8, {sr(SRD_WS)}, s{SFW} offen sc1\ns_waitcnt vmcnt(0)"); vm.clear()
            e.vpoll(SRD_WS, f"s{SFW}", 1, 8, VP)
            e(f"s_setprio {opt.get('mprio', 0)}")
        e.stamp(5, True)
        def park(j):
            out = []
            for i in range(5):
                pre = f"s_add_u32 s12, s{S_R64}, {j}\ns_and_b32 s12, s12, 3\ns_mul_i32 s12, s12, 5120\ns_add_u32 s13, s12, s{SOB}\ns_add_u32 s12, s12, s{SPK}\n" if i == 0 else ""
                out.append((('L',), pre + f"s_add_u32 m0, s12, {1024*i}\ns_add_u32 s77, s13, {1024*i}\nbuffer_load_dwordx4 v{VL16}, {sr(SRD_WS)}, s77 offen sc1 lds"))
            return out
        PK = opt.get('pk', (10, 11, 11, 12))
        for j in range(4):
            if PK[j] >= 0: continue
            yield_()
            for it in park(j): emit1(it)
            if len(vm) > THR: e(f"s_waitcnt vmcnt({THR})"); del vm[:len(vm) - THR]
        VH = [4, 5, 6, 7]; VOUT = 8; VGS = [2, 168, 170, 172]
        for t in range(4): e(f"s_xor_b32 s70, s{S_TL}, {t}\ns_lshr_b32 s71, s70, 1\ns_lshl_b32 s71, s71, 10\ns_and_b32 s70, s70, 1\ns_lshl_b32 s70, s70, 3\ns_add_u32 s70, s70, s71\ns_add_u32 s70, s70, 8192\nv_add_u32 v{VH[t]}, s70, v{VL16}")
        e.srd(SRD_T, S_OUT, 2048*1280)
        e(f"v_and_b32 v{VOUT}, 15, v0\nv_mul_u32_u24 v{VOUT}, 1280, v{VOUT}\nv_lshrrev_b32 v170, 4, v0\nv_mul_u32_u24 v170, 40, v170\nv_add_u32 v{VOUT}, v{VOUT}, v170\nv_add_u32 v171, s{SPK}, v{VL16}")
        e(f"s_lshl_b32 s70, s{S_R64}, 2\ns_add_u32 s70, s70, s{S_TL}\ns_mul_i32 s70, s70, {16*1280}\ns_mul_i32 s71, s{S_CB}, 160\ns_add_u32 s21, s70, s71")
        e(f"s_mul_i32 s70, s{S_WV}, 20480\ns_add_u32 s{SOA}, s{SOA}, s70")
        e(f"s_cmp_eq_u32 s{S_WV}, 3\ns_cselect_b32 s22, 3, 2")
        e.spoll(SFH, SPD, sleep=opt.get('slh', 2), least="s22")
        e.stamp(6, True)
        order = []
        for k in range(NS):
            order.append(('A', k))
            if k >= PB: order.append(('B', k))
        pend = []; gate = [False]
        LOOK = opt.get('look', 2)
        def refill(cur):
            i = 0
            while i < len(order):
                kind, k = order[i]
                if kind == 'A' and k >= NQ and not gate[0]: i += 1; continue
                if k > cur + LOOK or len(free) < (4 if kind == 'A' else 5) + (8 if i > 0 else 0): break
                pend.extend(group(kind, k)); order.pop(i)
        yield_()
        refill(-1)
        for it in pend: emit1(it)
        pend.clear()
        nxtflag = f"s_add_u32 s{SFH}, s{SFH}, 16"
        GK = NQ - opt.get('gk', LOOK); GO = NS - opt.get('go', 0)
        bo = {}; aq = []; dsq = []; lg = []
        def o_weights_stream():
            for u in range(5):
                sl = free.pop(0); bo[(4, u)] = POOL + 4*sl
                pend.append((('Bo',), (f"s_add_u32 s77, s{SOB}, {4*5120}\n" if u == 0 else "") + (ld(vr(POOL + 4*sl), VL16, "s77", 1024*u) if u < 4 else ld(vr(POOL + 4*sl), VL2, "s77", 0))))
        oa = [(t, i) for t in (3, 2, 1, 0) for i in range(5)]; ao = {}
        def a_next():
            t, i = oa.pop(0); sl = free.pop(0); ao[(t, i)] = d = POOL + 4*sl
            if i < 4: return [(('Ao', t, i), f"s_add_u32 s76, s{SOA}, {(i >> 1)*10240 + (i & 1)*4096}\n" + ld(vr(d), VT[t], "s76", 0))]
            return [(('Ao', t, i), f"s_add_u32 s76, s{SOA}, {ee*10240}\nbuffer_load_dwordx2 {vr(d+2*ee,2)}, v{VH[t]}, {sr(SRD_WS)}, s76 offen sc1") for ee in range(2)]
        ob = [(t, i, u) for t in (3, 2, 1, 0) for i in range(4) for u in range(5)]
        def b_next():
            t, i, u = ob.pop(0); sl = free.pop(0); bo[(t, i, u)] = POOL + 4*sl
            if len(lg) >= 15: e("s_waitcnt lgkmcnt(10)"); del lg[:5]
            e(f"ds_read_b128 {vr(POOL + 4*sl)}, v171 offset:{5120*i + 1024*u}"); lg.append((t, i))
        def o_gate():
            e.stamp(7, True)
            e.spoll(SFH, SPD, probed=True, sleep=opt.get('slz', 2), least=2)
            e.stamp(8, True); lg.clear()
            while oa: pend.extend(a_next())
        for k in range(NS):
            if k == GK:
                e.spoll(SFH, SPD, probed=True, sleep=opt.get('slo', 2), least=2)
                gate[0] = True
                e(f"v_and_b32 v{VGO}, 15, v0\nv_lshlrev_b32 v{VGO}, 2, v{VGO}")
                for t in range(4): emit1((('g',), f"s_xor_b32 s76, s{S_TL}, {t}\ns_lshl_b32 s76, s76, 6\ns_add_u32 s76, s76, s{SG}\nbuffer_load_dword v{VGS[t]}, v{VGO}, {sr(SRD_WS)}, s76 offen sc1"))
            refill(k)
            for j in range(4):
                if PK[j] == k: pend.extend(park(j))
            if k == NS - 2: o_weights_stream()
            while any(it[0] in (('A', k), ('B', k)) for it in pend): emit1(pend.pop(0))
            if k == GO:
                o_gate()
                for _ in range(4): emit1(pend.pop(0))
            waitvm(lambda t: t in (('A', k), ('B', k)))
            if pend and k != GK - 1 and k < GO - 1: yield_(pre_read=k > 0 and k != GK)
            pst(24 + k)
            cnt = 0
            for t in range(4):
                for u in range(5):
                    e(f"v_mfma_f32_16x16x32_bf16 {vr(acc(u,t))}, {vr(frag[('B',k,u)])}, {vr(frag[('A',k,t)])}, {vr(acc(u,t))}")
                    cnt += 1
                    if cnt % 2 == 0 and pend: emit1(pend.pop(0))
            while pend: emit1(pend.pop(0))
            for i in range(4): free.append((frag[('A', k, i)] - POOL)//4)
            for i in range(5): free.append((frag[('B', k, i)] - POOL)//4)
            if k == GK - 2 or (k == GO - 2 and GO < NS): e(nxtflag); e.sprobe(SFH, SPD)
            elif k == NS - 1 and GO >= NS: e(nxtflag)
            elif YLD and k + 1 < GO - 1 and k + 1 != GK: e(f"ds_read_b32 v{VP}, v{VY}")
        assert not order
        pst(38)
        e.lwait(12, 174, 175)
        waitvm(lambda t: t in (('g',), ('L',)))
        if GO >= NS: e.sprobe(SFH, SPD)
        while len(free) > (0 if GO < NS else 20): b_next()
        for t in range(4): e(f"v_sub_f32 v{VGS[t]}, 1.0, v{VGS[t]}")
        for t in (3, 2, 1, 0):
            for u in range(5):
                for r in (0, 2): e(f"v_pk_mul_f32 {vr(acc(u,t)+r,2)}, {vr(acc(u,t)+r,2)}, {vr(VGS[t],2)} op_sel_hi:[1,0]")
        RA = [2, 168, 170, 172]
        for t in range(4): e(f"s_xor_b32 s76, s{S_WV}, {t}\ns_mul_i32 s77, s76, 15360\ns_cmp_eq_u32 s76, 3\ns_cmov_b32 s77, {EXCH_H3}\nv_add_u32 v{RA[t]}, s77, v{VL16}")
        if opt.get('opf'):
            emit1((('opf',), f"buffer_load_dword v{VP}, v{VOUT}, {sr(SRD_T)}, s21 offen"))
        if GO >= NS:
            o_gate()
            for _ in range(opt.get('a0', 24)): emit1(pend.pop(0))
        pst(39)
        wq = []
        for t in (3, 2, 1, 0):
            for i in range(5):
                while any(it[0] == ('Ao', t, i) for it in pend): emit1(pend.pop(0))
                waitvm(lambda x: x == ('Ao', t, i) or x == ('Bo',))
                idx = max([n for n, x in enumerate(lg) if x == (t, i)], default=-1)
                if idx >= 0: e(f"s_waitcnt lgkmcnt({len(lg)-1-idx})"); del lg[:idx+1]
                for u in range(5):
                    bb = bo[(t, i, u)] if i < 4 else bo[(4, u)]
                    e(f"v_mfma_f32_16x16x32_bf16 {vr(acc(u,t))}, {vr(bb)}, {vr(ao[(t,i)])}, {vr(acc(u,t))}")
                    if i < 4 and u: free.append((bo[(t, i, u-1)] - POOL)//4)
                    if u in (0, 2) and pend: emit1(pend.pop(0))
                    if u == 3 and wq:
                        if len(lg) >= 15: e("s_waitcnt lgkmcnt(10)"); del lg[:5]
                        e(wq.pop(0)); lg.append('w')
                    if ob and free and len([x for x in lg if x != 'w']) < 12: b_next()
                if i < 4: free.append((bo[(t, i, 4)] - POOL)//4)
                free.append((ao[(t, i)] - POOL)//4)
            if t: wq += [f"ds_write_b128 v{RA[t]}, {vr(acc(u,t))} offset:{5120*(t-1) + 1024*u}" for u in range(5)]
        assert not wq and not oa and not ob
        pst(40)
        e("s_waitcnt lgkmcnt(0)\ns_barrier")
        pst(41)
        R = POOL
        for u in range(5):
            for sw in range(3): e(f"ds_read_b128 {vr(R + 12*u + 4*sw)}, v{RA[0]} offset:{sw*5120 + u*1024}")
        for u in range(5):
            e(f"s_waitcnt lgkmcnt({12 - 3*u})")
            b = R + 12*u; a = acc(u, 0)
            for r in (0, 2): e(f"v_pk_add_f32 {vr(a+r,2)}, {vr(a+r,2)}, {vr(b+r,2)}\nv_pk_add_f32 {vr(b+4+r,2)}, {vr(b+4+r,2)}, {vr(b+8+r,2)}")
            for r in (0, 2): e(f"v_pk_add_f32 {vr(a+r,2)}, {vr(a+r,2)}, {vr(b+4+r,2)}")
        pst(42)
        for u in range(5):
            a = acc(u, 0)
            e(f"v_cvt_pk_bf16_f32 v{100+2*u}, v{a}, v{a+1}\nv_cvt_pk_bf16_f32 v{101+2*u}, v{a+2}, v{a+3}")
        fl = opt.get('outfl', '')
        e(f"buffer_store_dwordx4 v[100:103], v{VOUT}, {sr(SRD_T)}, s21 offen {fl}\nbuffer_store_dwordx4 v[104:107], v{VOUT}, {sr(SRD_T)}, s21 offen offset:16 {fl}\nbuffer_store_dwordx2 v[108:109], v{VOUT}, {sr(SRD_T)}, s21 offen offset:32 {fl}")
        pst(43)
        if opt.get('steps'):
            e("s_waitcnt vmcnt(0)"); pst(44)
            e(f"s_lshl_b32 s70, s2, 2\ns_add_u32 s70, s70, s{S_WV}\ns_lshl_b32 s70, s70, 8\ns_add_u32 s70, s70, 0xF00000\nv_lshlrev_b32 v2, 2, v0\nbuffer_store_dword v9, v2, {sr(SRD_WS)}, s70 offen\ns_waitcnt vmcnt(0)")
        e.stamps_out()
        e("s_endpgm")
    S.run = run
    return S

def c_wave(e, D):
    XREG = 224; RING = 192; VXA = [246, 247]; AT = [240, 241]
    VZ, VL16 = 242, 243
    x_setup(e, [128, 129])
    e.fstamp(4)
    LIN = 0
    if LIN:
        ends = [20480, 39680, 56960, 74240, 80640][:3 if LIN <= 56 else 5]
        e(f"s_lshl_b32 s76, s2, 2\ns_add_u32 s76, s76, s{S_WV}\ns_mul_i32 s76, s76, {LIN}\nv_min_u32 v130, {min(LIN, 64)-1}, v0\nv_add_u32 v130, s76, v130")
    e("s_waitcnt lgkmcnt(0)")
    if LIN:
        ptr = [S_X, S_WQKV, S_W1, S_W2, S_WO]
        for rep in range(1 if LIN <= 64 else 2):
            if rep: e(f"v_min_u32 v130, {LIN-65}, v0\nv_add3_u32 v130, v130, s76, 64")
            e(f"v_min_u32 v130, {ends[-1]-1}, v130\nv_mov_b32 v132, s{ptr[0]}\nv_mov_b32 v133, s{ptr[0]+1}\nv_mov_b32 v131, v130")
            for i in range(1, len(ends)):
                e(f"v_cmp_le_u32 vcc, {ends[i-1]}, v130\nv_subrev_u32 v134, {ends[i-1]}, v130\nv_mov_b32 v135, s{ptr[i]}\nv_cndmask_b32 v131, v131, v134, vcc\nv_cndmask_b32 v132, v132, v135, vcc\nv_mov_b32 v135, s{ptr[i]+1}\nv_cndmask_b32 v133, v133, v135, vcc")
            e(f"v_lshlrev_b32 v131, 7, v131\nv_add_co_u32 v132, vcc, v132, v131\nv_addc_co_u32 v133, vcc, 0, v133, vcc\nglobal_load_dword v187, v[132:133], off")
    e.srd(SRD_X, S_X, 2048*1280)
    e.fstamp(5)
    for t, x in dma_x_ops([128, 129], 0, 0) + dma_x_ops([128, 129], 0, 1): e(x)
    e.fstamp(8)
    e.srd(SRD_T, S_B1, 3456)
    e(f"s_lshl_b32 s76, s{S_J}, 7\ns_mul_i32 s77, s{S_J}, 320\ns_add_u32 s77, s77, 1024\ns_cmp_eq_u32 s{S_ISQ}, 1\ns_cselect_b32 s76, s77, s76\ns_cselect_b32 s77, s77, {OOB}\nv_lshrrev_b32 v132, 4, v0\nv_lshlrev_b32 v132, 3, v132")
    for t in range(10): e(f"buffer_load_dwordx2 {vr(136+2*t,2)}, v132, {sr(SRD_T)}, s{76 if t < 4 else 77} offen offset:{32*t}")
    e.fstamp(6)
    e("v_lshrrev_b32 v1, 4, v0\nv_bfe_u32 v2, v0, 2, 2\nv_and_b32 v3, 3, v0")
    e("v_and_b32 v5, 1, v1\nv_lshl_add_u32 v4, v5, 2, v2\nv_lshrrev_b32 v6, 1, v1\nv_lshlrev_b32 v6, 13, v6")
    e(f"s_lshl_b32 s76, s{S_WV}, 5\nv_and_b32 v7, 15, v0\nv_add_u32 v7, s76, v7")
    e(f"v_lshrrev_b32 v128, 1, v7\nv_xor_b32 v128, v128, v1\nv_and_b32 v128, 7, v128\nv_lshlrev_b32 v128, 4, v128\nv_lshl_add_u32 v128, v7, 7, v128")
    e(f"v_add_u32 v{VXA[0]}, {XBASE}, v128\nv_xor_b32 v{VXA[1]}, 64, v{VXA[0]}")
    e(f"v_mul_u32_u24 v128, 160, v4\nv_mul_u32_u24 v129, 40, v3\nv_add3_u32 v{AT[0]}, v128, v129, v6\nv_add_u32 v{AT[1]}, {3*WSLOT}, v{AT[0]}")
    e(f"v_mov_b32 v{VZ}, 0\nv_lshlrev_b32 v{VL16}, 4, v0\nv_mov_b32 v128, 0\nv_mov_b32 v129, 0\nv_mov_b32 v130, 0\nv_mov_b32 v131, 0")
    e(f"s_lshl_b32 s76, s{S_WV}, 9\ns_add_u32 s76, s76, {ZERO_LDS}\nv_lshl_add_u32 v132, v0, 3, s76\nds_write_b64 v132, v[128:129]")
    e(f"v_lshlrev_b32 v132, 2, v0\nv_add_u32 v132, {CNT_LDS}, v132\nds_write_b32 v132, v128")
    VPH = 244
    e(f"v_mul_u32_u24 v132, 800, v3\nv_mul_u32_u24 v133, 40, v2\nv_add3_u32 v132, v132, v133, s76\nv_cmp_eq_u32 vcc, v1, v3\ns_add_u32 s77, s76, {-WPHI_LDS & 0xffffffff}")
    e(f"v_subrev_u32 v132, s77, v132\nv_mov_b32 v133, {ZERO_LDS}\nv_cndmask_b32 v{VPH}, v133, v132, vcc")
    e(f"s_mov_b32 s{S_C2}, {f2u(GC2)}\ns_mov_b32 s{S_C2+1}, {f2u(GC2)}\ns_mov_b32 s{S_L}, {f2u(LOG2E)}\ns_mov_b32 s{S_L+1}, {f2u(LOG2E)}")
    e("s_waitcnt lgkmcnt(0)")
    e.srd(SRD_WS, S_WS, WS_SIZE)
    S_HO, S_HFL, S_KFL = 12, 72, 74
    e(f"s_lshl_b32 s76, s{S_RB}, 1\ns_lshr_b32 s77, s{S_WV}, 1\ns_add_u32 s15, s76, s77")
    e(f"s_lshl_b32 s76, s{S_RB}, 11\ns_lshr_b32 s77, s{S_J}, 1\ns_lshl_b32 s77, s77, 2\ns_add_u32 s76, s76, s77\ns_add_u32 s76, s76, {WS_FL + FL_H*128}"); e.wsptr(S_HFL, "s76")
    e(f"s_lshl_b32 s76, s{S_J}, 11\ns_add_u32 s76, s76, {WS_FL + FL_KV*128}"); e.wsptr(S_KFL, "s76")
    S_GO = 3
    e(f"s_lshl_b32 s76, s{S_J}, 13\ns_lshl_b32 s77, s{S_RB}, 9\ns_add_u32 s76, s76, s77\ns_lshl_b32 s77, s{S_WV}, 7\ns_add_u32 s76, s76, s77\ns_add_u32 s{S_GO}, s76, {WS_G}")
    def after_bar0(): e.stamp(2)
    def bias_init(nu, hacc, zero_lo, zero_hi):
        e.fstamp(7)
        for i in list(range(*zero_lo)) + list(range(*zero_hi)): e(f"v_mov_b32 v{i}, 0")
        e("s_waitcnt vmcnt(0)")
        for t in range(nu):
            for m in range(2):
                a = hacc + 8*t + 4*m
                e(f"v_lshlrev_b32 v{a}, 16, v{136+2*t}\nv_and_b32 v{a+1}, 0xffff0000, v{136+2*t}\nv_lshlrev_b32 v{a+2}, 16, v{137+2*t}\nv_and_b32 v{a+3}, 0xffff0000, v{137+2*t}")
        e.stamp(1)
    C1 = 128; T = 130; PK = 140
    def gelu_steps(hacc, nsteps, PK, VL16, skip_from=None, mid=None):
        e(f"v_mov_b32 v{C1}, {f2u(GC1)}\nv_mov_b32 v{C1+1}, {f2u(GC1)}")
        Ls = e.lab("L_hskip")
        for i in range(nsteps):
            if i == skip_from: e(f"s_cmp_eq_u32 s{S_J}, 7\ns_cbranch_scc1 {Ls}")
            for m in range(2):
                d = PK + 4*((2*i + m) % 4)
                a0 = hacc + 16*i + 4*m; a1 = a0 + 8
                gelu_pack(e, [(a0, d), (a0+2, d+1), (a1, d+2), (a1+2, d+3)], T, C1)
                e(f"buffer_store_dwordx4 {vr(d)}, v{VL16}, {sr(SRD_WS)}, s{S_HO} offen offset:{1024*m} sc1")
            e(f"s_add_u32 s{S_HO}, s{S_HO}, 4096")
            if mid and i == 0: mid()
        e(f"{Ls}:")
    WF_ = 140
    QP = 192
    PHR = [f"ds_read_b64_tr_b16 {vr(WF_ + 10*tau + 2*t, 2)}, v{VPH} offset:{160*t + 8*tau}" for tau in range(5) for t in range(5)]
    def phi_stage(P, fill=()):
        for m in range(2):
            for t in range(5):
                a = 8 + 8*t + 4*m
                e(f"v_cvt_pk_bf16_f32 v{QP+10*m+2*t}, v{a}, v{a+1}\nv_cvt_pk_bf16_f32 v{QP+10*m+2*t+1}, v{a+2}, v{a+3}")
        e("s_waitcnt lgkmcnt(0)")
        mf = []
        for ks in range(3):
            for m in range(2):
                for tau in range(5):
                    d = vr(P + 20*m + 4*tau); c = "0" if ks == 0 else d
                    if ks < 2: mf.append(f"v_mfma_f32_16x16x32_bf16 {d}, {vr(WF_+10*tau+4*ks)}, {vr(QP+10*m+4*ks)}, {c}")
                    else: mf.append(f"v_mfma_f32_16x16x16_bf16 {d}, {vr(WF_+10*tau+8,2)}, {vr(QP+10*m+8,2)}, {c}")
        weave(e, mf, fill)
    e(f"s_cmp_eq_u32 s{S_ISQ}, 1\ns_cbranch_scc1 L_CQ")
    AH = [[248, 249], [250, 251], [252, 253], [254, 255]]; AG = [190, 191]
    e("v_lshrrev_b32 v128, 1, v4\nv_lshlrev_b32 v129, 7, v4\nv_lshl_add_u32 v129, v3, 3, v129\nv_add_u32 v129, v129, v6")
    for t in range(4): e(f"v_xor_b32 v130, {t}, v128\nv_lshl_add_u32 v{AH[t][0]}, v130, 5, v129\nv_add_u32 v{AH[t][1]}, {3*WSLOT}, v{AH[t][0]}")
    e(f"v_lshlrev_b32 v{AG[0]}, 4, v1\nv_add_u32 v{AG[1]}, {3*WSLOT}, v{AG[0]}")
    e(f"s_mul_i32 s76, s15, 54\ns_lshl_b32 s77, s{S_J}, 1\ns_add_u32 s76, s76, s77\ns_lshl_b32 s76, s76, 12\ns_and_b32 s77, s{S_WV}, 1\ns_lshl_b32 s77, s77, 11\ns_add_u32 s{S_HO}, s76, s77")
    bias_init(4, 88, (8, 88), (120, 128))
    c_main_loop(e, [Unit(AT, 8*t, 8 + 8*t) for t in range(5)] + [Unit(AT, 1280 + 8*t, 48 + 8*t) for t in range(5)]
                + [Unit(AH[t], 3072, 88 + 8*t) for t in range(4)] + [Unit(AG, 2560, 120, gate=True)], XREG, VXA, RING, D, after_bar0, PHR)
    e.stamp(3)
    if e.opt.get('cprio'): e(f"s_setprio {e.opt['cprio']}")
    e(f"v_mov_b32 v4, 0\nv_mov_b32 v5, v{VL16}")
    VZ0, VL0 = VZ, VL16; VZ, VL16 = 4, 5
    e.busy(1, 136, 137, 'k'); e.lpost(8, 136, 137)
    P = 212; RV = [8, 20]; RP = [140, 160]; EE = 192; XX = 128; AW = 32; AR = 40; AA = [45, 46, 47]
    F = []; f = F.append
    f(f"v_mov_b32 v138, {EXCH_H3 // 16384}\nv_and_b32 v136, 15, v0\ns_lshl_b32 s76, s{S_WV}, 5\nv_add_u32 v136, s76, v136\nv_cmp_eq_u32 vcc, 3, v1\nv_lshlrev_b32 v136, 7, v136\nv_and_b32 v139, 7, v0\nv_cndmask_b32 v137, v1, v138, vcc\nv_lshlrev_b32 v139, 4, v139\nv_lshl_add_u32 v136, v137, 14, v136")
    for m in range(2):
        for t in range(5):
            a = 48 + 8*t + 4*m
            f(f"v_cvt_pk_bf16_f32 v{RV[m]+2*t}, v{a}, v{a+1}\nv_cvt_pk_bf16_f32 v{RV[m]+1+2*t}, v{a+2}, v{a+3}")
        f(f"v_mov_b32 v{RV[m]+10}, 0x3f80\nv_mov_b32 v{RV[m]+11}, 0")
    for i in range(8): f(f"v_xor_b32 v{AW+i}, {16*i}, v139\nv_add_u32 v{AW+i}, v{AW+i}, v136")
    f("\n".join(f"v_mul_f32 v{130+m}, {f2u(-LOG2E)}, v{120+4*m}" for m in range(2)))
    f("\n".join(f"v_exp_f32 v{130+m}, v{130+m}" for m in range(2)))
    f("\n".join(f"v_add_f32 v{130+m}, 1.0, v{130+m}" for m in range(2)))
    f("\n".join(f"v_rcp_f32 v{130+m}, v{130+m}" for m in range(2)) + "\nv_lshlrev_b32 v132, 2, v0")
    phi_stage(P, F)
    e(f"s_mov_b64 exec, 0xffff")
    for m in range(2): e(f"buffer_store_dword v{130+m}, v132, {sr(SRD_WS)}, s{S_GO} offen offset:{64*m} sc1")
    e("s_mov_b64 exec, -1")
    e.stamp(4)
    softmax2(e, P, EE, RP[0], XX, fill=[f"ds_write_b128 v{AW+5+i}, {vr(RV[m]+4*i)} offset:{2048*m}" for m in range(2) for i in range(3)],
             wr=lambda i: e(f"ds_write_b128 v{AW+i}, {vr(RP[0]+4*i)}"))
    e(f"v_lshl_add_u32 v136, v1, 2, v2\nv_and_b32 v137, 7, v136\nv_lshlrev_b32 v136, 7, v136\ns_lshl_b32 s76, s{S_WV}, 14\ns_cmp_eq_u32 s{S_WV}, 3\ns_cmov_b32 s76, {EXCH_H3}\nv_and_b32 v138, 1, v3\nv_lshl_add_u32 v136, v138, 3, v136\nv_add_u32 v136, s76, v136\nv_lshrrev_b32 v138, 1, v3")
    for i, c0 in enumerate([0, 2, 4, 5]): e(f"v_add_u32 v{AR+i}, {c0}, v138\nv_xor_b32 v{AR+i}, v{AR+i}, v137\nv_lshl_add_u32 v{AR+i}, v{AR+i}, 4, v136")
    e(f"v_xor_b32 v{AR+4}, 7, v137\nv_lshl_add_u32 v{AR+4}, v{AR+4}, 4, v136")
    e(f"v_mov_b32 v136, {OOB}\nv_and_b32 v137, 15, v0\nv_cmp_gt_u32 vcc, 32, v0\nv_cndmask_b32 v{AA[0]}, v136, v{VL16}, vcc\nv_cmp_gt_u32 vcc, 5, v137\nv_cndmask_b32 v{AA[1]}, v136, v{VL16}, vcc\nv_cndmask_b32 v{AA[2]}, v136, v{AA[0]}, vcc")
    e(f"s_lshl_b32 s76, s{S_J}, 6\ns_add_u32 s76, s76, s{S_WV}\ns_mul_i32 s76, s76, 6144\ns_add_u32 s4, s76, {WS_KP}\ns_mul_i32 s76, s{S_RB}, 24576\ns_add_u32 s5, s4, s76\ns_add_u32 s6, s5, 4096")
    softmax2(e, P + 20, EE, RP[1], XX, wr=lambda i: e(f"ds_write_b128 v{AW+i}, {vr(RP[1]+4*i)} offset:2048"))
    e.stamp(5)
    e.busy(1, 136, 137, 'a')
    e.lsync(1, 136, 137)
    e.stamp(6)
    FR = lambda st: (48 + 20*st) if st < 2 else (140 + 20*(st - 2))
    KD = 212
    rd = [f"ds_read_b64_tr_b16 {vr(FR(st) + 4*i + 2*h, 2)}, v{AR+i} offset:{4096*st + 2048*h}" for st in range(4) for i in range(5) for h in range(2)]
    for x in rd[:14]: e(x)
    nxt = 14
    for st in range(4):
        need = 10*(st + 1)
        while nxt < need: e(rd[nxt]); nxt += 1
        e(f"s_waitcnt lgkmcnt({nxt - need})")
        for U in range(2):
            for Tt in range(3):
                d = vr(KD + 12*U + 4*Tt)
                e(f"v_mfma_f32_16x16x32_bf16 {d}, {vr(FR(st)+4*Tt)}, {vr(FR(st)+12+4*U)}, {'0' if st == 0 else d}")
                for _ in range(2):
                    if nxt < min(40, need + 14): e(rd[nxt]); nxt += 1
    e.lpost(12, 136, 137)
    e(f"s_mul_i32 s76, s{S_RB}, 14\nv_add_u32 v8, s76, v0\nv_mul_u32_u24 v9, 3121, v8\nv_lshrrev_b32 v9, 16, v9\nv_mul_u32_u24 v10, 21, v9\nv_sub_u32 v10, v8, v10")
    e(f"v_lshrrev_b32 v11, 2, v9\nv_lshrrev_b32 v12, 4, v10\nv_lshl_add_u32 v11, v11, 1, v12\nv_and_b32 v12, 3, v9\nv_and_b32 v13, 15, v10\nv_lshl_add_u32 v12, v12, 4, v13\nv_lshlrev_b32 v12, 4, v12\nv_lshl_add_u32 v11, v11, 10, v12")
    for Tt in range(3):
        for U in range(2):
            av = [[VL16, AA[1]], [VL16, AA[1]], [AA[0], AA[2]]][Tt][U]; ti = 2*Tt + U
            e(f"buffer_store_dwordx4 {vr(KD + 12*U + 4*Tt)}, v{av}, {sr(SRD_WS)}, s{5 if ti < 4 else 6} offen offset:{1024*(ti % 4)} sc1")
    e(f"v_mul_u32_u24 v12, 24, v9\nv_add_lshl_u32 v12, v12, v10, 3\nv_cmp_gt_u32 s[76:77], 14, v0\nv_cmp_gt_u32 vcc, 210, v8\ns_and_b64 vcc, vcc, s[76:77]\nv_mov_b32 v13, {OOB}\nv_cndmask_b32 v11, v13, v11, vcc\nv_cndmask_b32 v12, v13, v12, vcc")
    e(f"s_lshl_b32 s76, s{S_J}, 2\ns_add_u32 s76, s76, s{S_WV}\ns_lshl_b32 s76, s76, 11\ns_add_u32 s7, s76, {WS_KV}")
    e(f"s_add_u32 s68, s{S_KFL}, {(FL_KP - FL_KV)*128}\ns_addc_u32 s69, s{S_KFL+1}, 0")
    e.stamp(7)
    def mid(): e("s_waitcnt vmcnt(2)"); e.busy(-1, 136, 137, 'a'); e.busy(-1, 136, 137, 'k'); e.arrive(2, 136, 137, e.signal(68))
    gelu_steps(88, 2, 192, VL16, mid=mid)
    e(f"s_lshl_b32 s76, s{S_RB}, 7\ns_add_u32 s68, s68, s76\ns_addc_u32 s69, s69, 0")
    e.busy(1, 136, 137, 'b')
    if e.opt.get('lead', True): e.lpoll(19, 68, 34, 16, 136, 137)
    else: e.spoll(68, [34], sleep=e.opt.get('slk', 1), least=16)
    e.busy(1, 136, 137, 'B')
    e.stamp(8)
    SL = 16
    for p in range(16): e(f"buffer_load_dwordx4 {vr(SL + 4*p)}, v11, {sr(SRD_WS)}, s4 offen sc1\ns_add_u32 s4, s4, 24576")
    e("s_waitcnt vmcnt(16)")
    e.arrive(0, 136, 137, e.signal(S_HFL, 4))
    for p in range(1, 16):
        if p in (1, 4, 8, 12): e(f"s_waitcnt vmcnt({ {1: 12, 4: 8, 8: 4, 12: 0}[p] })")
        e(f"v_pk_add_f32 {vr(SL,2)}, {vr(SL,2)}, {vr(SL+4*p,2)}\nv_pk_add_f32 {vr(SL+2,2)}, {vr(SL+2,2)}, {vr(SL+4*p+2,2)}")
    e(f"v_cvt_pk_bf16_f32 v14, v{SL}, v{SL+1}\nv_cvt_pk_bf16_f32 v15, v{SL+2}, v{SL+3}\nbuffer_store_dwordx2 v[14:15], v12, {sr(SRD_WS)}, s7 offen sc1")
    e("s_waitcnt vmcnt(0)"); e.busy(-1, 136, 137, 'b'); e.busy(-1, 136, 137, 'B')
    e.arrive(4, 136, 137, e.signal(S_KFL))
    e.stamps_out()
    e("s_endpgm")
    VZ, VL16 = VZ0, VL0
    e("L_CQ:")
    AE, AO = [248, 249], [250, 251]
    e(f"v_mul_u32_u24 v128, 320, v4\nv_lshl_add_u32 v128, v3, 3, v128\nv_add_u32 v128, v128, v6\nv_lshlrev_b32 v129, 5, v5")
    e(f"v_add_u32 v{AE[0]}, v128, v129\nv_sub_u32 v{AO[0]}, v128, v129\nv_add_u32 v{AO[0]}, 32, v{AO[0]}\nv_add_u32 v{AE[1]}, {3*WSLOT}, v{AE[0]}\nv_add_u32 v{AO[1]}, {3*WSLOT}, v{AO[0]}")
    e(f"s_mul_i32 s76, s15, 54\ns_mul_i32 s77, s{S_J}, 5\ns_add_u32 s76, s76, s77\ns_add_u32 s76, s76, 16\ns_lshl_b32 s76, s76, 12\ns_and_b32 s77, s{S_WV}, 1\ns_lshl_b32 s77, s77, 11\ns_add_u32 s{S_HO}, s76, s77")
    bias_init(10, 48, (8, 48), (0, 0))
    c_main_loop(e, [Unit(AT, 8*t, 8 + 8*t) for t in range(5)] + [Unit(AE if t % 2 == 0 else AO, 1280 + 32*(t - t % 2), 48 + 8*t) for t in range(10)],
                XREG, VXA, RING, D, after_bar0, PHR)
    e.stamp(3)
    if e.opt.get('cprio'): e(f"s_setprio {e.opt['cprio']}")
    e.busy(1, 136, 137, 'd'); e.lpost(8, 136, 137); e.lpost(12, 136, 137)
    gelu_steps(48, 5, 212, VL16, skip_from=3)
    e.busy(-1, 136, 137, 'd')
    e.stamp(4)
    P = 88
    F = []; f = F.append
    f(f"v_lshlrev_b32 v68, 11, v1\nv_add_u32 v68, {KVT}, v68\nv_cmp_eq_u32 vcc, v1, v2\nv_lshl_add_u32 v69, v3, 3, v68\nv_mov_b32 v70, {ZERO_LDS}\nv_cndmask_b32 v240, v70, v69, vcc\nv_cndmask_b32 v239, v70, v68, vcc")
    f(f"v_and_b32 v241, 15, v0\nv_lshlrev_b32 v241, 2, v241")
    phi_stage(P, F)
    PHI = [192, 212]
    hq = e.opt.get('hq', 0)
    def hsig(D):
        e.signal(S_HFL)(D); e(f"s_cmp_lg_u32 s{S_J}, 5\ns_cbranch_scc1 {D}\ns_waitcnt lgkmcnt(0)"); e.signal(S_HFL, 1)(D)
    def harr(): e("s_waitcnt vmcnt(0)"); e.arrive(0, 136, 137, hsig); e.stamp(5)
    for m in range(2):
        if m == hq: harr()
        softmax2(e, P + 20*m, 48, PHI[m], 128)
    e(f"s_lshl_b32 s76, s{S_J}, 2\ns_add_u32 s76, s76, s{S_WV}\ns_lshl_b32 s76, s76, 11\ns_add_u32 s4, s76, {WS_KV}\ns_lshl_b32 s76, s{S_WV}, 11\ns_add_u32 m0, s76, {KVT}")
    e(f"s_lshl_b32 s76, s15, 3\ns_add_u32 s76, s76, s{S_J}\ns_mul_i32 s76, s76, 10240\ns_add_u32 s76, s76, {WS_OF}\ns_and_b32 s77, s{S_WV}, 1\ns_lshl_b32 s5, s77, 11\ns_add_u32 s5, s5, s76\ns_lshl_b32 s6, s77, 10\ns_add_u32 s6, s6, s76\ns_add_u32 s6, s6, 8192\ns_add_u32 s7, s5, 4096")
    e.stamp(6)
    e(f"s_lshl_b32 s76, s{S_RB}, 7\ns_add_u32 s{S_KFL}, s{S_KFL}, s76\ns_addc_u32 s{S_KFL+1}, s{S_KFL+1}, 0")
    if e.opt.get('lead', True): e.lpoll(19, S_KFL, 34, 16, 136, 137)
    else: e.spoll(S_KFL, [34], sleep=e.opt.get('slk', 1), least=16)
    e.stamp(7)
    if e.opt.get('oprio', 3): e(f"s_setprio {e.opt.get('oprio', 3)}")
    for t in range(2): e(f"buffer_load_dwordx4 v{VL16}, {sr(SRD_WS)}, s4 offen offset:{1024*t} sc1 lds")
    e.busy(1, 136, 137, 'c')
    for m in range(2): e(f"buffer_load_dword v{62+m}, v241, {sr(SRD_WS)}, s{S_GO} offen offset:{64*m} sc1")
    e("s_waitcnt vmcnt(2)")
    e.lsync(1, 136, 137)
    AF = 64
    seq = [5, 0, 1, 2, 3, 4]
    rd = [f"ds_read2_b64 {vr(AF + 20*n_ + 4*kp)}, v{240 if u < 5 else 239} offset0:{48*kp + 4*u} offset1:{48*kp + 4*u + 24}" for n_, u in enumerate(seq) for kp in range(5)]
    for x in rd[:10]: e(x)
    nxt = 10
    OD = 8
    for n_, u in enumerate(seq):
        e(f"s_waitcnt lgkmcnt({nxt - 5*(n_+1)})")
        F = []
        for _ in range(5):
            if nxt < 30: F.append(rd[nxt]); nxt += 1
        if n_ == 2:
            F.append("s_waitcnt vmcnt(0)")
            F += [f"v_add_f32 v{56+2*m}, {f2u(1e-6)}, v{OD+40+4*m}" for m in range(2)] + [f"v_rcp_f32 v{56+2*m}, v{56+2*m}" for m in range(2)] + [f"v_mul_f32 v{56+2*m}, v{56+2*m}, v{62+m}" for m in range(2)]
        if n_ >= 4:
            for uu in ([0, 1] if n_ == 4 else [2]):
                for m in range(2):
                    a = OD + 8*uu + 4*m
                    F += [f"v_mul_f32 v{a+r}, v{56+2*m}, v{a+r}" for r in range(4)]
                    F += [f"v_cvt_pk_bf16_f32 v{232+8*0 + 0}, v{a}, v{a+1}".replace(f"v{232}", f"v{[184,188][m] + 2*uu if uu < 2 else [244,248][m]}"),
                          f"v_cvt_pk_bf16_f32 v{([184,188][m] + 2*uu if uu < 2 else [244,248][m]) + 1}, v{a+2}, v{a+3}"]
        weave(e, [f"v_mfma_f32_16x16x32_bf16 {vr(OD + 8*u + 4*m)}, {vr(AF + 20*n_ + 4*kp)}, {vr(PHI[m] + 4*kp)}, {'0' if kp == 0 else vr(OD + 8*u + 4*m)}" for kp in range(5) for m in range(2)], F)
        if n_ == 4:
            for m in range(2): e(f"buffer_store_dwordx4 {vr([184,188][m])}, v{VL16}, {sr(SRD_WS)}, s5 offen offset:{1024*m} sc1")
    for uu in (3, 4):
        for m in range(2):
            a = OD + 8*uu + 4*m
            e(f"v_pk_mul_f32 {vr(a,2)}, {vr(a,2)}, {vr(56+2*m,2)} op_sel_hi:[1,0]\nv_pk_mul_f32 {vr(a+2,2)}, {vr(a+2,2)}, {vr(56+2*m,2)} op_sel_hi:[1,0]")
            d = [244, 248][m] + 2 if uu == 3 else 252 + 2*m
            e(f"v_cvt_pk_bf16_f32 v{d}, v{a}, v{a+1}\nv_cvt_pk_bf16_f32 v{d+1}, v{a+2}, v{a+3}")
        if uu == 3:
            for m in range(2): e(f"buffer_store_dwordx4 {vr([244,248][m])}, v{VL16}, {sr(SRD_WS)}, s7 offen offset:{1024*m} sc1")
    e(f"buffer_store_dwordx4 v[252:255], v{VL16}, {sr(SRD_WS)}, s6 offen sc1")
    e.stamp(8)
    e("s_waitcnt vmcnt(0)"); e.busy(-1, 136, 137, 'c'); e.arrive(2, 136, 137, e.signal(S_HFL, 8))
    e.stamps_out()

HEADER = open("gated_mix__linear_kernel_hedgehog__dense_activation_gelu__prompt.s.ref").read().split("; Override launch")[0] if __name__ == "__main__" else ""
if __name__ == "__main__":
    import ast
    kw = ast.literal_eval(sys.argv[2]) if len(sys.argv) > 2 else {}
    open(sys.argv[1], "w").write(HEADER + gen(**kw))
```

```python
import sys
import hazard

NAME = "gated_mix__linear_kernel_hedgehog__dense_activation_gelu__prompt_kernel"
WSLOT = 16384; NW = 5; XBASE = NW*WSLOT; XSLOT = 16384; NX = 3; NSTEP = 20
SPARE = XBASE + NX*XSLOT
ZERO_LDS = SPARE; CNT_LDS = SPARE + 2048; WPHI_LDS = SPARE + 2304; KVT = WPHI_LDS; STG = WPHI_LDS + 8192
EXCH_H3 = XBASE + 2*XSLOT; PARK = 3*WSLOT
assert STG + 4*5120 <= 163840
LDS_TOTAL = 163840
WS_HF = 0; WS_OF = 0x700000; WS_WF = 0xA00000; WS_G = 0xD00000; WS_KV = 0xE00000; WS_FL = 0xE20000; WS_KP = 0x1000000
WS_EP = WS_FL + 600*128
WS_SIZE = 0x1400000; WS_STAMP = 0x2000000
FL_H, FL_KV, FL_KP, FL_W = 0, 256, 384, 512
NINIT = 32
OOB = 0x40000000
S_X, S_WQKV, S_WPHI, S_WO, S_BX, S_W1, S_B1, S_W2 = 16, 18, 20, 22, 24, 26, 28, 30
S_B2, S_GATE, S_OUT, S_DBG, S_WS = 32, 34, 36, 38, 40
SRD_X, SRD_WS, SRD_T, SRD_D = 44, 48, 52, 56
S_RB, S_J, S_ISQ, S_WAVE, S_PH, S_WV, S_R64, S_CB = 60, 61, 62, 63, 64, 65, 66, 67
S_KK, S_XK, S_XOFF, S_M0X, S_M0W = 68, 69, 4, 5, 6
S_C2, S_L = 8, 10
LOG2E = 1.4426950408889634
import struct, math
def f2u(x): return struct.unpack('<I', struct.pack('<f', x))[0]
GC1 = -2.0 * LOG2E * math.sqrt(2.0 / math.pi); GC2 = GC1 * 0.044715

def vr(b, n=4): return f"v[{b}:{b+n-1}]" if n > 1 else f"v{b}"
def sr(b, n=4): return f"s[{b}:{b+n-1}]"

class G:
    def __init__(self, diag=False, **opt):
        self.L = []; self.diag = diag; self.opt = opt; self.nlab = 0
    def __call__(self, s): self.L.append(s)
    def dsbatch(self, lst):
        for i, x in enumerate(lst):
            if i >= 15 and (i - 15) % 5 == 0: self("s_waitcnt lgkmcnt(10)")
            self(x)
    def lab(self, p="L"): self.nlab += 1; return f"{p}_{self.nlab}"
    def srd(self, R, p, size):
        self(f"s_mov_b32 s{R}, s{p}\ns_mov_b32 s{R+1}, s{p+1}\ns_mov_b32 s{R+2}, {size}\ns_mov_b32 s{R+3}, 0x20000")
    def fstamp(self, i):
        if self.opt.get('fine'): self(f"s_memtime s[{80+2*i}:{81+2*i}]")
    def f2(self, i):
        if self.opt.get('fine2'): self(f"s_waitcnt lgkmcnt(0)\ns_memtime s[{80+2*i}:{81+2*i}]\ns_waitcnt lgkmcnt(0)")
    def stamp(self, i, m=False):
        if self.opt.get('fine') and 3 <= i <= 8: return
        if self.opt.get('fine2') and m: return
        if self.diag and (i == 9 or not self.opt.get('lite')): self(f"s_waitcnt lgkmcnt(0)\ns_memtime s[{80+2*i}:{81+2*i}]\ns_waitcnt lgkmcnt(0)")
    def stamps_out(self):
        if not self.diag: return
        e = self
        e(f"s_waitcnt vmcnt(0) lgkmcnt(0)")
        e.stamp(9)
        e("s_memrealtime s[72:73]\ns_waitcnt lgkmcnt(0)")
        e(f"s_mov_b32 s{SRD_T}, s{S_WS}\ns_mov_b32 s{SRD_T+1}, s{S_WS+1}\ns_mov_b32 s{SRD_T+2}, 0x10000000\ns_mov_b32 s{SRD_T+3}, 0x20000")
        e(f"s_lshl_b32 s70, s2, 3\ns_add_u32 s70, s70, s{S_WAVE}\ns_lshl_b32 s70, s70, 6\ns_add_u32 s70, s70, {WS_STAMP}")
        e("s_mov_b64 exec, 1\nv_mov_b32 v1, 0")
        for i in range(10):
            if i: e(f"s_sub_u32 s71, s{80+2*i}, s80")
            else: e("s_mov_b32 s71, s80")
            e(f"v_mov_b32 v2, s71\nbuffer_store_dword v2, v1, {sr(SRD_T)}, s70 offen offset:{4*i}")
        e(f"v_mov_b32 v2, s100\nbuffer_store_dword v2, v1, {sr(SRD_T)}, s70 offen offset:40\nv_mov_b32 v2, s72\nbuffer_store_dword v2, v1, {sr(SRD_T)}, s70 offen offset:44")
        e("s_waitcnt vmcnt(0)")
        if self.opt.get('dbgrt'):
            e("s_memrealtime s[70:71]\ns_waitcnt lgkmcnt(0)")
            e.srd(SRD_T, S_DBG, 256)
            e(f"v_mov_b32 v2, s70\nbuffer_atomic_umax v2, v1, {sr(SRD_T)}, 0 offen offset:4 sc1")
            e(f"s_not_b32 s71, s100\nv_mov_b32 v2, s71\nbuffer_atomic_umax v2, v1, {sr(SRD_T)}, 0 offen offset:8 sc1")
            for i in range(1, 10):
                e(f"s_sub_u32 s71, s{80+2*i}, s80\ns_cmp_gt_u32 s71, 0x1000000\ns_cmov_b32 s71, 0\nv_mov_b32 v2, s71\nbuffer_atomic_umax v2, v1, {sr(SRD_T)}, 0 offen offset:{8+4*i} sc1")
            e(f"v_mov_b32 v2, s100\nbuffer_atomic_umax v2, v1, {sr(SRD_T)}, 0 offen offset:48 sc1")
            e("s_waitcnt vmcnt(0)")
    def wsptr(self, d, soff):
        self(f"s_add_u32 s{d}, s{S_WS}, {soff}\ns_addc_u32 s{d+1}, s{S_WS+1}, 0")
    def sprobe(self, base, dst):
        for i, d in enumerate(dst): self(f"s_load_dword s{d}, s[{base}:{base+1}], {128*i} glc")
    def spoll(self, base, dst, probed=False, sleep=1, least=None):
        e = self; L = e.lab("L_sp"); C = e.lab("L_spc"); D = e.lab("L_spd")
        e("s_mov_b32 s79, 0")
        if probed: e(f"s_branch {C}") if False else None
        def chk():
            e("s_waitcnt lgkmcnt(0)")
            if least is not None: e(f"s_cmp_ge_u32 s{dst[0]}, {least}")
            elif len(dst) == 1: e(f"s_cmp_lg_u32 s{dst[0]}, 0")
            else:
                for d in dst[1:]: e(f"s_and_b32 s{dst[0]}, s{dst[0]}, s{d}")
            e(f"s_cbranch_scc1 {D}")
        if probed: chk()
        e(f"{L}:"); e.sprobe(base, dst); chk()
        e(f"s_add_u32 s79, s79, 1\ns_cmp_ge_u32 s79, 0x200000\ns_cbranch_scc1 L_end")
        if sleep: e(f"s_sleep {sleep}")
        e(f"s_branch {L}\n{D}:")
    def lpoll(self, cnt, base, d, least, va, vt, probed=False, sleep=0, hp=None):
        e = self; F = e.lab("L_lf"); D = e.lab("L_lpd"); S = e.lab("L_lps"); L = e.lab("L_lpl")
        if hp is not None: e(f"s_setprio {hp[0]}")
        e(f"v_mov_b32 v{va}, {CNT_LDS + 4*cnt}\ns_mov_b32 s79, 0")
        if probed: e(f"s_waitcnt lgkmcnt(0)\ns_cmp_ge_u32 s{d}, {least}\ns_cbranch_scc1 {S}")
        e(f"s_cmp_lg_u32 s{S_WV}, 0\ns_cbranch_scc1 {F}\n{L}:\ns_load_dword s{d}, s[{base}:{base+1}], 0 glc\ns_waitcnt lgkmcnt(0)\ns_cmp_ge_u32 s{d}, {least}\ns_cbranch_scc1 {S}")
        e(f"s_add_u32 s79, s79, 1\ns_cmp_ge_u32 s79, 0x200000\ns_cbranch_scc1 L_end\n" + (f"s_sleep {sleep}\n" if sleep else "") + f"s_branch {L}")
        e(f"{F}:\nds_read_b32 v{vt}, v{va}\ns_waitcnt lgkmcnt(0)\nv_readfirstlane_b32 s78, v{vt}\ns_cmp_lg_u32 s78, 0\ns_cbranch_scc1 {D}")
        e(f"s_add_u32 s79, s79, 1\ns_cmp_ge_u32 s79, 0x1000000\ns_cbranch_scc1 L_end\ns_branch {F}")
        e(f"{S}:\nv_mov_b32 v{vt}, 1\nds_write_b32 v{va}, v{vt}\n{D}:")
        if hp is not None: e(f"s_setprio {hp[1]}")
    def arrive(self, cnt, va, vt, then):
        e = self; D = e.lab("L_arr")
        e(f"s_mov_b64 exec, 1\nv_mov_b32 v{va}, {CNT_LDS + 4*cnt}\nv_mov_b32 v{vt}, 1\nds_add_rtn_u32 v{va}, v{va}, v{vt}\ns_waitcnt lgkmcnt(0)")
        e(f"v_readfirstlane_b32 s78, v{va}\ns_mov_b64 exec, -1\ns_cmp_lg_u32 s78, 3\ns_cbranch_scc1 {D}")
        then(D)
        e(f"{D}:")
    def signal(self, base, word=0):
        def f(D):
            for i in range(16): self(f"s_mov_b32 s{16+i}, 1\ns_atomic_add s{16+i}, s[{base}:{base+1}], {128*i + 4*word} glc")
        return f
    def sfirst(self, base, offs, dst):
        for o, d in zip(offs, dst): self(f"s_load_dword s{d}, s[{base}:{base+1}], {o}")
    def scheck(self, dst, target, srd, soff, vz, vt, vm):
        e = self; D = e.lab("L_sc")
        e("s_waitcnt lgkmcnt(0)")
        for d in dst[1:]: e(f"s_min_u32 s{dst[0]}, s{dst[0]}, s{d}")
        e(f"s_cmp_ge_u32 s{dst[0]}, {target}\ns_cbranch_scc1 {D}\nv_mov_b32 v{vt}, 0")
        e.vpoll(srd, soff, target, vz, vt)
        e(f"{D}:")
    def vpoll(self, srd, soff, target, vz, vt):
        e = self; L = e.lab("L_vp"); D = e.lab("L_vpd")
        e(f"s_mov_b32 s79, 0\n{L}:\nv_cmp_gt_u32 vcc, {target}, v{vt}\ns_cmp_eq_u64 vcc, 0\ns_cbranch_scc1 {D}")
        e(f"s_add_u32 s79, s79, 1\ns_cmp_ge_u32 s79, 0x100000\ns_cbranch_scc1 L_end\ns_sleep 8")
        e(f"buffer_load_dword v{vt}, v{vz}, {sr(srd)}, {soff} offen sc1\ns_waitcnt vmcnt(0)\ns_branch {L}\n{D}:")
    def lpost(self, cnt, va, vt):
        self(f"s_mov_b64 exec, 1\nv_mov_b32 v{va}, {CNT_LDS + 4*cnt}\nv_mov_b32 v{vt}, 1\nds_add_u32 v{va}, v{vt}\ns_mov_b64 exec, -1")
    def lwait(self, cnt, va, vt, sleep=1):
        e = self; L = e.lab("L_lw"); D = e.lab("L_lwd")
        e(f"s_setprio {e.opt.get('hp', 3)}")
        e(f"v_mov_b32 v{va}, {CNT_LDS + 4*cnt}\ns_mov_b32 s79, 0\n{L}:\nds_read_b32 v{vt}, v{va}\ns_waitcnt lgkmcnt(0)\nv_readfirstlane_b32 s78, v{vt}\ns_cmp_ge_u32 s78, 4\ns_cbranch_scc1 {D}")
        e(f"s_add_u32 s79, s79, 1\ns_cmp_ge_u32 s79, 0x1000000\ns_cbranch_scc1 L_end\n" + (f"s_sleep {sleep}\n" if sleep else "") + f"s_branch {L}\n{D}:\ns_setprio {e.opt.get('mprio', 0)}")
    def busy(self, d, va, vt, w=''):
        if w in self.opt.get('yld', ''): self(f"s_mov_b64 exec, 1\nv_mov_b32 v{va}, {CNT_LDS + 4*11}\nv_mov_b32 v{vt}, {d}\nds_add_u32 v{va}, v{vt}\ns_mov_b64 exec, -1")
    def lsync(self, cnt, va, vt):
        e = self; L = e.lab("L_ls")
        e(f"s_waitcnt lgkmcnt(0)\ns_mov_b64 exec, 1\nv_mov_b32 v{va}, {CNT_LDS + 4*cnt}\nv_mov_b32 v{vt}, 1\nds_add_u32 v{va}, v{vt}\ns_mov_b32 s79, 0\n{L}:")
        e(f"ds_read_b32 v{vt}, v{va}\ns_waitcnt lgkmcnt(0)\nv_readfirstlane_b32 s78, v{vt}\ns_add_u32 s79, s79, 1\ns_cmp_ge_u32 s79, 0x1000000\ns_cbranch_scc1 L_end\ns_cmp_lt_u32 s78, 4\ns_cbranch_scc1 {L}\ns_mov_b64 exec, -1")

SA, SAE, SAS, SB, SBE, SBS, SA2, SB2, SOA, SOB, SG, SPK = 16, 17, 18, 19, 24, 25, 26, 27, 28, 29, 10, 11
SFH, SFW = 34, 8
SPD = [20]; S_TL = 43
P3_ACC = 176; P3_B2 = 100; P3_VT = [10, 11, 12, 3]; P3_VL2 = 13; P3_VLB = 5; P3_VF = 171
p3acc = lambda u, t: P3_ACC + 16*u + 4*t

class Unit:
    def __init__(self, areg, off, acc, gate=False): self.areg, self.off, self.acc, self.gate = areg, off, acc, gate

def c_main_loop(e, units, xreg, xaddr, ring, D, after_bar0, tail=()):
    tail = list(tail)
    n = len(units); R = D + 2; lg = []; total = NSTEP * n
    def wait_lg(tags):
        idx = max([i for i, t in enumerate(lg) if t in tags], default=-1)
        if idx < 0: return
        cnt = len(lg) - 1 - idx; assert cnt <= 15
        e(f"s_waitcnt lgkmcnt({cnt})"); del lg[:idx + 1]
    def xreads(s, out):
        for m in range(2):
            out.append(f"ds_read_b128 {vr(xreg + 8*(s % 2) + 4*m)}, v{xaddr[s % 2]} offset:{((s//2) % NX)*XSLOT + m*2048}"); lg.append(('x', s))
    def wreads(q, out):
        s, u = divmod(q, n); U = units[u]; r = ring + 4*(q % R); slot = s % NW
        a = U.areg[slot // 3]; o = (slot % 3)*WSLOT + U.off
        if U.gate:
            out.append(f"ds_read_b128 {vr(r)}, v{a} offset:{o}"); lg.append(('w', q)); return
        out.append(f"ds_read_b64_tr_b16 {vr(r,2)}, v{a} offset:{o}"); out.append(f"ds_read_b64_tr_b16 {vr(r+2,2)}, v{a} offset:{o + 4096}")
        lg.extend([('w', q)]*2)
    e("s_barrier"); after_bar0()
    buf = []; xreads(0, buf)
    for q in range(D): wreads(q, buf)
    for b in buf: e(b)
    for q in range(total):
        s, u = divmod(q, n)
        tags = [('w', q), ('x', s)]
        if q % 2 == 0 and q + 1 < total: tags += [('w', q + 1), ('x', (q + 1)//n)]
        wait_lg(tags)
        buf = []; qa = q + D
        if qa < total:
            if qa % n == 0: buf.append("s_barrier"); xreads(qa // n, buf)
            wreads(qa, buf)
        elif tail:
            k_ = -(-len(tail) // (total - q))
            for x in tail[:k_]:
                if len(lg) >= 15: buf.append("s_waitcnt lgkmcnt(10)"); del lg[:len(lg) - 10]
                buf.append(x); lg.append(('t',))
            del tail[:k_]
        U = units[u]; r = ring + 4*(q % R); half = (len(buf) + 1)//2
        for m in range(2):
            acc = vr(U.acc + 4*m)
            e(f"v_mfma_f32_16x16x32_bf16 {acc}, {vr(r)}, {vr(xreg + 8*(s % 2) + 4*m)}, {acc}")
            for b in (buf[:half] if m == 0 else buf[half:]): e(b)

def gelu_pack(e, jobs, T, C1):
    for i in range(0, len(jobs), 4):
        grp = jobs[i:i+4]
        for k, (s, d) in enumerate(grp): e(f"v_pk_mul_f32 {vr(T+2*k,2)}, {vr(s,2)}, {vr(s,2)}")
        for k, (s, d) in enumerate(grp): e(f"v_pk_fma_f32 {vr(T+2*k,2)}, {vr(T+2*k,2)}, {sr(S_C2,2)}, {vr(C1,2)}")
        for k, (s, d) in enumerate(grp): e(f"v_pk_mul_f32 {vr(T+2*k,2)}, {vr(T+2*k,2)}, {vr(s,2)}")
        for k in range(2*len(grp)): e(f"v_exp_f32 v{T+k}, v{T+k}")
        for k, (s, d) in enumerate(grp): e(f"v_pk_add_f32 {vr(T+2*k,2)}, {vr(T+2*k,2)}, 1.0 op_sel_hi:[1,0]")
        for k in range(2*len(grp)): e(f"v_rcp_f32 v{T+k}, v{T+k}")
        for k, (s, d) in enumerate(grp): e(f"v_pk_mul_f32 {vr(T+2*k,2)}, {vr(T+2*k,2)}, {vr(s,2)}")
        for k, (s, d) in enumerate(grp): e(f"v_cvt_pk_bf16_f32 v{d}, v{T+2*k}, v{T+2*k+1}")

def softmax2(e, P, E, OUT, X, fill=(), wr=None):
    B = []; o = lambda t: B.extend(t.split("\n"))
    mx, mn = X, X + 2
    o(f"v_max3_f32 v{mx}, v{P}, v{P+1}, v{P+2}\nv_min3_f32 v{mn}, v{P}, v{P+1}, v{P+2}")
    for i in range(3, 19, 2): o(f"v_max3_f32 v{mx}, v{mx}, v{P+i}, v{P+i+1}\nv_min3_f32 v{mn}, v{mn}, v{P+i}, v{P+i+1}")
    o(f"v_max_f32 v{mx}, v{mx}, v{P+19}\nv_min_f32 v{mn}, v{mn}, v{P+19}")
    o(f"v_mul_f32 v{mx}, s{S_L}, v{mx}\nv_mul_f32 v{mn}, s{S_L}, v{mn}")
    for i in range(0, 20, 2):
        o(f"v_pk_fma_f32 {vr(E+i,2)}, {vr(P+i,2)}, {sr(S_L,2)}, {vr(mx,2)} op_sel_hi:[1,1,0] neg_lo:[0,0,1] neg_hi:[0,0,1]")
        o(f"v_pk_fma_f32 {vr(P+i,2)}, {vr(P+i,2)}, {sr(S_L,2)}, {vr(mn,2)} op_sel_hi:[1,1,0] neg_lo:[1,0,0] neg_hi:[1,0,0]")
    for i in range(20): o(f"v_exp_f32 v{E+i}, v{E+i}\nv_exp_f32 v{P+i}, v{P+i}")
    sp, sn = X + 4, X + 6
    o(f"v_pk_add_f32 {vr(sp,2)}, {vr(E,2)}, {vr(E+2,2)}\nv_pk_add_f32 {vr(sn,2)}, {vr(P,2)}, {vr(P+2,2)}")
    for i in range(4, 20, 2): o(f"v_pk_add_f32 {vr(sp,2)}, {vr(sp,2)}, {vr(E+i,2)}\nv_pk_add_f32 {vr(sn,2)}, {vr(sn,2)}, {vr(P+i,2)}")
    o(f"v_add_f32 v{sp}, v{sp}, v{sp+1}\nv_add_f32 v{sn}, v{sn}, v{sn+1}\nv_rcp_f32 v{sp}, v{sp}\nv_rcp_f32 v{sn}, v{sn}")
    fill = list(fill); step = len(B) // (len(fill) + 1)
    for i, x in enumerate(B):
        e(x)
        if fill and (i + 1) % step == 0: e(fill.pop(0))
    for src, sc, half in ((E, sp, 0), (P, sn, 1)):
        for i in range(10):
            e(f"v_pk_mul_f32 {vr(src+2*i,2)}, {vr(src+2*i,2)}, {vr(sc,2)} op_sel_hi:[1,0]")
            if i >= 1: e(f"v_cvt_pk_bf16_f32 v{OUT+10*half+i-1}, v{src+2*i-2}, v{src+2*i-1}")
            done = 10*half + i
            if wr and i >= 1 and done % 4 == 0: wr(done // 4 - 1)
        e(f"v_cvt_pk_bf16_f32 v{OUT+10*half+9}, v{src+18}, v{src+19}")
    if wr: wr(4)

def weave(e, main, fill, per=2):
    fill = [x for t in fill for x in t.split("\n")]
    for x in main:
        e(x)
        for _ in range(per):
            if fill: e(fill.pop(0))
    for x in fill: e(x)

def gen(diag=False, D=5, rot=(10, 20, 10, 5), PB=5, **opt):
    e = G(diag, **opt)
    e(f"; @launch grid=(256,1,1) block=(512,1,1) lds={LDS_TOTAL}")
    e(f'.amdgcn_target "amdgcn-amd-amdhsa--gfx950"\n.text\n.globl {NAME}\n.p2align 8\n.type {NAME},@function\n{NAME}:')
    if diag: e("s_memtime s[80:81]\ns_memrealtime s[100:101]")
    e("s_cmp_ge_u32 s2, 256\ns_cbranch_scc1 L_end")
    e("s_load_dwordx16 s[16:31], s[0:1], 0\ns_load_dwordx8 s[32:39], s[0:1], 64\ns_load_dwordx2 s[40:41], s[0:1], 96")
    if opt.get('epf', True):
        e(f"s_getpc_b64 s[12:13]\nL_pc0:\nv_lshlrev_b32 v2, 4, v0\nv_and_b32 v2, 0xc00, v2\nv_and_b32 v3, 7, v0\nv_lshl_add_u32 v2, v3, 7, v2")
        e(f"v_mov_b32 v3, L_C-L_pc0\nv_cmp_gt_u32 vcc, 256, v0\nv_cndmask_b32 v3, 0, v3, vcc\nv_add_u32 v2, v2, v3\ns_mov_b64 exec, 0xff\nglobal_load_dword v186, v2, s[12:13]\ns_mov_b64 exec, -1")
    e(f"v_lshrrev_b32 v1, 6, v0\nv_and_b32 v0, 63, v0")
    e(f"s_and_b32 s70, s2, 7\ns_lshr_b32 s71, s2, 3")
    e(f"v_readfirstlane_b32 s{S_WAVE}, v1")
    e(f"s_and_b32 s72, s70, 1\ns_and_b32 s73, s71, 7\ns_lshl_b32 s74, s72, 3\ns_add_u32 s{S_RB}, s74, s73")
    if opt.get('mix', True):
        e(f"s_lshr_b32 s{S_ISQ}, s71, 4\ns_lshr_b32 s74, s70, 1\ns_lshr_b32 s75, s71, 3")
        e(f"s_and_b32 s76, s75, 1\ns_lshl_b32 s77, s74, 1\ns_add_u32 s{S_J}, s76, s77")
    else:
        e(f"s_lshr_b32 s{S_ISQ}, s70, 2\ns_lshr_b32 s74, s70, 1\ns_lshr_b32 s75, s71, 3")
        e(f"s_and_b32 s76, s74, 1\ns_lshl_b32 s76, s76, 2\ns_add_u32 s{S_J}, s76, s75")
    a, b, c, d = rot
    e(f"s_mul_i32 s76, s73, {a}\ns_mul_i32 s77, s75, {b}\ns_add_u32 s76, s76, s77\ns_mul_i32 s77, s74, {c}\ns_add_u32 s76, s76, s77\ns_mul_i32 s77, s72, {d}\ns_add_u32 s76, s76, s77\ns_lshr_b32 s76, s76, 3")
    e(f"s_mul_i32 s77, s76, 6554\ns_lshr_b32 s77, s77, 16\ns_mul_i32 s77, s77, 10\ns_sub_u32 s{S_PH}, s76, s77")
    e(f"s_and_b32 s{S_WV}, s{S_WAVE}, 3")
    if opt.get('x0', False):
        x_setup(e, [16, 17])
        e(f"s_lshr_b32 s77, s{S_WAVE}, 2\ns_mul_i32 s76, s77, 81920\ns_lshl_b32 s77, s77, 13\ns_add_u32 s76, s76, s{S_XK}\ns_add_u32 m0, s77, s{S_M0X}\ns_add_u32 s76, s76, s{S_XOFF}\ns_waitcnt lgkmcnt(0)")
        e.srd(SRD_X, S_X, 2048*1280)
        e(f"buffer_load_dwordx4 v16, {sr(SRD_X)}, s76 offen lds\nbuffer_load_dwordx4 v17, {sr(SRD_X)}, s76 offen offset:1024 lds")
    e.fstamp(3)
    e(f"s_cmp_lt_u32 s{S_WAVE}, 4\ns_cbranch_scc1 L_C")
    m_wave(e, PB)
    e("L_C:")
    c_wave(e, D)
    e("L_end:\ns_endpgm")
    e(f""".section .rodata,"a"
.p2align 6
.amdhsa_kernel {NAME}
  .amdhsa_next_free_vgpr 256
  .amdhsa_next_free_sgpr 102
  .amdhsa_accum_offset 256
  .amdhsa_group_segment_fixed_size 0
  .amdhsa_kernarg_size 104
  .amdhsa_user_sgpr_count 2
  .amdhsa_user_sgpr_kernarg_segment_ptr 1
  .amdhsa_system_sgpr_workgroup_id_x 1
.end_amdhsa_kernel""")
    txt, n = hazard.fix("\n".join(e.L), opt.get('verbose', False))
    return txt + "\n"

def x_setup(e, VX):
    e(f"v_lshrrev_b32 v2, 3, v0\ns_lshl_b32 s76, s{S_WV}, 4\nv_add_u32 v2, s76, v2")
    e(f"v_lshrrev_b32 v3, 4, v0\nv_xor_b32 v3, v3, v0\nv_and_b32 v3, 7, v3\nv_lshlrev_b32 v3, 4, v3")
    e(f"v_mul_u32_u24 v2, 1280, v2\nv_add_u32 v{VX[0]}, v2, v3")
    e(f"v_xor_b32 v3, 64, v3\nv_add_u32 v2, {8*1280-1024}, v2\nv_add_u32 v{VX[1]}, v2, v3")
    e(f"s_mul_i32 s{S_XOFF}, s{S_RB}, {128*1280}\ns_lshl_b32 s{S_M0X}, s{S_WV}, 11\ns_add_u32 s{S_M0X}, s{S_M0X}, {XBASE}\ns_lshl_b32 s{S_XK}, s{S_PH}, 7")
XADV = f"s_add_u32 s{S_XK}, s{S_XK}, 128\ns_cmp_eq_u32 s{S_XK}, 1280\ns_cmov_b32 s{S_XK}, 0"
def dma_x_ops(VX, X, h):
    pre = f"s_add_u32 s76, s{S_XK}, {h*81920}\ns_add_u32 m0, s{S_M0X}, {(X % NX)*XSLOT + h*8192}\ns_add_u32 s76, s76, s{S_XOFF}\n"
    return [(('x', X), pre + f"buffer_load_dwordx4 v{VX[0]}, {sr(SRD_X)}, s76 offen lds"),
            (('x', X), f"buffer_load_dwordx4 v{VX[1]}, {sr(SRD_X)}, s76 offen offset:1024 lds" + ("\n" + XADV if h else ""))]

def m_wave(e, PB):
    e("s_setprio 3")
    VX = [16, 17]; VB = [18, 20, 22, 24]; VS = [26, 27, 28, 29]; VA = [30, 32, 34, 36]
    e(f"s_lshl_b32 s{S_M0W}, s{S_WV}, 12\ns_lshl_b32 s{S_KK}, s{S_PH}, 1")
    e(f"s_lshr_b32 s76, s{S_WV}, 1\ns_lshl_b32 s76, s76, 4\ns_and_b32 s77, s{S_WV}, 1\ns_lshl_b32 s77, s77, 2\ns_add_u32 s78, s76, s77")
    def krow(dst, rho):
        e(f"v_and_b32 v{dst}, 4, v{rho}\nv_add3_u32 v{dst}, v{dst}, v{rho}, s78")
    def panel(dst, ci0, colreg, kv):
        e(f"v_add_u32 v2, {ci0}, v0\nv_mul_u32_u24 v3, 6554, v2\nv_lshrrev_b32 v3, 16, v3\nv_mul_u32_u24 v4, 10, v3\nv_sub_u32 v4, v2, v4")
        if kv: e(f"v_lshrrev_b32 v6, 3, v3\nv_and_b32 v3, 7, v3\nv_mul_u32_u24 v6, 1280, v6\nv_lshl_add_u32 v4, v4, 4, v6")
        else: e(f"v_lshlrev_b32 v4, 4, v4")
        krow(5, 3)
        e(f"v_mul_u32_u24 v5, 3840, v5\nv_add3_u32 v{dst}, v5, v4, s{colreg}")
    def h160(dst, hi0):
        e(f"v_add_u32 v2, {hi0}, v0\nv_min_i32 v2, 159, v2\nv_max_i32 v2, 0, v2\nv_mul_u32_u24 v3, 3277, v2\nv_lshrrev_b32 v3, 16, v3\nv_mul_u32_u24 v4, 20, v3\nv_sub_u32 v4, v2, v4")
        e(f"v_lshrrev_b32 v6, 1, v3\nv_and_b32 v6, 2, v6\nv_xor_b32 v4, v4, v6\nv_min_u32 v4, s77, v4\nv_lshlrev_b32 v4, 4, v4")
        krow(5, 3)
        e(f"v_mul_u32_u24 v5, 3456, v5\nv_add3_u32 v{dst}, v5, v4, s76")
    def addptr(b, off, plo, phi):
        if b: e(f"v_subrev_u32 v{off}, {1024*b}, v{off}\nv_ashrrev_i32 v7, 31, v{off}")
        else: e(f"v_mov_b32 v7, 0")
        e(f"v_add_co_u32 v{VB[b]}, vcc, {plo}, v{off}")
        if phi.startswith('s'): e(f"v_mov_b32 v6, {phi}"); phi = "v6"
        e(f"v_addc_co_u32 v{VB[b]+1}, vcc, {phi}, v7, vcc")
    vm = ([('pf',)] if e.opt.get('epf', True) else []) + ([('x', 0)]*2 if e.opt.get('x0', False) else [])
    def emit(lst):
        for tag, txt in lst: e(txt); vm.append(tag)
    def wait_vm(pred):
        idx = max([i for i, t in enumerate(vm) if pred(t)], default=-1)
        if idx >= 0: e(f"s_waitcnt vmcnt({len(vm)-1-idx})"); del vm[:idx+1]
    def dma_w(step):
        pre = "".join(f"v_mad_u64_u32 {vr(VA[b],2)}, vcc, v{VS[b]}, s{S_KK}, {vr(VB[b],2)}\n" for b in range(4))
        pre += f"s_add_u32 m0, s{S_M0W}, {(step % NW)*WSLOT}\ns_add_u32 s{S_KK}, s{S_KK}, 1\ns_cmp_eq_u32 s{S_KK}, 20\ns_cmov_b32 s{S_KK}, 0\n"
        return [(('w', step), (pre if b == 0 else "") + f"global_load_lds_dwordx4 {vr(VA[b],2)}, off offset:{1024*b}") for b in range(4)]
    dma_x = lambda X, h: dma_x_ops(VX, X, h)
    O = [8, 46, 10, 11, 12]
    e(f"s_cmp_eq_u32 s{S_ISQ}, 1\ns_cbranch_scc1 L_MQ")
    e(f"s_mul_i32 s76, s{S_J}, 160\ns_add_u32 s76, s76, 1280")
    panel(O[0], 0, 76, True); panel(O[1], 64, 76, True); panel(O[2], 128, 76, True)
    e(f"v_lshrrev_b32 v3, 3, v0\nv_and_b32 v4, 6, v3\nv_xor_b32 v4, v4, v0\nv_and_b32 v4, 7, v4\nv_lshlrev_b32 v4, 4, v4\ns_lshl_b32 s76, s{S_J}, 7")
    krow(5, 3)
    e(f"v_mul_u32_u24 v5, 3456, v5\nv_add3_u32 v{O[3]}, v5, v4, s76")
    e(f"v_subrev_u32 v2, 32, v0\nv_min_u32 v2, 3, v2\nv_lshlrev_b32 v2, 4, v2\nv_cmp_gt_u32 s[14:15], 32, v0")
    e(f"v_mov_b32 v{VS[0]}, {32*3840}\nv_mov_b32 v{VS[1]}, {32*3840}\nv_mov_b32 v{VS[3]}, {32*3456}\nv_cndmask_b32 v{O[2]}, v2, v{O[2]}, s[14:15]\nv_cndmask_b32 v{VS[2]}, 64, v{VS[0]}, s[14:15]")
    e.fstamp(4)
    e("s_waitcnt lgkmcnt(0)")
    e.fstamp(5)
    addptr(0, O[0], f"s{S_WQKV}", f"s{S_WQKV+1}"); addptr(1, O[1], f"s{S_WQKV}", f"s{S_WQKV+1}"); addptr(3, O[3], f"s{S_W1}", f"s{S_W1+1}")
    e(f"v_mov_b32 v2, s{S_GATE}\nv_mov_b32 v3, s{S_WQKV}\nv_cndmask_b32 v2, v2, v3, s[14:15]\nv_mov_b32 v3, s{S_GATE+1}\nv_mov_b32 v4, s{S_WQKV+1}\nv_cndmask_b32 v3, v3, v4, s[14:15]")
    addptr(2, O[2], "v2", "v3")
    e("s_branch L_Mgo\nL_MQ:")
    e(f"s_mul_i32 s79, s{S_J}, 160\ns_mul_i32 s76, s{S_J}, 320\ns_add_u32 s76, s76, 1024\ns_cmp_eq_u32 s{S_J}, 7\ns_cselect_b32 s77, 11, 19")
    panel(O[0], 0, 79, False); panel(O[1], 64, 79, False); h160(O[4], -16); h160(O[2], 48); h160(O[3], 112)
    e(f"v_cmp_gt_u32 s[14:15], 16, v0\nv_mov_b32 v{VS[0]}, {32*3840}\nv_mov_b32 v{VS[2]}, {32*3456}\nv_mov_b32 v{VS[3]}, {32*3456}")
    e(f"v_cndmask_b32 v{O[1]}, v{O[4]}, v{O[1]}, s[14:15]\nv_cndmask_b32 v{VS[1]}, v{VS[2]}, v{VS[0]}, s[14:15]")
    e.fstamp(4)
    e("s_waitcnt lgkmcnt(0)")
    e.fstamp(5)
    addptr(0, O[0], f"s{S_WQKV}", f"s{S_WQKV+1}"); addptr(2, O[2], f"s{S_W1}", f"s{S_W1+1}"); addptr(3, O[3], f"s{S_W1}", f"s{S_W1+1}")
    e(f"v_mov_b32 v2, s{S_W1}\nv_mov_b32 v3, s{S_WQKV}\nv_cndmask_b32 v2, v2, v3, s[14:15]\nv_mov_b32 v3, s{S_W1+1}\nv_mov_b32 v4, s{S_WQKV+1}\nv_cndmask_b32 v3, v3, v4, s[14:15]")
    addptr(1, O[1], "v2", "v3")
    e("L_Mgo:")
    LA = e.opt.get('LA', 2); JS = e.opt.get('JS', 8)
    if e.opt.get('linbar'): e("s_barrier")
    emit(dma_w(0))
    e.stamp(1)
    emit(dma_w(1))
    if not e.opt.get('x0', False): x_setup(e, VX); e.srd(SRD_X, S_X, 2048*1280)
    e(XADV)
    if LA >= 3: emit(dma_x(1, 0)); emit(dma_w(2))
    e(f"s_setprio {e.opt.get('lprio', 0)}")
    e(f"s_and_b32 s76, s70, 3\ns_lshl_b32 s76, s76, 3\ns_add_u32 s{S_R64}, s76, s73\ns_and_b32 s76, s70, 4\ns_add_u32 s{S_CB}, s76, s75")
    e(f"s_mul_i32 s7, s73, 5\ns_mul_i32 s76, s75, 10\ns_add_u32 s7, s7, s76\ns_lshr_b32 s7, s7, 2")
    VZ, VL16 = 1, 15
    VJ = [38, 39, 40, 41, 42]; VJR = 43; VP = 14; JF = 48
    chunks = {}
    def c0():
        e.srd(SRD_WS, S_WS, WS_SIZE); e.srd(SRD_D, S_DBG, 256)
        e(f"v_mov_b32 v{VZ}, 0\nv_lshlrev_b32 v{VL16}, 4, v0")
        if e.opt.get('tail', False) or e.opt.get('jq', True):
            e(f"s_lshl_b32 s70, s{S_J}, 4\ns_add_u32 s70, s70, s{S_RB}\ns_lshl_b32 s71, s70, 2\ns_add_u32 s71, s71, s{S_WV}\ns_lshl_b32 s72, s{S_WV}, 7\ns_add_u32 s72, s72, s70\ns_add_u32 s72, s72, 432")
            e(f"s_cmp_eq_u32 s{S_ISQ}, {0 if e.opt.get('jq', True) else 1}\ns_cselect_b32 s72, s72, s71\ns_mov_b32 s71, 432\ns_cmov_b32 s71, 592\ns_sub_u32 s70, s72, s71\ns_lshr_b32 s71, s72, 3\ns_and_b32 s72, s72, 7")
        else:
            e(f"s_mul_i32 s70, s2, 37\ns_add_u32 s71, s70, 37\ns_lshr_b32 s70, s70, 4\ns_lshr_b32 s71, s71, 4\ns_add_u32 s72, s70, s{S_WV}\ns_sub_u32 s70, s72, s71\ns_lshr_b32 s71, s72, 3\ns_and_b32 s72, s72, 7")
        e(f"s_sub_u32 s73, s71, 54\ns_mul_i32 s77, s73, 6554\ns_lshr_b32 s77, s77, 15\ns_mul_i32 s78, s77, 5\ns_sub_u32 s78, s73, s78")
        e(f"s_mul_i32 s73, s77, 160\ns_lshr_b32 s77, s78, 1\ns_mul_i32 s77, s77, 80\ns_and_b32 s79, s78, 1\ns_lshl_b32 s79, s79, 3\ns_add_u32 s77, s77, s79")
        e(f"s_cmp_eq_u32 s78, 4\ns_cselect_b32 s77, 16, s77\ns_cselect_b32 s75, 80, 4\ns_add_u32 s73, s73, s77\ns_mov_b32 s74, 20")
    def c1():
        e(f"s_lshl_b32 s77, s71, 5\ns_cmp_lt_u32 s71, 54\ns_cselect_b32 s73, s77, s73\ns_cselect_b32 s74, 4, s74\ns_cselect_b32 s75, 16, s75")
        e(f"s_cselect_b32 s{SRD_T}, s{S_W2}, s{S_WO}\ns_cselect_b32 s{SRD_T+1}, s{S_W2+1}, s{S_WO+1}\ns_mov_b32 s{SRD_T+2}, {640*1280}\ns_cmov_b32 s{SRD_T+2}, {1728*1280}\ns_mov_b32 s{SRD_T+3}, 0x20000")
        e(f"s_mul_i32 s12, s73, 1280\ns_mul_i32 s77, s72, 160\ns_add_u32 s12, s12, s77")
        e(f"s_mul_i32 s13, s72, 74\ns_add_u32 s13, s13, s71\ns_mul_i32 s13, s13, 5120\ns_add_u32 s13, s13, {WS_WF}")
        e(f"s_and_b32 s77, s{S_RB}, 3\ns_lshl_b32 s78, s{S_ISQ}, 2\ns_add_u32 s77, s77, s78\ns_lshl_b32 s77, s77, 7\ns_add_u32 s77, s77, {WS_FL + FL_W*128}"); e.wsptr(14, "s77")
        e(f"s_cmp_lt_i32 s70, 0\ns_cselect_b32 s12, s12, {OOB}\ns_cselect_b32 s13, s13, {OOB}")
        e(f"s_mul_i32 s3, s{S_WV}, 5120\ns_add_u32 s3, s3, {STG}")
        e(f"v_lshrrev_b32 v2, 2, v0\nv_mul_u32_u24 v2, 160, v2\nv_and_b32 v3, 3, v0\nv_mul_u32_u24 v3, 40, v3\nv_add3_u32 v{VJR}, v2, v3, s3\nv_add_u32 v44, 4096, v{VL16}")
    def cj(i0, i1):
        def f():
            for i in range(i0, i1):
                e(f"v_add_u32 v2, {64*i}, v0\nv_mul_u32_u24 v3, 6554, v2\nv_lshrrev_b32 v3, 16, v3\nv_mul_u32_u24 v4, 10, v3\nv_sub_u32 v4, v2, v4")
                e(f"v_bfe_u32 v5, v3, 2, 2\nv_mul_u32_u24 v5, s74, v5\nv_lshrrev_b32 v6, 4, v3\nv_mul_u32_u24 v6, s75, v6\nv_and_b32 v3, 3, v3\nv_add3_u32 v3, v3, v5, v6")
                e(f"v_mul_u32_u24 v3, 1280, v3\nv_lshl_add_u32 v{VJ[i]}, v4, 4, v3")
        return f
    def c8():
        e(f"s_cmp_ge_u32 s{S_WV}, 2\ns_cselect_b32 s70, 9, 10\ns_mul_i32 s71, s{S_WV}, 10\ns_cmp_eq_u32 s{S_WV}, 3\ns_cmov_b32 s71, 29\ns_add_u32 s71, s71, 16")
        e(f"s_cmp_ge_u32 s7, s70\ns_cselect_b32 s72, s70, 0\ns_sub_u32 s7, s7, s72")
        e(f"s_mul_i32 s74, s{S_R64}, 54\ns_add_u32 s72, s74, s71\ns_lshl_b32 s{SAS}, s72, 12\ns_lshl_b32 s73, s70, 12\ns_add_u32 s{SAE}, s{SAS}, s73\ns_lshl_b32 s73, s7, 12\ns_add_u32 s{SA}, s{SAS}, s73")
        e(f"s_mul_i32 s75, s{S_CB}, 74\ns_add_u32 s73, s75, s71\ns_mul_i32 s73, s73, 5120\ns_add_u32 s{SBS}, s73, {WS_WF}\ns_mul_i32 s73, s70, 5120\ns_add_u32 s{SBE}, s{SBS}, s73\ns_mul_i32 s73, s7, 5120\ns_add_u32 s{SB}, s{SBS}, s73")
    def c9():
        e(f"s_lshl_b32 s70, s{S_WV}, 2\ns_add_u32 s71, s74, s70\ns_lshl_b32 s{SA2}, s71, 12\ns_add_u32 s71, s75, s70\ns_mul_i32 s71, s71, 5120\ns_add_u32 s{SB2}, s71, {WS_WF}")
        e(f"s_mul_i32 s70, s{S_WV}, 5\ns_add_u32 s70, s70, s75\ns_add_u32 s70, s70, 54\ns_mul_i32 s70, s70, 5120\ns_add_u32 s{SOB}, s70, {WS_WF}")
        e(f"s_mul_i32 s70, s{S_R64}, 81920\ns_add_u32 s{SOA}, s70, {WS_OF}")
        e(f"s_lshl_b32 s70, s{S_R64}, 3\ns_add_u32 s70, s70, s{S_CB}\ns_lshl_b32 s70, s70, 5\ns_add_u32 s70, s70, s{S_WV}\ns_lshl_b32 s70, s70, 2\ns_add_u32 s70, s70, {WS_FL + FL_H*128}"); e.wsptr(SFH, "s70")
        e(f"s_mov_b32 s{SFW}, {WS_FL + FL_W*128 + 1024}")
        e(f"s_lshl_b32 s70, s{S_R64}, 8\ns_lshl_b32 s71, s{S_WV}, 14\ns_add_u32 s70, s70, s71\ns_add_u32 s{SG}, s70, {WS_G}")
    def c10():
        e(f"s_mul_i32 s{SPK}, s{S_WV}, 20480\ns_add_u32 s{SPK}, s{SPK}, {PARK}\ns_cmp_eq_u32 s{S_WV}, 3\ns_cmov_b32 s{SPK}, {STG}")
        e(f"v_add_u32 v{P3_VL2}, 4096, v{VL16}")
        e(f"s_and_b32 s70, s{S_CB}, {3 if e.opt.get('trot', True) else 0}\ns_xor_b32 s{S_TL}, s70, s{S_WV}")
        for t in range(4): e(f"s_xor_b32 s70, s{S_TL}, {t}\ns_lshl_b32 s70, s70, 10\nv_add_u32 v{P3_VT[t]}, s70, v{VL16}")
        e(f"v_lshrrev_b32 v4, 4, v0\nv_mul_u32_u24 v4, 40, v4\ns_mul_i32 s70, s{S_CB}, 160\nv_add_u32 v4, s70, v4")
        e(f"s_cmp_eq_u32 s{S_WV}, 0\ns_cselect_b32 s42, 1.0, 0\nv_and_b32 v8, 7, v0\nv_lshlrev_b32 v8, 7, v8")
    def b2_unpack(u):
        for i in (2*u, 2*u + 1):
            r = (2*i) % 4
            e(f"v_lshlrev_b32 v{p3acc(u,0)+r}, 16, v{P3_B2+i}\nv_and_b32 v{p3acc(u,0)+r+1}, 0xffff0000, v{P3_B2+i}")
        if True:
            for t in (1, 2, 3, 0):
                for r in range(4): e(f"v_mul_f32 v{p3acc(u,t)+r}, s42, v{p3acc(u,0)+r}")
    TAIL = e.opt.get('tail', False)
    JL = e.opt.get('JL', 17 if TAIL else 2); JR = e.opt.get('JR', 20 if TAIL else 5); JS = e.opt.get('JS', JR); JSP = e.opt.get('JSP', 5); JA = e.opt.get('JA', 20 if TAIL else 10); assert JA != 19; ZA = e.opt.get('ZA', 2); pre = e.opt.get('pre', 0)
    for c_ in (c0, c1, cj(0, 5), c8, c9, c10): c_()
    e(f"v_mul_u32_u24 v2, 21846, v0\nv_lshrrev_b32 v2, 16, v2\nv_mul_u32_u24 v6, 3, v2\nv_sub_u32 v6, v0, v6\nv_lshlrev_b32 v6, 4, v6\nv_lshl_add_u32 v2, v2, 7, v6")
    e(f"v_lshlrev_b32 v6, 7, v0\nv_add_u32 v6, {(FL_KV - 24)*128}, v6\nv_cmp_gt_u32 vcc, 24, v0\nv_mov_b32 v168, 0\nv_mov_b32 v169, 0\nv_cndmask_b32 v2, v6, v2, vcc\ns_lshl_b32 s76, s2, 10\nv_add_u32 v2, s76, v2")
    e(f"v_mov_b32 v6, {OOB}\nv_cmp_gt_u32 vcc, 32, v0\nv_mov_b32 v170, 0\nv_mov_b32 v171, 0\nv_cndmask_b32 v2, v6, v2, vcc\ns_add_u32 s76, s2, {FL_W}\ns_lshl_b32 s76, s76, 7\ns_cmp_lt_u32 s2, 16\ns_cselect_b32 s76, s76, {OOB}\nv_writelane_b32 v2, s76, 32")
    e(f"s_lshl_b32 s76, s{S_WV}, 8\ns_or_b32 s76, s76, s2\ns_cmp_lt_u32 s76, {NINIT}\ns_mov_b32 s76, {OOB}\ns_cmov_b32 s76, {WS_FL}")
    emit([(('zero',), f"buffer_store_dwordx4 v[168:171], v2, {sr(SRD_WS)}, s76 offen sc1")])
    emit([(('b2',), f"global_load_dwordx4 {vr(P3_B2)}, v4, s[{S_B2}:{S_B2+1}]"), (('b2',), f"global_load_dwordx4 {vr(P3_B2+4)}, v4, s[{S_B2}:{S_B2+1}] offset:16"),
          (('b2',), f"global_load_dwordx2 {vr(P3_B2+8,2)}, v4, s[{S_B2}:{S_B2+1}] offset:32")])
    txt = (f"s_mul_i32 s76, s{S_J}, 3200\ns_lshl_b32 s77, s{S_WV}, 10\ns_add_u32 m0, s77, {WPHI_LDS}\ns_add_u32 s76, s76, s77\ns_add_u32 s76, s76, s{S_WPHI}\ns_addc_u32 s77, s{S_WPHI+1}, 0\n"
           f"s_cmp_eq_u32 s{S_WV}, 3\ns_mov_b32 s78, 1008\ns_cmov_b32 s78, 112\nv_min_u32 v6, s78, v{VL16}\nglobal_load_lds_dwordx4 v6, s[76:77]")
    emit([(('phi',), txt)])
    if e.opt.get('cpf', True):
        e(f"s_getpc_b64 s[76:77]\nL_pc:\ns_sub_u32 s76, s76, L_pc-{NAME}\ns_subb_u32 s77, s77, 0")
        e(f"s_lshr_b32 s78, s2, 3\ns_lshl_b32 s78, s78, 2\ns_add_u32 s78, s78, s{S_WV}\ns_lshl_b32 s78, s78, 9\nv_and_b32 v6, 3, v0\nv_lshl_add_u32 v6, v6, 7, s78")
        emit([(('pf',), f"s_mov_b32 s78, L_end-{NAME}\nv_min_u32 v6, s78, v6\ns_mov_b64 exec, 15\nglobal_load_dword v167, v6, s[76:77]\ns_mov_b64 exec, -1")])
    TAG = e.opt.get('tag', False)
    if TAG:
        Ln = e.lab("L_ep")
        e(f"s_or_b32 s76, s2, s{S_WV}\ns_cmp_lg_u32 s76, 0\ns_cbranch_scc1 {Ln}"); e.wsptr(76, WS_EP)
        e(f"s_mov_b32 s30, 0x61c88700\ns_atomic_add s30, s[76:77], 0 glc\n{Ln}:")
    def job_loads():
        for i in range(5):
            emit([(('job',), f"s_add_u32 m0, s3, {1024*i}\ns_nop 0\nbuffer_load_dwordx4 v{VJ[i]}, {sr(SRD_T)}, s12 offen lds")])
    if JL < 0: job_loads()
    P3S = P3(e, PB, VZ, VL16, vm)
    for s in range(NSTEP):
        wait_vm(lambda t: t == ('w', s) or t == ('x', s//2))
        e("s_barrier")
        if s == 0: e.stamp(2)
        if e.opt.get('steps'): e(f"s_memtime s[76:77]\ns_waitcnt lgkmcnt(0)\ns_sub_u32 s76, s76, s80\nv_writelane_b32 v9, s76, {s}")
        n_list = [2, 3] if (LA == 2 and s == 0) else [s + 3]
        for n_ in n_list:
            if n_ < NSTEP: emit(dma_x(n_ // 2, n_ % 2))
        if s + LA < NSTEP: emit(dma_w(s + LA))
        if s == ZA:
            wait_vm(lambda t: t[0] in ('zero', 'b2', 'phi'))
            Li = e.lab("L_ini")
            if TAG:
                Ln = e.lab("L_non")
                e(f"s_or_b32 s76, s2, s{S_WV}\ns_cmp_lg_u32 s76, 0\ns_cbranch_scc1 {Ln}")
                e(f"s_waitcnt lgkmcnt(0)\ns_add_u32 s30, s30, 0x61c88700\ns_lshr_b32 s76, s30, 8\ns_xor_b32 s76, s76, 1\ns_and_b32 s76, s76, 0xff\ns_andn2_b32 s30, s30, 0xff\ns_or_b32 s30, s30, s76")
                e(f"s_atomic_add s30, s[{S_DBG}:{S_DBG+1}], 4 glc\ns_waitcnt lgkmcnt(0)\n{Ln}:")
            e(f"s_lshl_b32 s76, s{S_WV}, 8\ns_or_b32 s76, s76, s2\ns_cmp_ge_u32 s76, {NINIT}\ns_cbranch_scc1 {Li}\ns_mov_b32 s21, 1\ns_atomic_add s21, s[{S_DBG}:{S_DBG+1}], 0 glc\n{Li}:")
        if ZA + 1 <= s < ZA + 6: b2_unpack(s - ZA - 1)
        if s == JL: job_loads()
        if s == JR:
            wait_vm(lambda t: t[0] == 'job')
            for u in range(5):
                e(f"ds_read_b64_tr_b16 {vr(JF+4*u,2)}, v{VJR} offset:{8*u}\nds_read_b64_tr_b16 {vr(JF+4*u+2,2)}, v{VJR} offset:{8*u + 2560}")
            e("s_waitcnt lgkmcnt(0)")
        if True:
            for u in range(5):
                if s != JS + u // JSP: continue
                if u < 4: emit([(('jst',), f"buffer_store_dwordx4 {vr(JF+4*u)}, v{VL16}, {sr(SRD_WS)}, s13 offen offset:{1024*u} sc1")])
                else: emit([(('jst',), f"buffer_store_dwordx4 {vr(JF+4*u)}, v44, {sr(SRD_WS)}, s13 offen sc1")])
        IC = min(JA, 15)
        if s == IC - 1: e.sfirst(S_DBG, [0], [31])
        if s == IC:
            e.scheck([31], NINIT, SRD_D, "0", VZ, VP, vm)
            if TAG: emit([(('non',), f"buffer_load_dword v46, v{VZ}, {sr(SRD_D)}, 0 offen offset:4 sc1")])
        if s == IC + 2 and TAG:
            wait_vm(lambda t: t[0] == 'non'); e(f"v_mov_b32 v45, {CNT_LDS + 4*20}\nds_write_b32 v45, v46\ns_waitcnt lgkmcnt(0)")
        if s == JA:
            wait_vm(lambda t: t[0] == 'jst'); e("s_mov_b32 s22, 0")
            e.arrive(3, 174, 175, lambda D: e(f"s_mov_b32 s22, 1\ns_atomic_add s22, s[14:15], 0 glc"))
        if s == JA + 1:
            Lw = e.lab("L_w2")
            e(f"s_waitcnt lgkmcnt(0)\ns_cmp_lg_u32 s22, 31\ns_cbranch_scc1 {Lw}\ns_mov_b32 s23, 1\ns_atomic_add s23, s[14:15], 1024 glc\n{Lw}:")
        if JA < 19:
            WD = [20, 22, 23, 30, 31, 32, 33, 12]
            if s == (17 if pre else 18): e.wsptr(76, f"s{SFW}"); e.sfirst(76, [128*i for i in range(8)], WD)
            if s == 18 and pre:
                e.scheck(WD, 1, SRD_WS, f"s{SFW}", 8, VP, vm)
                for _ in range(pre): P3S.prefetch()
    e.stamp(3)
    HP = e.opt.get('hp', 3)
    e(f"s_setprio {HP}")
    if JR >= NSTEP:
        wait_vm(lambda t: t[0] == 'job')
        e.f2(5)
        for u in range(5):
            e(f"ds_read_b64_tr_b16 {vr(JF+4*u,2)}, v{VJR} offset:{8*u}\nds_read_b64_tr_b16 {vr(JF+4*u+2,2)}, v{VJR} offset:{8*u + 2560}")
    if JS >= NSTEP:
        for u in range(5):
            e(f"s_waitcnt lgkmcnt({8-2*u})")
            if u < 4: emit([(('jst',), f"buffer_store_dwordx4 {vr(JF+4*u)}, v{VL16}, {sr(SRD_WS)}, s13 offen offset:{1024*u} sc1")])
            else: emit([(('jst',), f"buffer_store_dwordx4 {vr(JF+4*u)}, v44, {sr(SRD_WS)}, s13 offen sc1")])
    if JA >= 19:
        e.f2(6)
        wait_vm(lambda t: True)
        e.f2(7)
        def w_sig(D): e(f"s_mov_b32 s22, 1\ns_atomic_add s22, s[14:15], 0 glc\ns_waitcnt lgkmcnt(0)\ns_cmp_lg_u32 s22, 31\ns_cbranch_scc1 {D}\ns_mov_b32 s23, 1\ns_atomic_add s23, s[14:15], 1024 glc")
        e.arrive(3, 174, 175, w_sig)
        e.f2(8)
        e(f"v_mov_b32 v{VP}, 0")
        if TAIL: e("v_and_b32 v8, 0x180, v8")
        e.vpoll(SRD_WS, f"s{SFW}", 1, 8, VP)
    elif not pre:
        e.scheck(WD, 1, SRD_WS, f"s{SFW}", 8, VP, vm)
    e(f"s_setprio {e.opt.get('mprio', 0)}")
    e.stamp(4)
    if e.opt.get('nop3'):
        e.stamps_out(); e("s_endpgm"); return
    P3S.begin()
    while P3S.npre < PB:
        if P3S.npre >= e.opt.get('free', 2):
            if not P3S.ring:
                e.lwait(8, 174, 175); P3S.ring = True
                P3S.park_now(e.opt.get('pkf', 0))
            P3S.yield_()
        P3S.prefetch()
        if len(vm) > P3S.THR: e(f"s_waitcnt vmcnt({P3S.THR})"); del vm[:len(vm) - P3S.THR]
    P3S.run()

def P3(e, PB, VZ, VL16, vm):
    class S: pass
    S.npre = 0
    opt = e.opt
    ACC = 176; POOL = 16; NPOOL = 38
    VL2, VP = 13, 14; VGO = 173; VY = 9 if not opt.get('steps') else 169
    VT = P3_VT
    VG = 2
    acc = lambda u, t: ACC + 16*u + 4*t
    NQ, NK = 10, 4; NS = NQ + NK; HPM = (opt.get('hp', 3), opt.get('mprio', 0))
    def pst(i):
        if opt.get('steps'): e(f"s_waitcnt lgkmcnt(0)\ns_memtime s[76:77]\ns_waitcnt lgkmcnt(0)\ns_sub_u32 s76, s76, s80\nv_writelane_b32 v9, s76, {i}")
    free = list(range(NPOOL)); frag = {}
    def emit1(item): e(item[1]); vm.append(item[0])
    def waitvm(pred):
        idx = max([i for i, t in enumerate(vm) if pred(t)], default=-1)
        if idx >= 0: e(f"s_waitcnt vmcnt({len(vm)-1-idx})"); del vm[:idx+1]
    def ld(d, v, so, off): return f"buffer_load_dwordx4 {d}, v{v}, {sr(SRD_WS)}, {so} offen" + (f" offset:{off}" if off else "") + " sc1"
    def take(k): return free.pop(0)
    def group(kind, k):
        out = []
        for i in range(4 if kind == 'A' else 5):
            sl = take(k); frag[(kind, k, i)] = POOL + 4*sl; d = vr(POOL + 4*sl)
            pre = post = ""
            if kind == 'A':
                if k < NQ:
                    if k == NQ - 1 and i == 0: pre = f"s_cmp_ge_u32 s{S_WV}, 2\ns_cmov_b32 s{SA}, {OOB}\n"
                    if i == 3: post = f"\ns_add_u32 s{SA}, s{SA}, 4096\ns_cmp_eq_u32 s{SA}, s{SAE}\ns_cmov_b32 s{SA}, s{SAS}"
                    txt = ld(d, VT[i], f"s{SA}", 0)
                else:
                    txt = ld(d, VT[i], f"s{SA2}", 0)
                    if i == 3: post = f"\ns_add_u32 s{SA2}, s{SA2}, 4096"
            else:
                if k < NQ:
                    so = f"s{SB}"
                    if k == NQ - 1 and i == 0: pre = f"s_cmp_ge_u32 s{S_WV}, 2\ns_cmov_b32 s{SB}, {OOB}\n"
                    if i == 4: post = f"\ns_add_u32 s{SB}, s{SB}, 5120\ns_cmp_eq_u32 s{SB}, s{SBE}\ns_cmov_b32 s{SB}, s{SBS}"
                else:
                    so = f"s{SB2}"
                    if i == 4: post = f"\ns_add_u32 s{SB2}, s{SB2}, 5120"
                txt = ld(d, VL16, so, 1024*i) if i < 4 else ld(d, VL2, so, 0)
            out.append(((kind, k), pre + txt + post))
        return out
    THR = opt.get('thr', 10)
    YLD = opt.get('yld', '')
    def yield_(pre_read=False):
        if not YLD: return
        L = e.lab("L_y"); D = e.lab("L_yd")
        if not pre_read: e(f"ds_read_b32 v{VP}, v{VY}")
        e(f"s_setprio {opt.get('hp', 3)}\ns_mov_b32 s79, 0\n{L}:\ns_waitcnt lgkmcnt(0)\nv_readfirstlane_b32 s78, v{VP}\ns_cmp_eq_u32 s78, 0\ns_cbranch_scc1 {D}")
        e(f"s_add_u32 s79, s79, 1\ns_cmp_ge_u32 s79, 0x1000000\ns_cbranch_scc1 L_end\ns_sleep 1\nds_read_b32 v{VP}, v{VY}\ns_branch {L}\n{D}:\ns_setprio {opt.get('mprio', 0)}")
    def prefetch():
        for it in group('B', S.npre): emit1(it)
        S.npre += 1
    S.prefetch = prefetch; S.THR = THR
    def msync(cnt):
        e.lpost(cnt, 174, 175); e.lwait(cnt, 174, 175, sleep=0)
    def park(j):
        out = []
        for i in range(5):
            pre = f"s_add_u32 s12, s{S_R64}, {j}\ns_and_b32 s12, s12, 3\ns_mul_i32 s12, s12, 5120\ns_add_u32 s13, s12, s{SOB}\ns_add_u32 s12, s12, s{SPK}\n" if i == 0 else ""
            out.append((('L',), pre + f"s_add_u32 m0, s12, {1024*i}\ns_add_u32 s77, s13, {1024*i}\nbuffer_load_dwordx4 v{VL16}, {sr(SRD_WS)}, s77 offen sc1 lds"))
        return out
    S.ring = False; S.yield_ = yield_; S.parked = 0
    def park_now(n):
        for _ in range(n):
            yield_()
            for it in park(S.parked): emit1(it)
            S.parked += 1
            if len(vm) > THR: e(f"s_waitcnt vmcnt({THR})"); del vm[:len(vm) - THR]
    S.park_now = park_now
    S.begin = lambda: e(f"v_mov_b32 v{VY}, {CNT_LDS + 4*11}")
    def run():
        if not S.ring: e.lwait(8, 174, 175)
        e.stamp(5, True)
        PK = opt.get('pk', (10, 11, 11, 12))
        for j in range(4):
            if PK[j] >= 0 or j < S.parked: continue
            yield_()
            for it in park(j): emit1(it)
            if len(vm) > THR: e(f"s_waitcnt vmcnt({THR})"); del vm[:len(vm) - THR]
        VH = [4, 5, 6, 7]; VOUT = 8; VGS = [2, 168, 170, 172]
        for t in range(4): e(f"s_xor_b32 s70, s{S_TL}, {t}\ns_lshr_b32 s71, s70, 1\ns_lshl_b32 s71, s71, 10\ns_and_b32 s70, s70, 1\ns_lshl_b32 s70, s70, 3\ns_add_u32 s70, s70, s71\ns_add_u32 s70, s70, 8192\nv_add_u32 v{VH[t]}, s70, v{VL16}")
        e.srd(SRD_T, S_OUT, 2048*1280)
        e(f"v_and_b32 v{VOUT}, 15, v0\nv_mul_u32_u24 v{VOUT}, 1280, v{VOUT}\nv_lshrrev_b32 v170, 4, v0\nv_mul_u32_u24 v170, 40, v170\nv_add_u32 v{VOUT}, v{VOUT}, v170\nv_add_u32 v171, s{SPK}, v{VL16}")
        e(f"s_lshl_b32 s70, s{S_R64}, 2\ns_add_u32 s70, s70, s{S_TL}\ns_mul_i32 s70, s70, {16*1280}\ns_mul_i32 s71, s{S_CB}, 160\ns_add_u32 s21, s70, s71")
        e(f"s_mul_i32 s70, s{S_WV}, 20480\ns_add_u32 s{SOA}, s{SOA}, s70")
        e(f"s_cmp_eq_u32 s{S_WV}, 3\ns_cselect_b32 s22, 3, 2")
        e.spoll(SFH, SPD, sleep=opt.get('slh', 2), least="s22")
        e.stamp(6, True)
        order = []
        for k in range(NS):
            order.append(('A', k))
            if k >= PB: order.append(('B', k))
        pend = []; gate = [False]
        LOOK = opt.get('look', 2)
        def refill(cur):
            i = 0
            while i < len(order):
                kind, k = order[i]
                if kind == 'A' and k >= NQ and not gate[0]: i += 1; continue
                if k > cur + LOOK or len(free) < (4 if kind == 'A' else 5) + (8 if i > 0 else 0): break
                pend.extend(group(kind, k)); order.pop(i)
        yield_()
        refill(-1)
        for it in pend: emit1(it)
        pend.clear()
        nxtflag = f"s_add_u32 s{SFH}, s{SFH}, 16"
        GK = NQ - opt.get('gk', LOOK); GO = NS - opt.get('go', 0)
        bo = {}; aq = []; dsq = []; lg = []
        def o_weights_stream():
            for u in range(5):
                sl = free.pop(0); bo[(4, u)] = POOL + 4*sl
                pend.append((('Bo',), (f"s_add_u32 s77, s{SOB}, {4*5120}\n" if u == 0 else "") + (ld(vr(POOL + 4*sl), VL16, "s77", 1024*u) if u < 4 else ld(vr(POOL + 4*sl), VL2, "s77", 0))))
        oa = [(t, i) for t in (3, 2, 1, 0) for i in range(5)]; ao = {}
        def a_next():
            t, i = oa.pop(0); sl = free.pop(0); ao[(t, i)] = d = POOL + 4*sl
            if i < 4: return [(('Ao', t, i), f"s_add_u32 s76, s{SOA}, {(i >> 1)*10240 + (i & 1)*4096}\n" + ld(vr(d), VT[t], "s76", 0))]
            return [(('Ao', t, i), f"s_add_u32 s76, s{SOA}, {ee*10240}\nbuffer_load_dwordx2 {vr(d+2*ee,2)}, v{VH[t]}, {sr(SRD_WS)}, s76 offen sc1") for ee in range(2)]
        ob = [(t, i, u) for t in (3, 2, 1, 0) for i in range(4) for u in range(5)]
        def b_next():
            t, i, u = ob.pop(0); sl = free.pop(0); bo[(t, i, u)] = POOL + 4*sl
            if len(lg) >= 15: e("s_waitcnt lgkmcnt(10)"); del lg[:5]
            e(f"ds_read_b128 {vr(POOL + 4*sl)}, v171 offset:{5120*i + 1024*u}"); lg.append((t, i))
        def o_gate():
            e.stamp(7, True)
            e.spoll(SFH, SPD, probed=True, sleep=opt.get('slz', 2), least=2)
            e.stamp(8, True); lg.clear()
            while oa: pend.extend(a_next())
        for k in range(NS):
            if k == GK:
                e.spoll(SFH, SPD, probed=True, sleep=opt.get('slo', 2), least=2)
                gate[0] = True
                e(f"v_and_b32 v{VGO}, 15, v0\nv_lshlrev_b32 v{VGO}, 2, v{VGO}")
                for t in range(4): emit1((('g',), f"s_xor_b32 s76, s{S_TL}, {t}\ns_lshl_b32 s76, s76, 6\ns_add_u32 s76, s76, s{SG}\nbuffer_load_dword v{VGS[t]}, v{VGO}, {sr(SRD_WS)}, s76 offen sc1"))
            refill(k)
            if opt.get('tail', False) and k == min(PK) - 1:
                emit1((('w2',), f"v_and_b32 v169, 3, v0\nv_lshlrev_b32 v169, 7, v169\nv_or_b32 v169, 0x200, v169\nbuffer_load_dword v{VP}, v169, {sr(SRD_WS)}, s{SFW} offen sc1"))
            if opt.get('tail', False) and k == min(PK):
                waitvm(lambda t: t == ('w2',)); e.vpoll(SRD_WS, f"s{SFW}", 1, 169, VP)
            for j in range(4):
                if PK[j] == k and j >= S.parked: pend.extend(park(j))
            if k == NS - 2: o_weights_stream()
            while any(it[0] in (('A', k), ('B', k)) for it in pend): emit1(pend.pop(0))
            if k == GO:
                o_gate()
                for _ in range(4): emit1(pend.pop(0))
            waitvm(lambda t: t in (('A', k), ('B', k)))
            if pend and k != GK - 1 and k < GO - 1: yield_(pre_read=k > 0 and k != GK)
            pst(24 + k)
            cnt = 0
            for t in range(4):
                for u in range(5):
                    e(f"v_mfma_f32_16x16x32_bf16 {vr(acc(u,t))}, {vr(frag[('B',k,u)])}, {vr(frag[('A',k,t)])}, {vr(acc(u,t))}")
                    cnt += 1
                    if cnt % 2 == 0 and pend: emit1(pend.pop(0))
            while pend: emit1(pend.pop(0))
            for i in range(4): free.append((frag[('A', k, i)] - POOL)//4)
            for i in range(5): free.append((frag[('B', k, i)] - POOL)//4)
            if k == GK - 2 or (k == GO - 2 and GO < NS): e(nxtflag); e.sprobe(SFH, SPD)
            elif k == NS - 1 and GO >= NS: e(nxtflag)
            elif YLD and k + 1 < GO - 1 and k + 1 != GK: e(f"ds_read_b32 v{VP}, v{VY}")
        assert not order
        pst(38)
        e.lwait(12, 174, 175)
        waitvm(lambda t: t in (('g',), ('L',)))
        if GO >= NS: e.sprobe(SFH, SPD)
        while len(free) > (0 if GO < NS else 20): b_next()
        for t in range(4): e(f"v_sub_f32 v{VGS[t]}, 1.0, v{VGS[t]}")
        for t in (3, 2, 1, 0):
            for u in range(5):
                for r in (0, 2): e(f"v_pk_mul_f32 {vr(acc(u,t)+r,2)}, {vr(acc(u,t)+r,2)}, {vr(VGS[t],2)} op_sel_hi:[1,0]")
        RA = [2, 168, 170, 172]
        for t in range(4): e(f"s_xor_b32 s76, s{S_WV}, {t}\ns_mul_i32 s77, s76, 15360\ns_cmp_eq_u32 s76, 3\ns_cmov_b32 s77, {EXCH_H3}\nv_add_u32 v{RA[t]}, s77, v{VL16}")
        if opt.get('opf'):
            emit1((('opf',), f"buffer_load_dword v{VP}, v{VOUT}, {sr(SRD_T)}, s21 offen"))
        if GO >= NS:
            o_gate()
            for _ in range(opt.get('a0', 24)): emit1(pend.pop(0))
        pst(39)
        wq = []
        for t in (3, 2, 1, 0):
            for i in range(5):
                while any(it[0] == ('Ao', t, i) for it in pend): emit1(pend.pop(0))
                waitvm(lambda x: x == ('Ao', t, i) or x == ('Bo',))
                idx = max([n for n, x in enumerate(lg) if x == (t, i)], default=-1)
                if idx >= 0: e(f"s_waitcnt lgkmcnt({len(lg)-1-idx})"); del lg[:idx+1]
                for u in range(5):
                    bb = bo[(t, i, u)] if i < 4 else bo[(4, u)]
                    e(f"v_mfma_f32_16x16x32_bf16 {vr(acc(u,t))}, {vr(bb)}, {vr(ao[(t,i)])}, {vr(acc(u,t))}")
                    if i < 4 and u: free.append((bo[(t, i, u-1)] - POOL)//4)
                    if u in (0, 2) and pend: emit1(pend.pop(0))
                    if u == 3 and wq:
                        if len(lg) >= 15: e("s_waitcnt lgkmcnt(10)"); del lg[:5]
                        e(wq.pop(0)); lg.append('w')
                    if ob and free and len([x for x in lg if x != 'w']) < 12: b_next()
                if i < 4: free.append((bo[(t, i, 4)] - POOL)//4)
                free.append((ao[(t, i)] - POOL)//4)
            if t: wq += [f"ds_write_b128 v{RA[t]}, {vr(acc(u,t))} offset:{5120*(t-1) + 1024*u}" for u in range(5)]
        assert not wq and not oa and not ob
        pst(40)
        e("s_waitcnt lgkmcnt(0)\ns_barrier")
        pst(41)
        R = POOL
        for u in range(5):
            for sw in range(3): e(f"ds_read_b128 {vr(R + 12*u + 4*sw)}, v{RA[0]} offset:{sw*5120 + u*1024}")
        for u in range(5):
            e(f"s_waitcnt lgkmcnt({12 - 3*u})")
            b = R + 12*u; a = acc(u, 0)
            for r in (0, 2): e(f"v_pk_add_f32 {vr(a+r,2)}, {vr(a+r,2)}, {vr(b+r,2)}\nv_pk_add_f32 {vr(b+4+r,2)}, {vr(b+4+r,2)}, {vr(b+8+r,2)}")
            for r in (0, 2): e(f"v_pk_add_f32 {vr(a+r,2)}, {vr(a+r,2)}, {vr(b+4+r,2)}")
        pst(42)
        for u in range(5):
            a = acc(u, 0)
            e(f"v_cvt_pk_bf16_f32 v{100+2*u}, v{a}, v{a+1}\nv_cvt_pk_bf16_f32 v{101+2*u}, v{a+2}, v{a+3}")
        fl = opt.get('outfl', '')
        e(f"buffer_store_dwordx4 v[100:103], v{VOUT}, {sr(SRD_T)}, s21 offen {fl}\nbuffer_store_dwordx4 v[104:107], v{VOUT}, {sr(SRD_T)}, s21 offen offset:16 {fl}\nbuffer_store_dwordx2 v[108:109], v{VOUT}, {sr(SRD_T)}, s21 offen offset:32 {fl}")
        pst(43)
        if opt.get('steps'):
            e("s_waitcnt vmcnt(0)"); pst(44)
            e(f"s_lshl_b32 s70, s2, 2\ns_add_u32 s70, s70, s{S_WV}\ns_lshl_b32 s70, s70, 8\ns_add_u32 s70, s70, 0xF00000\nv_lshlrev_b32 v2, 2, v0\nbuffer_store_dword v9, v2, {sr(SRD_WS)}, s70 offen\ns_waitcnt vmcnt(0)")
        e.stamps_out()
        e("s_endpgm")
    S.run = run
    return S

def c_wave(e, D):
    XREG = 224; RING = 192; VXA = [246, 247]; AT = [240, 241]
    VZ, VL16 = 242, 243
    if not e.opt.get('x0', False):
        x_setup(e, [128, 129])
        e("s_waitcnt lgkmcnt(0)")
        e.srd(SRD_X, S_X, 2048*1280)
        for t, x in dma_x_ops([128, 129], 0, 0) + dma_x_ops([128, 129], 0, 1): e(x)
    e.fstamp(8)
    e.srd(SRD_T, S_B1, 3456)
    e(f"s_lshl_b32 s76, s{S_J}, 7\ns_mul_i32 s77, s{S_J}, 320\ns_add_u32 s77, s77, 1024\ns_cmp_eq_u32 s{S_ISQ}, 1\ns_cselect_b32 s76, s77, s76\ns_cselect_b32 s77, s77, {OOB}\nv_lshrrev_b32 v132, 4, v0\nv_lshlrev_b32 v132, 3, v132")
    for t in range(10): e(f"buffer_load_dwordx2 {vr(136+2*t,2)}, v132, {sr(SRD_T)}, s{76 if t < 4 else 77} offen offset:{32*t}")
    e.fstamp(6)
    e("v_lshrrev_b32 v1, 4, v0\nv_bfe_u32 v2, v0, 2, 2\nv_and_b32 v3, 3, v0")
    e("v_and_b32 v5, 1, v1\nv_lshl_add_u32 v4, v5, 2, v2\nv_lshrrev_b32 v6, 1, v1\nv_lshlrev_b32 v6, 13, v6")
    e(f"s_lshl_b32 s76, s{S_WV}, 5\nv_and_b32 v7, 15, v0\nv_add_u32 v7, s76, v7")
    e(f"v_lshrrev_b32 v128, 1, v7\nv_xor_b32 v128, v128, v1\nv_and_b32 v128, 7, v128\nv_lshlrev_b32 v128, 4, v128\nv_lshl_add_u32 v128, v7, 7, v128")
    e(f"v_add_u32 v{VXA[0]}, {XBASE}, v128\nv_xor_b32 v{VXA[1]}, 64, v{VXA[0]}")
    e(f"v_mul_u32_u24 v128, 160, v4\nv_mul_u32_u24 v129, 40, v3\nv_add3_u32 v{AT[0]}, v128, v129, v6\nv_add_u32 v{AT[1]}, {3*WSLOT}, v{AT[0]}")
    e(f"v_mov_b32 v{VZ}, 0\nv_lshlrev_b32 v{VL16}, 4, v0\nv_mov_b32 v128, 0\nv_mov_b32 v129, 0\nv_mov_b32 v130, 0\nv_mov_b32 v131, 0")
    e(f"s_lshl_b32 s76, s{S_WV}, 9\ns_add_u32 s76, s76, {ZERO_LDS}\nv_lshl_add_u32 v132, v0, 3, s76\nds_write_b64 v132, v[128:129]")
    e(f"v_lshlrev_b32 v132, 2, v0\nv_add_u32 v132, {CNT_LDS}, v132\nds_write_b32 v132, v128")
    VPH = 244
    e(f"v_mul_u32_u24 v132, 800, v3\nv_mul_u32_u24 v133, 40, v2\nv_add3_u32 v132, v132, v133, s76\nv_cmp_eq_u32 vcc, v1, v3\ns_add_u32 s77, s76, {-WPHI_LDS & 0xffffffff}")
    e(f"v_subrev_u32 v132, s77, v132\nv_mov_b32 v133, {ZERO_LDS}\nv_cndmask_b32 v{VPH}, v133, v132, vcc")
    e(f"s_mov_b32 s{S_C2}, {f2u(GC2)}\ns_mov_b32 s{S_C2+1}, {f2u(GC2)}\ns_mov_b32 s{S_L}, {f2u(LOG2E)}\ns_mov_b32 s{S_L+1}, {f2u(LOG2E)}")
    e("s_waitcnt lgkmcnt(0)")
    e.srd(SRD_WS, S_WS, WS_SIZE)
    S_HO, S_HFL, S_KFL = 12, 72, 74
    e(f"s_lshl_b32 s76, s{S_RB}, 1\ns_lshr_b32 s77, s{S_WV}, 1\ns_add_u32 s15, s76, s77")
    e(f"s_lshl_b32 s76, s{S_RB}, 11\ns_lshr_b32 s77, s{S_J}, 1\ns_lshl_b32 s77, s77, 2\ns_add_u32 s76, s76, s77\ns_add_u32 s76, s76, {WS_FL + FL_H*128}"); e.wsptr(S_HFL, "s76")
    e(f"s_lshl_b32 s76, s{S_J}, 11\ns_add_u32 s76, s76, {WS_FL + FL_KV*128}"); e.wsptr(S_KFL, "s76")
    S_GO = 3
    e(f"s_lshl_b32 s76, s{S_J}, 13\ns_lshl_b32 s77, s{S_RB}, 9\ns_add_u32 s76, s76, s77\ns_lshl_b32 s77, s{S_WV}, 7\ns_add_u32 s76, s76, s77\ns_add_u32 s{S_GO}, s76, {WS_G}")
    def after_bar0(): e.stamp(2)
    def bias_init(nu, hacc, zero_lo, zero_hi):
        e.fstamp(7)
        for i in list(range(*zero_lo)) + list(range(*zero_hi)): e(f"v_mov_b32 v{i}, 0")
        e("s_waitcnt vmcnt(0)")
        for t in range(nu):
            for m in range(2):
                a = hacc + 8*t + 4*m
                e(f"v_lshlrev_b32 v{a}, 16, v{136+2*t}\nv_and_b32 v{a+1}, 0xffff0000, v{136+2*t}\nv_lshlrev_b32 v{a+2}, 16, v{137+2*t}\nv_and_b32 v{a+3}, 0xffff0000, v{137+2*t}")
        e.stamp(1)
    C1 = 128; T = 130; PK = 140
    def gelu_steps(hacc, nsteps, PK, VL16, skip_from=None, mid=None):
        e(f"v_mov_b32 v{C1}, {f2u(GC1)}\nv_mov_b32 v{C1+1}, {f2u(GC1)}")
        Ls = e.lab("L_hskip")
        for i in range(nsteps):
            if i == skip_from: e(f"s_cmp_eq_u32 s{S_J}, 7\ns_cbranch_scc1 {Ls}")
            for m in range(2):
                d = PK + 4*((2*i + m) % 4)
                a0 = hacc + 16*i + 4*m; a1 = a0 + 8
                gelu_pack(e, [(a0, d), (a0+2, d+1), (a1, d+2), (a1+2, d+3)], T, C1)
                e(f"buffer_store_dwordx4 {vr(d)}, v{VL16}, {sr(SRD_WS)}, s{S_HO} offen offset:{1024*m} sc1")
            e(f"s_add_u32 s{S_HO}, s{S_HO}, 4096")
            if mid and i == 0: mid()
        e(f"{Ls}:")
    WF_ = 140
    QP = 192
    TAG = e.opt.get('tag', False); NB = [32, 33, 35, 13]
    def nonce_get(): e(f"v_mov_b32 v138, {CNT_LDS + 4*20}\nds_read_b32 v139, v138")
    nonce_fill = f"v_readfirstlane_b32 s{NB[0]}, v139\ns_nop 1\ns_lshr_b32 s{NB[1]}, s{NB[0]}, 8\ns_lshr_b32 s{NB[2]}, s{NB[0]}, 16\ns_lshr_b32 s{NB[3]}, s{NB[0]}, 24"
    def tag_check(regs, acc_, lanes, D):
        for n, r in enumerate(regs):
            if n == 0: e(f"v_xor_b32 v{acc_}, s{NB[0]}, v{r}")
            else: e(f"v_bitop3_b32 v{acc_}, v{r}, s{NB[n % 4]}, v{acc_} bitop3:0xbe")
        e(f"v_and_b32 v{acc_}, 0xff, v{acc_}\nv_cmp_ne_u32 vcc, 0, v{acc_}\ns_and_b64 vcc, vcc, {lanes}\ns_cbranch_scc0 {D}")
    PHR = [f"ds_read_b64_tr_b16 {vr(WF_ + 10*tau + 2*t, 2)}, v{VPH} offset:{160*t + 8*tau}" for tau in range(5) for t in range(5)]
    def phi_stage(P, fill=()):
        for m in range(2):
            for t in range(5):
                a = 8 + 8*t + 4*m
                e(f"v_cvt_pk_bf16_f32 v{QP+10*m+2*t}, v{a}, v{a+1}\nv_cvt_pk_bf16_f32 v{QP+10*m+2*t+1}, v{a+2}, v{a+3}")
        e("s_waitcnt lgkmcnt(0)")
        mf = []
        for ks in range(3):
            for m in range(2):
                for tau in range(5):
                    d = vr(P + 20*m + 4*tau); c = "0" if ks == 0 else d
                    if ks < 2: mf.append(f"v_mfma_f32_16x16x32_bf16 {d}, {vr(WF_+10*tau+4*ks)}, {vr(QP+10*m+4*ks)}, {c}")
                    else: mf.append(f"v_mfma_f32_16x16x16_bf16 {d}, {vr(WF_+10*tau+8,2)}, {vr(QP+10*m+8,2)}, {c}")
        weave(e, mf, fill)
    e(f"s_cmp_eq_u32 s{S_ISQ}, 1\ns_cbranch_scc1 L_CQ")
    AH = [[248, 249], [250, 251], [252, 253], [254, 255]]; AG = [190, 191]
    e("v_lshrrev_b32 v128, 1, v4\nv_lshlrev_b32 v129, 7, v4\nv_lshl_add_u32 v129, v3, 3, v129\nv_add_u32 v129, v129, v6")
    for t in range(4): e(f"v_xor_b32 v130, {t}, v128\nv_lshl_add_u32 v{AH[t][0]}, v130, 5, v129\nv_add_u32 v{AH[t][1]}, {3*WSLOT}, v{AH[t][0]}")
    e(f"v_lshlrev_b32 v{AG[0]}, 4, v1\nv_add_u32 v{AG[1]}, {3*WSLOT}, v{AG[0]}")
    e(f"s_mul_i32 s76, s15, 54\ns_lshl_b32 s77, s{S_J}, 1\ns_add_u32 s76, s76, s77\ns_lshl_b32 s76, s76, 12\ns_and_b32 s77, s{S_WV}, 1\ns_lshl_b32 s77, s77, 11\ns_add_u32 s{S_HO}, s76, s77")
    bias_init(4, 88, (8, 88), (120, 128))
    c_main_loop(e, [Unit(AT, 8*t, 8 + 8*t) for t in range(5)] + [Unit(AT, 1280 + 8*t, 48 + 8*t) for t in range(5)]
                + [Unit(AH[t], 3072, 88 + 8*t) for t in range(4)] + [Unit(AG, 2560, 120, gate=True)], XREG, VXA, RING, D, after_bar0, PHR)
    e.stamp(3)
    if e.opt.get('cprio'): e(f"s_setprio {e.opt['cprio']}")
    e(f"v_mov_b32 v4, 0\nv_mov_b32 v5, v{VL16}")
    VZ0, VL0 = VZ, VL16; VZ, VL16 = 4, 5
    e.busy(1, 136, 137, 'k'); e.lpost(8, 136, 137)
    P = 212; RV = [8, 20]; RP = [140, 160]; EE = 192; XX = 128; AW = 32; AR = 40; AA = [45, 46, 47]
    F = []; f = F.append
    if TAG: nonce_get(); f(nonce_fill)
    f(f"v_mov_b32 v138, {EXCH_H3 // 16384}\nv_and_b32 v136, 15, v0\ns_lshl_b32 s76, s{S_WV}, 5\nv_add_u32 v136, s76, v136\nv_cmp_eq_u32 vcc, 3, v1\nv_lshlrev_b32 v136, 7, v136\nv_and_b32 v139, 7, v0\nv_cndmask_b32 v137, v1, v138, vcc\nv_lshlrev_b32 v139, 4, v139\nv_lshl_add_u32 v136, v137, 14, v136")
    for m in range(2):
        for t in range(5):
            a = 48 + 8*t + 4*m
            f(f"v_cvt_pk_bf16_f32 v{RV[m]+2*t}, v{a}, v{a+1}\nv_cvt_pk_bf16_f32 v{RV[m]+1+2*t}, v{a+2}, v{a+3}")
        f(f"v_mov_b32 v{RV[m]+10}, 0x3f80\nv_mov_b32 v{RV[m]+11}, 0")
    for i in range(8): f(f"v_xor_b32 v{AW+i}, {16*i}, v139\nv_add_u32 v{AW+i}, v{AW+i}, v136")
    f("\n".join(f"v_mul_f32 v{130+m}, {f2u(-LOG2E)}, v{120+4*m}" for m in range(2)))
    f("\n".join(f"v_exp_f32 v{130+m}, v{130+m}" for m in range(2)))
    f("\n".join(f"v_add_f32 v{130+m}, 1.0, v{130+m}" for m in range(2)))
    f("\n".join(f"v_rcp_f32 v{130+m}, v{130+m}" for m in range(2)) + "\nv_lshlrev_b32 v132, 2, v0")
    phi_stage(P, F)
    e(f"s_mov_b64 exec, 0xffff")
    for m in range(2): e(f"buffer_store_dword v{130+m}, v132, {sr(SRD_WS)}, s{S_GO} offen offset:{64*m} sc1")
    e("s_mov_b64 exec, -1")
    e.stamp(4)
    softmax2(e, P, EE, RP[0], XX, fill=[f"ds_write_b128 v{AW+5+i}, {vr(RV[m]+4*i)} offset:{2048*m}" for m in range(2) for i in range(3)],
             wr=lambda i: e(f"ds_write_b128 v{AW+i}, {vr(RP[0]+4*i)}"))
    e(f"v_lshl_add_u32 v136, v1, 2, v2\nv_and_b32 v137, 7, v136\nv_lshlrev_b32 v136, 7, v136\ns_lshl_b32 s76, s{S_WV}, 14\ns_cmp_eq_u32 s{S_WV}, 3\ns_cmov_b32 s76, {EXCH_H3}\nv_and_b32 v138, 1, v3\nv_lshl_add_u32 v136, v138, 3, v136\nv_add_u32 v136, s76, v136\nv_lshrrev_b32 v138, 1, v3")
    for i, c0 in enumerate([0, 2, 4, 5]): e(f"v_add_u32 v{AR+i}, {c0}, v138\nv_xor_b32 v{AR+i}, v{AR+i}, v137\nv_lshl_add_u32 v{AR+i}, v{AR+i}, 4, v136")
    e(f"v_xor_b32 v{AR+4}, 7, v137\nv_lshl_add_u32 v{AR+4}, v{AR+4}, 4, v136")
    e(f"v_mov_b32 v136, {OOB}\nv_and_b32 v137, 15, v0\nv_cmp_gt_u32 vcc, 32, v0\nv_cndmask_b32 v{AA[0]}, v136, v{VL16}, vcc\nv_cmp_gt_u32 vcc, 5, v137\nv_cndmask_b32 v{AA[1]}, v136, v{VL16}, vcc\nv_cndmask_b32 v{AA[2]}, v136, v{AA[0]}, vcc")
    e(f"s_lshl_b32 s76, s{S_J}, 6\ns_add_u32 s76, s76, s{S_WV}\ns_mul_i32 s76, s76, 6144\ns_add_u32 s4, s76, {WS_KP}\ns_mul_i32 s76, s{S_RB}, 24576\ns_add_u32 s5, s4, s76\ns_add_u32 s6, s5, 4096")
    softmax2(e, P + 20, EE, RP[1], XX, wr=lambda i: e(f"ds_write_b128 v{AW+i}, {vr(RP[1]+4*i)} offset:2048"))
    e.stamp(5)
    e.busy(1, 136, 137, 'a')
    e.lsync(1, 136, 137)
    e.stamp(6)
    FR = lambda st: (48 + 20*st) if st < 2 else (140 + 20*(st - 2))
    KD = 212
    rd = [f"ds_read_b64_tr_b16 {vr(FR(st) + 4*i + 2*h, 2)}, v{AR+i} offset:{4096*st + 2048*h}" for st in range(4) for i in range(5) for h in range(2)]
    for x in rd[:14]: e(x)
    nxt = 14
    for st in range(4):
        need = 10*(st + 1)
        while nxt < need: e(rd[nxt]); nxt += 1
        e(f"s_waitcnt lgkmcnt({nxt - need})")
        for U in range(2):
            for Tt in range(3):
                d = vr(KD + 12*U + 4*Tt)
                e(f"v_mfma_f32_16x16x32_bf16 {d}, {vr(FR(st)+4*Tt)}, {vr(FR(st)+12+4*U)}, {'0' if st == 0 else d}")
                for _ in range(2):
                    if nxt < min(40, need + 14): e(rd[nxt]); nxt += 1
    e.lpost(12, 136, 137)
    if TAG:
        e(f"s_mul_i32 s76, s{S_RB}, 14\nv_and_b32 v14, 15, v0\nv_add_u32 v8, s76, v14\nv_mul_u32_u24 v9, 3121, v8\nv_lshrrev_b32 v9, 16, v9\nv_mul_u32_u24 v10, 21, v9\nv_sub_u32 v10, v8, v10\nv_mov_b32 v15, 0xff")
        for r in range(24): e(f"v_bfi_b32 v{KD + r}, v15, s{NB[r % 4]}, v{KD + r}")
        for Tt in range(3):
            for U in range(2):
                av = [[VL16, AA[1]], [VL16, AA[1]], [AA[0], AA[2]]][Tt][U]; ti = 2*Tt + U
                e(f"buffer_store_dwordx4 {vr(KD + 12*U + 4*Tt)}, v{av}, {sr(SRD_WS)}, s{5 if ti < 4 else 6} offen offset:{1024*(ti % 4)} sc1")
        e(f"v_lshrrev_b32 v11, 2, v9\nv_lshrrev_b32 v12, 4, v10\nv_lshl_add_u32 v11, v11, 1, v12\nv_and_b32 v12, 3, v9\nv_and_b32 v13, 15, v10\nv_lshl_add_u32 v12, v12, 4, v13\nv_lshlrev_b32 v12, 4, v12\nv_lshl_add_u32 v11, v11, 10, v12")
        e(f"v_mul_u32_u24 v12, 24576, v1\nv_add_u32 v11, v11, v12\nv_cmp_gt_u32 s[68:69], 14, v14\nv_cmp_gt_u32 vcc, 210, v8\ns_and_b64 s[68:69], vcc, s[68:69]\nv_mov_b32 v13, {OOB}\nv_cndmask_b32 v11, v13, v11, s[68:69]")
        SL = 16
        def loads():
            for i in range(4): e(f"s_add_u32 s76, s4, {4*24576*i}\nbuffer_load_dwordx4 {vr(SL + 4*i)}, v11, {sr(SRD_WS)}, s76 offen sc1")
        e(f"s_lshl_b32 s76, s{S_WV}, 9\ns_add_u32 s{S_KFL}, s{S_KFL}, s76\ns_addc_u32 s{S_KFL+1}, s{S_KFL+1}, 0")
        for i in range(4): e(f"s_mov_b32 s{16+i}, 1\ns_atomic_add s{16+i}, s[{S_KFL}:{S_KFL+1}], {(FL_KP - FL_KV)*128 + 128*i} glc")
        e(f"v_lshlrev_b32 v12, 4, v8\ns_and_b64 vcc, s[68:69], 0xffff\nv_cndmask_b32 v12, v13, v12, vcc")
        e(f"s_lshl_b32 s76, s{S_J}, 2\ns_add_u32 s76, s76, s{S_WV}\ns_lshl_b32 s76, s76, 12\ns_add_u32 s7, s76, {WS_KV}")
        e(f"s_lshl_b32 s76, s{S_J}, 4\ns_add_u32 s76, s76, s{S_RB}\ns_lshl_b32 s76, s76, 7\ns_add_u32 s76, s76, {WS_FL + FL_KP*128}"); e.wsptr(70, "s76")
        e.stamp(7)
        gelu_steps(88, 2, 192, VL16)
        e.lpoll(19, 70, 34, 16, 136, 137)
        Lp = e.lab("L_tp"); Lv = e.lab("L_tv")
        e(f"s_mov_b32 s79, 0\n{Lp}:")
        loads(); e("s_waitcnt vmcnt(0)")
        tag_check(list(range(SL, SL + 16)), 32, "s[68:69]", Lv)
        e(f"s_add_u32 s79, s79, 1\ns_cmp_ge_u32 s79, 0x100000\ns_cbranch_scc1 L_end\ns_sleep {e.opt.get('slt', 2)}\ns_branch {Lp}\n{Lv}:")
        e.busy(-1, 136, 137, 'a'); e.busy(-1, 136, 137, 'k')
        e.stamp(8)
        for r in range(16): e(f"v_and_b32 v{SL+r}, 0xffffff00, v{SL+r}")
        for r in (0, 2): e(f"v_pk_add_f32 {vr(SL+r,2)}, {vr(SL+r,2)}, {vr(SL+4+r,2)}\nv_pk_add_f32 {vr(SL+8+r,2)}, {vr(SL+8+r,2)}, {vr(SL+12+r,2)}")
        for r in (0, 2): e(f"v_pk_add_f32 {vr(SL+r,2)}, {vr(SL+r,2)}, {vr(SL+8+r,2)}")
        for op in ("v_permlane32_swap_b32", "v_permlane16_swap_b32"):
            for r in range(4): e(f"v_mov_b32 v{SL+4+r}, v{SL+r}")
            for r in range(4): e(f"{op} v{SL+4+r}, v{SL+r}")
            for r in (0, 2): e(f"v_pk_add_f32 {vr(SL+r,2)}, {vr(SL+r,2)}, {vr(SL+4+r,2)}")
        for r in range(4): e(f"v_bfi_b32 v{SL + r}, v15, s{NB[r]}, v{SL + r}")
        e(f"buffer_store_dwordx4 {vr(SL)}, v12, {sr(SRD_WS)}, s7 offen sc1")
        if e.opt.get('hd'): e(f"s_sleep {e.opt['hd']}")
        for i in range(4): e(f"s_mov_b32 s{20+i}, 1\ns_atomic_add s{20+i}, s[{S_KFL}:{S_KFL+1}], {128*i} glc")
        e.arrive(0, 136, 137, e.signal(S_HFL, 4))
    else:
        e(f"s_mul_i32 s76, s{S_RB}, 14\nv_add_u32 v8, s76, v0\nv_mul_u32_u24 v9, 3121, v8\nv_lshrrev_b32 v9, 16, v9\nv_mul_u32_u24 v10, 21, v9\nv_sub_u32 v10, v8, v10")
        e(f"v_lshrrev_b32 v11, 2, v9\nv_lshrrev_b32 v12, 4, v10\nv_lshl_add_u32 v11, v11, 1, v12\nv_and_b32 v12, 3, v9\nv_and_b32 v13, 15, v10\nv_lshl_add_u32 v12, v12, 4, v13\nv_lshlrev_b32 v12, 4, v12\nv_lshl_add_u32 v11, v11, 10, v12")
        for Tt in range(3):
            for U in range(2):
                av = [[VL16, AA[1]], [VL16, AA[1]], [AA[0], AA[2]]][Tt][U]; ti = 2*Tt + U
                e(f"buffer_store_dwordx4 {vr(KD + 12*U + 4*Tt)}, v{av}, {sr(SRD_WS)}, s{5 if ti < 4 else 6} offen offset:{1024*(ti % 4)} sc1")
        e(f"v_mul_u32_u24 v12, 24, v9\nv_add_lshl_u32 v12, v12, v10, 3\nv_cmp_gt_u32 s[76:77], 14, v0\nv_cmp_gt_u32 vcc, 210, v8\ns_and_b64 vcc, vcc, s[76:77]\nv_mov_b32 v13, {OOB}\nv_cndmask_b32 v11, v13, v11, vcc\nv_cndmask_b32 v12, v13, v12, vcc")
        e(f"s_lshl_b32 s76, s{S_J}, 2\ns_add_u32 s76, s76, s{S_WV}\ns_lshl_b32 s76, s76, 11\ns_add_u32 s7, s76, {WS_KV}")
        e(f"s_add_u32 s68, s{S_KFL}, {(FL_KP - FL_KV)*128}\ns_addc_u32 s69, s{S_KFL+1}, 0")
        e.stamp(7)
        def mid(): e("s_waitcnt vmcnt(2)"); e.busy(-1, 136, 137, 'a'); e.busy(-1, 136, 137, 'k'); e.arrive(2, 136, 137, e.signal(68))
        gelu_steps(88, 2, 192, VL16, mid=mid)
        e(f"s_lshl_b32 s76, s{S_RB}, 7\ns_add_u32 s68, s68, s76\ns_addc_u32 s69, s69, 0")
        e.busy(1, 136, 137, 'b')
        if e.opt.get('lead', True): e.lpoll(19, 68, 34, 16, 136, 137)
        else: e.spoll(68, [34], sleep=e.opt.get('slk', 1), least=16)
        e.busy(1, 136, 137, 'B')
        e.stamp(8)
        SL = 16
        for p in range(16): e(f"buffer_load_dwordx4 {vr(SL + 4*p)}, v11, {sr(SRD_WS)}, s4 offen sc1\ns_add_u32 s4, s4, 24576")
        e("s_waitcnt vmcnt(16)")
        e.arrive(0, 136, 137, e.signal(S_HFL, 4))
        for p in range(1, 16):
            if p in (1, 4, 8, 12): e(f"s_waitcnt vmcnt({ {1: 12, 4: 8, 8: 4, 12: 0}[p] })")
            e(f"v_pk_add_f32 {vr(SL,2)}, {vr(SL,2)}, {vr(SL+4*p,2)}\nv_pk_add_f32 {vr(SL+2,2)}, {vr(SL+2,2)}, {vr(SL+4*p+2,2)}")
        e(f"v_cvt_pk_bf16_f32 v14, v{SL}, v{SL+1}\nv_cvt_pk_bf16_f32 v15, v{SL+2}, v{SL+3}\nbuffer_store_dwordx2 v[14:15], v12, {sr(SRD_WS)}, s7 offen sc1")
        e("s_waitcnt vmcnt(0)"); e.busy(-1, 136, 137, 'b'); e.busy(-1, 136, 137, 'B')
        e.arrive(4, 136, 137, e.signal(S_KFL))
    e.stamps_out()
    e("s_endpgm")
    VZ, VL16 = VZ0, VL0
    e("L_CQ:")
    AE, AO = [248, 249], [250, 251]
    e(f"v_mul_u32_u24 v128, 320, v4\nv_lshl_add_u32 v128, v3, 3, v128\nv_add_u32 v128, v128, v6\nv_lshlrev_b32 v129, 5, v5")
    e(f"v_add_u32 v{AE[0]}, v128, v129\nv_sub_u32 v{AO[0]}, v128, v129\nv_add_u32 v{AO[0]}, 32, v{AO[0]}\nv_add_u32 v{AE[1]}, {3*WSLOT}, v{AE[0]}\nv_add_u32 v{AO[1]}, {3*WSLOT}, v{AO[0]}")
    e(f"s_mul_i32 s76, s15, 54\ns_mul_i32 s77, s{S_J}, 5\ns_add_u32 s76, s76, s77\ns_add_u32 s76, s76, 16\ns_lshl_b32 s76, s76, 12\ns_and_b32 s77, s{S_WV}, 1\ns_lshl_b32 s77, s77, 11\ns_add_u32 s{S_HO}, s76, s77")
    bias_init(10, 48, (8, 48), (0, 0))
    c_main_loop(e, [Unit(AT, 8*t, 8 + 8*t) for t in range(5)] + [Unit(AE if t % 2 == 0 else AO, 1280 + 32*(t - t % 2), 48 + 8*t) for t in range(10)],
                XREG, VXA, RING, D, after_bar0, PHR)
    e.stamp(3)
    if e.opt.get('cprio'): e(f"s_setprio {e.opt['cprio']}")
    e.busy(1, 136, 137, 'd'); e.lpost(8, 136, 137); e.lpost(12, 136, 137)
    gelu_steps(48, 5, 212, VL16, skip_from=3)
    e.busy(-1, 136, 137, 'd')
    e.stamp(4)
    P = 88
    F = []; f = F.append
    if TAG:
        nonce_get(); f(nonce_fill)
        f(f"s_lshl_b32 s77, s{S_WV}, 11\ns_add_u32 s77, s77, {KVT}")
        for t in range(4):
            f(f"v_add_u32 v68, {64*t}, v0\nv_mul_u32_u24 v69, 3121, v68\nv_lshrrev_b32 v69, 16, v69\nv_mul_u32_u24 v69, 3, v69\nv_add_u32 v69, v69, v68\nv_lshl_add_u32 v{232+t}, v69, 3, s77")
    f(f"v_lshlrev_b32 v68, 11, v1\nv_add_u32 v68, {KVT}, v68\nv_cmp_eq_u32 vcc, v1, v2\nv_lshl_add_u32 v69, v3, 3, v68\nv_mov_b32 v70, {ZERO_LDS}\nv_cndmask_b32 v240, v70, v69, vcc\nv_cndmask_b32 v239, v70, v68, vcc")
    f(f"v_and_b32 v241, 15, v0\nv_lshlrev_b32 v241, 2, v241")
    phi_stage(P, F)
    PHI = [192, 212]
    hq = e.opt.get('hq', 0)
    def hsig(D):
        e.signal(S_HFL)(D); e(f"s_cmp_lg_u32 s{S_J}, 5\ns_cbranch_scc1 {D}\ns_waitcnt lgkmcnt(0)"); e.signal(S_HFL, 1)(D)
    def harr(): e("s_waitcnt vmcnt(0)"); e.arrive(0, 136, 137, hsig); e.stamp(5)
    for m in range(2):
        if m == hq: harr()
        softmax2(e, P + 20*m, 48, PHI[m], 128)
    e(f"s_lshl_b32 s76, s{S_J}, 2\ns_add_u32 s76, s76, s{S_WV}\ns_lshl_b32 s76, s76, {12 if TAG else 11}\ns_add_u32 s4, s76, {WS_KV}\ns_lshl_b32 s76, s{S_WV}, 11\ns_add_u32 m0, s76, {KVT}\nv_min_u32 v236, 272, v{VL16}")
    e(f"s_lshl_b32 s76, s15, 3\ns_add_u32 s76, s76, s{S_J}\ns_mul_i32 s76, s76, 10240\ns_add_u32 s76, s76, {WS_OF}\ns_and_b32 s77, s{S_WV}, 1\ns_lshl_b32 s5, s77, 11\ns_add_u32 s5, s5, s76\ns_lshl_b32 s6, s77, 10\ns_add_u32 s6, s6, s76\ns_add_u32 s6, s6, 8192\ns_add_u32 s7, s5, 4096")
    e.stamp(6)
    e(f"s_lshl_b32 s76, s{S_RB}, 7\ns_add_u32 s{S_KFL}, s{S_KFL}, s76\ns_addc_u32 s{S_KFL+1}, s{S_KFL+1}, 0")
    if e.opt.get('lead', True): e.lpoll(19, S_KFL, 34, 16, 136, 137)
    else: e.spoll(S_KFL, [34], sleep=e.opt.get('slk', 1), least=16)
    e.stamp(7)
    if e.opt.get('oprio', 3): e(f"s_setprio {e.opt.get('oprio', 3)}")
    if TAG:
        e.busy(1, 136, 137, 'c')
        Lp = e.lab("L_tq"); Lv = e.lab("L_tqv")
        e(f"s_mov_b32 s79, 0\ns_mov_b64 s[68:69], -1\n{Lp}:")
        for t in range(4): e(f"buffer_load_dwordx4 {vr(64+4*t)}, v{VL16 if t < 3 else 236}, {sr(SRD_WS)}, s4 offen offset:{1024*t} sc1")
        e("s_waitcnt vmcnt(0)")
        tag_check(list(range(64, 80)), 80, "s[68:69]", Lv)
        e(f"s_add_u32 s79, s79, 1\ns_cmp_ge_u32 s79, 0x100000\ns_cbranch_scc1 L_end\ns_sleep {e.opt.get('slt', 2)}\ns_branch {Lp}\n{Lv}:")
        if e.opt.get('cnt'): e(f"s_mov_b32 s96, s79\ns_add_u32 s96, s96, s80")
        for m in range(2): e(f"buffer_load_dword v{62+m}, v241, {sr(SRD_WS)}, s{S_GO} offen offset:{64*m} sc1")
        for t in range(4):
            for r in range(4): e(f"v_and_b32 v{64+4*t+r}, 0xffffff00, v{64+4*t+r}")
            e(f"v_cvt_pk_bf16_f32 v{80+2*t}, v{64+4*t}, v{65+4*t}\nv_cvt_pk_bf16_f32 v{81+2*t}, v{66+4*t}, v{67+4*t}")
            if t == 3: e("s_mov_b64 exec, 0x3ffff")
            e(f"ds_write_b64 v{232+t}, {vr(80+2*t,2)}")
        e("s_mov_b64 exec, -1")
        e.lsync(1, 136, 137)
    else:
        for t in range(2): e(f"buffer_load_dwordx4 v{VL16}, {sr(SRD_WS)}, s4 offen offset:{1024*t} sc1 lds")
        e.busy(1, 136, 137, 'c')
        for m in range(2): e(f"buffer_load_dword v{62+m}, v241, {sr(SRD_WS)}, s{S_GO} offen offset:{64*m} sc1")
        e("s_waitcnt vmcnt(2)")
        e.lsync(1, 136, 137)
    AF = 64
    seq = [5, 0, 1, 2, 3, 4]
    rd = [f"ds_read2_b64 {vr(AF + 20*n_ + 4*kp)}, v{240 if u < 5 else 239} offset0:{48*kp + 4*u} offset1:{48*kp + 4*u + 24}" for n_, u in enumerate(seq) for kp in range(5)]
    for x in rd[:10]: e(x)
    nxt = 10
    OD = 8
    for n_, u in enumerate(seq):
        e(f"s_waitcnt lgkmcnt({nxt - 5*(n_+1)})")
        F = []
        for _ in range(5):
            if nxt < 30: F.append(rd[nxt]); nxt += 1
        if n_ == 2:
            F.append("s_waitcnt vmcnt(0)")
            F += [f"v_add_f32 v{56+2*m}, {f2u(1e-6)}, v{OD+40+4*m}" for m in range(2)] + [f"v_rcp_f32 v{56+2*m}, v{56+2*m}" for m in range(2)] + [f"v_mul_f32 v{56+2*m}, v{56+2*m}, v{62+m}" for m in range(2)]
        if n_ >= 4:
            for uu in ([0, 1] if n_ == 4 else [2]):
                for m in range(2):
                    a = OD + 8*uu + 4*m
                    F += [f"v_mul_f32 v{a+r}, v{56+2*m}, v{a+r}" for r in range(4)]
                    F += [f"v_cvt_pk_bf16_f32 v{232+8*0 + 0}, v{a}, v{a+1}".replace(f"v{232}", f"v{[184,188][m] + 2*uu if uu < 2 else [244,248][m]}"),
                          f"v_cvt_pk_bf16_f32 v{([184,188][m] + 2*uu if uu < 2 else [244,248][m]) + 1}, v{a+2}, v{a+3}"]
        weave(e, [f"v_mfma_f32_16x16x32_bf16 {vr(OD + 8*u + 4*m)}, {vr(AF + 20*n_ + 4*kp)}, {vr(PHI[m] + 4*kp)}, {'0' if kp == 0 else vr(OD + 8*u + 4*m)}" for kp in range(5) for m in range(2)], F)
        if n_ == 4:
            for m in range(2): e(f"buffer_store_dwordx4 {vr([184,188][m])}, v{VL16}, {sr(SRD_WS)}, s5 offen offset:{1024*m} sc1")
    for uu in (3, 4):
        for m in range(2):
            a = OD + 8*uu + 4*m
            e(f"v_pk_mul_f32 {vr(a,2)}, {vr(a,2)}, {vr(56+2*m,2)} op_sel_hi:[1,0]\nv_pk_mul_f32 {vr(a+2,2)}, {vr(a+2,2)}, {vr(56+2*m,2)} op_sel_hi:[1,0]")
            d = [244, 248][m] + 2 if uu == 3 else 252 + 2*m
            e(f"v_cvt_pk_bf16_f32 v{d}, v{a}, v{a+1}\nv_cvt_pk_bf16_f32 v{d+1}, v{a+2}, v{a+3}")
        if uu == 3:
            for m in range(2): e(f"buffer_store_dwordx4 {vr([244,248][m])}, v{VL16}, {sr(SRD_WS)}, s7 offen offset:{1024*m} sc1")
    e(f"buffer_store_dwordx4 v[252:255], v{VL16}, {sr(SRD_WS)}, s6 offen sc1")
    e.stamp(8)
    e("s_waitcnt vmcnt(0)"); e.busy(-1, 136, 137, 'c'); e.arrive(2, 136, 137, e.signal(S_HFL, 8))
    e.stamps_out()

HEADER = open("gated_mix__linear_kernel_hedgehog__dense_activation_gelu__prompt.s.ref").read().split("; Override launch")[0] if __name__ == "__main__" else ""
if __name__ == "__main__":
    import ast
    kw = ast.literal_eval(sys.argv[2]) if len(sys.argv) > 2 else {}
    open(sys.argv[1], "w").write(HEADER + gen(**kw))
```

```python
import sys
import hazard

NAME = "gated_mix__linear_kernel_hedgehog__dense_activation_gelu__prompt_kernel"
WSLOT = 16384; NW = 5; XBASE = NW*WSLOT; XSLOT = 16384; NX = 3; NSTEP = 20
SPARE = XBASE + NX*XSLOT
ZERO_LDS = SPARE; CNT_LDS = SPARE + 2048; WPHI_LDS = SPARE + 2304; KVT = WPHI_LDS; STG = WPHI_LDS + 8192
EXCH_H3 = XBASE + 2*XSLOT; PARK = 3*WSLOT
B2_LDS = STG + 4*5120
assert B2_LDS + 1024 <= 163840
LDS_TOTAL = 163840
WS_HF = 0; WS_OF = 0x700000; WS_WF = 0xA00000; WS_G = 0xD00000; WS_KV = 0xE00000; WS_FL = 0xE20000; WS_KP = 0x1000000
WS_SIZE = 0x1400000; WS_STAMP = 0x2000000
FL_H, FL_KV, FL_KP, FL_W = 0, 256, 384, 512
NINIT = 32
OOB = 0x40000000
S_X, S_WQKV, S_WPHI, S_WO, S_BX, S_W1, S_B1, S_W2 = 16, 18, 20, 22, 24, 26, 28, 30
S_B2, S_GATE, S_OUT, S_DBG, S_WS = 32, 34, 36, 38, 40
SRD_X, SRD_WS, SRD_T, SRD_D = 44, 48, 52, 56
S_RB, S_J, S_ISQ, S_WAVE, S_PH, S_WV, S_R64, S_CB = 60, 61, 62, 63, 64, 65, 66, 67
S_KK, S_XK, S_XOFF, S_M0X, S_M0W = 68, 69, 4, 5, 6
S_C2, S_L = 8, 10
LOG2E = 1.4426950408889634
import struct, math
def f2u(x): return struct.unpack('<I', struct.pack('<f', x))[0]
GC1 = -2.0 * LOG2E * math.sqrt(2.0 / math.pi); GC2 = GC1 * 0.044715

def vr(b, n=4): return f"v[{b}:{b+n-1}]" if n > 1 else f"v{b}"
def sr(b, n=4): return f"s[{b}:{b+n-1}]"

class G:
    def __init__(self, diag=False, **opt):
        self.L = []; self.diag = diag; self.opt = opt; self.nlab = 0
    def __call__(self, s): self.L.append(s)
    def dsbatch(self, lst):
        for i, x in enumerate(lst):
            if i >= 15 and (i - 15) % 5 == 0: self("s_waitcnt lgkmcnt(10)")
            self(x)
    def lab(self, p="L"): self.nlab += 1; return f"{p}_{self.nlab}"
    def srd(self, R, p, size):
        self(f"s_mov_b32 s{R}, s{p}\ns_mov_b32 s{R+1}, s{p+1}\ns_mov_b32 s{R+2}, {size}\ns_mov_b32 s{R+3}, 0x20000")
    def fstamp(self, i):
        if self.opt.get('fine'): self(f"s_memtime s[{80+2*i}:{81+2*i}]")
    def f2(self, i):
        if self.opt.get('fine2'): self(f"s_waitcnt lgkmcnt(0)\ns_memtime s[{80+2*i}:{81+2*i}]\ns_waitcnt lgkmcnt(0)")
    def stamp(self, i, m=False):
        if self.opt.get('fine') and 3 <= i <= 8: return
        if self.opt.get('fine2') and m: return
        if self.diag and (i == 9 or not self.opt.get('lite')): self(f"s_waitcnt lgkmcnt(0)\ns_memtime s[{80+2*i}:{81+2*i}]\ns_waitcnt lgkmcnt(0)")
    def stamps_out(self):
        if not self.diag: return
        e = self
        e(f"s_waitcnt vmcnt(0) lgkmcnt(0)")
        e.stamp(9)
        e("s_memrealtime s[72:73]\ns_waitcnt lgkmcnt(0)")
        e(f"s_mov_b32 s{SRD_T}, s{S_WS}\ns_mov_b32 s{SRD_T+1}, s{S_WS+1}\ns_mov_b32 s{SRD_T+2}, 0x10000000\ns_mov_b32 s{SRD_T+3}, 0x20000")
        e(f"s_lshl_b32 s70, s2, 3\ns_add_u32 s70, s70, s{S_WAVE}\ns_lshl_b32 s70, s70, 6\ns_add_u32 s70, s70, {WS_STAMP}")
        e("s_mov_b64 exec, 1\nv_mov_b32 v1, 0")
        for i in range(10):
            if i: e(f"s_sub_u32 s71, s{80+2*i}, s80")
            else: e("s_mov_b32 s71, s80")
            e(f"v_mov_b32 v2, s71\nbuffer_store_dword v2, v1, {sr(SRD_T)}, s70 offen offset:{4*i}")
        e(f"v_mov_b32 v2, s100\nbuffer_store_dword v2, v1, {sr(SRD_T)}, s70 offen offset:40\nv_mov_b32 v2, s72\nbuffer_store_dword v2, v1, {sr(SRD_T)}, s70 offen offset:44")
        e("s_waitcnt vmcnt(0)")
        if self.opt.get('dbgrt'):
            e("s_memrealtime s[70:71]\ns_waitcnt lgkmcnt(0)")
            e.srd(SRD_T, S_DBG, 256)
            e(f"v_mov_b32 v2, s70\nbuffer_atomic_umax v2, v1, {sr(SRD_T)}, 0 offen offset:4 sc1")
            e(f"s_not_b32 s71, s100\nv_mov_b32 v2, s71\nbuffer_atomic_umax v2, v1, {sr(SRD_T)}, 0 offen offset:8 sc1")
            for i in range(1, 10):
                e(f"s_sub_u32 s71, s{80+2*i}, s80\ns_cmp_gt_u32 s71, 0x1000000\ns_cmov_b32 s71, 0\nv_mov_b32 v2, s71\nbuffer_atomic_umax v2, v1, {sr(SRD_T)}, 0 offen offset:{8+4*i} sc1")
            e(f"v_mov_b32 v2, s100\nbuffer_atomic_umax v2, v1, {sr(SRD_T)}, 0 offen offset:48 sc1")
            e("s_waitcnt vmcnt(0)")
    def wsptr(self, d, soff):
        self(f"s_add_u32 s{d}, s{S_WS}, {soff}\ns_addc_u32 s{d+1}, s{S_WS+1}, 0")
    def sprobe(self, base, dst):
        for i, d in enumerate(dst): self(f"s_load_dword s{d}, s[{base}:{base+1}], {128*i} glc")
    def spoll(self, base, dst, probed=False, sleep=1, least=None):
        e = self; L = e.lab("L_sp"); C = e.lab("L_spc"); D = e.lab("L_spd")
        e("s_mov_b32 s79, 0")
        if probed: e(f"s_branch {C}") if False else None
        def chk():
            e("s_waitcnt lgkmcnt(0)")
            if least is not None: e(f"s_cmp_ge_u32 s{dst[0]}, {least}")
            elif len(dst) == 1: e(f"s_cmp_lg_u32 s{dst[0]}, 0")
            else:
                for d in dst[1:]: e(f"s_and_b32 s{dst[0]}, s{dst[0]}, s{d}")
            e(f"s_cbranch_scc1 {D}")
        if probed: chk()
        e(f"{L}:"); e.sprobe(base, dst); chk()
        e(f"s_add_u32 s79, s79, 1\ns_cmp_ge_u32 s79, 0x200000\ns_cbranch_scc1 L_end")
        if sleep: e(f"s_sleep {sleep}")
        e(f"s_branch {L}\n{D}:")
    def lpoll(self, cnt, base, d, least, va, vt, probed=False, sleep=0, hp=None):
        e = self; F = e.lab("L_lf"); D = e.lab("L_lpd"); S = e.lab("L_lps"); L = e.lab("L_lpl")
        if hp is not None: e(f"s_setprio {hp[0]}")
        e(f"v_mov_b32 v{va}, {CNT_LDS + 4*cnt}\ns_mov_b32 s79, 0")
        if probed: e(f"s_waitcnt lgkmcnt(0)\ns_cmp_ge_u32 s{d}, {least}\ns_cbranch_scc1 {S}")
        e(f"s_cmp_lg_u32 s{S_WV}, 0\ns_cbranch_scc1 {F}\n{L}:\ns_load_dword s{d}, s[{base}:{base+1}], 0 glc\ns_waitcnt lgkmcnt(0)\ns_cmp_ge_u32 s{d}, {least}\ns_cbranch_scc1 {S}")
        e(f"s_add_u32 s79, s79, 1\ns_cmp_ge_u32 s79, 0x200000\ns_cbranch_scc1 L_end\n" + (f"s_sleep {sleep}\n" if sleep else "") + f"s_branch {L}")
        e(f"{F}:\nds_read_b32 v{vt}, v{va}\ns_waitcnt lgkmcnt(0)\nv_readfirstlane_b32 s78, v{vt}\ns_cmp_lg_u32 s78, 0\ns_cbranch_scc1 {D}")
        e(f"s_add_u32 s79, s79, 1\ns_cmp_ge_u32 s79, 0x1000000\ns_cbranch_scc1 L_end\ns_branch {F}")
        e(f"{S}:\nv_mov_b32 v{vt}, 1\nds_write_b32 v{va}, v{vt}\n{D}:")
        if hp is not None: e(f"s_setprio {hp[1]}")
    def arrive(self, cnt, va, vt, then):
        e = self; D = e.lab("L_arr")
        e(f"s_mov_b64 exec, 1\nv_mov_b32 v{va}, {CNT_LDS + 4*cnt}\nv_mov_b32 v{vt}, 1\nds_add_rtn_u32 v{va}, v{va}, v{vt}\ns_waitcnt lgkmcnt(0)")
        e(f"v_readfirstlane_b32 s78, v{va}\ns_mov_b64 exec, -1\ns_cmp_lg_u32 s78, 3\ns_cbranch_scc1 {D}")
        then(D)
        e(f"{D}:")
    def signal(self, base, word=0):
        def f(D):
            for i in range(16): self(f"s_mov_b32 s{16+i}, 1\ns_atomic_add s{16+i}, s[{base}:{base+1}], {128*i + 4*word} glc")
        return f
    def sfirst(self, base, offs, dst):
        for o, d in zip(offs, dst): self(f"s_load_dword s{d}, s[{base}:{base+1}], {o}")
    def scheck(self, dst, target, srd, soff, vz, vt, vm):
        e = self; D = e.lab("L_sc")
        e("s_waitcnt lgkmcnt(0)")
        for d in dst[1:]: e(f"s_min_u32 s{dst[0]}, s{dst[0]}, s{d}")
        e(f"s_cmp_ge_u32 s{dst[0]}, {target}\ns_cbranch_scc1 {D}\nv_mov_b32 v{vt}, 0")
        e.vpoll(srd, soff, target, vz, vt)
        e(f"{D}:")
    def vpoll(self, srd, soff, target, vz, vt):
        e = self; L = e.lab("L_vp"); D = e.lab("L_vpd")
        e(f"s_mov_b32 s79, 0\n{L}:\nv_cmp_gt_u32 vcc, {target}, v{vt}\ns_cmp_eq_u64 vcc, 0\ns_cbranch_scc1 {D}")
        e(f"s_add_u32 s79, s79, 1\ns_cmp_ge_u32 s79, 0x100000\ns_cbranch_scc1 L_end\ns_sleep 8")
        e(f"buffer_load_dword v{vt}, v{vz}, {sr(srd)}, {soff} offen sc1\ns_waitcnt vmcnt(0)\ns_branch {L}\n{D}:")
    def lpost(self, cnt, va, vt):
        self(f"s_mov_b64 exec, 1\nv_mov_b32 v{va}, {CNT_LDS + 4*cnt}\nv_mov_b32 v{vt}, 1\nds_add_u32 v{va}, v{vt}\ns_mov_b64 exec, -1")
    def lwait(self, cnt, va, vt, sleep=1):
        e = self; L = e.lab("L_lw"); D = e.lab("L_lwd")
        e(f"s_setprio {e.opt.get('hp', 3)}")
        e(f"v_mov_b32 v{va}, {CNT_LDS + 4*cnt}\ns_mov_b32 s79, 0\n{L}:\nds_read_b32 v{vt}, v{va}\ns_waitcnt lgkmcnt(0)\nv_readfirstlane_b32 s78, v{vt}\ns_cmp_ge_u32 s78, 4\ns_cbranch_scc1 {D}")
        e(f"s_add_u32 s79, s79, 1\ns_cmp_ge_u32 s79, 0x1000000\ns_cbranch_scc1 L_end\n" + (f"s_sleep {sleep}\n" if sleep else "") + f"s_branch {L}\n{D}:\ns_setprio {e.opt.get('mprio', 0)}")
    def busy(self, d, va, vt, w=''):
        if w in self.opt.get('yld', ''): self(f"s_mov_b64 exec, 1\nv_mov_b32 v{va}, {CNT_LDS + 4*11}\nv_mov_b32 v{vt}, {d}\nds_add_u32 v{va}, v{vt}\ns_mov_b64 exec, -1")
    def lsync(self, cnt, va, vt):
        e = self; L = e.lab("L_ls")
        e(f"s_waitcnt lgkmcnt(0)\ns_mov_b64 exec, 1\nv_mov_b32 v{va}, {CNT_LDS + 4*cnt}\nv_mov_b32 v{vt}, 1\nds_add_u32 v{va}, v{vt}\ns_mov_b32 s79, 0\n{L}:")
        e(f"ds_read_b32 v{vt}, v{va}\ns_waitcnt lgkmcnt(0)\nv_readfirstlane_b32 s78, v{vt}\ns_add_u32 s79, s79, 1\ns_cmp_ge_u32 s79, 0x1000000\ns_cbranch_scc1 L_end\ns_cmp_lt_u32 s78, 4\ns_cbranch_scc1 {L}\ns_mov_b64 exec, -1")

SA, SAE, SAS, SB, SBE, SBS, SA2, SB2, SOA, SOB, SG, SPK = 16, 17, 18, 19, 24, 25, 26, 27, 28, 29, 10, 11
SFH, SFW = 34, 8
SPD = [20]; S_TL = 43
P3_ACC = 176; P3_B2 = 100; P3_VT = [10, 11, 12, 3]; P3_VL2 = 13; P3_VLB = 5; P3_VF = 171
p3acc = lambda u, t: P3_ACC + 16*u + 4*t

class Unit:
    def __init__(self, areg, off, acc, gate=False): self.areg, self.off, self.acc, self.gate = areg, off, acc, gate

def c_main_loop(e, units, xreg, xaddr, ring, D, after_bar0, tail=()):
    tail = list(tail)
    n = len(units); R = D + 2; lg = []; total = NSTEP * n
    def wait_lg(tags):
        idx = max([i for i, t in enumerate(lg) if t in tags], default=-1)
        if idx < 0: return
        cnt = len(lg) - 1 - idx; assert cnt <= 15
        e(f"s_waitcnt lgkmcnt({cnt})"); del lg[:idx + 1]
    def xreads(s, out):
        for m in range(2):
            out.append(f"ds_read_b128 {vr(xreg + 8*(s % 2) + 4*m)}, v{xaddr[s % 2]} offset:{((s//2) % NX)*XSLOT + m*2048}"); lg.append(('x', s))
    def wreads(q, out):
        s, u = divmod(q, n); U = units[u]; r = ring + 4*(q % R); slot = s % NW
        a = U.areg[slot // 3]; o = (slot % 3)*WSLOT + U.off
        if U.gate:
            out.append(f"ds_read_b128 {vr(r)}, v{a} offset:{o}"); lg.append(('w', q)); return
        out.append(f"ds_read_b64_tr_b16 {vr(r,2)}, v{a} offset:{o}"); out.append(f"ds_read_b64_tr_b16 {vr(r+2,2)}, v{a} offset:{o + 4096}")
        lg.extend([('w', q)]*2)
    e("s_barrier"); after_bar0()
    buf = []; xreads(0, buf)
    for q in range(D): wreads(q, buf)
    for b in buf: e(b)
    for q in range(total):
        s, u = divmod(q, n)
        tags = [('w', q), ('x', s)]
        if q % 2 == 0 and q + 1 < total: tags += [('w', q + 1), ('x', (q + 1)//n)]
        wait_lg(tags)
        buf = []; qa = q + D
        if qa < total:
            if qa % n == 0: buf.append("s_barrier"); xreads(qa // n, buf)
            wreads(qa, buf)
        elif tail:
            k_ = -(-len(tail) // (total - q))
            for x in tail[:k_]:
                if len(lg) >= 15: buf.append("s_waitcnt lgkmcnt(10)"); del lg[:len(lg) - 10]
                buf.append(x); lg.append(('t',))
            del tail[:k_]
        U = units[u]; r = ring + 4*(q % R); half = (len(buf) + 1)//2
        for m in range(2):
            acc = vr(U.acc + 4*m)
            e(f"v_mfma_f32_16x16x32_bf16 {acc}, {vr(r)}, {vr(xreg + 8*(s % 2) + 4*m)}, {acc}")
            for b in (buf[:half] if m == 0 else buf[half:]): e(b)

def gelu_pack(e, jobs, T, C1):
    for i in range(0, len(jobs), 4):
        grp = jobs[i:i+4]
        for k, (s, d) in enumerate(grp): e(f"v_pk_mul_f32 {vr(T+2*k,2)}, {vr(s,2)}, {vr(s,2)}")
        for k, (s, d) in enumerate(grp): e(f"v_pk_fma_f32 {vr(T+2*k,2)}, {vr(T+2*k,2)}, {sr(S_C2,2)}, {vr(C1,2)}")
        for k, (s, d) in enumerate(grp): e(f"v_pk_mul_f32 {vr(T+2*k,2)}, {vr(T+2*k,2)}, {vr(s,2)}")
        for k in range(2*len(grp)): e(f"v_exp_f32 v{T+k}, v{T+k}")
        for k, (s, d) in enumerate(grp): e(f"v_pk_add_f32 {vr(T+2*k,2)}, {vr(T+2*k,2)}, 1.0 op_sel_hi:[1,0]")
        for k in range(2*len(grp)): e(f"v_rcp_f32 v{T+k}, v{T+k}")
        for k, (s, d) in enumerate(grp): e(f"v_pk_mul_f32 {vr(T+2*k,2)}, {vr(T+2*k,2)}, {vr(s,2)}")
        for k, (s, d) in enumerate(grp): e(f"v_cvt_pk_bf16_f32 v{d}, v{T+2*k}, v{T+2*k+1}")

def softmax2(e, P, E, OUT, X, fill=(), wr=None):
    B = []; o = lambda t: B.extend(t.split("\n"))
    mx, mn = X, X + 2
    o(f"v_max3_f32 v{mx}, v{P}, v{P+1}, v{P+2}\nv_min3_f32 v{mn}, v{P}, v{P+1}, v{P+2}")
    for i in range(3, 19, 2): o(f"v_max3_f32 v{mx}, v{mx}, v{P+i}, v{P+i+1}\nv_min3_f32 v{mn}, v{mn}, v{P+i}, v{P+i+1}")
    o(f"v_max_f32 v{mx}, v{mx}, v{P+19}\nv_min_f32 v{mn}, v{mn}, v{P+19}")
    o(f"v_mul_f32 v{mx}, s{S_L}, v{mx}\nv_mul_f32 v{mn}, s{S_L}, v{mn}")
    for i in range(0, 20, 2):
        o(f"v_pk_fma_f32 {vr(E+i,2)}, {vr(P+i,2)}, {sr(S_L,2)}, {vr(mx,2)} op_sel_hi:[1,1,0] neg_lo:[0,0,1] neg_hi:[0,0,1]")
        o(f"v_pk_fma_f32 {vr(P+i,2)}, {vr(P+i,2)}, {sr(S_L,2)}, {vr(mn,2)} op_sel_hi:[1,1,0] neg_lo:[1,0,0] neg_hi:[1,0,0]")
    for i in range(20): o(f"v_exp_f32 v{E+i}, v{E+i}\nv_exp_f32 v{P+i}, v{P+i}")
    sp, sn = X + 4, X + 6
    o(f"v_pk_add_f32 {vr(sp,2)}, {vr(E,2)}, {vr(E+2,2)}\nv_pk_add_f32 {vr(sn,2)}, {vr(P,2)}, {vr(P+2,2)}")
    for i in range(4, 20, 2): o(f"v_pk_add_f32 {vr(sp,2)}, {vr(sp,2)}, {vr(E+i,2)}\nv_pk_add_f32 {vr(sn,2)}, {vr(sn,2)}, {vr(P+i,2)}")
    o(f"v_add_f32 v{sp}, v{sp}, v{sp+1}\nv_add_f32 v{sn}, v{sn}, v{sn+1}\nv_rcp_f32 v{sp}, v{sp}\nv_rcp_f32 v{sn}, v{sn}")
    fill = list(fill); step = len(B) // (len(fill) + 1)
    for i, x in enumerate(B):
        e(x)
        if fill and (i + 1) % step == 0: e(fill.pop(0))
    for src, sc, half in ((E, sp, 0), (P, sn, 1)):
        for i in range(10):
            e(f"v_pk_mul_f32 {vr(src+2*i,2)}, {vr(src+2*i,2)}, {vr(sc,2)} op_sel_hi:[1,0]")
            if i >= 1: e(f"v_cvt_pk_bf16_f32 v{OUT+10*half+i-1}, v{src+2*i-2}, v{src+2*i-1}")
            done = 10*half + i
            if wr and i >= 1 and done % 4 == 0: wr(done // 4 - 1)
        e(f"v_cvt_pk_bf16_f32 v{OUT+10*half+9}, v{src+18}, v{src+19}")
    if wr: wr(4)

def weave(e, main, fill, per=2):
    fill = [x for t in fill for x in t.split("\n")]
    for x in main:
        e(x)
        for _ in range(per):
            if fill: e(fill.pop(0))
    for x in fill: e(x)

def gen(diag=False, D=5, rot=(10, 20, 10, 5), PB=5, **opt):
    e = G(diag, **opt)
    e(f"; @launch grid=(256,1,1) block=(512,1,1) lds={LDS_TOTAL}")
    e(f'.amdgcn_target "amdgcn-amd-amdhsa--gfx950"\n.text\n.globl {NAME}\n.p2align 8\n.type {NAME},@function\n{NAME}:')
    if diag: e("s_memtime s[80:81]\ns_memrealtime s[100:101]")
    e("s_cmp_ge_u32 s2, 256\ns_cbranch_scc1 L_end")
    e("s_load_dwordx16 s[16:31], s[0:1], 0\ns_load_dwordx8 s[32:39], s[0:1], 64\ns_load_dwordx2 s[40:41], s[0:1], 96")
    WALK = opt.get('walk', True)
    if WALK:
        e(f"v_lshrrev_b32 v1, 6, v0\ns_lshr_b32 s{S_ISQ}, s2, 7\nv_readfirstlane_b32 s{S_WAVE}, v1\ns_lshl_b32 s70, s{S_ISQ}, 2\ns_sub_u32 s71, s{S_WAVE}, 1\ns_cmp_ge_u32 s71, 3\ns_cbranch_scc1 L_back")
        e(f"s_add_u32 s70, s70, s71\ns_mov_b64 exec, 0\ns_cmp_eq_u32 s71, 2\ns_cbranch_scc1 L_pad4\ns_cmp_eq_u32 s70, 0\ns_cbranch_scc1 L_pad0\ns_cmp_eq_u32 s70, 1\ns_cbranch_scc1 L_pad1\ns_cmp_eq_u32 s70, 4\ns_cbranch_scc1 L_pad2\ns_branch L_pad3\nL_back:\ns_mov_b64 exec, -1")
    if opt.get('epf', True) and not WALK:
        e(f"s_getpc_b64 s[12:13]\nL_pc0:\nv_lshlrev_b32 v2, 4, v0\nv_and_b32 v2, 0xc00, v2\nv_and_b32 v3, 7, v0\nv_lshl_add_u32 v2, v3, 7, v2")
        e(f"v_mov_b32 v3, L_C-L_pc0\nv_cmp_gt_u32 vcc, 256, v0\nv_cndmask_b32 v3, 0, v3, vcc\nv_add_u32 v2, v2, v3\ns_mov_b64 exec, 0xff\nglobal_load_dword v186, v2, s[12:13]\ns_mov_b64 exec, -1")
    if WALK: e(f"v_and_b32 v0, 63, v0\ns_and_b32 s70, s2, 7\ns_lshr_b32 s71, s2, 3")
    else:
        e(f"v_lshrrev_b32 v1, 6, v0\nv_and_b32 v0, 63, v0")
        e(f"s_and_b32 s70, s2, 7\ns_lshr_b32 s71, s2, 3")
        e(f"v_readfirstlane_b32 s{S_WAVE}, v1")
    e(f"s_and_b32 s72, s70, 1\ns_and_b32 s73, s71, 7\ns_lshl_b32 s74, s72, 3\ns_add_u32 s{S_RB}, s74, s73")
    if opt.get('mix', True):
        e(f"s_lshr_b32 s{S_ISQ}, s71, 4\ns_lshr_b32 s74, s70, 1\ns_lshr_b32 s75, s71, 3")
        e(f"s_and_b32 s76, s75, 1\ns_lshl_b32 s77, s74, 1\ns_add_u32 s{S_J}, s76, s77")
    else:
        e(f"s_lshr_b32 s{S_ISQ}, s70, 2\ns_lshr_b32 s74, s70, 1\ns_lshr_b32 s75, s71, 3")
        e(f"s_and_b32 s76, s74, 1\ns_lshl_b32 s76, s76, 2\ns_add_u32 s{S_J}, s76, s75")
    a, b, c, d = rot
    e(f"s_mul_i32 s76, s73, {a}\ns_mul_i32 s77, s75, {b}\ns_add_u32 s76, s76, s77\ns_mul_i32 s77, s74, {c}\ns_add_u32 s76, s76, s77\ns_mul_i32 s77, s72, {d}\ns_add_u32 s76, s76, s77\ns_lshr_b32 s76, s76, 3")
    e(f"s_mul_i32 s77, s76, 6554\ns_lshr_b32 s77, s77, 16\ns_mul_i32 s77, s77, 10\ns_sub_u32 s{S_PH}, s76, s77")
    e(f"s_and_b32 s{S_WV}, s{S_WAVE}, 3")
    if opt.get('x0', False):
        x_setup(e, [16, 17])
        e(f"s_lshr_b32 s77, s{S_WAVE}, 2\ns_mul_i32 s76, s77, 81920\ns_lshl_b32 s77, s77, 13\ns_add_u32 s76, s76, s{S_XK}\ns_add_u32 m0, s77, s{S_M0X}\ns_add_u32 s76, s76, s{S_XOFF}\ns_waitcnt lgkmcnt(0)")
        e.srd(SRD_X, S_X, 2048*1280)
        e(f"buffer_load_dwordx4 v16, {sr(SRD_X)}, s76 offen lds\nbuffer_load_dwordx4 v17, {sr(SRD_X)}, s76 offen offset:1024 lds")
    e.fstamp(3)
    if opt.get('c0', True) and not opt.get('x0', False):
        e(f"s_cmp_ge_u32 s{S_WAVE}, 4\ns_cbranch_scc1 L_M")
        c_first(e)
        e("s_branch L_C\nL_M:")
    else: e(f"s_cmp_lt_u32 s{S_WAVE}, 4\ns_cbranch_scc1 L_C")
    m_wave(e, PB)
    e("L_C:")
    c_wave(e, D)
    e("L_end:\ns_endpgm")
    e(f""".section .rodata,"a"
.p2align 6
.amdhsa_kernel {NAME}
  .amdhsa_next_free_vgpr 256
  .amdhsa_next_free_sgpr 102
  .amdhsa_accum_offset 256
  .amdhsa_group_segment_fixed_size 0
  .amdhsa_kernarg_size 104
  .amdhsa_user_sgpr_count 2
  .amdhsa_user_sgpr_kernarg_segment_ptr 1
  .amdhsa_system_sgpr_workgroup_id_x 1
.end_amdhsa_kernel""")
    txt, n = hazard.fix("\n".join(e.L), opt.get('verbose', False))
    return txt + "\n"

def x_setup(e, VX):
    e(f"v_lshrrev_b32 v2, 3, v0\ns_lshl_b32 s76, s{S_WV}, 4\nv_add_u32 v2, s76, v2")
    e(f"v_lshrrev_b32 v3, 4, v0\nv_xor_b32 v3, v3, v0\nv_and_b32 v3, 7, v3\nv_lshlrev_b32 v3, 4, v3")
    e(f"v_mul_u32_u24 v2, 1280, v2\nv_add_u32 v{VX[0]}, v2, v3")
    e(f"v_xor_b32 v3, 64, v3\nv_add_u32 v2, {8*1280-1024}, v2\nv_add_u32 v{VX[1]}, v2, v3")
    e(f"s_mul_i32 s{S_XOFF}, s{S_RB}, {128*1280}\ns_lshl_b32 s{S_M0X}, s{S_WV}, 11\ns_add_u32 s{S_M0X}, s{S_M0X}, {XBASE}\ns_lshl_b32 s{S_XK}, s{S_PH}, 7")
XADV = f"s_add_u32 s{S_XK}, s{S_XK}, 128\ns_cmp_eq_u32 s{S_XK}, 1280\ns_cmov_b32 s{S_XK}, 0"
def dma_x_ops(VX, X, h):
    pre = f"s_add_u32 s76, s{S_XK}, {h*81920}\ns_add_u32 m0, s{S_M0X}, {(X % NX)*XSLOT + h*8192}\ns_add_u32 s76, s76, s{S_XOFF}\n"
    return [(('x', X), pre + f"buffer_load_dwordx4 v{VX[0]}, {sr(SRD_X)}, s76 offen lds"),
            (('x', X), f"buffer_load_dwordx4 v{VX[1]}, {sr(SRD_X)}, s76 offen offset:1024 lds" + ("\n" + XADV if h else ""))]

def m_wave(e, PB):
    e("s_setprio 3")
    VX = [16, 17]; VB = [18, 20, 22, 24]; VS = [26, 27, 28, 29]; VA = [30, 32, 34, 36]
    e(f"s_lshl_b32 s{S_M0W}, s{S_WV}, 12\ns_lshl_b32 s{S_KK}, s{S_PH}, 1")
    e(f"s_lshr_b32 s76, s{S_WV}, 1\ns_lshl_b32 s76, s76, 4\ns_and_b32 s77, s{S_WV}, 1\ns_lshl_b32 s77, s77, 2\ns_add_u32 s78, s76, s77")
    def krow(dst, rho):
        e(f"v_and_b32 v{dst}, 4, v{rho}\nv_add3_u32 v{dst}, v{dst}, v{rho}, s78")
    def panel(dst, ci0, colreg, kv):
        e(f"v_add_u32 v2, {ci0}, v0\nv_mul_u32_u24 v3, 6554, v2\nv_lshrrev_b32 v3, 16, v3\nv_mul_u32_u24 v4, 10, v3\nv_sub_u32 v4, v2, v4")
        if kv: e(f"v_lshrrev_b32 v6, 3, v3\nv_and_b32 v3, 7, v3\nv_mul_u32_u24 v6, 1280, v6\nv_lshl_add_u32 v4, v4, 4, v6")
        else: e(f"v_lshlrev_b32 v4, 4, v4")
        krow(5, 3)
        e(f"v_mul_u32_u24 v5, 3840, v5\nv_add3_u32 v{dst}, v5, v4, s{colreg}")
    def h160(dst, hi0):
        e(f"v_add_u32 v2, {hi0}, v0\nv_min_i32 v2, 159, v2\nv_max_i32 v2, 0, v2\nv_mul_u32_u24 v3, 3277, v2\nv_lshrrev_b32 v3, 16, v3\nv_mul_u32_u24 v4, 20, v3\nv_sub_u32 v4, v2, v4")
        e(f"v_lshrrev_b32 v6, 1, v3\nv_and_b32 v6, 2, v6\nv_xor_b32 v4, v4, v6\nv_min_u32 v4, s77, v4\nv_lshlrev_b32 v4, 4, v4")
        krow(5, 3)
        e(f"v_mul_u32_u24 v5, 3456, v5\nv_add3_u32 v{dst}, v5, v4, s76")
    def addptr(b, off, plo, phi):
        if b: e(f"v_subrev_u32 v{off}, {1024*b}, v{off}\nv_ashrrev_i32 v7, 31, v{off}")
        else: e(f"v_mov_b32 v7, 0")
        e(f"v_add_co_u32 v{VB[b]}, vcc, {plo}, v{off}")
        if phi.startswith('s'): e(f"v_mov_b32 v6, {phi}"); phi = "v6"
        e(f"v_addc_co_u32 v{VB[b]+1}, vcc, {phi}, v7, vcc")
    vm = ([('pf',)] if (e.opt.get('epf', True) and not e.opt.get('walk', True)) else []) + ([('x', 0)]*2 if e.opt.get('x0', False) else [])
    def emit(lst):
        for tag, txt in lst: e(txt); vm.append(tag)
    def wait_vm(pred):
        idx = max([i for i, t in enumerate(vm) if pred(t)], default=-1)
        if idx >= 0: e(f"s_waitcnt vmcnt({len(vm)-1-idx})"); del vm[:idx+1]
    def dma_w(step):
        pre = "".join(f"v_mad_u64_u32 {vr(VA[b],2)}, vcc, v{VS[b]}, s{S_KK}, {vr(VB[b],2)}\n" for b in range(4))
        pre += f"s_add_u32 m0, s{S_M0W}, {(step % NW)*WSLOT}\ns_add_u32 s{S_KK}, s{S_KK}, 1\ns_cmp_eq_u32 s{S_KK}, 20\ns_cmov_b32 s{S_KK}, 0\n"
        return [(('w', step), (pre if b == 0 else "") + f"global_load_lds_dwordx4 {vr(VA[b],2)}, off offset:{1024*b}") for b in range(4)]
    dma_x = lambda X, h: dma_x_ops(VX, X, h)
    O = [8, 46, 10, 11, 12]
    e(f"s_cmp_eq_u32 s{S_ISQ}, 1\ns_cbranch_scc1 L_MQ")
    e(f"s_mul_i32 s76, s{S_J}, 160\ns_add_u32 s76, s76, 1280")
    pad = lambda i: e(f"L_pad{i}:\ns_cbranch_execz L_back") if e.opt.get('walk', True) else None
    panel(O[0], 0, 76, True); panel(O[1], 64, 76, True); pad(0); panel(O[2], 128, 76, True)
    e(f"v_lshrrev_b32 v3, 3, v0\nv_and_b32 v4, 6, v3\nv_xor_b32 v4, v4, v0\nv_and_b32 v4, 7, v4\nv_lshlrev_b32 v4, 4, v4\ns_lshl_b32 s76, s{S_J}, 7")
    krow(5, 3)
    e(f"v_mul_u32_u24 v5, 3456, v5\nv_add3_u32 v{O[3]}, v5, v4, s76")
    e(f"v_subrev_u32 v2, 32, v0\nv_min_u32 v2, 3, v2\nv_lshlrev_b32 v2, 4, v2\nv_cmp_gt_u32 s[14:15], 32, v0")
    e(f"v_mov_b32 v{VS[0]}, {32*3840}\nv_mov_b32 v{VS[1]}, {32*3840}\nv_mov_b32 v{VS[3]}, {32*3456}\nv_cndmask_b32 v{O[2]}, v2, v{O[2]}, s[14:15]\nv_cndmask_b32 v{VS[2]}, 64, v{VS[0]}, s[14:15]")
    e.fstamp(4)
    e("s_waitcnt lgkmcnt(0)")
    e.fstamp(5)
    pad(1)
    addptr(0, O[0], f"s{S_WQKV}", f"s{S_WQKV+1}"); addptr(1, O[1], f"s{S_WQKV}", f"s{S_WQKV+1}"); addptr(3, O[3], f"s{S_W1}", f"s{S_W1+1}")
    e(f"v_mov_b32 v2, s{S_GATE}\nv_mov_b32 v3, s{S_WQKV}\nv_cndmask_b32 v2, v2, v3, s[14:15]\nv_mov_b32 v3, s{S_GATE+1}\nv_mov_b32 v4, s{S_WQKV+1}\nv_cndmask_b32 v3, v3, v4, s[14:15]")
    addptr(2, O[2], "v2", "v3")
    e("s_branch L_Mgo\nL_MQ:")
    e(f"s_mul_i32 s79, s{S_J}, 160\ns_mul_i32 s76, s{S_J}, 320\ns_add_u32 s76, s76, 1024\ns_cmp_eq_u32 s{S_J}, 7\ns_cselect_b32 s77, 11, 19")
    pad(2); panel(O[0], 0, 79, False); panel(O[1], 64, 79, False); h160(O[4], -16); pad(3); h160(O[2], 48); h160(O[3], 112)
    e(f"v_cmp_gt_u32 s[14:15], 16, v0\nv_mov_b32 v{VS[0]}, {32*3840}\nv_mov_b32 v{VS[2]}, {32*3456}\nv_mov_b32 v{VS[3]}, {32*3456}")
    e(f"v_cndmask_b32 v{O[1]}, v{O[4]}, v{O[1]}, s[14:15]\nv_cndmask_b32 v{VS[1]}, v{VS[2]}, v{VS[0]}, s[14:15]")
    e.fstamp(4)
    e("s_waitcnt lgkmcnt(0)")
    e.fstamp(5)
    addptr(0, O[0], f"s{S_WQKV}", f"s{S_WQKV+1}"); addptr(2, O[2], f"s{S_W1}", f"s{S_W1+1}"); addptr(3, O[3], f"s{S_W1}", f"s{S_W1+1}")
    e(f"v_mov_b32 v2, s{S_W1}\nv_mov_b32 v3, s{S_WQKV}\nv_cndmask_b32 v2, v2, v3, s[14:15]\nv_mov_b32 v3, s{S_W1+1}\nv_mov_b32 v4, s{S_WQKV+1}\nv_cndmask_b32 v3, v3, v4, s[14:15]")
    addptr(1, O[1], "v2", "v3")
    e("L_Mgo:"); pad(4)
    LA = e.opt.get('LA', 2); JS = e.opt.get('JS', 8)
    if e.opt.get('linbar'): e("s_barrier")
    emit(dma_w(0))
    e.stamp(1)
    emit(dma_w(1))
    if not e.opt.get('x0', False): x_setup(e, VX); e.srd(SRD_X, S_X, 2048*1280)
    e(XADV)
    if LA >= 3: emit(dma_x(1, 0)); emit(dma_w(2))
    e(f"s_setprio {e.opt.get('lprio', 0)}")
    e(f"s_and_b32 s76, s70, 3\ns_lshl_b32 s76, s76, 3\ns_add_u32 s{S_R64}, s76, s73\ns_and_b32 s76, s70, 4\ns_add_u32 s{S_CB}, s76, s75")
    e(f"s_mul_i32 s7, s73, 5\ns_mul_i32 s76, s75, 10\ns_add_u32 s7, s7, s76\ns_lshr_b32 s7, s7, 2")
    VZ, VL16 = 1, 15
    VJ = [38, 39, 40, 41, 42]; VJR = 43; VP = 14; JF = 48
    chunks = {}
    def c0():
        e.srd(SRD_WS, S_WS, WS_SIZE); e.srd(SRD_D, S_DBG, 256)
        e(f"v_mov_b32 v{VZ}, 0\nv_lshlrev_b32 v{VL16}, 4, v0")
        if e.opt.get('jq', True):
            e(f"s_lshl_b32 s70, s{S_J}, 4\ns_add_u32 s70, s70, s{S_RB}\ns_lshl_b32 s71, s70, 2\ns_add_u32 s71, s71, s{S_WV}\ns_lshl_b32 s72, s{S_WV}, 7\ns_add_u32 s72, s72, s70\ns_add_u32 s72, s72, 432")
            e(f"s_cmp_eq_u32 s{S_ISQ}, {0 if e.opt.get('jq', True) else 1}\ns_cselect_b32 s72, s72, s71\ns_mov_b32 s71, 432\ns_cmov_b32 s71, 592\ns_sub_u32 s70, s72, s71\ns_lshr_b32 s71, s72, 3\ns_and_b32 s72, s72, 7")
        else:
            e(f"s_mul_i32 s70, s2, 37\ns_add_u32 s71, s70, 37\ns_lshr_b32 s70, s70, 4\ns_lshr_b32 s71, s71, 4\ns_add_u32 s72, s70, s{S_WV}\ns_sub_u32 s70, s72, s71\ns_lshr_b32 s71, s72, 3\ns_and_b32 s72, s72, 7")
        e(f"s_sub_u32 s73, s71, 54\ns_mul_i32 s77, s73, 6554\ns_lshr_b32 s77, s77, 15\ns_mul_i32 s78, s77, 5\ns_sub_u32 s78, s73, s78")
        e(f"s_mul_i32 s73, s77, 160\ns_lshr_b32 s77, s78, 1\ns_mul_i32 s77, s77, 80\ns_and_b32 s79, s78, 1\ns_lshl_b32 s79, s79, 3\ns_add_u32 s77, s77, s79")
        e(f"s_cmp_eq_u32 s78, 4\ns_cselect_b32 s77, 16, s77\ns_cselect_b32 s75, 80, 4\ns_add_u32 s73, s73, s77\ns_mov_b32 s74, 20")
    def c1():
        e(f"s_lshl_b32 s77, s71, 5\ns_cmp_lt_u32 s71, 54\ns_cselect_b32 s73, s77, s73\ns_cselect_b32 s74, 4, s74\ns_cselect_b32 s75, 16, s75")
        e(f"s_cselect_b32 s{SRD_T}, s{S_W2}, s{S_WO}\ns_cselect_b32 s{SRD_T+1}, s{S_W2+1}, s{S_WO+1}\ns_mov_b32 s{SRD_T+2}, {640*1280}\ns_cmov_b32 s{SRD_T+2}, {1728*1280}\ns_mov_b32 s{SRD_T+3}, 0x20000")
        e(f"s_mul_i32 s12, s73, 1280\ns_mul_i32 s77, s72, 160\ns_add_u32 s12, s12, s77")
        e(f"s_mul_i32 s13, s72, 74\ns_add_u32 s13, s13, s71\ns_mul_i32 s13, s13, 5120\ns_add_u32 s13, s13, {WS_WF}")
        e(f"s_and_b32 s77, s{S_RB}, 3\ns_lshl_b32 s78, s{S_ISQ}, 2\ns_add_u32 s77, s77, s78\ns_lshl_b32 s77, s77, 7\ns_add_u32 s77, s77, {WS_FL + FL_W*128}"); e.wsptr(14, "s77")
        e(f"s_cmp_lt_i32 s70, 0\ns_cselect_b32 s12, s12, {OOB}\ns_cselect_b32 s13, s13, {OOB}")
        e(f"s_mul_i32 s3, s{S_WV}, 5120\ns_add_u32 s3, s3, {STG}")
        e(f"v_lshrrev_b32 v2, 2, v0\nv_mul_u32_u24 v2, 160, v2\nv_and_b32 v3, 3, v0\nv_mul_u32_u24 v3, 40, v3\nv_add3_u32 v{VJR}, v2, v3, s3\nv_add_u32 v44, 4096, v{VL16}")
    def cj(i0, i1):
        def f():
            for i in range(i0, i1):
                e(f"v_add_u32 v2, {64*i}, v0\nv_mul_u32_u24 v3, 6554, v2\nv_lshrrev_b32 v3, 16, v3\nv_mul_u32_u24 v4, 10, v3\nv_sub_u32 v4, v2, v4")
                e(f"v_bfe_u32 v5, v3, 2, 2\nv_mul_u32_u24 v5, s74, v5\nv_lshrrev_b32 v6, 4, v3\nv_mul_u32_u24 v6, s75, v6\nv_and_b32 v3, 3, v3\nv_add3_u32 v3, v3, v5, v6")
                e(f"v_mul_u32_u24 v3, 1280, v3\nv_lshl_add_u32 v{VJ[i]}, v4, 4, v3")
        return f
    def c8():
        e(f"s_cmp_ge_u32 s{S_WV}, 2\ns_cselect_b32 s70, 9, 10\ns_mul_i32 s71, s{S_WV}, 10\ns_cmp_eq_u32 s{S_WV}, 3\ns_cmov_b32 s71, 29\ns_add_u32 s71, s71, 16")
        e(f"s_cmp_ge_u32 s7, s70\ns_cselect_b32 s72, s70, 0\ns_sub_u32 s7, s7, s72")
        e(f"s_mul_i32 s74, s{S_R64}, 54\ns_add_u32 s72, s74, s71\ns_lshl_b32 s{SAS}, s72, 12\ns_lshl_b32 s73, s70, 12\ns_add_u32 s{SAE}, s{SAS}, s73\ns_lshl_b32 s73, s7, 12\ns_add_u32 s{SA}, s{SAS}, s73")
        e(f"s_mul_i32 s75, s{S_CB}, 74\ns_add_u32 s73, s75, s71\ns_mul_i32 s73, s73, 5120\ns_add_u32 s{SBS}, s73, {WS_WF}\ns_mul_i32 s73, s70, 5120\ns_add_u32 s{SBE}, s{SBS}, s73\ns_mul_i32 s73, s7, 5120\ns_add_u32 s{SB}, s{SBS}, s73")
    def c9():
        e(f"s_lshl_b32 s70, s{S_WV}, 2\ns_add_u32 s71, s74, s70\ns_lshl_b32 s{SA2}, s71, 12\ns_add_u32 s71, s75, s70\ns_mul_i32 s71, s71, 5120\ns_add_u32 s{SB2}, s71, {WS_WF}")
        e(f"s_mul_i32 s70, s{S_WV}, 5\ns_add_u32 s70, s70, s75\ns_add_u32 s70, s70, 54\ns_mul_i32 s70, s70, 5120\ns_add_u32 s{SOB}, s70, {WS_WF}")
        e(f"s_mul_i32 s70, s{S_R64}, 81920\ns_add_u32 s{SOA}, s70, {WS_OF}")
        e(f"s_lshl_b32 s70, s{S_R64}, 3\ns_add_u32 s70, s70, s{S_CB}\ns_lshl_b32 s70, s70, 5\ns_add_u32 s70, s70, s{S_WV}\ns_lshl_b32 s70, s70, 2\ns_add_u32 s70, s70, {WS_FL + FL_H*128}"); e.wsptr(SFH, "s70")
        e(f"s_mov_b32 s{SFW}, {WS_FL + FL_W*128 + 1024}")
        e(f"s_lshl_b32 s70, s{S_R64}, 8\ns_lshl_b32 s71, s{S_WV}, 14\ns_add_u32 s70, s70, s71\ns_add_u32 s{SG}, s70, {WS_G}")
    def c10():
        e(f"s_mul_i32 s{SPK}, s{S_WV}, 20480\ns_add_u32 s{SPK}, s{SPK}, {PARK}\ns_cmp_eq_u32 s{S_WV}, 3\ns_cmov_b32 s{SPK}, {STG}")
        e(f"v_add_u32 v{P3_VL2}, 4096, v{VL16}")
        e(f"s_and_b32 s70, s{S_CB}, {3 if e.opt.get('trot', True) else 0}\ns_xor_b32 s{S_TL}, s70, s{S_WV}")
        for t in range(4): e(f"s_xor_b32 s70, s{S_TL}, {t}\ns_lshl_b32 s70, s70, 10\nv_add_u32 v{P3_VT[t]}, s70, v{VL16}")
        e(f"v_min_u32 v4, 144, v{VL16}\ns_mul_i32 s70, s{S_CB}, 160\nv_add_u32 v4, s70, v4")
        e(f"v_and_b32 v8, 7, v0\nv_lshlrev_b32 v8, 7, v8")
    JL = e.opt.get('JL', -1); JR = e.opt.get('JR', 2); JA = e.opt.get('JA', 8); ZA = e.opt.get('ZA', 2); pre = e.opt.get('pre', 0)
    for c_ in (c0, c1, cj(0, 5), c8, c9, c10): c_()
    e(f"v_mul_u32_u24 v2, 21846, v0\nv_lshrrev_b32 v2, 16, v2\nv_mul_u32_u24 v6, 3, v2\nv_sub_u32 v6, v0, v6\nv_lshlrev_b32 v6, 4, v6\nv_lshl_add_u32 v2, v2, 7, v6")
    e(f"v_lshlrev_b32 v6, 7, v0\nv_add_u32 v6, {(FL_KV - 24)*128}, v6\nv_cmp_gt_u32 vcc, 24, v0\nv_mov_b32 v168, 0\nv_mov_b32 v169, 0\nv_cndmask_b32 v2, v6, v2, vcc\ns_lshl_b32 s76, s2, 10\nv_add_u32 v2, s76, v2")
    e(f"v_mov_b32 v6, {OOB}\nv_cmp_gt_u32 vcc, 32, v0\nv_mov_b32 v170, 0\nv_mov_b32 v171, 0\nv_cndmask_b32 v2, v6, v2, vcc\ns_add_u32 s76, s2, {FL_W}\ns_lshl_b32 s76, s76, 7\ns_cmp_lt_u32 s2, 16\ns_cselect_b32 s76, s76, {OOB}\nv_writelane_b32 v2, s76, 32")
    e(f"s_lshl_b32 s76, s{S_WV}, 8\ns_or_b32 s76, s76, s2\ns_cmp_lt_u32 s76, {NINIT}\ns_mov_b32 s76, {OOB}\ns_cmov_b32 s76, {WS_FL}")
    emit([(('zero',), f"buffer_store_dwordx4 v[168:171], v2, {sr(SRD_WS)}, s76 offen sc1")])
    emit([(('b2',), f"s_mov_b32 m0, {B2_LDS}\nglobal_load_lds_dwordx4 v4, s[{S_B2}:{S_B2+1}]")])
    txt = (f"s_mul_i32 s76, s{S_J}, 3200\ns_lshl_b32 s77, s{S_WV}, 10\ns_add_u32 m0, s77, {WPHI_LDS}\ns_add_u32 s76, s76, s77\ns_add_u32 s76, s76, s{S_WPHI}\ns_addc_u32 s77, s{S_WPHI+1}, 0\n"
           f"s_cmp_eq_u32 s{S_WV}, 3\ns_mov_b32 s78, 1008\ns_cmov_b32 s78, 112\nv_min_u32 v6, s78, v{VL16}\nglobal_load_lds_dwordx4 v6, s[76:77]")
    emit([(('phi',), txt)])
    if e.opt.get('cpf', True):
        e(f"s_getpc_b64 s[76:77]\nL_pc:\ns_sub_u32 s76, s76, L_pc-{NAME}\ns_subb_u32 s77, s77, 0")
        e(f"s_lshr_b32 s78, s2, 3\ns_lshl_b32 s78, s78, 2\ns_add_u32 s78, s78, s{S_WV}\ns_lshl_b32 s78, s78, 9\nv_and_b32 v6, 3, v0\nv_lshl_add_u32 v6, v6, 7, s78")
        emit([(('pf',), f"s_mov_b32 s78, L_end-{NAME}\nv_min_u32 v6, s78, v6\ns_mov_b64 exec, 15\nglobal_load_dword v167, v6, s[76:77]\ns_mov_b64 exec, -1")])
    def job_loads():
        for i in range(5):
            emit([(('job',), f"s_add_u32 m0, s3, {1024*i}\ns_nop 0\nbuffer_load_dwordx4 v{VJ[i]}, {sr(SRD_T)}, s12 offen lds")])
    if JL < 0: job_loads()
    P3S = P3(e, PB, VZ, VL16, vm)
    WD = [20, 22, 23, 30, 31, 32, 33, 12]
    def extras(s):
        if s == ZA:
            wait_vm(lambda t: t[0] in ('zero', 'b2', 'phi'))
            Li = e.lab("L_ini")
            e(f"s_lshl_b32 s77, s{S_WV}, 8\ns_or_b32 s77, s77, s2\ns_cmp_ge_u32 s77, {NINIT}\ns_cbranch_scc1 {Li}\ns_mov_b32 s21, 1\ns_atomic_add s21, s[{S_DBG}:{S_DBG+1}], 0 glc\n{Li}:")
        if s == JR:
            wait_vm(lambda t: t[0] == 'job')
            for u in range(5):
                e(f"ds_read_b64_tr_b16 {vr(JF+4*u,2)}, v{VJR} offset:{8*u}\nds_read_b64_tr_b16 {vr(JF+4*u+2,2)}, v{VJR} offset:{8*u + 2560}")
        if s == JA - 1: e.sfirst(S_DBG, [0], [31])
        if s == JA:
            e.scheck([31], NINIT, SRD_D, "0", VZ, VP, vm)
            wait_vm(lambda t: t[0] == 'jst')
            e(f"s_mov_b64 exec, 1\nv_mov_b32 v174, {CNT_LDS + 4*3}\nv_mov_b32 v175, 1\nds_add_rtn_u32 v174, v174, v175\ns_mov_b64 exec, -1\ns_mov_b32 s22, 0")
        if s == JA + 1:
            Lw = e.lab("L_w1")
            e(f"s_waitcnt lgkmcnt(0)\nv_readfirstlane_b32 s78, v174\ns_cmp_lg_u32 s78, 3\ns_cbranch_scc1 {Lw}\ns_mov_b32 s22, 1\ns_atomic_add s22, s[14:15], 0 glc\n{Lw}:")
        if s == JA + 3:
            Lw = e.lab("L_w2")
            e(f"s_waitcnt lgkmcnt(0)\ns_cmp_lg_u32 s22, 31\ns_cbranch_scc1 {Lw}\ns_mov_b32 s23, 1\ns_atomic_add s23, s[14:15], 1024 glc\n{Lw}:")
    for s in range(NSTEP):
        wait_vm(lambda t: t == ('w', s) or t == ('x', s//2))
        e("s_barrier")
        if s == 0: e.stamp(2)
        if e.opt.get('steps'): e(f"s_memtime s[76:77]\ns_waitcnt lgkmcnt(0)\ns_sub_u32 s76, s76, s80\nv_writelane_b32 v9, s76, {s}")
        n_list = [2, 3] if (LA == 2 and s == 0) else [s + 3]
        for n_ in n_list:
            if n_ < NSTEP: emit(dma_x(n_ // 2, n_ % 2))
        extras(s)
        if s + LA < NSTEP: emit(dma_w(s + LA))
        if s == JL: job_loads()
        if s == JR + e.opt.get('JSd', 0):
            e("s_waitcnt lgkmcnt(0)")
            for u in range(5):
                if u < 4: emit([(('jst',), f"buffer_store_dwordx4 {vr(JF+4*u)}, v{VL16}, {sr(SRD_WS)}, s13 offen offset:{1024*u} sc1")])
                else: emit([(('jst',), f"buffer_store_dwordx4 {vr(JF+4*u)}, v44, {sr(SRD_WS)}, s13 offen sc1")])
        if s == (17 if pre else 18): e.wsptr(76, f"s{SFW}"); e.sfirst(76, [128*i for i in range(8)], WD)
        if s == 18 and pre:
            e.scheck(WD, 1, SRD_WS, f"s{SFW}", 8, VP, vm)
            for _ in range(pre): P3S.prefetch()
    e.stamp(3)
    if not pre: e.scheck(WD, 1, SRD_WS, f"s{SFW}", 8, VP, vm)
    e(f"s_setprio {e.opt.get('mprio', 0)}")
    e.stamp(4)
    if e.opt.get('nop3'):
        e.stamps_out(); e("s_endpgm"); return
    P3S.begin()
    while P3S.npre < PB:
        if P3S.npre >= e.opt.get('free', 2):
            if not P3S.ring:
                e.lwait(8, 174, 175); P3S.ring = True
                P3S.park_now(e.opt.get('pkf', 0))
            P3S.yield_()
        P3S.prefetch()
        if len(vm) > P3S.THR: e(f"s_waitcnt vmcnt({P3S.THR})"); del vm[:len(vm) - P3S.THR]
    P3S.run()

def P3(e, PB, VZ, VL16, vm):
    class S: pass
    S.npre = 0
    opt = e.opt
    ACC = 176; POOL = 16; NPOOL = 38
    VL2, VP = 13, 14; VGO = 173; VY = 9 if not opt.get('steps') else 169
    VT = P3_VT
    VG = 2
    acc = lambda u, t: ACC + 16*u + 4*t
    NQ, NK = 10, 4; NS = NQ + NK; HPM = (opt.get('hp', 3), opt.get('mprio', 0))
    def pst(i):
        if opt.get('steps'): e(f"s_waitcnt lgkmcnt(0)\ns_memtime s[76:77]\ns_waitcnt lgkmcnt(0)\ns_sub_u32 s76, s76, s80\nv_writelane_b32 v9, s76, {i}")
    free = list(range(NPOOL)); frag = {}
    def emit1(item): e(item[1]); vm.append(item[0])
    def waitvm(pred):
        idx = max([i for i, t in enumerate(vm) if pred(t)], default=-1)
        if idx >= 0: e(f"s_waitcnt vmcnt({len(vm)-1-idx})"); del vm[:idx+1]
    def ld(d, v, so, off): return f"buffer_load_dwordx4 {d}, v{v}, {sr(SRD_WS)}, {so} offen" + (f" offset:{off}" if off else "") + " sc1"
    def take(k): return free.pop(0)
    def group(kind, k):
        out = []
        for i in range(4 if kind == 'A' else 5):
            sl = take(k); frag[(kind, k, i)] = POOL + 4*sl; d = vr(POOL + 4*sl)
            pre = post = ""
            if kind == 'A':
                if k < NQ:
                    if k == NQ - 1 and i == 0: pre = f"s_cmp_ge_u32 s{S_WV}, 2\ns_cmov_b32 s{SA}, {OOB}\n"
                    if i == 3: post = f"\ns_add_u32 s{SA}, s{SA}, 4096\ns_cmp_eq_u32 s{SA}, s{SAE}\ns_cmov_b32 s{SA}, s{SAS}"
                    txt = ld(d, VT[i], f"s{SA}", 0)
                else:
                    txt = ld(d, VT[i], f"s{SA2}", 0)
                    if i == 3: post = f"\ns_add_u32 s{SA2}, s{SA2}, 4096"
            else:
                if k < NQ:
                    so = f"s{SB}"
                    if k == NQ - 1 and i == 0: pre = f"s_cmp_ge_u32 s{S_WV}, 2\ns_cmov_b32 s{SB}, {OOB}\n"
                    if i == 4: post = f"\ns_add_u32 s{SB}, s{SB}, 5120\ns_cmp_eq_u32 s{SB}, s{SBE}\ns_cmov_b32 s{SB}, s{SBS}"
                else:
                    so = f"s{SB2}"
                    if i == 4: post = f"\ns_add_u32 s{SB2}, s{SB2}, 5120"
                txt = ld(d, VL16, so, 1024*i) if i < 4 else ld(d, VL2, so, 0)
            out.append(((kind, k), pre + txt + post))
        return out
    THR = opt.get('thr', 10)
    YLD = opt.get('yld', '')
    def yield_(pre_read=False):
        if not YLD: return
        L = e.lab("L_y"); D = e.lab("L_yd")
        if not pre_read: e(f"ds_read_b32 v{VP}, v{VY}")
        e(f"s_setprio {opt.get('hp', 3)}\ns_mov_b32 s79, 0\n{L}:\ns_waitcnt lgkmcnt(0)\nv_readfirstlane_b32 s78, v{VP}\ns_cmp_eq_u32 s78, 0\ns_cbranch_scc1 {D}")
        e(f"s_add_u32 s79, s79, 1\ns_cmp_ge_u32 s79, 0x1000000\ns_cbranch_scc1 L_end\ns_sleep 1\nds_read_b32 v{VP}, v{VY}\ns_branch {L}\n{D}:\ns_setprio {opt.get('mprio', 0)}")
    def prefetch():
        for it in group('B', S.npre): emit1(it)
        S.npre += 1
    S.prefetch = prefetch; S.THR = THR
    def msync(cnt):
        e.lpost(cnt, 174, 175); e.lwait(cnt, 174, 175, sleep=0)
    def park(j):
        out = []
        for i in range(5):
            pre = f"s_add_u32 s12, s{S_R64}, {j}\ns_and_b32 s12, s12, 3\ns_mul_i32 s12, s12, 5120\ns_add_u32 s13, s12, s{SOB}\ns_add_u32 s12, s12, s{SPK}\n" if i == 0 else ""
            out.append((('L',), pre + f"s_add_u32 m0, s12, {1024*i}\ns_add_u32 s77, s13, {1024*i}\nbuffer_load_dwordx4 v{VL16}, {sr(SRD_WS)}, s77 offen sc1 lds"))
        return out
    S.ring = False; S.yield_ = yield_; S.parked = 0
    def park_now(n):
        for _ in range(n):
            yield_()
            for it in park(S.parked): emit1(it)
            S.parked += 1
            if len(vm) > THR: e(f"s_waitcnt vmcnt({THR})"); del vm[:len(vm) - THR]
    S.park_now = park_now
    S.begin = lambda: e(f"v_mov_b32 v{VY}, {CNT_LDS + 4*11}")
    def run():
        if not S.ring: e.lwait(8, 174, 175)
        e.stamp(5, True)
        PK = opt.get('pk', (10, 11, 11, 12))
        for j in range(4):
            if PK[j] >= 0 or j < S.parked: continue
            yield_()
            for it in park(j): emit1(it)
            if len(vm) > THR: e(f"s_waitcnt vmcnt({THR})"); del vm[:len(vm) - THR]
        VH = [4, 5, 6, 7]; VOUT = 8; VGS = [2, 168, 170, 172]
        for t in range(4): e(f"s_xor_b32 s70, s{S_TL}, {t}\ns_lshr_b32 s71, s70, 1\ns_lshl_b32 s71, s71, 10\ns_and_b32 s70, s70, 1\ns_lshl_b32 s70, s70, 3\ns_add_u32 s70, s70, s71\ns_add_u32 s70, s70, 8192\nv_add_u32 v{VH[t]}, s70, v{VL16}")
        e.srd(SRD_T, S_OUT, 2048*1280)
        e(f"v_and_b32 v{VOUT}, 15, v0\nv_mul_u32_u24 v{VOUT}, 1280, v{VOUT}\nv_lshrrev_b32 v170, 4, v0\nv_mul_u32_u24 v170, 40, v170\nv_add_u32 v{VOUT}, v{VOUT}, v170\nv_add_u32 v171, s{SPK}, v{VL16}")
        e(f"s_lshl_b32 s70, s{S_R64}, 2\ns_add_u32 s70, s70, s{S_TL}\ns_mul_i32 s70, s70, {16*1280}\ns_mul_i32 s71, s{S_CB}, 160\ns_add_u32 s21, s70, s71")
        e(f"s_mul_i32 s70, s{S_WV}, 20480\ns_add_u32 s{SOA}, s{SOA}, s70")
        e(f"s_cmp_eq_u32 s{S_WV}, 3\ns_cselect_b32 s22, 3, 2")
        e.spoll(SFH, SPD, sleep=opt.get('slh', 2), least="s22")
        e.stamp(6, True)
        order = []
        for k in range(NS):
            order.append(('A', k))
            if k >= PB: order.append(('B', k))
        pend = []; gate = [False]
        LOOK = opt.get('look', 2)
        def refill(cur):
            i = 0
            while i < len(order):
                kind, k = order[i]
                if kind == 'A' and k >= NQ and not gate[0]: i += 1; continue
                if k > cur + LOOK or len(free) < (4 if kind == 'A' else 5) + (8 if i > 0 else 0): break
                pend.extend(group(kind, k)); order.pop(i)
        yield_()
        refill(-1)
        for it in pend: emit1(it)
        pend.clear()
        nxtflag = f"s_add_u32 s{SFH}, s{SFH}, 16"
        GK = NQ - opt.get('gk', LOOK); GO = NS - opt.get('go', 0)
        bo = {}; aq = []; dsq = []; lg = []
        def o_weights_stream():
            for u in range(5):
                sl = free.pop(0); bo[(4, u)] = POOL + 4*sl
                pend.append((('Bo',), (f"s_add_u32 s77, s{SOB}, {4*5120}\n" if u == 0 else "") + (ld(vr(POOL + 4*sl), VL16, "s77", 1024*u) if u < 4 else ld(vr(POOL + 4*sl), VL2, "s77", 0))))
        oa = [(t, i) for t in (3, 2, 1, 0) for i in range(5)]; ao = {}
        def a_next():
            t, i = oa.pop(0); sl = free.pop(0); ao[(t, i)] = d = POOL + 4*sl
            if i < 4: return [(('Ao', t, i), f"s_add_u32 s76, s{SOA}, {(i >> 1)*10240 + (i & 1)*4096}\n" + ld(vr(d), VT[t], "s76", 0))]
            return [(('Ao', t, i), f"s_add_u32 s76, s{SOA}, {ee*10240}\nbuffer_load_dwordx2 {vr(d+2*ee,2)}, v{VH[t]}, {sr(SRD_WS)}, s76 offen sc1") for ee in range(2)]
        ob = [(t, i, u) for t in (3, 2, 1, 0) for i in range(4) for u in range(5)]
        def b_next():
            t, i, u = ob.pop(0); sl = free.pop(0); bo[(t, i, u)] = POOL + 4*sl
            if len(lg) >= 15: e("s_waitcnt lgkmcnt(10)"); del lg[:5]
            e(f"ds_read_b128 {vr(POOL + 4*sl)}, v171 offset:{5120*i + 1024*u}"); lg.append((t, i))
        def o_gate():
            e.stamp(7, True)
            e.spoll(SFH, SPD, probed=True, sleep=opt.get('slz', 2), least=2)
            e.stamp(8, True); lg.clear()
            while oa: pend.extend(a_next())
        for k in range(NS):
            if k == GK:
                e.spoll(SFH, SPD, probed=True, sleep=opt.get('slo', 2), least=2)
                gate[0] = True
                e(f"v_and_b32 v{VGO}, 15, v0\nv_lshlrev_b32 v{VGO}, 2, v{VGO}")
                for t in range(4): emit1((('g',), f"s_xor_b32 s76, s{S_TL}, {t}\ns_lshl_b32 s76, s76, 6\ns_add_u32 s76, s76, s{SG}\nbuffer_load_dword v{VGS[t]}, v{VGO}, {sr(SRD_WS)}, s76 offen sc1"))
            refill(k)
            for j in range(4):
                if PK[j] == k and j >= S.parked: pend.extend(park(j))
            if k == NS - 2: o_weights_stream()
            while any(it[0] in (('A', k), ('B', k)) for it in pend): emit1(pend.pop(0))
            if k == GO:
                o_gate()
                for _ in range(4): emit1(pend.pop(0))
            waitvm(lambda t: t in (('A', k), ('B', k)))
            if pend and k != GK - 1 and k < GO - 1: yield_(pre_read=k > 0 and k != GK)
            pst(24 + k)
            cnt = 0
            for t in range(4):
                for u in range(5):
                    e(f"v_mfma_f32_16x16x32_bf16 {vr(acc(u,t))}, {vr(frag[('B',k,u)])}, {vr(frag[('A',k,t)])}, {vr(acc(u,t)) if k else 0}")
                    cnt += 1
                    if cnt % 2 == 0 and pend: emit1(pend.pop(0))
            while pend: emit1(pend.pop(0))
            for i in range(4): free.append((frag[('A', k, i)] - POOL)//4)
            for i in range(5): free.append((frag[('B', k, i)] - POOL)//4)
            if k == GK - 2 or (k == GO - 2 and GO < NS): e(nxtflag); e.sprobe(SFH, SPD)
            elif k == NS - 1 and GO >= NS: e(nxtflag)
            elif YLD and k + 1 < GO - 1 and k + 1 != GK: e(f"ds_read_b32 v{VP}, v{VY}")
        assert not order
        pst(38)
        e.lwait(12, 174, 175)
        waitvm(lambda t: t in (('g',), ('L',)))
        bs = [free.pop(0) for _ in range(3)]; br = [POOL + 4*x for x in bs]
        e(f"v_lshrrev_b32 v{VGO}, 4, v0\nv_mul_u32_u24 v{VGO}, 40, v{VGO}\nv_add_u32 v{VGO}, {B2_LDS}, v{VGO}")
        for i in range(5): e(f"ds_read_b64 {vr(br[i >> 1] + 2*(i & 1), 2)}, v{VGO} offset:{8*i}")
        e("s_waitcnt lgkmcnt(0)")
        for u in range(5):
            for h_ in range(2):
                x = br[u >> 1] + 2*(u & 1) + h_; a = acc(u, 0) + 2*h_
                e(f"v_lshlrev_b32 v174, 16, v{x}\nv_and_b32 v175, 0xffff0000, v{x}\nv_pk_add_f32 {vr(a,2)}, {vr(a,2)}, v[174:175]")
        free.extend(bs)
        if GO >= NS: e.sprobe(SFH, SPD)
        while len(free) > (0 if GO < NS else 20): b_next()
        for t in range(4): e(f"v_sub_f32 v{VGS[t]}, 1.0, v{VGS[t]}")
        for t in (3, 2, 1, 0):
            for u in range(5):
                for r in (0, 2): e(f"v_pk_mul_f32 {vr(acc(u,t)+r,2)}, {vr(acc(u,t)+r,2)}, {vr(VGS[t],2)} op_sel_hi:[1,0]")
        RA = [2, 168, 170, 172]
        for t in range(4): e(f"s_xor_b32 s76, s{S_WV}, {t}\ns_mul_i32 s77, s76, 15360\ns_cmp_eq_u32 s76, 3\ns_cmov_b32 s77, {EXCH_H3}\nv_add_u32 v{RA[t]}, s77, v{VL16}")
        if opt.get('opf'):
            emit1((('opf',), f"buffer_load_dword v{VP}, v{VOUT}, {sr(SRD_T)}, s21 offen"))
        if GO >= NS:
            o_gate()
            for _ in range(opt.get('a0', 24)): emit1(pend.pop(0))
        pst(39)
        wq = []
        for t in (3, 2, 1, 0):
            for i in range(5):
                while any(it[0] == ('Ao', t, i) for it in pend): emit1(pend.pop(0))
                waitvm(lambda x: x == ('Ao', t, i) or x == ('Bo',))
                idx = max([n for n, x in enumerate(lg) if x == (t, i)], default=-1)
                if idx >= 0: e(f"s_waitcnt lgkmcnt({len(lg)-1-idx})"); del lg[:idx+1]
                for u in range(5):
                    bb = bo[(t, i, u)] if i < 4 else bo[(4, u)]
                    e(f"v_mfma_f32_16x16x32_bf16 {vr(acc(u,t))}, {vr(bb)}, {vr(ao[(t,i)])}, {vr(acc(u,t))}")
                    if i < 4 and u: free.append((bo[(t, i, u-1)] - POOL)//4)
                    if u in (0, 2) and pend: emit1(pend.pop(0))
                    if u == 3 and wq:
                        if len(lg) >= 15: e("s_waitcnt lgkmcnt(10)"); del lg[:5]
                        e(wq.pop(0)); lg.append('w')
                    if ob and free and len([x for x in lg if x != 'w']) < 12: b_next()
                if i < 4: free.append((bo[(t, i, 4)] - POOL)//4)
                free.append((ao[(t, i)] - POOL)//4)
            if t: wq += [f"ds_write_b128 v{RA[t]}, {vr(acc(u,t))} offset:{5120*(t-1) + 1024*u}" for u in range(5)]
        assert not wq and not oa and not ob
        pst(40)
        e("s_waitcnt lgkmcnt(0)\ns_barrier")
        pst(41)
        R = POOL
        for u in range(5):
            for sw in range(3): e(f"ds_read_b128 {vr(R + 12*u + 4*sw)}, v{RA[0]} offset:{sw*5120 + u*1024}")
        for u in range(5):
            e(f"s_waitcnt lgkmcnt({12 - 3*u})")
            b = R + 12*u; a = acc(u, 0)
            for r in (0, 2): e(f"v_pk_add_f32 {vr(a+r,2)}, {vr(a+r,2)}, {vr(b+r,2)}\nv_pk_add_f32 {vr(b+4+r,2)}, {vr(b+4+r,2)}, {vr(b+8+r,2)}")
            for r in (0, 2): e(f"v_pk_add_f32 {vr(a+r,2)}, {vr(a+r,2)}, {vr(b+4+r,2)}")
        pst(42)
        for u in range(5):
            a = acc(u, 0)
            e(f"v_cvt_pk_bf16_f32 v{100+2*u}, v{a}, v{a+1}\nv_cvt_pk_bf16_f32 v{101+2*u}, v{a+2}, v{a+3}")
        fl = opt.get('outfl', '')
        e(f"buffer_store_dwordx4 v[100:103], v{VOUT}, {sr(SRD_T)}, s21 offen {fl}\nbuffer_store_dwordx4 v[104:107], v{VOUT}, {sr(SRD_T)}, s21 offen offset:16 {fl}\nbuffer_store_dwordx2 v[108:109], v{VOUT}, {sr(SRD_T)}, s21 offen offset:32 {fl}")
        pst(43)
        if opt.get('steps'):
            e("s_waitcnt vmcnt(0)"); pst(44)
            e(f"s_lshl_b32 s70, s2, 2\ns_add_u32 s70, s70, s{S_WV}\ns_lshl_b32 s70, s70, 8\ns_add_u32 s70, s70, 0xF00000\nv_lshlrev_b32 v2, 2, v0\nbuffer_store_dword v9, v2, {sr(SRD_WS)}, s70 offen\ns_waitcnt vmcnt(0)")
        e.stamps_out()
        e("s_endpgm")
    S.run = run
    return S

def c_first(e):
    if e.opt.get('epf', True) and e.opt.get('walk', True):
        e(f"s_getpc_b64 s[12:13]\nL_pc0:\ns_lshl_b32 s76, s{S_WV}, 10\nv_and_b32 v2, 7, v0\nv_lshl_add_u32 v2, v2, 7, s76\nv_mov_b32 v3, L_C-L_pc0\nv_mov_b32 v4, L_Mgo-L_pc0\nv_cmp_gt_u32 vcc, 8, v0")
        e(f"v_cndmask_b32 v3, v3, v4, vcc\nv_add_u32 v2, v2, v3\ns_mov_b64 exec, 0xffff\nglobal_load_dword v186, v2, s[12:13]\ns_mov_b64 exec, -1")
    if not e.opt.get('x0', False):
        x_setup(e, [128, 129])
        e("s_waitcnt lgkmcnt(0)")
        e.srd(SRD_X, S_X, 2048*1280)
        for t, x in dma_x_ops([128, 129], 0, 0) + dma_x_ops([128, 129], 0, 1): e(x)
    e.fstamp(8)
    e.srd(SRD_T, S_B1, 3456)
    e(f"s_lshl_b32 s76, s{S_J}, 7\ns_mul_i32 s77, s{S_J}, 320\ns_add_u32 s77, s77, 1024\ns_cmp_eq_u32 s{S_ISQ}, 1\ns_cselect_b32 s76, s77, s76\ns_cselect_b32 s77, s77, {OOB}\nv_lshrrev_b32 v132, 4, v0\nv_lshlrev_b32 v132, 3, v132")
    for t in range(10): e(f"buffer_load_dwordx2 {vr(136+2*t,2)}, v132, {sr(SRD_T)}, s{76 if t < 4 else 77} offen offset:{32*t}")
    e.fstamp(6)

def c_wave(e, D):
    XREG = 224; RING = 192; VXA = [246, 247]; AT = [240, 241]
    VZ, VL16 = 242, 243
    if not (e.opt.get('c0', True) and not e.opt.get('x0', False)): c_first(e)
    e("v_lshrrev_b32 v1, 4, v0\nv_bfe_u32 v2, v0, 2, 2\nv_and_b32 v3, 3, v0")
    e("v_and_b32 v5, 1, v1\nv_lshl_add_u32 v4, v5, 2, v2\nv_lshrrev_b32 v6, 1, v1\nv_lshlrev_b32 v6, 13, v6")
    e(f"s_lshl_b32 s76, s{S_WV}, 5\nv_and_b32 v7, 15, v0\nv_add_u32 v7, s76, v7")
    e(f"v_lshrrev_b32 v128, 1, v7\nv_xor_b32 v128, v128, v1\nv_and_b32 v128, 7, v128\nv_lshlrev_b32 v128, 4, v128\nv_lshl_add_u32 v128, v7, 7, v128")
    e(f"v_add_u32 v{VXA[0]}, {XBASE}, v128\nv_xor_b32 v{VXA[1]}, 64, v{VXA[0]}")
    e(f"v_mul_u32_u24 v128, 160, v4\nv_mul_u32_u24 v129, 40, v3\nv_add3_u32 v{AT[0]}, v128, v129, v6\nv_add_u32 v{AT[1]}, {3*WSLOT}, v{AT[0]}")
    e(f"v_mov_b32 v{VZ}, 0\nv_lshlrev_b32 v{VL16}, 4, v0\nv_mov_b32 v128, 0\nv_mov_b32 v129, 0\nv_mov_b32 v130, 0\nv_mov_b32 v131, 0")
    e(f"s_lshl_b32 s76, s{S_WV}, 9\ns_add_u32 s76, s76, {ZERO_LDS}\nv_lshl_add_u32 v132, v0, 3, s76\nds_write_b64 v132, v[128:129]")
    e(f"v_lshlrev_b32 v132, 2, v0\nv_add_u32 v132, {CNT_LDS}, v132\nds_write_b32 v132, v128")
    VPH = 244
    e(f"v_mul_u32_u24 v132, 800, v3\nv_mul_u32_u24 v133, 40, v2\nv_add3_u32 v132, v132, v133, s76\nv_cmp_eq_u32 vcc, v1, v3\ns_add_u32 s77, s76, {-WPHI_LDS & 0xffffffff}")
    e(f"v_subrev_u32 v132, s77, v132\nv_mov_b32 v133, {ZERO_LDS}\nv_cndmask_b32 v{VPH}, v133, v132, vcc")
    e(f"s_mov_b32 s{S_C2}, {f2u(GC2)}\ns_mov_b32 s{S_C2+1}, {f2u(GC2)}\ns_mov_b32 s{S_L}, {f2u(LOG2E)}\ns_mov_b32 s{S_L+1}, {f2u(LOG2E)}")
    e("s_waitcnt lgkmcnt(0)")
    e.srd(SRD_WS, S_WS, WS_SIZE)
    S_HO, S_HFL, S_KFL = 12, 72, 74
    e(f"s_lshl_b32 s76, s{S_RB}, 1\ns_lshr_b32 s77, s{S_WV}, 1\ns_add_u32 s15, s76, s77")
    e(f"s_lshl_b32 s76, s{S_RB}, 11\ns_lshr_b32 s77, s{S_J}, 1\ns_lshl_b32 s77, s77, 2\ns_add_u32 s76, s76, s77\ns_add_u32 s76, s76, {WS_FL + FL_H*128}"); e.wsptr(S_HFL, "s76")
    e(f"s_lshl_b32 s76, s{S_J}, 11\ns_add_u32 s76, s76, {WS_FL + FL_KV*128}"); e.wsptr(S_KFL, "s76")
    S_GO = 3
    e(f"s_lshl_b32 s76, s{S_J}, 13\ns_lshl_b32 s77, s{S_RB}, 9\ns_add_u32 s76, s76, s77\ns_lshl_b32 s77, s{S_WV}, 7\ns_add_u32 s76, s76, s77\ns_add_u32 s{S_GO}, s76, {WS_G}")
    def after_bar0(): e.stamp(2)
    def bias_init(nu, hacc, zero_lo, zero_hi):
        e.fstamp(7)
        for i in list(range(*zero_lo)) + list(range(*zero_hi)): e(f"v_mov_b32 v{i}, 0")
        e("s_waitcnt vmcnt(0)")
        for t in range(nu):
            for m in range(2):
                a = hacc + 8*t + 4*m
                e(f"v_lshlrev_b32 v{a}, 16, v{136+2*t}\nv_and_b32 v{a+1}, 0xffff0000, v{136+2*t}\nv_lshlrev_b32 v{a+2}, 16, v{137+2*t}\nv_and_b32 v{a+3}, 0xffff0000, v{137+2*t}")
        e.stamp(1)
    C1 = 128; T = 130; PK = 140
    def gelu_steps(hacc, nsteps, PK, VL16, skip_from=None, mid=None):
        e(f"v_mov_b32 v{C1}, {f2u(GC1)}\nv_mov_b32 v{C1+1}, {f2u(GC1)}")
        Ls = e.lab("L_hskip")
        for i in range(nsteps):
            if i == skip_from: e(f"s_cmp_eq_u32 s{S_J}, 7\ns_cbranch_scc1 {Ls}")
            for m in range(2):
                d = PK + 4*((2*i + m) % 4)
                a0 = hacc + 16*i + 4*m; a1 = a0 + 8
                gelu_pack(e, [(a0, d), (a0+2, d+1), (a1, d+2), (a1+2, d+3)], T, C1)
                e(f"buffer_store_dwordx4 {vr(d)}, v{VL16}, {sr(SRD_WS)}, s{S_HO} offen offset:{1024*m} sc1")
            e(f"s_add_u32 s{S_HO}, s{S_HO}, 4096")
            if mid and i == 0: mid()
        e(f"{Ls}:")
    WF_ = 140
    QP = 192
    PHR = [f"ds_read_b64_tr_b16 {vr(WF_ + 10*tau + 2*t, 2)}, v{VPH} offset:{160*t + 8*tau}" for tau in range(5) for t in range(5)]
    def phi_stage(P, fill=()):
        for m in range(2):
            for t in range(5):
                a = 8 + 8*t + 4*m
                e(f"v_cvt_pk_bf16_f32 v{QP+10*m+2*t}, v{a}, v{a+1}\nv_cvt_pk_bf16_f32 v{QP+10*m+2*t+1}, v{a+2}, v{a+3}")
        e("s_waitcnt lgkmcnt(0)")
        mf = []
        for ks in range(3):
            for m in range(2):
                for tau in range(5):
                    d = vr(P + 20*m + 4*tau); c = "0" if ks == 0 else d
                    if ks < 2: mf.append(f"v_mfma_f32_16x16x32_bf16 {d}, {vr(WF_+10*tau+4*ks)}, {vr(QP+10*m+4*ks)}, {c}")
                    else: mf.append(f"v_mfma_f32_16x16x16_bf16 {d}, {vr(WF_+10*tau+8,2)}, {vr(QP+10*m+8,2)}, {c}")
        weave(e, mf, fill)
    e(f"s_cmp_eq_u32 s{S_ISQ}, 1\ns_cbranch_scc1 L_CQ")
    AH = [[248, 249], [250, 251], [252, 253], [254, 255]]; AG = [190, 191]
    e("v_lshrrev_b32 v128, 1, v4\nv_lshlrev_b32 v129, 7, v4\nv_lshl_add_u32 v129, v3, 3, v129\nv_add_u32 v129, v129, v6")
    for t in range(4): e(f"v_xor_b32 v130, {t}, v128\nv_lshl_add_u32 v{AH[t][0]}, v130, 5, v129\nv_add_u32 v{AH[t][1]}, {3*WSLOT}, v{AH[t][0]}")
    e(f"v_lshlrev_b32 v{AG[0]}, 4, v1\nv_add_u32 v{AG[1]}, {3*WSLOT}, v{AG[0]}")
    e(f"s_mul_i32 s76, s15, 54\ns_lshl_b32 s77, s{S_J}, 1\ns_add_u32 s76, s76, s77\ns_lshl_b32 s76, s76, 12\ns_and_b32 s77, s{S_WV}, 1\ns_lshl_b32 s77, s77, 11\ns_add_u32 s{S_HO}, s76, s77")
    bias_init(4, 88, (8, 88), (120, 128))
    c_main_loop(e, [Unit(AT, 8*t, 8 + 8*t) for t in range(5)] + [Unit(AT, 1280 + 8*t, 48 + 8*t) for t in range(5)]
                + [Unit(AH[t], 3072, 88 + 8*t) for t in range(4)] + [Unit(AG, 2560, 120, gate=True)], XREG, VXA, RING, D, after_bar0, PHR)
    e.stamp(3)
    if e.opt.get('cprio'): e(f"s_setprio {e.opt['cprio']}")
    e(f"v_mov_b32 v4, 0\nv_mov_b32 v5, v{VL16}")
    VZ0, VL0 = VZ, VL16; VZ, VL16 = 4, 5
    e.busy(1, 136, 137, 'k'); e.lpost(8, 136, 137)
    P = 212; RV = [8, 20]; RP = [140, 160]; EE = 192; XX = 128; AW = 32; AR = 40; AA = [45, 46, 47]
    F = []; f = F.append
    f(f"v_mov_b32 v138, {EXCH_H3 // 16384}\nv_and_b32 v136, 15, v0\ns_lshl_b32 s76, s{S_WV}, 5\nv_add_u32 v136, s76, v136\nv_cmp_eq_u32 vcc, 3, v1\nv_lshlrev_b32 v136, 7, v136\nv_and_b32 v139, 7, v0\nv_cndmask_b32 v137, v1, v138, vcc\nv_lshlrev_b32 v139, 4, v139\nv_lshl_add_u32 v136, v137, 14, v136")
    for m in range(2):
        for t in range(5):
            a = 48 + 8*t + 4*m
            f(f"v_cvt_pk_bf16_f32 v{RV[m]+2*t}, v{a}, v{a+1}\nv_cvt_pk_bf16_f32 v{RV[m]+1+2*t}, v{a+2}, v{a+3}")
        f(f"v_mov_b32 v{RV[m]+10}, 0x3f80\nv_mov_b32 v{RV[m]+11}, 0")
    for i in range(8): f(f"v_xor_b32 v{AW+i}, {16*i}, v139\nv_add_u32 v{AW+i}, v{AW+i}, v136")
    f("\n".join(f"v_mul_f32 v{130+m}, {f2u(-LOG2E)}, v{120+4*m}" for m in range(2)))
    f("\n".join(f"v_exp_f32 v{130+m}, v{130+m}" for m in range(2)))
    f("\n".join(f"v_add_f32 v{130+m}, 1.0, v{130+m}" for m in range(2)))
    f("\n".join(f"v_rcp_f32 v{130+m}, v{130+m}" for m in range(2)) + "\nv_lshlrev_b32 v132, 2, v0")
    phi_stage(P, F)
    e(f"s_mov_b64 exec, 0xffff")
    for m in range(2): e(f"buffer_store_dword v{130+m}, v132, {sr(SRD_WS)}, s{S_GO} offen offset:{64*m} sc1")
    e("s_mov_b64 exec, -1")
    e.stamp(4)
    softmax2(e, P, EE, RP[0], XX, fill=[f"ds_write_b128 v{AW+5+i}, {vr(RV[m]+4*i)} offset:{2048*m}" for m in range(2) for i in range(3)],
             wr=lambda i: e(f"ds_write_b128 v{AW+i}, {vr(RP[0]+4*i)}"))
    e(f"v_lshl_add_u32 v136, v1, 2, v2\nv_and_b32 v137, 7, v136\nv_lshlrev_b32 v136, 7, v136\ns_lshl_b32 s76, s{S_WV}, 14\ns_cmp_eq_u32 s{S_WV}, 3\ns_cmov_b32 s76, {EXCH_H3}\nv_and_b32 v138, 1, v3\nv_lshl_add_u32 v136, v138, 3, v136\nv_add_u32 v136, s76, v136\nv_lshrrev_b32 v138, 1, v3")
    for i, c0 in enumerate([0, 2, 4, 5]): e(f"v_add_u32 v{AR+i}, {c0}, v138\nv_xor_b32 v{AR+i}, v{AR+i}, v137\nv_lshl_add_u32 v{AR+i}, v{AR+i}, 4, v136")
    e(f"v_xor_b32 v{AR+4}, 7, v137\nv_lshl_add_u32 v{AR+4}, v{AR+4}, 4, v136")
    e(f"v_mov_b32 v136, {OOB}\nv_and_b32 v137, 15, v0\nv_cmp_gt_u32 vcc, 32, v0\nv_cndmask_b32 v{AA[0]}, v136, v{VL16}, vcc\nv_cmp_gt_u32 vcc, 5, v137\nv_cndmask_b32 v{AA[1]}, v136, v{VL16}, vcc\nv_cndmask_b32 v{AA[2]}, v136, v{AA[0]}, vcc")
    e(f"s_lshl_b32 s76, s{S_J}, 6\ns_add_u32 s76, s76, s{S_WV}\ns_mul_i32 s76, s76, 6144\ns_add_u32 s4, s76, {WS_KP}\ns_mul_i32 s76, s{S_RB}, 24576\ns_add_u32 s5, s4, s76\ns_add_u32 s6, s5, 4096")
    softmax2(e, P + 20, EE, RP[1], XX, wr=lambda i: e(f"ds_write_b128 v{AW+i}, {vr(RP[1]+4*i)} offset:2048"))
    e.stamp(5)
    e.busy(1, 136, 137, 'a')
    e.lsync(1, 136, 137)
    e.stamp(6)
    FR = lambda st: (48 + 20*st) if st < 2 else (140 + 20*(st - 2))
    KD = 212
    rd = [f"ds_read_b64_tr_b16 {vr(FR(st) + 4*i + 2*h, 2)}, v{AR+i} offset:{4096*st + 2048*h}" for st in range(4) for i in range(5) for h in range(2)]
    for x in rd[:14]: e(x)
    nxt = 14
    for st in range(4):
        need = 10*(st + 1)
        while nxt < need: e(rd[nxt]); nxt += 1
        e(f"s_waitcnt lgkmcnt({nxt - need})")
        for U in range(2):
            for Tt in range(3):
                d = vr(KD + 12*U + 4*Tt)
                e(f"v_mfma_f32_16x16x32_bf16 {d}, {vr(FR(st)+4*Tt)}, {vr(FR(st)+12+4*U)}, {'0' if st == 0 else d}")
                for _ in range(2):
                    if nxt < min(40, need + 14): e(rd[nxt]); nxt += 1
    e.lpost(12, 136, 137)
    e(f"s_mul_i32 s76, s{S_RB}, 14\nv_add_u32 v8, s76, v0\nv_mul_u32_u24 v9, 3121, v8\nv_lshrrev_b32 v9, 16, v9\nv_mul_u32_u24 v10, 21, v9\nv_sub_u32 v10, v8, v10")
    e(f"v_lshrrev_b32 v11, 2, v9\nv_lshrrev_b32 v12, 4, v10\nv_lshl_add_u32 v11, v11, 1, v12\nv_and_b32 v12, 3, v9\nv_and_b32 v13, 15, v10\nv_lshl_add_u32 v12, v12, 4, v13\nv_lshlrev_b32 v12, 4, v12\nv_lshl_add_u32 v11, v11, 10, v12")
    for Tt in range(3):
        for U in range(2):
            av = [[VL16, AA[1]], [VL16, AA[1]], [AA[0], AA[2]]][Tt][U]; ti = 2*Tt + U
            e(f"buffer_store_dwordx4 {vr(KD + 12*U + 4*Tt)}, v{av}, {sr(SRD_WS)}, s{5 if ti < 4 else 6} offen offset:{1024*(ti % 4)} sc1")
    e(f"v_mul_u32_u24 v12, 24, v9\nv_add_lshl_u32 v12, v12, v10, 3\nv_cmp_gt_u32 s[76:77], 14, v0\nv_cmp_gt_u32 vcc, 210, v8\ns_and_b64 vcc, vcc, s[76:77]\nv_mov_b32 v13, {OOB}\nv_cndmask_b32 v11, v13, v11, vcc\nv_cndmask_b32 v12, v13, v12, vcc")
    e(f"s_lshl_b32 s76, s{S_J}, 2\ns_add_u32 s76, s76, s{S_WV}\ns_lshl_b32 s76, s76, 11\ns_add_u32 s7, s76, {WS_KV}")
    e(f"s_add_u32 s68, s{S_KFL}, {(FL_KP - FL_KV)*128}\ns_addc_u32 s69, s{S_KFL+1}, 0")
    e.stamp(7)
    def mid(): e("s_waitcnt vmcnt(2)"); e.busy(-1, 136, 137, 'a'); e.busy(-1, 136, 137, 'k'); e.arrive(2, 136, 137, e.signal(68))
    gelu_steps(88, 2, 192, VL16, mid=mid)
    e(f"s_lshl_b32 s76, s{S_RB}, 7\ns_add_u32 s68, s68, s76\ns_addc_u32 s69, s69, 0")
    e.busy(1, 136, 137, 'b')
    if e.opt.get('lead', True): e.lpoll(19, 68, 34, 16, 136, 137)
    else: e.spoll(68, [34], sleep=e.opt.get('slk', 1), least=16)
    e.busy(1, 136, 137, 'B')
    e.stamp(8)
    SL = 16
    for p in range(16): e(f"buffer_load_dwordx4 {vr(SL + 4*p)}, v11, {sr(SRD_WS)}, s4 offen sc1\ns_add_u32 s4, s4, 24576")
    e("s_waitcnt vmcnt(16)")
    e.arrive(0, 136, 137, e.signal(S_HFL, 4))
    for p in range(1, 16):
        if p in (1, 4, 8, 12): e(f"s_waitcnt vmcnt({ {1: 12, 4: 8, 8: 4, 12: 0}[p] })")
        e(f"v_pk_add_f32 {vr(SL,2)}, {vr(SL,2)}, {vr(SL+4*p,2)}\nv_pk_add_f32 {vr(SL+2,2)}, {vr(SL+2,2)}, {vr(SL+4*p+2,2)}")
    e(f"v_cvt_pk_bf16_f32 v14, v{SL}, v{SL+1}\nv_cvt_pk_bf16_f32 v15, v{SL+2}, v{SL+3}\nbuffer_store_dwordx2 v[14:15], v12, {sr(SRD_WS)}, s7 offen sc1")
    e("s_waitcnt vmcnt(0)"); e.busy(-1, 136, 137, 'b'); e.busy(-1, 136, 137, 'B')
    e.arrive(4, 136, 137, e.signal(S_KFL))
    e.stamps_out()
    e("s_endpgm")
    VZ, VL16 = VZ0, VL0
    e("L_CQ:")
    AE, AO = [248, 249], [250, 251]
    e(f"v_mul_u32_u24 v128, 320, v4\nv_lshl_add_u32 v128, v3, 3, v128\nv_add_u32 v128, v128, v6\nv_lshlrev_b32 v129, 5, v5")
    e(f"v_add_u32 v{AE[0]}, v128, v129\nv_sub_u32 v{AO[0]}, v128, v129\nv_add_u32 v{AO[0]}, 32, v{AO[0]}\nv_add_u32 v{AE[1]}, {3*WSLOT}, v{AE[0]}\nv_add_u32 v{AO[1]}, {3*WSLOT}, v{AO[0]}")
    e(f"s_mul_i32 s76, s15, 54\ns_mul_i32 s77, s{S_J}, 5\ns_add_u32 s76, s76, s77\ns_add_u32 s76, s76, 16\ns_lshl_b32 s76, s76, 12\ns_and_b32 s77, s{S_WV}, 1\ns_lshl_b32 s77, s77, 11\ns_add_u32 s{S_HO}, s76, s77")
    bias_init(10, 48, (8, 48), (0, 0))
    c_main_loop(e, [Unit(AT, 8*t, 8 + 8*t) for t in range(5)] + [Unit(AE if t % 2 == 0 else AO, 1280 + 32*(t - t % 2), 48 + 8*t) for t in range(10)],
                XREG, VXA, RING, D, after_bar0, PHR)
    e.stamp(3)
    if e.opt.get('cprio'): e(f"s_setprio {e.opt['cprio']}")
    e.busy(1, 136, 137, 'd'); e.lpost(8, 136, 137); e.lpost(12, 136, 137)
    gelu_steps(48, 5, 212, VL16, skip_from=3)
    e.busy(-1, 136, 137, 'd')
    e.stamp(4)
    P = 88
    F = []; f = F.append
    f(f"v_lshlrev_b32 v68, 11, v1\nv_add_u32 v68, {KVT}, v68\nv_cmp_eq_u32 vcc, v1, v2\nv_lshl_add_u32 v69, v3, 3, v68\nv_mov_b32 v70, {ZERO_LDS}\nv_cndmask_b32 v240, v70, v69, vcc\nv_cndmask_b32 v239, v70, v68, vcc")
    f(f"v_and_b32 v241, 15, v0\nv_lshlrev_b32 v241, 2, v241")
    phi_stage(P, F)
    PHI = [192, 212]
    hq = e.opt.get('hq', 0)
    def hsig(D):
        e.signal(S_HFL)(D); e(f"s_cmp_lg_u32 s{S_J}, 5\ns_cbranch_scc1 {D}\ns_waitcnt lgkmcnt(0)"); e.signal(S_HFL, 1)(D)
    def harr(): e("s_waitcnt vmcnt(0)"); e.arrive(0, 136, 137, hsig); e.stamp(5)
    for m in range(2):
        if m == hq: harr()
        softmax2(e, P + 20*m, 48, PHI[m], 128)
    e(f"s_lshl_b32 s76, s{S_J}, 2\ns_add_u32 s76, s76, s{S_WV}\ns_lshl_b32 s76, s76, 11\ns_add_u32 s4, s76, {WS_KV}\ns_lshl_b32 s76, s{S_WV}, 11\ns_add_u32 m0, s76, {KVT}")
    e(f"s_lshl_b32 s76, s15, 3\ns_add_u32 s76, s76, s{S_J}\ns_mul_i32 s76, s76, 10240\ns_add_u32 s76, s76, {WS_OF}\ns_and_b32 s77, s{S_WV}, 1\ns_lshl_b32 s5, s77, 11\ns_add_u32 s5, s5, s76\ns_lshl_b32 s6, s77, 10\ns_add_u32 s6, s6, s76\ns_add_u32 s6, s6, 8192\ns_add_u32 s7, s5, 4096")
    e.stamp(6)
    e(f"s_lshl_b32 s76, s{S_RB}, 7\ns_add_u32 s{S_KFL}, s{S_KFL}, s76\ns_addc_u32 s{S_KFL+1}, s{S_KFL+1}, 0")
    if e.opt.get('lead', True): e.lpoll(19, S_KFL, 34, 16, 136, 137)
    else: e.spoll(S_KFL, [34], sleep=e.opt.get('slk', 1), least=16)
    e.stamp(7)
    if e.opt.get('oprio', 3): e(f"s_setprio {e.opt.get('oprio', 3)}")
    for t in range(2): e(f"buffer_load_dwordx4 v{VL16}, {sr(SRD_WS)}, s4 offen offset:{1024*t} sc1 lds")
    e.busy(1, 136, 137, 'c')
    for m in range(2): e(f"buffer_load_dword v{62+m}, v241, {sr(SRD_WS)}, s{S_GO} offen offset:{64*m} sc1")
    e("s_waitcnt vmcnt(2)")
    e.lsync(1, 136, 137)
    AF = 64
    seq = [5, 0, 1, 2, 3, 4]
    rd = [f"ds_read2_b64 {vr(AF + 20*n_ + 4*kp)}, v{240 if u < 5 else 239} offset0:{48*kp + 4*u} offset1:{48*kp + 4*u + 24}" for n_, u in enumerate(seq) for kp in range(5)]
    for x in rd[:10]: e(x)
    nxt = 10
    OD = 8
    for n_, u in enumerate(seq):
        e(f"s_waitcnt lgkmcnt({nxt - 5*(n_+1)})")
        F = []
        for _ in range(5):
            if nxt < 30: F.append(rd[nxt]); nxt += 1
        if n_ == 2:
            F.append("s_waitcnt vmcnt(0)")
            F += [f"v_add_f32 v{56+2*m}, {f2u(1e-6)}, v{OD+40+4*m}" for m in range(2)] + [f"v_rcp_f32 v{56+2*m}, v{56+2*m}" for m in range(2)] + [f"v_mul_f32 v{56+2*m}, v{56+2*m}, v{62+m}" for m in range(2)]
        if n_ >= 4:
            for uu in ([0, 1] if n_ == 4 else [2]):
                for m in range(2):
                    a = OD + 8*uu + 4*m
                    F += [f"v_mul_f32 v{a+r}, v{56+2*m}, v{a+r}" for r in range(4)]
                    F += [f"v_cvt_pk_bf16_f32 v{232+8*0 + 0}, v{a}, v{a+1}".replace(f"v{232}", f"v{[184,188][m] + 2*uu if uu < 2 else [244,248][m]}"),
                          f"v_cvt_pk_bf16_f32 v{([184,188][m] + 2*uu if uu < 2 else [244,248][m]) + 1}, v{a+2}, v{a+3}"]
        weave(e, [f"v_mfma_f32_16x16x32_bf16 {vr(OD + 8*u + 4*m)}, {vr(AF + 20*n_ + 4*kp)}, {vr(PHI[m] + 4*kp)}, {'0' if kp == 0 else vr(OD + 8*u + 4*m)}" for kp in range(5) for m in range(2)], F)
        if n_ == 4:
            for m in range(2): e(f"buffer_store_dwordx4 {vr([184,188][m])}, v{VL16}, {sr(SRD_WS)}, s5 offen offset:{1024*m} sc1")
    for uu in (3, 4):
        for m in range(2):
            a = OD + 8*uu + 4*m
            e(f"v_pk_mul_f32 {vr(a,2)}, {vr(a,2)}, {vr(56+2*m,2)} op_sel_hi:[1,0]\nv_pk_mul_f32 {vr(a+2,2)}, {vr(a+2,2)}, {vr(56+2*m,2)} op_sel_hi:[1,0]")
            d = [244, 248][m] + 2 if uu == 3 else 252 + 2*m
            e(f"v_cvt_pk_bf16_f32 v{d}, v{a}, v{a+1}\nv_cvt_pk_bf16_f32 v{d+1}, v{a+2}, v{a+3}")
        if uu == 3:
            for m in range(2): e(f"buffer_store_dwordx4 {vr([244,248][m])}, v{VL16}, {sr(SRD_WS)}, s7 offen offset:{1024*m} sc1")
    e(f"buffer_store_dwordx4 v[252:255], v{VL16}, {sr(SRD_WS)}, s6 offen sc1")
    e.stamp(8)
    e("s_waitcnt vmcnt(0)"); e.busy(-1, 136, 137, 'c'); e.arrive(2, 136, 137, e.signal(S_HFL, 8))
    e.stamps_out()

HEADER = open("gated_mix__linear_kernel_hedgehog__dense_activation_gelu__prompt.s.ref").read().split("; Override launch")[0] if __name__ == "__main__" else ""
if __name__ == "__main__":
    import ast
    kw = ast.literal_eval(sys.argv[2]) if len(sys.argv) > 2 else {}
    open(sys.argv[1], "w").write(HEADER + gen(**kw))
```

```python
import sys
import hazard

NAME = "gated_mix__linear_kernel_hedgehog__dense_activation_gelu__prompt_kernel"
WSLOT = 16384; NW = 5; XBASE = NW*WSLOT; XSLOT = 16384; NX = 3; NSTEP = 20
SPARE = XBASE + NX*XSLOT
ZERO_LDS = SPARE; CNT_LDS = SPARE + 2048; WPHI_LDS = SPARE + 2304; KVT = WPHI_LDS + 64; KVS = 2080; STG = WPHI_LDS + 8448
EXCH_H3 = XBASE + 2*XSLOT; PARK = 3*WSLOT
B2_LDS = STG + 4*5120
B1_LDS = B2_LDS + 1024
assert B1_LDS + 320 <= 163840
LDS_TOTAL = 163840
WS_HF = 0; WS_OF = 0x700000; WS_WF = 0xA00000; WS_G = 0xD00000; WS_KV = 0xE00000; WS_FL = 0xE20000; WS_KP = 0x1000000
WS_SIZE = 0x1400000; WS_STAMP = 0x2000000
FL_H, FL_KV, FL_KP, FL_W = 0, 1024, 1152, 1280
NINIT = 32
OOB = 0x40000000
S_X, S_WQKV, S_WPHI, S_WO, S_BX, S_W1, S_B1, S_W2 = 16, 18, 20, 22, 24, 26, 28, 30
S_B2, S_GATE, S_OUT, S_DBG, S_WS = 32, 34, 36, 38, 40
SRD_X, SRD_WS, SRD_T, SRD_D = 44, 48, 52, 56
S_RB, S_J, S_ISQ, S_WAVE, S_PH, S_WV, S_R64, S_CB = 60, 61, 62, 63, 64, 65, 66, 67
S_KK, S_XK, S_XOFF, S_M0X, S_M0W = 68, 69, 4, 5, 6
S_C2, S_L = 8, 10
LOG2E = 1.4426950408889634
import struct, math
def f2u(x): return struct.unpack('<I', struct.pack('<f', x))[0]
GC1 = -2.0 * LOG2E * math.sqrt(2.0 / math.pi); GC2 = GC1 * 0.044715

def vr(b, n=4): return f"v[{b}:{b+n-1}]" if n > 1 else f"v{b}"
def sr(b, n=4): return f"s[{b}:{b+n-1}]"

class G:
    def __init__(self, diag=False, **opt):
        self.L = []; self.diag = diag; self.opt = opt; self.nlab = 0
    def __call__(self, s): self.L.append(s)
    def dsbatch(self, lst):
        for i, x in enumerate(lst):
            if i >= 15 and (i - 15) % 5 == 0: self("s_waitcnt lgkmcnt(10)")
            self(x)
    def lab(self, p="L"): self.nlab += 1; return f"{p}_{self.nlab}"
    def srd(self, R, p, size):
        self(f"s_mov_b32 s{R}, s{p}\ns_mov_b32 s{R+1}, s{p+1}\ns_mov_b32 s{R+2}, {size}\ns_mov_b32 s{R+3}, 0x20000")
    def fstamp(self, i):
        if self.opt.get('fine'): self(f"s_memtime s[{80+2*i}:{81+2*i}]")
    def f2(self, i):
        if self.opt.get('fine2'): self(f"s_waitcnt lgkmcnt(0)\ns_memtime s[{80+2*i}:{81+2*i}]\ns_waitcnt lgkmcnt(0)")
    def stamp(self, i, m=False):
        if self.opt.get('fine') and 3 <= i <= 8: return
        if self.opt.get('fine2') and m: return
        if self.diag and (i == 9 or not self.opt.get('lite')): self(f"s_waitcnt lgkmcnt(0)\ns_memtime s[{80+2*i}:{81+2*i}]\ns_waitcnt lgkmcnt(0)")
    def stamps_out(self):
        if not self.diag: return
        e = self
        e(f"s_waitcnt vmcnt(0) lgkmcnt(0)")
        e.stamp(9)
        e("s_memrealtime s[72:73]\ns_waitcnt lgkmcnt(0)")
        e(f"s_mov_b32 s{SRD_T}, s{S_WS}\ns_mov_b32 s{SRD_T+1}, s{S_WS+1}\ns_mov_b32 s{SRD_T+2}, 0x10000000\ns_mov_b32 s{SRD_T+3}, 0x20000")
        e(f"s_lshl_b32 s70, s2, 3\ns_add_u32 s70, s70, s{S_WAVE}\ns_lshl_b32 s70, s70, 6\ns_add_u32 s70, s70, {WS_STAMP}")
        e("s_mov_b64 exec, 1\nv_mov_b32 v1, 0")
        for i in range(10):
            if i: e(f"s_sub_u32 s71, s{80+2*i}, s80")
            else: e("s_mov_b32 s71, s80")
            e(f"v_mov_b32 v2, s71\nbuffer_store_dword v2, v1, {sr(SRD_T)}, s70 offen offset:{4*i}")
        e(f"v_mov_b32 v2, s100\nbuffer_store_dword v2, v1, {sr(SRD_T)}, s70 offen offset:40\nv_mov_b32 v2, s72\nbuffer_store_dword v2, v1, {sr(SRD_T)}, s70 offen offset:44")
        e("s_waitcnt vmcnt(0)")
        if self.opt.get('dbgrt'):
            e("s_memrealtime s[70:71]\ns_waitcnt lgkmcnt(0)")
            e.srd(SRD_T, S_DBG, 256)
            e(f"v_mov_b32 v2, s70\nbuffer_atomic_umax v2, v1, {sr(SRD_T)}, 0 offen offset:4 sc1")
            e(f"s_not_b32 s71, s100\nv_mov_b32 v2, s71\nbuffer_atomic_umax v2, v1, {sr(SRD_T)}, 0 offen offset:8 sc1")
            for i in range(1, 10):
                e(f"s_sub_u32 s71, s{80+2*i}, s80\ns_cmp_gt_u32 s71, 0x1000000\ns_cmov_b32 s71, 0\nv_mov_b32 v2, s71\nbuffer_atomic_umax v2, v1, {sr(SRD_T)}, 0 offen offset:{8+4*i} sc1")
            e(f"v_mov_b32 v2, s100\nbuffer_atomic_umax v2, v1, {sr(SRD_T)}, 0 offen offset:48 sc1")
            e("s_waitcnt vmcnt(0)")
    def wsptr(self, d, soff):
        self(f"s_add_u32 s{d}, s{S_WS}, {soff}\ns_addc_u32 s{d+1}, s{S_WS+1}, 0")
    def sprobe(self, base, dst):
        for i, d in enumerate(dst): self(f"s_load_dword s{d}, s[{base}:{base+1}], {128*i} glc")
    def spoll(self, base, dst, probed=False, sleep=1, least=None):
        e = self; L = e.lab("L_sp"); C = e.lab("L_spc"); D = e.lab("L_spd")
        e("s_mov_b32 s79, 0")
        if probed: e(f"s_branch {C}") if False else None
        def chk():
            e("s_waitcnt lgkmcnt(0)")
            if least is not None: e(f"s_cmp_ge_u32 s{dst[0]}, {least}")
            elif len(dst) == 1: e(f"s_cmp_lg_u32 s{dst[0]}, 0")
            else:
                for d in dst[1:]: e(f"s_and_b32 s{dst[0]}, s{dst[0]}, s{d}")
            e(f"s_cbranch_scc1 {D}")
        if probed: chk()
        e(f"{L}:"); e.sprobe(base, dst); chk()
        e(f"s_add_u32 s79, s79, 1\ns_cmp_ge_u32 s79, 0x200000\ns_cbranch_scc1 L_end")
        if sleep: e(f"s_sleep {sleep}")
        e(f"s_branch {L}\n{D}:")
    def lpoll(self, cnt, base, d, least, va, vt, probed=False, sleep=0, hp=None):
        e = self; F = e.lab("L_lf"); D = e.lab("L_lpd"); S = e.lab("L_lps"); L = e.lab("L_lpl")
        if hp is not None: e(f"s_setprio {hp[0]}")
        e(f"v_mov_b32 v{va}, {CNT_LDS + 4*cnt}\ns_mov_b32 s79, 0")
        if probed: e(f"s_waitcnt lgkmcnt(0)\ns_cmp_ge_u32 s{d}, {least}\ns_cbranch_scc1 {S}")
        e(f"s_cmp_lg_u32 s{S_WV}, 0\ns_cbranch_scc1 {F}\n{L}:\ns_load_dword s{d}, s[{base}:{base+1}], 0 glc\ns_waitcnt lgkmcnt(0)\ns_cmp_ge_u32 s{d}, {least}\ns_cbranch_scc1 {S}")
        e(f"s_add_u32 s79, s79, 1\ns_cmp_ge_u32 s79, 0x200000\ns_cbranch_scc1 L_end\n" + (f"s_sleep {sleep}\n" if sleep else "") + f"s_branch {L}")
        e(f"{F}:\nds_read_b32 v{vt}, v{va}\ns_waitcnt lgkmcnt(0)\nv_readfirstlane_b32 s78, v{vt}\ns_cmp_lg_u32 s78, 0\ns_cbranch_scc1 {D}")
        e(f"s_add_u32 s79, s79, 1\ns_cmp_ge_u32 s79, 0x1000000\ns_cbranch_scc1 L_end\ns_branch {F}")
        e(f"{S}:\nv_mov_b32 v{vt}, 1\nds_write_b32 v{va}, v{vt}\n{D}:")
        if hp is not None: e(f"s_setprio {hp[1]}")
    def arrive(self, cnt, va, vt, then):
        e = self; D = e.lab("L_arr")
        e(f"s_mov_b64 exec, 1\nv_mov_b32 v{va}, {CNT_LDS + 4*cnt}\nv_mov_b32 v{vt}, 1\nds_add_rtn_u32 v{va}, v{va}, v{vt}\ns_waitcnt lgkmcnt(0)")
        e(f"v_readfirstlane_b32 s78, v{va}\ns_mov_b64 exec, -1\ns_cmp_lg_u32 s78, 3\ns_cbranch_scc1 {D}")
        then(D)
        e(f"{D}:")
    def signal(self, base, word=0, stride=128):
        def f(D):
            for i in range(16): self(f"s_atomic_add s{16+i}, s[{base}:{base+1}], {stride*i + 4*word} glc")
        return f
    def arm(self):
        self("s_waitcnt lgkmcnt(0)\n" + "\n".join(f"s_mov_b32 s{16+i}, 1" for i in range(16)))
    def sfirst(self, base, offs, dst):
        for o, d in zip(offs, dst): self(f"s_load_dword s{d}, s[{base}:{base+1}], {o}")
    def scheck(self, dst, target, srd, soff, vz, vt, vm):
        e = self; D = e.lab("L_sc")
        e("s_waitcnt lgkmcnt(0)")
        for d in dst[1:]: e(f"s_min_u32 s{dst[0]}, s{dst[0]}, s{d}")
        e(f"s_cmp_ge_u32 s{dst[0]}, {target}\ns_cbranch_scc1 {D}\nv_mov_b32 v{vt}, 0")
        e.vpoll(srd, soff, target, vz, vt)
        e(f"{D}:")
    def vpoll(self, srd, soff, target, vz, vt):
        e = self; L = e.lab("L_vp"); D = e.lab("L_vpd")
        e(f"s_mov_b32 s79, 0\n{L}:\nv_cmp_gt_u32 vcc, {target}, v{vt}\ns_cmp_eq_u64 vcc, 0\ns_cbranch_scc1 {D}")
        e(f"s_add_u32 s79, s79, 1\ns_cmp_ge_u32 s79, 0x100000\ns_cbranch_scc1 L_end\ns_sleep 8")
        e(f"buffer_load_dword v{vt}, v{vz}, {sr(srd)}, {soff} offen sc1\ns_waitcnt vmcnt(0)\ns_branch {L}\n{D}:")
    def lpost(self, cnt, va, vt):
        self(f"s_mov_b64 exec, 1\nv_mov_b32 v{va}, {CNT_LDS + 4*cnt}\nv_mov_b32 v{vt}, 1\nds_add_u32 v{va}, v{vt}\ns_mov_b64 exec, -1")
    def lwait(self, cnt, va, vt, sleep=1):
        e = self; L = e.lab("L_lw"); D = e.lab("L_lwd")
        e(f"s_setprio {e.opt.get('hp', 3)}")
        e(f"v_mov_b32 v{va}, {CNT_LDS + 4*cnt}\ns_mov_b32 s79, 0\n{L}:\nds_read_b32 v{vt}, v{va}\ns_waitcnt lgkmcnt(0)\nv_readfirstlane_b32 s78, v{vt}\ns_cmp_ge_u32 s78, 4\ns_cbranch_scc1 {D}")
        e(f"s_add_u32 s79, s79, 1\ns_cmp_ge_u32 s79, 0x1000000\ns_cbranch_scc1 L_end\n" + (f"s_sleep {sleep}\n" if sleep else "") + f"s_branch {L}\n{D}:\ns_setprio {e.opt.get('mprio', 0)}")
    def busy(self, d, va, vt, w=''):
        if w in self.opt.get('yld', ''): self(f"s_mov_b64 exec, 1\nv_mov_b32 v{va}, {CNT_LDS + 4*11}\nv_mov_b32 v{vt}, {d}\nds_add_u32 v{va}, v{vt}\ns_mov_b64 exec, -1")
    def lsync(self, cnt, va, vt):
        e = self; L = e.lab("L_ls")
        e(f"s_waitcnt lgkmcnt(0)\ns_mov_b64 exec, 1\nv_mov_b32 v{va}, {CNT_LDS + 4*cnt}\nv_mov_b32 v{vt}, 1\nds_add_u32 v{va}, v{vt}\ns_mov_b32 s79, 0\n{L}:")
        e(f"ds_read_b32 v{vt}, v{va}\ns_waitcnt lgkmcnt(0)\nv_readfirstlane_b32 s78, v{vt}\ns_add_u32 s79, s79, 1\ns_cmp_ge_u32 s79, 0x1000000\ns_cbranch_scc1 L_end\ns_cmp_lt_u32 s78, 4\ns_cbranch_scc1 {L}\ns_mov_b64 exec, -1")

SA, SAE, SAS, SB, SBE, SBS, SA2, SB2, SOA, SOB, SG, SPK = 16, 17, 18, 19, 24, 25, 26, 27, 28, 29, 10, 11
SFH, SFW = 34, 8
SPD = [20]; S_TL = 43
P3_ACC = 176; P3_B2 = 100; P3_VT = [10, 11, 12, 3]; P3_VL2 = 13; P3_VLB = 5; P3_VF = 171
p3acc = lambda u, t: P3_ACC + 16*u + 4*t

class Unit:
    def __init__(self, areg, off, acc, gate=False): self.areg, self.off, self.acc, self.gate = areg, off, acc, gate

def c_main_loop(e, units, xreg, xaddr, ring, D, after_bar0, tail=()):
    tail = list(tail)
    n = len(units); R = D + 2; lg = []; total = NSTEP * n
    def wait_lg(tags):
        idx = max([i for i, t in enumerate(lg) if t in tags], default=-1)
        if idx < 0: return
        cnt = len(lg) - 1 - idx; assert cnt <= 15
        e(f"s_waitcnt lgkmcnt({cnt})"); del lg[:idx + 1]
    def xreads(s, out):
        for m in range(2):
            out.append(f"ds_read_b128 {vr(xreg + 8*(s % 2) + 4*m)}, v{xaddr[s % 2]} offset:{((s//2) % NX)*XSLOT + m*2048}"); lg.append(('x', s))
    def wreads(q, out):
        s, u = divmod(q, n); U = units[u]; r = ring + 4*(q % R); slot = s % NW
        a = U.areg[slot // 3]; o = (slot % 3)*WSLOT + U.off
        if U.gate:
            out.append(f"ds_read_b128 {vr(r)}, v{a} offset:{o}"); lg.append(('w', q)); return
        out.append(f"ds_read_b64_tr_b16 {vr(r,2)}, v{a} offset:{o}"); out.append(f"ds_read_b64_tr_b16 {vr(r+2,2)}, v{a} offset:{o + 4096}")
        lg.extend([('w', q)]*2)
    e("s_barrier"); after_bar0()
    buf = []; xreads(0, buf)
    for q in range(D): wreads(q, buf)
    for b in buf: e(b)
    for q in range(total):
        s, u = divmod(q, n)
        tags = [('w', q), ('x', s)]
        if q % 2 == 0 and q + 1 < total: tags += [('w', q + 1), ('x', (q + 1)//n)]
        wait_lg(tags)
        buf = []; qa = q + D
        if qa < total:
            if qa % n == 0: buf.append("s_barrier"); xreads(qa // n, buf)
            wreads(qa, buf)
        elif tail:
            k_ = -(-len(tail) // (total - q))
            for x in tail[:k_]:
                if len(lg) >= 15: buf.append("s_waitcnt lgkmcnt(10)"); del lg[:len(lg) - 10]
                buf.append(x); lg.append(('t',))
            del tail[:k_]
        U = units[u]; r = ring + 4*(q % R); half = (len(buf) + 1)//2
        for m in range(2):
            acc = vr(U.acc + 4*m)
            e(f"v_mfma_f32_16x16x32_bf16 {acc}, {vr(r)}, {vr(xreg + 8*(s % 2) + 4*m)}, {acc}")
            for b in (buf[:half] if m == 0 else buf[half:]): e(b)

def gelu_pack(e, jobs, T, C1):
    for i in range(0, len(jobs), 4):
        grp = jobs[i:i+4]
        for k, (s, d) in enumerate(grp): e(f"v_pk_mul_f32 {vr(T+2*k,2)}, {vr(s,2)}, {vr(s,2)}")
        for k, (s, d) in enumerate(grp): e(f"v_pk_fma_f32 {vr(T+2*k,2)}, {vr(T+2*k,2)}, {sr(S_C2,2)}, {vr(C1,2)}")
        for k, (s, d) in enumerate(grp): e(f"v_pk_mul_f32 {vr(T+2*k,2)}, {vr(T+2*k,2)}, {vr(s,2)}")
        for k in range(2*len(grp)): e(f"v_exp_f32 v{T+k}, v{T+k}")
        for k, (s, d) in enumerate(grp): e(f"v_pk_add_f32 {vr(T+2*k,2)}, {vr(T+2*k,2)}, 1.0 op_sel_hi:[1,0]")
        for k in range(2*len(grp)): e(f"v_rcp_f32 v{T+k}, v{T+k}")
        for k, (s, d) in enumerate(grp): e(f"v_pk_mul_f32 {vr(T+2*k,2)}, {vr(T+2*k,2)}, {vr(s,2)}")
        for k, (s, d) in enumerate(grp): e(f"v_cvt_pk_bf16_f32 v{d}, v{T+2*k}, v{T+2*k+1}")

def softmax2(e, P, E, OUT, X, fill=(), wr=None):
    B = []; o = lambda t: B.extend(t.split("\n"))
    mx, mn = X, X + 2
    o(f"v_max3_f32 v{mx}, v{P}, v{P+1}, v{P+2}\nv_min3_f32 v{mn}, v{P}, v{P+1}, v{P+2}")
    for i in range(3, 19, 2): o(f"v_max3_f32 v{mx}, v{mx}, v{P+i}, v{P+i+1}\nv_min3_f32 v{mn}, v{mn}, v{P+i}, v{P+i+1}")
    o(f"v_max_f32 v{mx}, v{mx}, v{P+19}\nv_min_f32 v{mn}, v{mn}, v{P+19}")
    o(f"v_mul_f32 v{mx}, s{S_L}, v{mx}\nv_mul_f32 v{mn}, s{S_L}, v{mn}")
    for i in range(0, 20, 2):
        o(f"v_pk_fma_f32 {vr(E+i,2)}, {vr(P+i,2)}, {sr(S_L,2)}, {vr(mx,2)} op_sel_hi:[1,1,0] neg_lo:[0,0,1] neg_hi:[0,0,1]")
        o(f"v_pk_fma_f32 {vr(P+i,2)}, {vr(P+i,2)}, {sr(S_L,2)}, {vr(mn,2)} op_sel_hi:[1,1,0] neg_lo:[1,0,0] neg_hi:[1,0,0]")
    for i in range(20): o(f"v_exp_f32 v{E+i}, v{E+i}\nv_exp_f32 v{P+i}, v{P+i}")
    sp, sn = X + 4, X + 6
    o(f"v_pk_add_f32 {vr(sp,2)}, {vr(E,2)}, {vr(E+2,2)}\nv_pk_add_f32 {vr(sn,2)}, {vr(P,2)}, {vr(P+2,2)}")
    for i in range(4, 20, 2): o(f"v_pk_add_f32 {vr(sp,2)}, {vr(sp,2)}, {vr(E+i,2)}\nv_pk_add_f32 {vr(sn,2)}, {vr(sn,2)}, {vr(P+i,2)}")
    o(f"v_add_f32 v{sp}, v{sp}, v{sp+1}\nv_add_f32 v{sn}, v{sn}, v{sn+1}\nv_rcp_f32 v{sp}, v{sp}\nv_rcp_f32 v{sn}, v{sn}")
    fill = list(fill); step = len(B) // (len(fill) + 1)
    for i, x in enumerate(B):
        e(x)
        if fill and (i + 1) % step == 0: e(fill.pop(0))
    for src, sc, half in ((E, sp, 0), (P, sn, 1)):
        for i in range(10):
            e(f"v_pk_mul_f32 {vr(src+2*i,2)}, {vr(src+2*i,2)}, {vr(sc,2)} op_sel_hi:[1,0]")
            if i >= 1: e(f"v_cvt_pk_bf16_f32 v{OUT+10*half+i-1}, v{src+2*i-2}, v{src+2*i-1}")
            done = 10*half + i
            if wr and i >= 1 and done % 4 == 0: wr(done // 4 - 1)
        e(f"v_cvt_pk_bf16_f32 v{OUT+10*half+9}, v{src+18}, v{src+19}")
    if wr: wr(4)

def weave(e, main, fill, per=2):
    fill = [x for t in fill for x in t.split("\n")]
    for x in main:
        e(x)
        for _ in range(per):
            if fill: e(fill.pop(0))
    for x in fill: e(x)

def gen(diag=False, D=5, rot=(10, 20, 10, 5), PB=5, **opt):
    e = G(diag, **opt)
    e(f"; @launch grid=(256,1,1) block=(512,1,1) lds={LDS_TOTAL}")
    e(f'.amdgcn_target "amdgcn-amd-amdhsa--gfx950"\n.text\n.globl {NAME}\n.p2align 8\n.type {NAME},@function\n{NAME}:')
    if diag: e("s_memtime s[80:81]\ns_memrealtime s[100:101]")
    e("s_cmp_ge_u32 s2, 256\ns_cbranch_scc1 L_end")
    e("s_load_dwordx16 s[16:31], s[0:1], 0\ns_load_dwordx8 s[32:39], s[0:1], 64\ns_load_dwordx2 s[40:41], s[0:1], 96")
    if opt.get('epf', False):
        e(f"s_getpc_b64 s[12:13]\nL_pc0:\nv_lshlrev_b32 v2, 4, v0\nv_and_b32 v2, 0xc00, v2\nv_and_b32 v3, 7, v0\nv_lshl_add_u32 v2, v3, 7, v2")
        e(f"v_mov_b32 v3, L_C-L_pc0\nv_cmp_gt_u32 vcc, 256, v0\nv_cndmask_b32 v3, 0, v3, vcc\nv_add_u32 v2, v2, v3\ns_mov_b64 exec, 0xff\nglobal_load_dword v186, v2, s[12:13]\ns_mov_b64 exec, -1")
    if opt.get('cpt'):
        e(f"s_getpc_b64 s[76:77]\nL_pct:\ns_lshr_b32 s78, s2, 3\ns_lshl_b32 s78, s78, 11\nv_lshrrev_b32 v1, 6, v0\nv_and_b32 v2, 1, v0\nv_lshl_add_u32 v2, v1, 1, v2\nv_lshl_add_u32 v2, v2, 7, s78")
        e(f"v_min_u32 v2, L_end-L_pct, v2\ns_mov_b64 exec, 3\nglobal_load_dword v187, v2, s[76:77]\ns_mov_b64 exec, -1")
    e(f"v_lshrrev_b32 v1, 6, v0\nv_and_b32 v0, 63, v0")
    e(f"s_and_b32 s70, s2, 7\ns_lshr_b32 s71, s2, 3")
    e(f"v_readfirstlane_b32 s{S_WAVE}, v1")
    e(f"s_and_b32 s72, s70, 1\ns_and_b32 s73, s71, 7\ns_lshl_b32 s74, s72, 3\ns_add_u32 s{S_RB}, s74, s73")
    if opt.get('mix', True):
        e(f"s_lshr_b32 s{S_ISQ}, s71, 4\ns_lshr_b32 s74, s70, 1\ns_lshr_b32 s75, s71, 3")
        e(f"s_and_b32 s76, s75, 1\ns_lshl_b32 s77, s74, 1\ns_add_u32 s{S_J}, s76, s77")
    else:
        e(f"s_lshr_b32 s{S_ISQ}, s70, 2\ns_lshr_b32 s74, s70, 1\ns_lshr_b32 s75, s71, 3")
        e(f"s_and_b32 s76, s74, 1\ns_lshl_b32 s76, s76, 2\ns_add_u32 s{S_J}, s76, s75")
    a, b, c, d = rot
    e(f"s_mul_i32 s76, s73, {a}\ns_mul_i32 s77, s75, {b}\ns_add_u32 s76, s76, s77\ns_mul_i32 s77, s74, {c}\ns_add_u32 s76, s76, s77\ns_mul_i32 s77, s72, {d}\ns_add_u32 s76, s76, s77\ns_lshr_b32 s76, s76, 3")
    e(f"s_mul_i32 s77, s76, 6554\ns_lshr_b32 s77, s77, 16\ns_mul_i32 s77, s77, 10\ns_sub_u32 s{S_PH}, s76, s77")
    e(f"s_and_b32 s{S_WV}, s{S_WAVE}, 3")
    e.fstamp(3)
    if opt.get('c0', True):
        e(f"s_cmp_ge_u32 s{S_WAVE}, 4\ns_cbranch_scc1 L_M")
        c_first(e)
        e("s_branch L_C\nL_M:")
    else: e(f"s_cmp_lt_u32 s{S_WAVE}, 4\ns_cbranch_scc1 L_C")
    m_wave(e, PB)
    e("L_C:")
    c_wave(e, D)
    e("L_end:\ns_endpgm")
    e(f""".section .rodata,"a"
.p2align 6
.amdhsa_kernel {NAME}
  .amdhsa_next_free_vgpr 256
  .amdhsa_next_free_sgpr 102
  .amdhsa_accum_offset 256
  .amdhsa_group_segment_fixed_size 0
  .amdhsa_kernarg_size 104
  .amdhsa_user_sgpr_count 2
  .amdhsa_user_sgpr_kernarg_segment_ptr 1
  .amdhsa_system_sgpr_workgroup_id_x 1
.end_amdhsa_kernel""")
    txt, n = hazard.fix("\n".join(e.L), opt.get('verbose', False))
    return txt + "\n"

def x_setup(e, VX):
    e(f"v_lshrrev_b32 v2, 3, v0\ns_lshl_b32 s76, s{S_WV}, 4\nv_add_u32 v2, s76, v2")
    e(f"v_lshrrev_b32 v3, 4, v0\nv_xor_b32 v3, v3, v0\nv_and_b32 v3, 7, v3\nv_lshlrev_b32 v3, 4, v3")
    e(f"v_mul_u32_u24 v2, 1280, v2\nv_add_u32 v{VX[0]}, v2, v3")
    e(f"v_xor_b32 v3, 64, v3\nv_add_u32 v2, {8*1280-1024}, v2\nv_add_u32 v{VX[1]}, v2, v3")
    e(f"s_mul_i32 s{S_XOFF}, s{S_RB}, {128*1280}\ns_lshl_b32 s{S_M0X}, s{S_WV}, 11\ns_add_u32 s{S_M0X}, s{S_M0X}, {XBASE}\ns_lshl_b32 s{S_XK}, s{S_PH}, 7")
XADV = f"s_add_u32 s{S_XK}, s{S_XK}, 128\ns_cmp_eq_u32 s{S_XK}, 1280\ns_cmov_b32 s{S_XK}, 0"
def dma_x_ops(VX, X, h):
    pre = f"s_add_u32 s76, s{S_XK}, {h*81920}\ns_add_u32 m0, s{S_M0X}, {(X % NX)*XSLOT + h*8192}\ns_add_u32 s76, s76, s{S_XOFF}\n"
    return [(('x', X), pre + f"buffer_load_dwordx4 v{VX[0]}, {sr(SRD_X)}, s76 offen lds"),
            (('x', X), f"buffer_load_dwordx4 v{VX[1]}, {sr(SRD_X)}, s76 offen offset:1024 lds" + ("\n" + XADV if h else ""))]

def m_wave(e, PB):
    e("s_setprio 3")
    VX = [16, 17]; VB = [18, 20, 22, 24]; VS = [26, 27, 28, 29]; VA = [30, 32, 34, 36]
    e(f"s_lshl_b32 s{S_M0W}, s{S_WV}, 12\ns_lshl_b32 s{S_KK}, s{S_PH}, 1")
    e(f"s_lshr_b32 s76, s{S_WV}, 1\ns_lshl_b32 s76, s76, 4\ns_and_b32 s77, s{S_WV}, 1\ns_lshl_b32 s77, s77, 2\ns_add_u32 s78, s76, s77")
    def krow(dst, rho):
        e(f"v_and_b32 v{dst}, 4, v{rho}\nv_add3_u32 v{dst}, v{dst}, v{rho}, s78")
    def panel(dst, ci0, colreg, kv):
        e(f"v_add_u32 v2, {ci0}, v0\nv_mul_u32_u24 v3, 6554, v2\nv_lshrrev_b32 v3, 16, v3\nv_mul_u32_u24 v4, 10, v3\nv_sub_u32 v4, v2, v4")
        if kv: e(f"v_lshrrev_b32 v6, 3, v3\nv_and_b32 v3, 7, v3\nv_mul_u32_u24 v6, 1280, v6\nv_lshl_add_u32 v4, v4, 4, v6")
        else: e(f"v_lshlrev_b32 v4, 4, v4")
        krow(5, 3)
        e(f"v_mul_u32_u24 v5, 3840, v5\nv_add3_u32 v{dst}, v5, v4, s{colreg}")
    def h160(dst, hi0):
        e(f"v_add_u32 v2, {hi0}, v0\nv_min_i32 v2, 159, v2\nv_max_i32 v2, 0, v2\nv_mul_u32_u24 v3, 3277, v2\nv_lshrrev_b32 v3, 16, v3\nv_mul_u32_u24 v4, 20, v3\nv_sub_u32 v4, v2, v4")
        e(f"v_lshrrev_b32 v6, 1, v3\nv_and_b32 v6, 2, v6\nv_xor_b32 v4, v4, v6\nv_min_u32 v4, s77, v4\nv_lshlrev_b32 v4, 4, v4")
        krow(5, 3)
        e(f"v_mul_u32_u24 v5, 3456, v5\nv_add3_u32 v{dst}, v5, v4, s76")
    def addptr(b, off, plo, phi):
        if b: e(f"v_subrev_u32 v{off}, {1024*b}, v{off}\nv_ashrrev_i32 v7, 31, v{off}")
        else: e(f"v_mov_b32 v7, 0")
        e(f"v_add_co_u32 v{VB[b]}, vcc, {plo}, v{off}")
        if phi.startswith('s'): e(f"v_mov_b32 v6, {phi}"); phi = "v6"
        e(f"v_addc_co_u32 v{VB[b]+1}, vcc, {phi}, v7, vcc")
    vm = ([('pf',)] if e.opt.get('epf', False) else []) + ([('pf',)] if e.opt.get('cpt') else [])
    def emit(lst):
        for tag, txt in lst: e(txt); vm.append(tag)
    def wait_vm(pred):
        idx = max([i for i, t in enumerate(vm) if pred(t)], default=-1)
        if idx >= 0: e(f"s_waitcnt vmcnt({len(vm)-1-idx})"); del vm[:idx+1]
    def dma_w(step):
        pre = "".join(f"v_mad_u64_u32 {vr(VA[b],2)}, vcc, v{VS[b]}, s{S_KK}, {vr(VB[b],2)}\n" for b in range(4))
        pre += f"s_add_u32 m0, s{S_M0W}, {(step % NW)*WSLOT}\ns_add_u32 s{S_KK}, s{S_KK}, 1\ns_cmp_eq_u32 s{S_KK}, 20\ns_cmov_b32 s{S_KK}, 0\n"
        return [(('w', step), (pre if b == 0 else "") + f"global_load_lds_dwordx4 {vr(VA[b],2)}, off offset:{1024*b} {e.opt.get('wnt', '')}") for b in range(4)]
    dma_x = lambda X, h: dma_x_ops(VX, X, h)
    O = [8, 46, 10, 11, 12]
    e(f"s_cmp_eq_u32 s{S_ISQ}, 1\ns_cbranch_scc1 L_MQ")
    e(f"s_mul_i32 s76, s{S_J}, 160\ns_add_u32 s76, s76, 1280")
    panel(O[0], 0, 76, True); panel(O[1], 64, 76, True); panel(O[2], 128, 76, True)
    e(f"v_lshrrev_b32 v3, 3, v0\nv_and_b32 v4, 6, v3\nv_xor_b32 v4, v4, v0\nv_and_b32 v4, 7, v4\nv_lshlrev_b32 v4, 4, v4\ns_lshl_b32 s76, s{S_J}, 7")
    krow(5, 3)
    e(f"v_mul_u32_u24 v5, 3456, v5\nv_add3_u32 v{O[3]}, v5, v4, s76")
    e(f"v_subrev_u32 v2, 32, v0\nv_min_u32 v2, 3, v2\nv_lshlrev_b32 v2, 4, v2\nv_cmp_gt_u32 s[14:15], 32, v0")
    e(f"v_mov_b32 v{VS[0]}, {32*3840}\nv_mov_b32 v{VS[1]}, {32*3840}\nv_mov_b32 v{VS[3]}, {32*3456}\nv_cndmask_b32 v{O[2]}, v2, v{O[2]}, s[14:15]\nv_cndmask_b32 v{VS[2]}, 64, v{VS[0]}, s[14:15]")
    e.fstamp(4)
    e("s_waitcnt lgkmcnt(0)")
    e.fstamp(5)
    addptr(0, O[0], f"s{S_WQKV}", f"s{S_WQKV+1}"); addptr(1, O[1], f"s{S_WQKV}", f"s{S_WQKV+1}"); addptr(3, O[3], f"s{S_W1}", f"s{S_W1+1}")
    e(f"v_mov_b32 v2, s{S_GATE}\nv_mov_b32 v3, s{S_WQKV}\nv_cndmask_b32 v2, v2, v3, s[14:15]\nv_mov_b32 v3, s{S_GATE+1}\nv_mov_b32 v4, s{S_WQKV+1}\nv_cndmask_b32 v3, v3, v4, s[14:15]")
    addptr(2, O[2], "v2", "v3")
    e("s_branch L_Mgo\nL_MQ:")
    e(f"s_mul_i32 s79, s{S_J}, 160\ns_mul_i32 s76, s{S_J}, 320\ns_add_u32 s76, s76, 1024\ns_cmp_eq_u32 s{S_J}, 7\ns_cselect_b32 s77, 11, 19")
    panel(O[0], 0, 79, False); panel(O[1], 64, 79, False); h160(O[4], -16); h160(O[2], 48); h160(O[3], 112)
    e(f"v_cmp_gt_u32 s[14:15], 16, v0\nv_mov_b32 v{VS[0]}, {32*3840}\nv_mov_b32 v{VS[2]}, {32*3456}\nv_mov_b32 v{VS[3]}, {32*3456}")
    e(f"v_cndmask_b32 v{O[1]}, v{O[4]}, v{O[1]}, s[14:15]\nv_cndmask_b32 v{VS[1]}, v{VS[2]}, v{VS[0]}, s[14:15]")
    e.fstamp(4)
    e("s_waitcnt lgkmcnt(0)")
    e.fstamp(5)
    addptr(0, O[0], f"s{S_WQKV}", f"s{S_WQKV+1}"); addptr(2, O[2], f"s{S_W1}", f"s{S_W1+1}"); addptr(3, O[3], f"s{S_W1}", f"s{S_W1+1}")
    e(f"v_mov_b32 v2, s{S_W1}\nv_mov_b32 v3, s{S_WQKV}\nv_cndmask_b32 v2, v2, v3, s[14:15]\nv_mov_b32 v3, s{S_W1+1}\nv_mov_b32 v4, s{S_WQKV+1}\nv_cndmask_b32 v3, v3, v4, s[14:15]")
    addptr(1, O[1], "v2", "v3")
    e("L_Mgo:")
    LA = e.opt.get('LA', 2); JS = e.opt.get('JS', 8)
    if e.opt.get('linbar'): e("s_barrier")
    emit(dma_w(0))
    e.stamp(1)
    emit(dma_w(1))
    x_setup(e, VX); e.srd(SRD_X, S_X, 2048*1280)
    e(XADV)
    if LA >= 3: emit(dma_x(1, 0)); emit(dma_w(2))
    e(f"s_setprio {e.opt.get('lprio', 0)}")
    e(f"s_and_b32 s76, s70, 3\ns_lshl_b32 s76, s76, 3\ns_add_u32 s{S_R64}, s76, s73\ns_and_b32 s76, s70, 4\ns_add_u32 s{S_CB}, s76, s75")
    e(f"s_mul_i32 s7, s73, 5\ns_mul_i32 s76, s75, 10\ns_add_u32 s7, s7, s76\ns_lshr_b32 s7, s7, 2")
    VZ, VL16 = 1, 15
    VJ = [38, 39, 40, 41, 42]; VJR = 43; VP = 14; JF = 48
    chunks = {}
    def c0():
        e.srd(SRD_WS, S_WS, WS_SIZE); e.srd(SRD_D, S_DBG, 256)
        e(f"v_mov_b32 v{VZ}, 0\nv_lshlrev_b32 v{VL16}, 4, v0")
        if e.opt.get('jq', True):
            e(f"s_lshl_b32 s70, s{S_J}, 4\ns_add_u32 s70, s70, s{S_RB}\ns_lshl_b32 s71, s70, 2\ns_add_u32 s71, s71, s{S_WV}\ns_lshl_b32 s72, s{S_WV}, 7\ns_add_u32 s72, s72, s70\ns_add_u32 s72, s72, 432")
            e(f"s_cmp_eq_u32 s{S_ISQ}, {0 if e.opt.get('jq', True) else 1}\ns_cselect_b32 s72, s72, s71\ns_mov_b32 s71, 432\ns_cmov_b32 s71, 592\ns_sub_u32 s70, s72, s71\ns_lshr_b32 s71, s72, 3\ns_and_b32 s72, s72, 7")
        else:
            e(f"s_mul_i32 s70, s2, 37\ns_add_u32 s71, s70, 37\ns_lshr_b32 s70, s70, 4\ns_lshr_b32 s71, s71, 4\ns_add_u32 s72, s70, s{S_WV}\ns_sub_u32 s70, s72, s71\ns_lshr_b32 s71, s72, 3\ns_and_b32 s72, s72, 7")
        e(f"s_sub_u32 s73, s71, 54\ns_mul_i32 s77, s73, 6554\ns_lshr_b32 s77, s77, 15\ns_mul_i32 s78, s77, 5\ns_sub_u32 s78, s73, s78")
        e(f"s_mul_i32 s73, s77, 160\ns_lshr_b32 s77, s78, 1\ns_mul_i32 s77, s77, 80\ns_and_b32 s79, s78, 1\ns_lshl_b32 s79, s79, 3\ns_add_u32 s77, s77, s79")
        e(f"s_cmp_eq_u32 s78, 4\ns_cselect_b32 s77, 16, s77\ns_cselect_b32 s75, 80, 4\ns_add_u32 s73, s73, s77\ns_mov_b32 s74, 20")
    def c1():
        e(f"s_lshl_b32 s77, s71, 5\ns_cmp_lt_u32 s71, 54\ns_cselect_b32 s73, s77, s73\ns_cselect_b32 s74, 4, s74\ns_cselect_b32 s75, 16, s75")
        e(f"s_cselect_b32 s{SRD_T}, s{S_W2}, s{S_WO}\ns_cselect_b32 s{SRD_T+1}, s{S_W2+1}, s{S_WO+1}\ns_mov_b32 s{SRD_T+2}, {640*1280}\ns_cmov_b32 s{SRD_T+2}, {1728*1280}\ns_mov_b32 s{SRD_T+3}, 0x20000")
        e(f"s_mul_i32 s12, s73, 1280\ns_mul_i32 s77, s72, 160\ns_add_u32 s12, s12, s77")
        e(f"s_mul_i32 s13, s72, 74\ns_add_u32 s13, s13, s71\ns_mul_i32 s13, s13, 5120\ns_add_u32 s13, s13, {WS_WF}")
        e(f"s_and_b32 s77, s{S_RB}, 3\ns_lshl_b32 s78, s{S_ISQ}, 2\ns_add_u32 s77, s77, s78\ns_lshl_b32 s77, s77, 7\ns_add_u32 s77, s77, {WS_FL + FL_W*128}"); e.wsptr(14, "s77")
        e(f"s_cmp_lt_i32 s70, 0\ns_cselect_b32 s12, s12, {OOB}\ns_cselect_b32 s13, s13, {OOB}")
        e(f"s_mul_i32 s3, s{S_WV}, 5120\ns_add_u32 s3, s3, {STG}")
        e(f"v_lshrrev_b32 v2, 2, v0\nv_mul_u32_u24 v2, 160, v2\nv_and_b32 v3, 3, v0\nv_mul_u32_u24 v3, 40, v3\nv_add3_u32 v{VJR}, v2, v3, s3\nv_add_u32 v44, 4096, v{VL16}")
    def cj(i0, i1):
        def f():
            for i in range(i0, i1):
                e(f"v_add_u32 v2, {64*i}, v0\nv_mul_u32_u24 v3, 6554, v2\nv_lshrrev_b32 v3, 16, v3\nv_mul_u32_u24 v4, 10, v3\nv_sub_u32 v4, v2, v4")
                e(f"v_bfe_u32 v5, v3, 2, 2\nv_mul_u32_u24 v5, s74, v5\nv_lshrrev_b32 v6, 4, v3\nv_mul_u32_u24 v6, s75, v6\nv_and_b32 v3, 3, v3\nv_add3_u32 v3, v3, v5, v6")
                e(f"v_mul_u32_u24 v3, 1280, v3\nv_lshl_add_u32 v{VJ[i]}, v4, 4, v3")
        return f
    def c8():
        e(f"s_cmp_eq_u32 s{S_WV}, 3\ns_cselect_b32 s70, 8, 10\ns_mul_i32 s71, s{S_WV}, 10\ns_add_u32 s71, s71, 16")
        for _ in range(2): e(f"s_cmp_ge_u32 s7, s70\ns_cselect_b32 s72, s70, 0\ns_sub_u32 s7, s7, s72")
        e(f"s_mul_i32 s74, s{S_R64}, 54\ns_add_u32 s72, s74, s71\ns_lshl_b32 s{SAS}, s72, 12\ns_lshl_b32 s73, s70, 12\ns_add_u32 s{SAE}, s{SAS}, s73\ns_lshl_b32 s73, s7, 12\ns_add_u32 s{SA}, s{SAS}, s73")
        e(f"s_mul_i32 s75, s{S_CB}, 74\ns_add_u32 s73, s75, s71\ns_mul_i32 s73, s73, 5120\ns_add_u32 s{SBS}, s73, {WS_WF}\ns_mul_i32 s73, s70, 5120\ns_add_u32 s{SBE}, s{SBS}, s73\ns_mul_i32 s73, s7, 5120\ns_add_u32 s{SB}, s{SBS}, s73")
    def c9():
        e(f"s_lshl_b32 s70, s{S_WV}, 2\ns_add_u32 s71, s74, s70\ns_lshl_b32 s{SA2}, s71, 12\ns_add_u32 s71, s75, s70\ns_mul_i32 s71, s71, 5120\ns_add_u32 s{SB2}, s71, {WS_WF}")
        e(f"s_mul_i32 s70, s{S_WV}, 5\ns_add_u32 s70, s70, s75\ns_add_u32 s70, s70, 54\ns_mul_i32 s70, s70, 5120\ns_add_u32 s{SOB}, s70, {WS_WF}")
        e(f"s_mul_i32 s70, s{S_R64}, 81920\ns_add_u32 s{SOA}, s70, {WS_OF}")
        e(f"s_lshl_b32 s70, s{S_R64}, 3\ns_add_u32 s70, s70, s{S_CB}\ns_lshl_b32 s70, s70, 2\ns_add_u32 s70, s70, s{S_WV}\ns_lshl_b32 s70, s70, 7\ns_add_u32 s70, s70, {WS_FL + FL_H*128}"); e.wsptr(SFH, "s70")
        e(f"s_mov_b32 s{SFW}, {WS_FL + FL_W*128 + 1024}")
        e(f"s_lshl_b32 s70, s{S_R64}, 8\ns_lshl_b32 s71, s{S_WV}, 14\ns_add_u32 s70, s70, s71\ns_add_u32 s{SG}, s70, {WS_G}")
    def c10():
        e(f"s_mul_i32 s{SPK}, s{S_WV}, 20480\ns_add_u32 s{SPK}, s{SPK}, {PARK}\ns_cmp_eq_u32 s{S_WV}, 3\ns_cmov_b32 s{SPK}, {STG}")
        e(f"v_add_u32 v{P3_VL2}, 4096, v{VL16}")
        e(f"s_and_b32 s70, s{S_CB}, {3 if e.opt.get('trot', True) else 0}\ns_xor_b32 s{S_TL}, s70, s{S_WV}")
        for t in range(4): e(f"s_xor_b32 s70, s{S_TL}, {t}\ns_lshl_b32 s70, s70, 10\nv_add_u32 v{P3_VT[t]}, s70, v{VL16}")
        e(f"v_min_u32 v4, 144, v{VL16}\ns_mul_i32 s70, s{S_CB}, 160\nv_add_u32 v4, s70, v4")
        e(f"v_and_b32 v8, 7, v0\nv_lshlrev_b32 v8, 7, v8")
    JL = e.opt.get('JL', -1); JR = e.opt.get('JR', 2); JA = e.opt.get('JA', 8); ZA = e.opt.get('ZA', 2); pre = e.opt.get('pre', 0)
    for c_ in (c0, c1, cj(0, 5), c8, c9, c10): c_()
    e(f"s_lshl_b32 s76, s2, 12\nv_lshl_add_u32 v2, v0, 7, s76\ns_lshl_b32 s76, s2, 10\ns_add_u32 s76, s76, {(FL_KV - 32)*128}\nv_lshl_add_u32 v6, v0, 7, s76\nv_cmp_gt_u32 vcc, 32, v0\nv_mov_b32 v168, 0\nv_mov_b32 v169, 0\nv_cndmask_b32 v2, v6, v2, vcc")
    e(f"v_mov_b32 v6, {OOB}\nv_cmp_gt_u32 vcc, 40, v0\nv_mov_b32 v170, 0\nv_mov_b32 v171, 0\nv_cndmask_b32 v2, v6, v2, vcc\ns_add_u32 s76, s2, {FL_W}\ns_lshl_b32 s76, s76, 7\ns_cmp_lt_u32 s2, 16\ns_cselect_b32 s76, s76, {OOB}\nv_writelane_b32 v2, s76, 40")
    e(f"s_lshl_b32 s76, s{S_WV}, 8\ns_or_b32 s76, s76, s2\ns_cmp_lt_u32 s76, {NINIT}\ns_mov_b32 s76, {OOB}\ns_cmov_b32 s76, {WS_FL}")
    emit([(('zero',), f"buffer_store_dwordx4 v[168:171], v2, {sr(SRD_WS)}, s76 offen sc1")])
    emit([(('b2',), f"s_mov_b32 m0, {B2_LDS}\nglobal_load_lds_dwordx4 v4, s[{S_B2}:{S_B2+1}]")])
    txt = (f"s_mul_i32 s76, s{S_J}, 3200\ns_lshl_b32 s77, s{S_WV}, 10\ns_add_u32 m0, s77, {WPHI_LDS}\ns_add_u32 s76, s76, s77\ns_add_u32 s76, s76, s{S_WPHI}\ns_addc_u32 s77, s{S_WPHI+1}, 0\n"
           f"s_cmp_eq_u32 s{S_WV}, 3\ns_mov_b32 s78, 1008\ns_cmov_b32 s78, 112\nv_min_u32 v6, s78, v{VL16}\nglobal_load_lds_dwordx4 v6, s[76:77]")
    emit([(('phi',), txt)])
    if e.opt.get('cpf', True) and not e.opt.get('cpc', True):
        e(f"s_getpc_b64 s[76:77]\nL_pc:\ns_sub_u32 s76, s76, L_pc-{NAME}\ns_subb_u32 s77, s77, 0")
        e(f"s_lshr_b32 s78, s2, 3\ns_lshl_b32 s78, s78, 2\ns_add_u32 s78, s78, s{S_WV}\ns_lshl_b32 s78, s78, 9\nv_and_b32 v6, 3, v0\nv_lshl_add_u32 v6, v6, 7, s78")
        emit([(('pf',), f"s_mov_b32 s78, L_end-{NAME}\nv_min_u32 v6, s78, v6\ns_mov_b64 exec, 15\nglobal_load_dword v167, v6, s[76:77]\ns_mov_b64 exec, -1")])
    def job_loads():
        for i in range(5):
            emit([(('job',), f"s_add_u32 m0, s3, {1024*i}\ns_nop 0\nbuffer_load_dwordx4 v{VJ[i]}, {sr(SRD_T)}, s12 offen {e.opt.get('jnt', 'nt')} lds")])
    if JL < 0: job_loads()
    P3S = P3(e, PB, VZ, VL16, vm)
    WD = [20, 22, 23, 30, 31, 32, 33, 12]
    def extras(s):
        if s == ZA:
            wait_vm(lambda t: t[0] in ('zero', 'b2', 'phi'))
            Li = e.lab("L_ini")
            e(f"s_lshl_b32 s77, s{S_WV}, 8\ns_or_b32 s77, s77, s2\ns_cmp_ge_u32 s77, {NINIT}\ns_cbranch_scc1 {Li}\ns_mov_b32 s21, 1\ns_atomic_add s21, s[{S_DBG}:{S_DBG+1}], 0 glc\n{Li}:")
        if s == JR:
            wait_vm(lambda t: t[0] == 'job')
            for u in range(5):
                e(f"ds_read_b64_tr_b16 {vr(JF+4*u,2)}, v{VJR} offset:{8*u}\nds_read_b64_tr_b16 {vr(JF+4*u+2,2)}, v{VJR} offset:{8*u + 2560}")
        if s == JA - 1: e.sfirst(S_DBG, [0], [31])
        if s == JA:
            e.scheck([31], NINIT, SRD_D, "0", VZ, VP, vm)
            wait_vm(lambda t: t[0] == 'jst')
            e(f"s_mov_b64 exec, 1\nv_mov_b32 v174, {CNT_LDS + 4*3}\nv_mov_b32 v175, 1\nds_add_rtn_u32 v174, v174, v175\ns_mov_b64 exec, -1\ns_mov_b32 s22, 0")
        if s == JA + 1:
            Lw = e.lab("L_w1")
            e(f"s_waitcnt lgkmcnt(0)\nv_readfirstlane_b32 s78, v174\ns_cmp_lg_u32 s78, 3\ns_cbranch_scc1 {Lw}\ns_mov_b32 s22, 1\ns_atomic_add s22, s[14:15], 0 glc\n{Lw}:")
        if s == JA + e.opt.get('JF', 2):
            Lw = e.lab("L_w2")
            e(f"s_waitcnt lgkmcnt(0)\ns_cmp_lg_u32 s22, 31\ns_cbranch_scc1 {Lw}\ns_mov_b32 s23, 1\ns_atomic_add s23, s[14:15], 1024 glc\n{Lw}:")
    for s in range(NSTEP):
        wait_vm(lambda t: t == ('w', s) or t == ('x', s//2))
        e("s_barrier")
        if s == 0: e.stamp(2)
        if e.opt.get('steps'): e(f"s_memtime s[76:77]\ns_waitcnt lgkmcnt(0)\ns_sub_u32 s76, s76, s80\nv_writelane_b32 v9, s76, {s}")
        n_list = [2, 3] if (LA == 2 and s == 0) else [s + 3]
        for n_ in n_list:
            if n_ < NSTEP: emit(dma_x(n_ // 2, n_ % 2))
        extras(s)
        if s + LA < NSTEP: emit(dma_w(s + LA))
        if s == JL: job_loads()
        if s == JR + e.opt.get('JSd', 0):
            e("s_waitcnt lgkmcnt(0)")
            for u in range(5):
                if u < 4: emit([(('jst',), f"buffer_store_dwordx4 {vr(JF+4*u)}, v{VL16}, {sr(SRD_WS)}, s13 offen offset:{1024*u} sc1")])
                else: emit([(('jst',), f"buffer_store_dwordx4 {vr(JF+4*u)}, v44, {sr(SRD_WS)}, s13 offen sc1")])
        if s == (17 if pre else 18): e.wsptr(76, f"s{SFW}"); e.sfirst(76, [128*i for i in range(8)], WD)
        if s == 18 and pre:
            e.scheck(WD, 1, SRD_WS, f"s{SFW}", 8, VP, vm)
            for _ in range(pre): P3S.prefetch()
    e.stamp(3)
    if not pre: e.scheck(WD, 1, SRD_WS, f"s{SFW}", 8, VP, vm)
    e(f"s_setprio {e.opt.get('mprio', 0)}")
    e.stamp(4)
    if e.opt.get('nop3'):
        e.stamps_out(); e("s_endpgm"); return
    P3S.begin()
    while P3S.npre < PB:
        if P3S.npre >= e.opt.get('free', 2):
            if not P3S.ring:
                e.lwait(8, 174, 175); P3S.ring = True
                P3S.park_now(e.opt.get('pkf', 0))
            P3S.yield_()
        P3S.prefetch()
        if len(vm) > P3S.THR: e(f"s_waitcnt vmcnt({P3S.THR})"); del vm[:len(vm) - P3S.THR]
    if e.opt.get('pkl', 4):
        if not P3S.ring: e.lwait(8, 174, 175); P3S.ring = True
        P3S.park_now(e.opt.get('pkl', 4))
    P3S.run()

def P3(e, PB, VZ, VL16, vm):
    class S: pass
    S.npre = 0
    opt = e.opt
    ACC = 176; POOL = 16; NPOOL = 38
    VL2, VP = 13, 14; VGO = 173; VY = 9 if not opt.get('steps') else 169
    VT = P3_VT
    VG = 2
    acc = lambda u, t: ACC + 16*u + 4*t
    NQ, NK = 10, 4; NS = NQ + NK; HPM = (opt.get('hp', 3), opt.get('mprio', 0))
    def pst(i):
        if opt.get('steps'): e(f"s_waitcnt lgkmcnt(0)\ns_memtime s[76:77]\ns_waitcnt lgkmcnt(0)\ns_sub_u32 s76, s76, s80\nv_writelane_b32 v9, s76, {i}")
    free = list(range(NPOOL)); frag = {}
    def emit1(item): e(item[1]); vm.append(item[0])
    def waitvm(pred):
        idx = max([i for i, t in enumerate(vm) if pred(t)], default=-1)
        if idx >= 0: e(f"s_waitcnt vmcnt({len(vm)-1-idx})"); del vm[:idx+1]
    def ld(d, v, so, off): return f"buffer_load_dwordx4 {d}, v{v}, {sr(SRD_WS)}, {so} offen" + (f" offset:{off}" if off else "") + " sc1"
    def take(k): return free.pop(0)
    def group(kind, k):
        out = []
        for i in range(4 if kind == 'A' else 5):
            sl = take(k); frag[(kind, k, i)] = POOL + 4*sl; d = vr(POOL + 4*sl)
            pre = post = ""
            if kind == 'A':
                if k < NQ:
                    if k == NQ - 2 and i == 0: pre = f"s_cmp_eq_u32 s{S_WV}, 3\ns_cmov_b32 s{SA}, {OOB}\n"
                    if i == 3: post = f"\ns_add_u32 s{SA}, s{SA}, 4096\ns_cmp_eq_u32 s{SA}, s{SAE}\ns_cmov_b32 s{SA}, s{SAS}"
                    txt = ld(d, VT[i], f"s{SA}", 0)
                else:
                    txt = ld(d, VT[i], f"s{SA2}", 0)
                    if i == 3: post = f"\ns_add_u32 s{SA2}, s{SA2}, 4096"
            else:
                if k < NQ:
                    so = f"s{SB}"
                    if k == NQ - 2 and i == 0: pre = f"s_cmp_eq_u32 s{S_WV}, 3\ns_cmov_b32 s{SB}, {OOB}\n"
                    if i == 4: post = f"\ns_add_u32 s{SB}, s{SB}, 5120\ns_cmp_eq_u32 s{SB}, s{SBE}\ns_cmov_b32 s{SB}, s{SBS}"
                else:
                    so = f"s{SB2}"
                    if i == 4: post = f"\ns_add_u32 s{SB2}, s{SB2}, 5120"
                txt = ld(d, VL16, so, 1024*i) if i < 4 else ld(d, VL2, so, 0)
            out.append(((kind, k), pre + txt + post))
        return out
    THR = opt.get('thr', 10)
    YLD = opt.get('yld', '')
    def yield_(pre_read=False):
        if not YLD: return
        L = e.lab("L_y"); D = e.lab("L_yd")
        if not pre_read: e(f"ds_read_b32 v{VP}, v{VY}")
        e(f"s_setprio {opt.get('hp', 3)}\ns_mov_b32 s79, 0\n{L}:\ns_waitcnt lgkmcnt(0)\nv_readfirstlane_b32 s78, v{VP}\ns_cmp_eq_u32 s78, 0\ns_cbranch_scc1 {D}")
        e(f"s_add_u32 s79, s79, 1\ns_cmp_ge_u32 s79, 0x1000000\ns_cbranch_scc1 L_end\ns_sleep 1\nds_read_b32 v{VP}, v{VY}\ns_branch {L}\n{D}:\ns_setprio {opt.get('mprio', 0)}")
    def prefetch():
        for it in group('B', S.npre):
            emit1(it)
            r_ = opt.get('rth')
            if r_ is not None and S.npre >= opt.get('free', 2) and len(vm) > r_: e(f"s_waitcnt vmcnt({r_})"); del vm[:len(vm) - r_]
        S.npre += 1
    S.prefetch = prefetch; S.THR = THR
    def msync(cnt):
        e.lpost(cnt, 174, 175); e.lwait(cnt, 174, 175, sleep=0)
    def park(j):
        out = []
        for i in range(5):
            pre = f"s_add_u32 s12, s{S_R64}, {j}\ns_and_b32 s12, s12, 3\ns_mul_i32 s12, s12, 5120\ns_add_u32 s13, s12, s{SOB}\ns_add_u32 s12, s12, s{SPK}\n" if i == 0 else ""
            out.append((('L',), pre + f"s_add_u32 m0, s12, {1024*i}\ns_add_u32 s77, s13, {1024*i}\nbuffer_load_dwordx4 v{VL16}, {sr(SRD_WS)}, s77 offen sc1 lds"))
        return out
    S.ring = False; S.yield_ = yield_; S.parked = 0
    def park_now(n):
        for _ in range(n):
            yield_()
            for it in park(S.parked):
                emit1(it)
                p_ = opt.get('pth', 2)
                if len(vm) > p_: e(f"s_waitcnt vmcnt({p_})"); del vm[:len(vm) - p_]
            S.parked += 1
            if len(vm) > THR: e(f"s_waitcnt vmcnt({THR})"); del vm[:len(vm) - THR]
    S.park_now = park_now
    S.begin = lambda: e(f"v_mov_b32 v{VY}, {CNT_LDS + 4*11}")
    def run():
        if not S.ring: e.lwait(8, 174, 175)
        e.stamp(5, True)
        PK = opt.get('pk', (10, 11, 11, 12))
        for j in range(4):
            if PK[j] >= 0 or j < S.parked: continue
            yield_()
            for it in park(j): emit1(it)
            if len(vm) > THR: e(f"s_waitcnt vmcnt({THR})"); del vm[:len(vm) - THR]
        VH = [4, 5, 6, 7]; VOUT = 8; VGS = [2, 168, 170, 172]
        for t in range(4): e(f"s_xor_b32 s70, s{S_TL}, {t}\ns_lshr_b32 s71, s70, 1\ns_lshl_b32 s71, s71, 10\ns_and_b32 s70, s70, 1\ns_lshl_b32 s70, s70, 3\ns_add_u32 s70, s70, s71\ns_add_u32 s70, s70, 8192\nv_add_u32 v{VH[t]}, s70, v{VL16}")
        e.srd(SRD_T, S_OUT, 2048*1280)
        e(f"v_and_b32 v{VOUT}, 15, v0\nv_mul_u32_u24 v{VOUT}, 1280, v{VOUT}\nv_lshrrev_b32 v170, 4, v0\nv_mul_u32_u24 v170, 40, v170\nv_add_u32 v{VOUT}, v{VOUT}, v170\nv_add_u32 v171, s{SPK}, v{VL16}")
        e(f"s_lshl_b32 s70, s{S_R64}, 2\ns_add_u32 s70, s70, s{S_TL}\ns_mul_i32 s70, s70, {16*1280}\ns_mul_i32 s71, s{S_CB}, 160\ns_add_u32 s21, s70, s71")
        e(f"s_mul_i32 s70, s{S_WV}, 20480\ns_add_u32 s{SOA}, s{SOA}, s70")
        if opt.get('hw'):
            Lh = e.lab("L_hw")
            e(f"s_cmp_eq_u32 s{S_ISQ}, 0\ns_cbranch_scc1 {Lh}"); e.lwait(0, 174, 175); e(f"{Lh}:")
        e.spoll(SFH, SPD, sleep=opt.get('slh', 0), least=2)
        e.stamp(6, True)
        order = []
        for k in range(NS):
            order.append(('A', k))
            if k >= PB: order.append(('B', k))
        pend = []; gate = [False]
        LOOK = opt.get('look', 2)
        def refill(cur):
            i = 0
            while i < len(order):
                kind, k = order[i]
                if kind == 'A' and k >= NQ and not gate[0]: i += 1; continue
                if k > cur + LOOK or len(free) < (4 if kind == 'A' else 5) + (8 if i > 0 else 0): break
                pend.extend(group(kind, k)); order.pop(i)
        yield_()
        refill(-1)
        for it in pend: emit1(it)
        pend.clear()
        nxtflag = f"s_add_u32 s{SFH}, s{SFH}, 4"
        GK = NQ - opt.get('gk', LOOK); GO = NS - opt.get('go', 0)
        bo = {}; aq = []; dsq = []; lg = []
        def o_weights_stream():
            for u in range(5):
                sl = free.pop(0); bo[(4, u)] = POOL + 4*sl
                pend.append((('Bo',), (f"s_add_u32 s77, s{SOB}, {4*5120}\n" if u == 0 else "") + (ld(vr(POOL + 4*sl), VL16, "s77", 1024*u) if u < 4 else ld(vr(POOL + 4*sl), VL2, "s77", 0))))
        SNAKE = opt.get('snake', True)
        iord = lambda t: ([3, 2, 4, 1, 0] if (t == 2 and SNAKE) else [0, 1, 2, 3, 4])
        oa = [(t, i) for t in (3, 2, 1, 0) for i in iord(t)]; ao = {}
        def a_next():
            t, i = oa.pop(0); sl = free.pop(0); ao[(t, i)] = d = POOL + 4*sl
            if i < 4: return [(('Ao', t, i), f"s_add_u32 s76, s{SOA}, {(i >> 1)*10240 + (i & 1)*4096}\n" + ld(vr(d), VT[t], "s76", 0))]
            return [(('Ao', t, i), f"s_add_u32 s76, s{SOA}, {ee*10240}\nbuffer_load_dwordx2 {vr(d+2*ee,2)}, v{VH[t]}, {sr(SRD_WS)}, s76 offen sc1") for ee in range(2)]
        ob = [(t, i, u) for t in (3, 2, 1, 0) for i in range(4) for u in range(5)]
        if SNAKE: ob = [(3, i, u) for i in range(4) for u in range(5)] + [(2, i, u) for i in (1, 0) for u in range(5)]
        def b_next():
            t, i, u = ob.pop(0); sl = free.pop(0); bo[(t, i, u)] = POOL + 4*sl
            if len(lg) >= 15: e("s_waitcnt lgkmcnt(10)"); del lg[:5]
            e(f"ds_read_b128 {vr(POOL + 4*sl)}, v171 offset:{5120*i + 1024*u}"); lg.append((t, i))
        def o_gate():
            e.stamp(7, True)
            e.spoll(SFH, SPD, probed=True, sleep=opt.get('slz', 0), least=2)
            e.stamp(8, True); lg.clear()
            while oa: pend.extend(a_next())
        for k in range(NS):
            if k == GK:
                e.spoll(SFH, SPD, probed=True, sleep=opt.get('slo', 0), least=2)
                gate[0] = True
                e(f"v_and_b32 v{VGO}, 15, v0\nv_lshlrev_b32 v{VGO}, 2, v{VGO}")
                for t in range(4): emit1((('g',), f"s_xor_b32 s76, s{S_TL}, {t}\ns_lshl_b32 s76, s76, 6\ns_add_u32 s76, s76, s{SG}\nbuffer_load_dword v{VGS[t]}, v{VGO}, {sr(SRD_WS)}, s76 offen sc1"))
            refill(k)
            for j in range(4):
                if PK[j] == k and j >= S.parked: pend.extend(park(j))
            if k == NS - 2: o_weights_stream()
            while any(it[0] in (('A', k), ('B', k)) for it in pend): emit1(pend.pop(0))
            if k == GO:
                o_gate()
                for _ in range(4): emit1(pend.pop(0))
            waitvm(lambda t: t in (('A', k), ('B', k)))
            if pend and k != GK - 1 and k < GO - 1: yield_(pre_read=k > 0 and k != GK)
            pst(24 + k)
            cnt = 0
            for t in range(4):
                for u in range(5):
                    e(f"v_mfma_f32_16x16x32_bf16 {vr(acc(u,t))}, {vr(frag[('B',k,u)])}, {vr(frag[('A',k,t)])}, {vr(acc(u,t)) if k else 0}")
                    cnt += 1
                    if cnt % 2 == 0 and pend: emit1(pend.pop(0))
            while pend: emit1(pend.pop(0))
            for i in range(4): free.append((frag[('A', k, i)] - POOL)//4)
            for i in range(5): free.append((frag[('B', k, i)] - POOL)//4)
            if k == GK - 2 or (k == GO - 2 and GO < NS): e(nxtflag); e.sprobe(SFH, SPD)
            elif k == NS - 1 and GO >= NS: e(nxtflag)
            elif YLD and k + 1 < GO - 1 and k + 1 != GK: e(f"ds_read_b32 v{VP}, v{VY}")
        assert not order
        pst(38)
        e.lwait(12, 174, 175)
        waitvm(lambda t: t in (('g',), ('L',)))
        bs = [free.pop(0) for _ in range(3)]; br = [POOL + 4*x for x in bs]
        e(f"v_lshrrev_b32 v{VGO}, 4, v0\nv_mul_u32_u24 v{VGO}, 40, v{VGO}\nv_add_u32 v{VGO}, {B2_LDS}, v{VGO}")
        for i in range(5): e(f"ds_read_b64 {vr(br[i >> 1] + 2*(i & 1), 2)}, v{VGO} offset:{8*i}")
        e("s_waitcnt lgkmcnt(0)")
        for u in range(5):
            for h_ in range(2):
                x = br[u >> 1] + 2*(u & 1) + h_; a = acc(u, 0) + 2*h_
                e(f"v_lshlrev_b32 v174, 16, v{x}\nv_and_b32 v175, 0xffff0000, v{x}\nv_pk_add_f32 {vr(a,2)}, {vr(a,2)}, v[174:175]")
        free.extend(bs)
        if GO >= NS: e.sprobe(SFH, SPD)
        while len(free) > (0 if GO < NS else 20): b_next()
        for t in range(4): e(f"v_sub_f32 v{VGS[t]}, 1.0, v{VGS[t]}")
        for t in (3, 2, 1, 0):
            for u in range(5):
                for r in (0, 2): e(f"v_pk_mul_f32 {vr(acc(u,t)+r,2)}, {vr(acc(u,t)+r,2)}, {vr(VGS[t],2)} op_sel_hi:[1,0]")
        RA = [2, 168, 170, 172]
        for t in range(4): e(f"s_xor_b32 s76, s{S_WV}, {t}\ns_mul_i32 s77, s76, 15360\ns_cmp_eq_u32 s76, 3\ns_cmov_b32 s77, {EXCH_H3}\nv_add_u32 v{RA[t]}, s77, v{VL16}")
        if opt.get('opf'):
            emit1((('opf',), f"buffer_load_dword v{VP}, v{VOUT}, {sr(SRD_T)}, s21 offen"))
        if GO >= NS:
            o_gate()
            for _ in range(opt.get('a0', 12)): emit1(pend.pop(0))
        pst(39)
        wq = []
        for t in (3, 2, 1, 0):
            for i in iord(t):
                while any(it[0] == ('Ao', t, i) for it in pend): emit1(pend.pop(0))
                while any(x[:2] == (t, i) for x in ob): b_next()
                waitvm(lambda x: x == ('Ao', t, i) or x == ('Bo',))
                idx = max([n for n, x in enumerate(lg) if x == (t, i)], default=-1)
                if idx >= 0: e(f"s_waitcnt lgkmcnt({len(lg)-1-idx})"); del lg[:idx+1]
                src = t if not SNAKE else (3 if (i >= 2 or t == 3) else 2)
                drop = i < 4 and (not SNAKE or (t == 3 and i < 2))
                for u in range(5):
                    bb = bo[(src, i, u)] if i < 4 else bo[(4, u)]
                    e(f"v_mfma_f32_16x16x32_bf16 {vr(acc(u,t))}, {vr(bb)}, {vr(ao[(t,i)])}, {vr(acc(u,t))}")
                    if drop and u: free.append((bo[(t, i, u-1)] - POOL)//4)
                    if u in (0, 2) and pend: emit1(pend.pop(0))
                    if u == 3 and wq:
                        if len(lg) >= 15: e("s_waitcnt lgkmcnt(10)"); del lg[:5]
                        e(wq.pop(0)); lg.append('w')
                    if ob and free and len([x for x in lg if x != 'w']) < 12: b_next()
                if drop: free.append((bo[(t, i, 4)] - POOL)//4)
                free.append((ao[(t, i)] - POOL)//4)
            if t: wq += [f"ds_write_b128 v{RA[t]}, {vr(acc(u,t))} offset:{5120*(t-1) + 1024*u}" for u in range(5)]
        assert not wq and not oa and not ob
        pst(40)
        e("s_waitcnt lgkmcnt(0)\ns_barrier")
        pst(41)
        R = POOL
        for u in range(5):
            for sw in range(3): e(f"ds_read_b128 {vr(R + 12*u + 4*sw)}, v{RA[0]} offset:{sw*5120 + u*1024}")
        for u in range(5):
            e(f"s_waitcnt lgkmcnt({12 - 3*u})")
            b = R + 12*u; a = acc(u, 0)
            for r in (0, 2): e(f"v_pk_add_f32 {vr(a+r,2)}, {vr(a+r,2)}, {vr(b+r,2)}\nv_pk_add_f32 {vr(b+4+r,2)}, {vr(b+4+r,2)}, {vr(b+8+r,2)}")
            for r in (0, 2): e(f"v_pk_add_f32 {vr(a+r,2)}, {vr(a+r,2)}, {vr(b+4+r,2)}")
        pst(42)
        for u in range(5):
            a = acc(u, 0)
            e(f"v_cvt_pk_bf16_f32 v{100+2*u}, v{a}, v{a+1}\nv_cvt_pk_bf16_f32 v{101+2*u}, v{a+2}, v{a+3}")
        fl = opt.get('outfl', '')
        e(f"buffer_store_dwordx4 v[100:103], v{VOUT}, {sr(SRD_T)}, s21 offen {fl}\nbuffer_store_dwordx4 v[104:107], v{VOUT}, {sr(SRD_T)}, s21 offen offset:16 {fl}\nbuffer_store_dwordx2 v[108:109], v{VOUT}, {sr(SRD_T)}, s21 offen offset:32 {fl}")
        pst(43)
        if opt.get('steps'):
            e("s_waitcnt vmcnt(0)"); pst(44)
            e(f"s_lshl_b32 s70, s2, 2\ns_add_u32 s70, s70, s{S_WV}\ns_lshl_b32 s70, s70, 8\ns_add_u32 s70, s70, 0xF00000\nv_lshlrev_b32 v2, 2, v0\nbuffer_store_dword v9, v2, {sr(SRD_WS)}, s70 offen\ns_waitcnt vmcnt(0)")
        e.stamps_out()
        e("s_endpgm")
    S.run = run
    return S

def c_first(e):
    if e.opt.get('cpf', True) and e.opt.get('cpc', True):
        e(f"s_getpc_b64 s[76:77]\nL_pc:\ns_sub_u32 s76, s76, L_pc-{NAME}\ns_subb_u32 s77, s77, 0")
        e(f"s_lshl_b32 s78, s71, 2\ns_add_u32 s78, s78, s{S_WV}\ns_lshl_b32 s78, s78, 9\nv_and_b32 v6, 3, v0\nv_lshl_add_u32 v6, v6, 7, s78")
        e(f"s_mov_b32 s78, L_end-{NAME}\nv_min_u32 v6, s78, v6\ns_mov_b64 exec, 15\nglobal_load_dword v187, v6, s[76:77]\ns_mov_b64 exec, -1")
    x_setup(e, [128, 129])
    e(f"s_lshl_b32 s78, s{S_J}, 7\ns_mul_i32 s77, s{S_J}, 320\ns_add_u32 s77, s77, 1024\ns_cmp_eq_u32 s{S_ISQ}, 1\ns_cselect_b32 s78, s77, s78\nv_lshlrev_b32 v132, 4, v0\ns_mov_b32 m0, {B1_LDS}")
    e("s_waitcnt lgkmcnt(0)")
    e.srd(SRD_T, S_B1, 3456); e.srd(SRD_X, S_X, 2048*1280)
    e(f"s_mov_b64 exec, 0xfffff\nbuffer_load_dwordx4 v132, {sr(SRD_T)}, s78 offen lds\ns_mov_b64 exec, -1")
    for t, x in dma_x_ops([128, 129], 0, 0) + dma_x_ops([128, 129], 0, 1): e(x)
    e.fstamp(8); e.fstamp(6)

def c_wave(e, D):
    XREG = 224; RING = 192; VXA = [246, 247]; AT = [240, 241]
    VZ, VL16 = 242, 243
    if not e.opt.get('c0', True): c_first(e)
    e("v_lshrrev_b32 v1, 4, v0\nv_bfe_u32 v2, v0, 2, 2\nv_and_b32 v3, 3, v0")
    e("v_and_b32 v5, 1, v1\nv_lshl_add_u32 v4, v5, 2, v2\nv_lshrrev_b32 v6, 1, v1\nv_lshlrev_b32 v6, 13, v6")
    e(f"s_lshl_b32 s76, s{S_WV}, 5\nv_and_b32 v7, 15, v0\nv_add_u32 v7, s76, v7")
    e(f"v_lshrrev_b32 v128, 1, v7\nv_xor_b32 v128, v128, v1\nv_and_b32 v128, 7, v128\nv_lshlrev_b32 v128, 4, v128\nv_lshl_add_u32 v128, v7, 7, v128")
    e(f"v_add_u32 v{VXA[0]}, {XBASE}, v128\nv_xor_b32 v{VXA[1]}, 64, v{VXA[0]}")
    e(f"v_mul_u32_u24 v128, 160, v4\nv_mul_u32_u24 v129, 40, v3\nv_add3_u32 v{AT[0]}, v128, v129, v6\nv_add_u32 v{AT[1]}, {3*WSLOT}, v{AT[0]}")
    e(f"v_mov_b32 v{VZ}, 0\nv_lshlrev_b32 v{VL16}, 4, v0\nv_mov_b32 v128, 0\nv_mov_b32 v129, 0\nv_mov_b32 v130, 0\nv_mov_b32 v131, 0")
    e(f"s_lshl_b32 s76, s{S_WV}, 9\ns_add_u32 s76, s76, {ZERO_LDS}\nv_lshl_add_u32 v132, v0, 3, s76\nds_write_b64 v132, v[128:129]")
    e(f"v_lshlrev_b32 v132, 2, v0\nv_add_u32 v132, {CNT_LDS}, v132\nds_write_b32 v132, v128")
    VPH = 244
    e(f"v_mul_u32_u24 v132, 800, v3\nv_mul_u32_u24 v133, 40, v2\nv_add3_u32 v132, v132, v133, s76\nv_cmp_eq_u32 vcc, v1, v3\ns_add_u32 s77, s76, {-WPHI_LDS & 0xffffffff}")
    e(f"v_subrev_u32 v132, s77, v132\nv_mov_b32 v133, {ZERO_LDS}\nv_cndmask_b32 v{VPH}, v133, v132, vcc")
    e(f"s_mov_b32 s{S_C2}, {f2u(GC2)}\ns_mov_b32 s{S_C2+1}, {f2u(GC2)}\ns_mov_b32 s{S_L}, {f2u(LOG2E)}\ns_mov_b32 s{S_L+1}, {f2u(LOG2E)}")
    e("s_waitcnt lgkmcnt(0)")
    e.srd(SRD_WS, S_WS, WS_SIZE)
    S_HO, S_HFL, S_KFL = 12, 72, 74
    e(f"s_lshl_b32 s76, s{S_RB}, 1\ns_lshr_b32 s77, s{S_WV}, 1\ns_add_u32 s15, s76, s77")
    e(f"s_lshl_b32 s76, s{S_RB}, 13\ns_lshr_b32 s77, s{S_J}, 1\ns_lshl_b32 s77, s77, 7\ns_add_u32 s76, s76, s77\ns_add_u32 s76, s76, {WS_FL + FL_H*128}"); e.wsptr(S_HFL, "s76")
    e(f"s_lshl_b32 s76, s{S_J}, 11\ns_add_u32 s76, s76, {WS_FL + FL_KV*128}"); e.wsptr(S_KFL, "s76")
    S_GO = 3
    e(f"s_lshl_b32 s76, s{S_J}, 13\ns_lshl_b32 s77, s{S_RB}, 9\ns_add_u32 s76, s76, s77\ns_lshl_b32 s77, s{S_WV}, 7\ns_add_u32 s76, s76, s77\ns_add_u32 s{S_GO}, s76, {WS_G}")
    def after_bar0(): e.stamp(2)
    def bias_init(nu, hacc, zero_lo, zero_hi):
        e.fstamp(7)
        for i in list(range(*zero_lo)) + list(range(*zero_hi)): e(f"v_mov_b32 v{i}, 0")
        e(f"v_lshlrev_b32 v156, 3, v1\nv_add_u32 v156, {B1_LDS}, v156\ns_waitcnt vmcnt(4)")
        for t in range(nu): e(f"ds_read_b64 {vr(136+2*t,2)}, v156 offset:{32*t}")
        e("s_waitcnt lgkmcnt(0)")
        for t in range(nu):
            for m in range(2):
                a = hacc + 8*t + 4*m
                e(f"v_lshlrev_b32 v{a}, 16, v{136+2*t}\nv_and_b32 v{a+1}, 0xffff0000, v{136+2*t}\nv_lshlrev_b32 v{a+2}, 16, v{137+2*t}\nv_and_b32 v{a+3}, 0xffff0000, v{137+2*t}")
        e("s_waitcnt vmcnt(0)")
        e.stamp(1)
    C1 = 128; T = 130; PK = 140
    def gelu_steps(hacc, nsteps, PK, VL16, skip_from=None, mid=None):
        e(f"v_mov_b32 v{C1}, {f2u(GC1)}\nv_mov_b32 v{C1+1}, {f2u(GC1)}")
        Ls = e.lab("L_hskip")
        for i in range(nsteps):
            if i == skip_from: e(f"s_cmp_eq_u32 s{S_J}, 7\ns_cbranch_scc1 {Ls}")
            for m in range(2):
                d = PK + 4*((2*i + m) % 4)
                a0 = hacc + 16*i + 4*m; a1 = a0 + 8
                gelu_pack(e, [(a0, d), (a0+2, d+1), (a1, d+2), (a1+2, d+3)], T, C1)
                e(f"buffer_store_dwordx4 {vr(d)}, v{VL16}, {sr(SRD_WS)}, s{S_HO} offen offset:{1024*m} sc1")
            e(f"s_add_u32 s{S_HO}, s{S_HO}, 4096")
            if mid and i == 0: mid()
        e(f"{Ls}:")
    WF_ = 140
    QP = 192
    PHR = [f"ds_read_b64_tr_b16 {vr(WF_ + 10*tau + 2*t, 2)}, v{VPH} offset:{160*t + 8*tau}" for tau in range(5) for t in range(5)]
    def phi_mfma(P, m):
        out = []
        for ks in range(3):
            for tau in range(5):
                d = vr(P + 20*m + 4*tau); c = "0" if ks == 0 else d
                if ks < 2: out.append(f"v_mfma_f32_16x16x32_bf16 {d}, {vr(WF_+10*tau+4*ks)}, {vr(QP+10*m+4*ks)}, {c}")
                else: out.append(f"v_mfma_f32_16x16x16_bf16 {d}, {vr(WF_+10*tau+8,2)}, {vr(QP+10*m+8,2)}, {c}")
        return out
    def phi_cvt():
        for m in range(2):
            for t in range(5):
                a = 8 + 8*t + 4*m
                e(f"v_cvt_pk_bf16_f32 v{QP+10*m+2*t}, v{a}, v{a+1}\nv_cvt_pk_bf16_f32 v{QP+10*m+2*t+1}, v{a+2}, v{a+3}")
        e("s_waitcnt lgkmcnt(0)")
    def phi_stage(P, fill=()):
        for m in range(2):
            for t in range(5):
                a = 8 + 8*t + 4*m
                e(f"v_cvt_pk_bf16_f32 v{QP+10*m+2*t}, v{a}, v{a+1}\nv_cvt_pk_bf16_f32 v{QP+10*m+2*t+1}, v{a+2}, v{a+3}")
        e("s_waitcnt lgkmcnt(0)")
        mf = []
        for ks in range(3):
            for m in range(2):
                for tau in range(5):
                    d = vr(P + 20*m + 4*tau); c = "0" if ks == 0 else d
                    if ks < 2: mf.append(f"v_mfma_f32_16x16x32_bf16 {d}, {vr(WF_+10*tau+4*ks)}, {vr(QP+10*m+4*ks)}, {c}")
                    else: mf.append(f"v_mfma_f32_16x16x16_bf16 {d}, {vr(WF_+10*tau+8,2)}, {vr(QP+10*m+8,2)}, {c}")
        weave(e, mf, fill)
    e(f"s_cmp_eq_u32 s{S_ISQ}, 1\ns_cbranch_scc1 L_CQ")
    AH = [[248, 249], [250, 251], [252, 253], [254, 255]]; AG = [190, 191]
    e("v_lshrrev_b32 v128, 1, v4\nv_lshlrev_b32 v129, 7, v4\nv_lshl_add_u32 v129, v3, 3, v129\nv_add_u32 v129, v129, v6")
    for t in range(4): e(f"v_xor_b32 v130, {t}, v128\nv_lshl_add_u32 v{AH[t][0]}, v130, 5, v129\nv_add_u32 v{AH[t][1]}, {3*WSLOT}, v{AH[t][0]}")
    e(f"v_lshlrev_b32 v{AG[0]}, 4, v1\nv_add_u32 v{AG[1]}, {3*WSLOT}, v{AG[0]}")
    e(f"s_mul_i32 s76, s15, 54\ns_lshl_b32 s77, s{S_J}, 1\ns_add_u32 s76, s76, s77\ns_lshl_b32 s76, s76, 12\ns_and_b32 s77, s{S_WV}, 1\ns_lshl_b32 s77, s77, 11\ns_add_u32 s{S_HO}, s76, s77")
    AR = 128; AA = [133, 134, 135]; VSL, VTB = 6, 7
    e(f"v_lshl_add_u32 v8, v1, 2, v2\nv_and_b32 v9, 7, v8\nv_lshlrev_b32 v8, 7, v8\ns_lshl_b32 s76, s{S_WV}, 14\ns_cmp_eq_u32 s{S_WV}, 3\ns_cmov_b32 s76, {EXCH_H3}\nv_and_b32 v10, 1, v3\nv_lshl_add_u32 v8, v10, 3, v8\nv_add_u32 v8, s76, v8\nv_lshrrev_b32 v10, 1, v3")
    for i, c0 in enumerate([0, 2, 4, 5]): e(f"v_add_u32 v{AR+i}, {c0}, v10\nv_xor_b32 v{AR+i}, v{AR+i}, v9\nv_lshl_add_u32 v{AR+i}, v{AR+i}, 4, v8")
    e(f"v_xor_b32 v{AR+4}, 7, v9\nv_lshl_add_u32 v{AR+4}, v{AR+4}, 4, v8")
    e(f"v_mov_b32 v10, {EXCH_H3 // 16384}\nv_and_b32 v8, 15, v0\ns_lshl_b32 s76, s{S_WV}, 5\nv_add_u32 v8, s76, v8\nv_cmp_eq_u32 vcc, 3, v1\nv_lshlrev_b32 v8, 7, v8\nv_and_b32 v11, 7, v0\nv_cndmask_b32 v9, v1, v10, vcc\nv_lshl_add_u32 v8, v11, 4, v8\nv_lshl_add_u32 v245, v9, 14, v8")
    e(f"v_mov_b32 v13, {OOB}\nv_and_b32 v14, 15, v0\nv_cmp_gt_u32 vcc, 32, v0\nv_cndmask_b32 v{AA[0]}, v13, v{VL16}, vcc\nv_cmp_gt_u32 vcc, 5, v14\nv_cndmask_b32 v{AA[1]}, v13, v{VL16}, vcc\nv_cndmask_b32 v{AA[2]}, v13, v{AA[0]}, vcc")
    e(f"s_lshl_b32 s76, s{S_J}, 6\ns_add_u32 s76, s76, s{S_WV}\ns_mul_i32 s76, s76, 6144\ns_add_u32 s4, s76, {WS_KP}\ns_mul_i32 s76, s{S_RB}, 24576\ns_add_u32 s5, s4, s76\ns_add_u32 s6, s5, 4096")
    e(f"s_mul_i32 s76, s{S_RB}, 14\nv_add_u32 v8, s76, v14\nv_mul_u32_u24 v9, 3121, v8\nv_lshrrev_b32 v9, 16, v9\nv_mul_u32_u24 v10, 21, v9\nv_sub_u32 v10, v8, v10")
    e(f"v_lshrrev_b32 v11, 2, v9\nv_lshrrev_b32 v12, 4, v10\nv_lshl_add_u32 v11, v11, 1, v12\nv_and_b32 v12, 3, v9\nv_and_b32 v15, 15, v10\nv_lshl_add_u32 v12, v12, 4, v15\nv_lshlrev_b32 v12, 4, v12\nv_lshl_add_u32 v11, v11, 10, v12")
    e(f"v_mul_u32_u24 v12, 24576, v1\nv_add_u32 v11, v11, v12\nv_cmp_gt_u32 s[76:77], 14, v14\nv_cmp_gt_u32 vcc, 210, v8\ns_and_b64 vcc, vcc, s[76:77]\nv_cndmask_b32 v{VSL}, v13, v11, vcc")
    e(f"v_mul_u32_u24 v12, 24, v9\nv_add_lshl_u32 v12, v12, v10, 3\ns_and_b64 vcc, vcc, 0xffff\nv_cndmask_b32 v{VTB}, v13, v12, vcc")
    e(f"s_lshl_b32 s76, s{S_J}, 2\ns_add_u32 s76, s76, s{S_WV}\ns_lshl_b32 s76, s76, 11\ns_add_u32 s7, s76, {WS_KV}")
    e(f"s_add_u32 s68, s{S_KFL}, {(FL_KP - FL_KV)*128}\ns_addc_u32 s69, s{S_KFL+1}, 0")
    bias_init(4, 88, (8, 88), (120, 128))
    c_main_loop(e, [Unit(AT, 8*t, 8 + 8*t) for t in range(5)] + [Unit(AT, 1280 + 8*t, 48 + 8*t) for t in range(5)]
                + [Unit(AH[t], 3072, 88 + 8*t) for t in range(4)] + [Unit(AG, 2560, 120, gate=True)], XREG, VXA, RING, D, after_bar0, PHR)
    e.stamp(3)
    e(f"s_setprio {e.opt.get('cprio', 2)}")
    e(f"v_mov_b32 v4, 0\nv_mov_b32 v5, v{VL16}")
    VZ0, VL0 = VZ, VL16; VZ, VL16 = 4, 5
    e.busy(1, 136, 137, 'k'); e.lpost(8, 136, 137)
    P = 212; RV = [8, 20]; RP = [140, 160]; EE = 192; XX = 40; AW = 32
    F = [f"v_xor_b32 v{AW+i}, {16*i}, v245" for i in range(8)]
    for m in range(2):
        for t in range(5):
            a = 48 + 8*t + 4*m
            F += [f"v_cvt_pk_bf16_f32 v{RV[m]+2*t}, v{a}, v{a+1}", f"v_cvt_pk_bf16_f32 v{RV[m]+1+2*t}, v{a+2}, v{a+3}"]
        F += [f"v_mov_b32 v{RV[m]+10}, 0x3f80", f"v_mov_b32 v{RV[m]+11}, 0"]
    phi_cvt()
    weave(e, phi_mfma(P, 0), F)
    e.stamp(4)
    EE0 = 48; RP0 = 68
    softmax2(e, P, EE0, RP0, XX)
    G_ = [f"v_mul_f32 v{40+m}, {f2u(-LOG2E)}, v{120+4*m}" for m in range(2)] + [f"v_exp_f32 v{40+m}, v{40+m}" for m in range(2)] + [f"v_add_f32 v{40+m}, 1.0, v{40+m}" for m in range(2)] + [f"v_rcp_f32 v{40+m}, v{40+m}" for m in range(2)] + ["v_lshlrev_b32 v42, 2, v0"]
    W_ = [f"ds_write_b128 v{AW+i}, {vr(RP0+4*i)}" for i in range(5)] + [f"ds_write_b128 v{AW+5+i}, {vr(RV[m]+4*i)} offset:{2048*m}" for m in range(2) for i in range(3)]
    for n_, x in enumerate(phi_mfma(P, 1)):
        e(x)
        if W_: e(W_.pop(0))
        if G_: e(G_.pop(0))
    e(f"s_mov_b64 exec, 0xffff")
    for m in range(2): e(f"buffer_store_dword v{40+m}, v42, {sr(SRD_WS)}, s{S_GO} offen offset:{64*m} sc1")
    e("s_mov_b64 exec, -1")
    softmax2(e, P + 20, EE, RP[1], XX, wr=lambda i: e(f"ds_write_b128 v{AW+i}, {vr(RP[1]+4*i)} offset:2048"))
    e.stamp(5)
    e.busy(1, 136, 137, 'a')
    e.lsync(1, 136, 137)
    e.stamp(6)
    FR = lambda st: (48 + 20*st) if st < 2 else (140 + 20*(st - 2))
    KD = 212
    rd = [f"ds_read_b64_tr_b16 {vr(FR(st) + 4*i + 2*h, 2)}, v{AR+i} offset:{4096*st + 2048*h}" for st in range(4) for i in range(5) for h in range(2)]
    for x in rd[:14]: e(x)
    nxt = 14
    for st in range(4):
        need = 10*(st + 1)
        while nxt < need: e(rd[nxt]); nxt += 1
        e(f"s_waitcnt lgkmcnt({nxt - need})")
        for U in range(2):
            for Tt in range(3):
                d = vr(KD + 12*U + 4*Tt)
                e(f"v_mfma_f32_16x16x32_bf16 {d}, {vr(FR(st)+4*Tt)}, {vr(FR(st)+12+4*U)}, {'0' if st == 0 else d}")
                for _ in range(2):
                    if nxt < min(40, need + 14): e(rd[nxt]); nxt += 1
    e.lpost(12, 136, 137)
    for Tt in range(3):
        for U in range(2):
            av = [[VL16, AA[1]], [VL16, AA[1]], [AA[0], AA[2]]][Tt][U]; ti = 2*Tt + U
            e(f"buffer_store_dwordx4 {vr(KD + 12*U + 4*Tt)}, v{av}, {sr(SRD_WS)}, s{5 if ti < 4 else 6} offen offset:{1024*(ti % 4)} sc1")
    e.stamp(7)
    def mid(): e.arm(); e("s_waitcnt vmcnt(2)"); e.f2(4); e.busy(-1, 136, 137, 'a'); e.busy(-1, 136, 137, 'k'); e.arrive(2, 136, 137, e.signal(68))
    gelu_steps(88, 2, 192, VL16, mid=mid)
    e(f"s_lshl_b32 s76, s{S_RB}, 7\ns_add_u32 s68, s68, s76\ns_addc_u32 s69, s69, 0")
    e.busy(1, 136, 137, 'b')
    if e.opt.get('lead', False): e.lpoll(19, 68, 34, 16, 136, 137)
    else: e.spoll(68, [34], sleep=e.opt.get('slk', 0), least=16)
    e.busy(1, 136, 137, 'B')
    e.stamp(8)
    SL = 16
    for i in range(4): e(f"buffer_load_dwordx4 {vr(SL + 4*i)}, v{VSL}, {sr(SRD_WS)}, s4 offen sc1\ns_add_u32 s4, s4, {4*24576}")
    e.arm(); e("s_waitcnt vmcnt(4)")
    e.arrive(0, 136, 137, e.signal(S_HFL, 1, 512))
    e("s_waitcnt vmcnt(0)")
    e.f2(5)
    for r in (0, 2): e(f"v_pk_add_f32 {vr(SL+r,2)}, {vr(SL+r,2)}, {vr(SL+4+r,2)}\nv_pk_add_f32 {vr(SL+8+r,2)}, {vr(SL+8+r,2)}, {vr(SL+12+r,2)}")
    for r in (0, 2): e(f"v_pk_add_f32 {vr(SL+r,2)}, {vr(SL+r,2)}, {vr(SL+8+r,2)}")
    for op in ("v_permlane32_swap_b32", "v_permlane16_swap_b32"):
        for r in range(4): e(f"v_mov_b32 v{SL+4+r}, v{SL+r}")
        for r in range(4): e(f"{op} v{SL+4+r}, v{SL+r}")
        for r in (0, 2): e(f"v_pk_add_f32 {vr(SL+r,2)}, {vr(SL+r,2)}, {vr(SL+4+r,2)}")
    e(f"v_cvt_pk_bf16_f32 v14, v{SL}, v{SL+1}\nv_cvt_pk_bf16_f32 v15, v{SL+2}, v{SL+3}\nbuffer_store_dwordx2 v[14:15], v{VTB}, {sr(SRD_WS)}, s7 offen sc1")
    e.arm(); e("s_waitcnt vmcnt(0)"); e.f2(6); e.busy(-1, 136, 137, 'b'); e.busy(-1, 136, 137, 'B')
    e.arrive(4, 136, 137, e.signal(S_KFL))
    e.stamps_out()
    e("s_endpgm")
    VZ, VL16 = VZ0, VL0
    e("L_CQ:")
    AE, AO = [248, 249], [250, 251]
    e(f"v_mul_u32_u24 v128, 320, v4\nv_lshl_add_u32 v128, v3, 3, v128\nv_add_u32 v128, v128, v6\nv_lshlrev_b32 v129, 5, v5")
    e(f"v_add_u32 v{AE[0]}, v128, v129\nv_sub_u32 v{AO[0]}, v128, v129\nv_add_u32 v{AO[0]}, 32, v{AO[0]}\nv_add_u32 v{AE[1]}, {3*WSLOT}, v{AE[0]}\nv_add_u32 v{AO[1]}, {3*WSLOT}, v{AO[0]}")
    e(f"s_mul_i32 s76, s15, 54\ns_mul_i32 s77, s{S_J}, 5\ns_add_u32 s76, s76, s77\ns_add_u32 s76, s76, 16\ns_lshl_b32 s76, s76, 12\ns_and_b32 s77, s{S_WV}, 1\ns_lshl_b32 s77, s77, 11\ns_add_u32 s{S_HO}, s76, s77")
    bias_init(10, 48, (8, 48), (0, 0))
    c_main_loop(e, [Unit(AT, 8*t, 8 + 8*t) for t in range(5)] + [Unit(AE if t % 2 == 0 else AO, 1280 + 32*(t - t % 2), 48 + 8*t) for t in range(10)],
                XREG, VXA, RING, D, after_bar0, PHR)
    e.stamp(3)
    e(f"s_setprio {e.opt.get('cprio', 2)}")
    e.busy(1, 136, 137, 'd'); e.lpost(8, 136, 137); e.lpost(12, 136, 137)
    gelu_steps(48, 5, 212, VL16, skip_from=3)
    e.busy(-1, 136, 137, 'd')
    e.stamp(4)
    P = 88
    F = []; f = F.append
    f(f"v_mul_u32_u24 v68, {KVS}, v1\nv_add_u32 v68, {KVT}, v68\nv_cmp_eq_u32 vcc, v1, v2\nv_lshl_add_u32 v69, v3, 3, v68\nv_mov_b32 v70, {ZERO_LDS}\nv_cndmask_b32 v240, v70, v69, vcc\nv_cndmask_b32 v239, v70, v68, vcc")
    f(f"v_and_b32 v241, 15, v0\nv_lshlrev_b32 v241, 2, v241")
    phi_stage(P, F)
    PHI = [192, 212]
    hq = e.opt.get('hq', 0)
    hsig = e.signal(S_HFL, 0, 512)
    def harr(): e.arm(); e("s_waitcnt vmcnt(0)"); e.arrive(0, 136, 137, hsig); e.stamp(5)
    for m in range(2):
        if m == hq: harr()
        softmax2(e, P + 20*m, 48, PHI[m], 128)
    e(f"s_lshl_b32 s76, s{S_J}, 2\ns_add_u32 s76, s76, s{S_WV}\ns_lshl_b32 s76, s76, 11\ns_add_u32 s4, s76, {WS_KV}\ns_mul_i32 s76, s{S_WV}, {KVS}\ns_add_u32 m0, s76, {KVT}")
    e(f"s_lshl_b32 s76, s15, 3\ns_add_u32 s76, s76, s{S_J}\ns_mul_i32 s76, s76, 10240\ns_add_u32 s76, s76, {WS_OF}\ns_and_b32 s77, s{S_WV}, 1\ns_lshl_b32 s5, s77, 11\ns_add_u32 s5, s5, s76\ns_lshl_b32 s6, s77, 10\ns_add_u32 s6, s6, s76\ns_add_u32 s6, s6, 8192\ns_add_u32 s7, s5, 4096")
    e.stamp(6)
    e(f"s_lshl_b32 s76, s{S_RB}, 7\ns_add_u32 s{S_KFL}, s{S_KFL}, s76\ns_addc_u32 s{S_KFL+1}, s{S_KFL+1}, 0")
    if e.opt.get('lead', False): e.lpoll(19, S_KFL, 34, 16, 136, 137)
    else: e.spoll(S_KFL, [34], sleep=e.opt.get('slk', 0), least=16)
    e.stamp(7)
    if e.opt.get('oprio', 3): e(f"s_setprio {e.opt.get('oprio', 3)}")
    for t in range(2): e(f"buffer_load_dwordx4 v{VL16}, {sr(SRD_WS)}, s4 offen offset:{1024*t} sc1 lds")
    e.busy(1, 136, 137, 'c')
    for m in range(2): e(f"buffer_load_dword v{62+m}, v241, {sr(SRD_WS)}, s{S_GO} offen offset:{64*m} sc1")
    e("s_waitcnt vmcnt(2)")
    e.f2(4)
    e.lsync(1, 136, 137)
    e.f2(5)
    AF = 64
    seq = [5, 0, 1, 2, 3, 4]
    rd = [f"ds_read_b64 {vr(AF + 20*n_ + 4*kp + 2*h, 2)}, v{240 if u < 5 else 239} offset:{8*(48*kp + 4*u + 24*h)}" for n_, u in enumerate(seq) for kp in range(5) for h in range(2)]
    for x in rd[:14]: e(x)
    nxt = 14
    OD = 8
    for n_, u in enumerate(seq):
        while nxt < 10*(n_+1): e(rd[nxt]); nxt += 1
        e(f"s_waitcnt lgkmcnt({nxt - 10*(n_+1)})")
        F = []
        while nxt < min(60, 10*(n_+1) + 14): F.append(rd[nxt]); nxt += 1
        if n_ == 2:
            F.append("s_waitcnt vmcnt(0)")
            F += [f"v_add_f32 v{56+2*m}, {f2u(1e-6)}, v{OD+40+4*m}" for m in range(2)] + [f"v_rcp_f32 v{56+2*m}, v{56+2*m}" for m in range(2)] + [f"v_mul_f32 v{56+2*m}, v{56+2*m}, v{62+m}" for m in range(2)]
        if n_ >= 4:
            for uu in ([0, 1] if n_ == 4 else [2]):
                for m in range(2):
                    a = OD + 8*uu + 4*m
                    F += [f"v_mul_f32 v{a+r}, v{56+2*m}, v{a+r}" for r in range(4)]
                    F += [f"v_cvt_pk_bf16_f32 v{232+8*0 + 0}, v{a}, v{a+1}".replace(f"v{232}", f"v{[184,188][m] + 2*uu if uu < 2 else [244,248][m]}"),
                          f"v_cvt_pk_bf16_f32 v{([184,188][m] + 2*uu if uu < 2 else [244,248][m]) + 1}, v{a+2}, v{a+3}"]
        weave(e, [f"v_mfma_f32_16x16x32_bf16 {vr(OD + 8*u + 4*m)}, {vr(AF + 20*n_ + 4*kp)}, {vr(PHI[m] + 4*kp)}, {'0' if kp == 0 else vr(OD + 8*u + 4*m)}" for kp in range(5) for m in range(2)], F)
        if n_ == 4:
            for m in range(2): e(f"buffer_store_dwordx4 {vr([184,188][m])}, v{VL16}, {sr(SRD_WS)}, s5 offen offset:{1024*m} sc1")
    e.f2(6)
    for uu in (3, 4):
        for m in range(2):
            a = OD + 8*uu + 4*m
            e(f"v_pk_mul_f32 {vr(a,2)}, {vr(a,2)}, {vr(56+2*m,2)} op_sel_hi:[1,0]\nv_pk_mul_f32 {vr(a+2,2)}, {vr(a+2,2)}, {vr(56+2*m,2)} op_sel_hi:[1,0]")
            d = [244, 248][m] + 2 if uu == 3 else 252 + 2*m
            e(f"v_cvt_pk_bf16_f32 v{d}, v{a}, v{a+1}\nv_cvt_pk_bf16_f32 v{d+1}, v{a+2}, v{a+3}")
        if uu == 3:
            for m in range(2): e(f"buffer_store_dwordx4 {vr([244,248][m])}, v{VL16}, {sr(SRD_WS)}, s7 offen offset:{1024*m} sc1")
    e(f"buffer_store_dwordx4 v[252:255], v{VL16}, {sr(SRD_WS)}, s6 offen sc1")
    e.stamp(8)
    e.arm(); e("s_waitcnt vmcnt(0)"); e.busy(-1, 136, 137, 'c'); e.arrive(2, 136, 137, e.signal(S_HFL, 2, 512))
    e.stamps_out()

HEADER = open("gated_mix__linear_kernel_hedgehog__dense_activation_gelu__prompt.s.ref").read().split("; Override launch")[0] if __name__ == "__main__" else ""
if __name__ == "__main__":
    import ast
    kw = ast.literal_eval(sys.argv[2]) if len(sys.argv) > 2 else {}
    open(sys.argv[1], "w").write(HEADER + gen(**kw))
```

```python
import sys
import hazard

NAME = "gated_mix__linear_kernel_hedgehog__dense_activation_gelu__prompt_kernel"
WSLOT = 16384; NW = 5; XBASE = NW*WSLOT; XSLOT = 16384; NX = 3; NSTEP = 20
SPARE = XBASE + NX*XSLOT
ZERO_LDS = SPARE; CNT_LDS = SPARE + 2048; WPHI_LDS = SPARE + 2304; KVT = WPHI_LDS + 64; KVS = 2080; STG = WPHI_LDS + 8448
EXCH_H3 = XBASE + 2*XSLOT; PARK = 3*WSLOT
B2_LDS = STG + 4*5120
B1_LDS = B2_LDS + 1024
assert B1_LDS + 320 <= 163840
LDS_TOTAL = 163840
WS_HF = 0; WS_OF = 0x700000; WS_WF = 0xA00000; WS_G = 0xD00000; WS_KV = 0xE00000; WS_FL = 0xE20000; WS_KP = 0x1000000
WS_SIZE = 0x1400000; WS_STAMP = 0x2000000
FL_H, FL_KV, FL_KP, FL_W = 0, 1024, 1152, 1280
NINIT = 32
OOB = 0x40000000
S_X, S_WQKV, S_WPHI, S_WO, S_BX, S_W1, S_B1, S_W2 = 16, 18, 20, 22, 24, 26, 28, 30
S_B2, S_GATE, S_OUT, S_DBG, S_WS = 32, 34, 36, 38, 40
SRD_X, SRD_WS, SRD_T, SRD_D = 44, 48, 52, 56
S_RB, S_J, S_ISQ, S_WAVE, S_PH, S_WV, S_R64, S_CB = 60, 61, 62, 63, 64, 65, 66, 67
S_KK, S_XK, S_XOFF, S_M0X, S_M0W = 68, 69, 4, 5, 6
S_C2, S_L = 8, 10
LOG2E = 1.4426950408889634
import struct, math
def f2u(x): return struct.unpack('<I', struct.pack('<f', x))[0]
GC1 = -2.0 * LOG2E * math.sqrt(2.0 / math.pi); GC2 = GC1 * 0.044715

def vr(b, n=4): return f"v[{b}:{b+n-1}]" if n > 1 else f"v{b}"
def sr(b, n=4): return f"s[{b}:{b+n-1}]"

class G:
    def __init__(self, diag=False, **opt):
        self.L = []; self.diag = diag; self.opt = opt; self.nlab = 0
    def __call__(self, s): self.L.append(s)
    def dsbatch(self, lst):
        for i, x in enumerate(lst):
            if i >= 15 and (i - 15) % 5 == 0: self("s_waitcnt lgkmcnt(10)")
            self(x)
    def lab(self, p="L"): self.nlab += 1; return f"{p}_{self.nlab}"
    def srd(self, R, p, size):
        self(f"s_mov_b32 s{R}, s{p}\ns_mov_b32 s{R+1}, s{p+1}\ns_mov_b32 s{R+2}, {size}\ns_mov_b32 s{R+3}, 0x20000")
    def fstamp(self, i):
        if self.opt.get('fine'): self(f"s_memtime s[{80+2*i}:{81+2*i}]")
    def f2(self, i):
        if self.opt.get('fine2'): self(f"s_waitcnt lgkmcnt(0)\ns_memtime s[{80+2*i}:{81+2*i}]\ns_waitcnt lgkmcnt(0)")
    def stamp(self, i, m=False):
        if self.opt.get('fine') and 3 <= i <= 8: return
        if self.opt.get('fine2') and m: return
        if self.diag and (i == 9 or not self.opt.get('lite')): self(f"s_waitcnt lgkmcnt(0)\ns_memtime s[{80+2*i}:{81+2*i}]\ns_waitcnt lgkmcnt(0)")
    def stamps_out(self):
        if not self.diag: return
        e = self
        e(f"s_waitcnt vmcnt(0) lgkmcnt(0)")
        e.stamp(9)
        e("s_memrealtime s[72:73]\ns_waitcnt lgkmcnt(0)")
        e(f"s_mov_b32 s{SRD_T}, s{S_WS}\ns_mov_b32 s{SRD_T+1}, s{S_WS+1}\ns_mov_b32 s{SRD_T+2}, 0x10000000\ns_mov_b32 s{SRD_T+3}, 0x20000")
        e(f"s_lshl_b32 s70, s2, 3\ns_add_u32 s70, s70, s{S_WAVE}\ns_lshl_b32 s70, s70, 6\ns_add_u32 s70, s70, {WS_STAMP}")
        e("s_mov_b64 exec, 1\nv_mov_b32 v1, 0")
        for i in range(10):
            if i: e(f"s_sub_u32 s71, s{80+2*i}, s80")
            else: e("s_mov_b32 s71, s80")
            e(f"v_mov_b32 v2, s71\nbuffer_store_dword v2, v1, {sr(SRD_T)}, s70 offen offset:{4*i}")
        e(f"v_mov_b32 v2, s100\nbuffer_store_dword v2, v1, {sr(SRD_T)}, s70 offen offset:40\nv_mov_b32 v2, s72\nbuffer_store_dword v2, v1, {sr(SRD_T)}, s70 offen offset:44")
        e("s_waitcnt vmcnt(0)")
        if self.opt.get('dbgrt'):
            e("s_memrealtime s[70:71]\ns_waitcnt lgkmcnt(0)")
            e.srd(SRD_T, S_DBG, 256)
            e(f"v_mov_b32 v2, s70\nbuffer_atomic_umax v2, v1, {sr(SRD_T)}, 0 offen offset:4 sc1")
            e(f"s_not_b32 s71, s100\nv_mov_b32 v2, s71\nbuffer_atomic_umax v2, v1, {sr(SRD_T)}, 0 offen offset:8 sc1")
            for i in range(1, 10):
                e(f"s_sub_u32 s71, s{80+2*i}, s80\ns_cmp_gt_u32 s71, 0x1000000\ns_cmov_b32 s71, 0\nv_mov_b32 v2, s71\nbuffer_atomic_umax v2, v1, {sr(SRD_T)}, 0 offen offset:{8+4*i} sc1")
            e(f"v_mov_b32 v2, s100\nbuffer_atomic_umax v2, v1, {sr(SRD_T)}, 0 offen offset:48 sc1")
            e("s_waitcnt vmcnt(0)")
    def wsptr(self, d, soff):
        self(f"s_add_u32 s{d}, s{S_WS}, {soff}\ns_addc_u32 s{d+1}, s{S_WS+1}, 0")
    def sprobe(self, base, dst):
        for i, d in enumerate(dst): self(f"s_load_dword s{d}, s[{base}:{base+1}], {128*i} glc")
    def spoll(self, base, dst, probed=False, sleep=1, least=None):
        e = self; L = e.lab("L_sp"); C = e.lab("L_spc"); D = e.lab("L_spd")
        e("s_mov_b32 s79, 0")
        if probed: e(f"s_branch {C}") if False else None
        def chk():
            e("s_waitcnt lgkmcnt(0)")
            if least is not None: e(f"s_cmp_ge_u32 s{dst[0]}, {least}")
            elif len(dst) == 1: e(f"s_cmp_lg_u32 s{dst[0]}, 0")
            else:
                for d in dst[1:]: e(f"s_and_b32 s{dst[0]}, s{dst[0]}, s{d}")
            e(f"s_cbranch_scc1 {D}")
        if probed: chk()
        e(f"{L}:"); e.sprobe(base, dst); chk()
        e(f"s_add_u32 s79, s79, 1\ns_cmp_ge_u32 s79, 0x200000\ns_cbranch_scc1 L_end")
        if sleep: e(f"s_sleep {sleep}")
        e(f"s_branch {L}\n{D}:")
    def lpoll(self, cnt, base, d, least, va, vt, probed=False, sleep=0, hp=None):
        e = self; F = e.lab("L_lf"); D = e.lab("L_lpd"); S = e.lab("L_lps"); L = e.lab("L_lpl")
        if hp is not None: e(f"s_setprio {hp[0]}")
        e(f"v_mov_b32 v{va}, {CNT_LDS + 4*cnt}\ns_mov_b32 s79, 0")
        if probed: e(f"s_waitcnt lgkmcnt(0)\ns_cmp_ge_u32 s{d}, {least}\ns_cbranch_scc1 {S}")
        e(f"s_cmp_lg_u32 s{S_WV}, 0\ns_cbranch_scc1 {F}\n{L}:\ns_load_dword s{d}, s[{base}:{base+1}], 0 glc\ns_waitcnt lgkmcnt(0)\ns_cmp_ge_u32 s{d}, {least}\ns_cbranch_scc1 {S}")
        e(f"s_add_u32 s79, s79, 1\ns_cmp_ge_u32 s79, 0x200000\ns_cbranch_scc1 L_end\n" + (f"s_sleep {sleep}\n" if sleep else "") + f"s_branch {L}")
        e(f"{F}:\nds_read_b32 v{vt}, v{va}\ns_waitcnt lgkmcnt(0)\nv_readfirstlane_b32 s78, v{vt}\ns_cmp_lg_u32 s78, 0\ns_cbranch_scc1 {D}")
        e(f"s_add_u32 s79, s79, 1\ns_cmp_ge_u32 s79, 0x1000000\ns_cbranch_scc1 L_end\ns_branch {F}")
        e(f"{S}:\nv_mov_b32 v{vt}, 1\nds_write_b32 v{va}, v{vt}\n{D}:")
        if hp is not None: e(f"s_setprio {hp[1]}")
    def arrive(self, cnt, va, vt, then):
        e = self; D = e.lab("L_arr")
        e(f"s_mov_b64 exec, 1\nv_mov_b32 v{va}, {CNT_LDS + 4*cnt}\nv_mov_b32 v{vt}, 1\nds_add_rtn_u32 v{va}, v{va}, v{vt}\ns_waitcnt lgkmcnt(0)")
        e(f"v_readfirstlane_b32 s78, v{va}\ns_mov_b64 exec, -1\ns_cmp_lg_u32 s78, 3\ns_cbranch_scc1 {D}")
        then(D)
        e(f"{D}:")
    def signal(self, base, word=0, stride=128):
        def f(D):
            for i in range(16): self(f"s_atomic_add s{16+i}, s[{base}:{base+1}], {stride*i + 4*word} glc")
        return f
    def arm4(self, base, stride):
        self(f"s_waitcnt lgkmcnt(0)\ns_mul_i32 s20, s{S_WV}, {4*stride}\ns_add_u32 s20, s20, s{base}\ns_addc_u32 s21, s{base+1}, 0\n" + "\n".join(f"s_mov_b32 s{16+i}, 1" for i in range(4)))
    def sig4(self, cnt, va, vt, word, stride):
        self.lsync(cnt, va, vt)
        for i in range(4): self(f"s_atomic_add s{16+i}, s[20:21], {stride*i + 4*word} glc")
    def post(self, site, cnt, base, word, stride, wait, between=None):
        if site in self.opt.get('s4', 'pkho'):
            self.arm4(base, stride); self(wait)
            if between: between()
            self.sig4(cnt, 136, 137, word, stride)
        else:
            self.arm(); self(wait)
            if between: between()
            self.arrive(cnt, 136, 137, self.signal(base, word, stride))
    def arm(self):
        self("s_waitcnt lgkmcnt(0)\n" + "\n".join(f"s_mov_b32 s{16+i}, 1" for i in range(16)))
    def sfirst(self, base, offs, dst):
        for o, d in zip(offs, dst): self(f"s_load_dword s{d}, s[{base}:{base+1}], {o}")
    def scheck(self, dst, target, srd, soff, vz, vt, vm):
        e = self; D = e.lab("L_sc")
        e("s_waitcnt lgkmcnt(0)")
        for d in dst[1:]: e(f"s_min_u32 s{dst[0]}, s{dst[0]}, s{d}")
        e(f"s_cmp_ge_u32 s{dst[0]}, {target}\ns_cbranch_scc1 {D}\nv_mov_b32 v{vt}, 0")
        e.vpoll(srd, soff, target, vz, vt)
        e(f"{D}:")
    def vpoll(self, srd, soff, target, vz, vt):
        e = self; L = e.lab("L_vp"); D = e.lab("L_vpd")
        e(f"s_mov_b32 s79, 0\n{L}:\nv_cmp_gt_u32 vcc, {target}, v{vt}\ns_cmp_eq_u64 vcc, 0\ns_cbranch_scc1 {D}")
        e(f"s_add_u32 s79, s79, 1\ns_cmp_ge_u32 s79, 0x100000\ns_cbranch_scc1 L_end\ns_sleep 8")
        e(f"buffer_load_dword v{vt}, v{vz}, {sr(srd)}, {soff} offen sc1\ns_waitcnt vmcnt(0)\ns_branch {L}\n{D}:")
    def lpost(self, cnt, va, vt):
        self(f"s_mov_b64 exec, 1\nv_mov_b32 v{va}, {CNT_LDS + 4*cnt}\nv_mov_b32 v{vt}, 1\nds_add_u32 v{va}, v{vt}\ns_mov_b64 exec, -1")
    def lwait(self, cnt, va, vt, sleep=1):
        e = self; L = e.lab("L_lw"); D = e.lab("L_lwd")
        e(f"s_setprio {e.opt.get('hp', 3)}")
        e(f"v_mov_b32 v{va}, {CNT_LDS + 4*cnt}\ns_mov_b32 s79, 0\n{L}:\nds_read_b32 v{vt}, v{va}\ns_waitcnt lgkmcnt(0)\nv_readfirstlane_b32 s78, v{vt}\ns_cmp_ge_u32 s78, 4\ns_cbranch_scc1 {D}")
        e(f"s_add_u32 s79, s79, 1\ns_cmp_ge_u32 s79, 0x1000000\ns_cbranch_scc1 L_end\n" + (f"s_sleep {sleep}\n" if sleep else "") + f"s_branch {L}\n{D}:\ns_setprio {e.opt.get('mprio', 0)}")
    def busy(self, d, va, vt, w=''):
        if w in self.opt.get('yld', ''): self(f"s_mov_b64 exec, 1\nv_mov_b32 v{va}, {CNT_LDS + 4*11}\nv_mov_b32 v{vt}, {d}\nds_add_u32 v{va}, v{vt}\ns_mov_b64 exec, -1")
    def lsync(self, cnt, va, vt):
        e = self; L = e.lab("L_ls")
        e(f"s_waitcnt lgkmcnt(0)\ns_mov_b64 exec, 1\nv_mov_b32 v{va}, {CNT_LDS + 4*cnt}\nv_mov_b32 v{vt}, 1\nds_add_u32 v{va}, v{vt}\ns_mov_b32 s79, 0\n{L}:")
        e(f"ds_read_b32 v{vt}, v{va}\ns_waitcnt lgkmcnt(0)\nv_readfirstlane_b32 s78, v{vt}\ns_add_u32 s79, s79, 1\ns_cmp_ge_u32 s79, 0x1000000\ns_cbranch_scc1 L_end\ns_cmp_lt_u32 s78, 4\ns_cbranch_scc1 {L}\ns_mov_b64 exec, -1")

SA, SAE, SAS, SB, SBE, SBS, SA2, SB2, SOA, SOB, SG, SPK = 16, 17, 18, 19, 24, 25, 26, 27, 28, 29, 10, 11
SFH, SFW = 34, 8
SPD = [20]; S_TL = 43
P3_ACC = 176; P3_B2 = 100; P3_VT = [10, 11, 12, 3]; P3_VL2 = 13; P3_VLB = 5; P3_VF = 171
p3acc = lambda u, t: P3_ACC + 16*u + 4*t

class Unit:
    def __init__(self, areg, off, acc, gate=False): self.areg, self.off, self.acc, self.gate = areg, off, acc, gate

def c_main_loop(e, units, xreg, xaddr, ring, D, after_bar0, tail=()):
    tail = list(tail)
    n = len(units); R = D + 2; lg = []; total = NSTEP * n
    def wait_lg(tags):
        idx = max([i for i, t in enumerate(lg) if t in tags], default=-1)
        if idx < 0: return
        cnt = len(lg) - 1 - idx; assert cnt <= 15
        e(f"s_waitcnt lgkmcnt({cnt})"); del lg[:idx + 1]
    def xreads(s, out):
        for m in range(2):
            out.append(f"ds_read_b128 {vr(xreg + 8*(s % 2) + 4*m)}, v{xaddr[s % 2]} offset:{((s//2) % NX)*XSLOT + m*2048}"); lg.append(('x', s))
    def wreads(q, out):
        s, u = divmod(q, n); U = units[u]; r = ring + 4*(q % R); slot = s % NW
        a = U.areg[slot // 3]; o = (slot % 3)*WSLOT + U.off
        if U.gate:
            out.append(f"ds_read_b128 {vr(r)}, v{a} offset:{o}"); lg.append(('w', q)); return
        out.append(f"ds_read_b64_tr_b16 {vr(r,2)}, v{a} offset:{o}"); out.append(f"ds_read_b64_tr_b16 {vr(r+2,2)}, v{a} offset:{o + 4096}")
        lg.extend([('w', q)]*2)
    e("s_barrier"); after_bar0()
    buf = []; xreads(0, buf)
    for q in range(D): wreads(q, buf)
    for b in buf: e(b)
    for q in range(total):
        s, u = divmod(q, n)
        tags = [('w', q), ('x', s)]
        if q % 2 == 0 and q + 1 < total: tags += [('w', q + 1), ('x', (q + 1)//n)]
        wait_lg(tags)
        buf = []; qa = q + D
        if qa < total:
            if qa % n == 0: buf.append("s_barrier"); xreads(qa // n, buf)
            wreads(qa, buf)
        elif tail:
            k_ = -(-len(tail) // (total - q))
            for x in tail[:k_]:
                if len(lg) >= 15: buf.append("s_waitcnt lgkmcnt(10)"); del lg[:len(lg) - 10]
                buf.append(x); lg.append(('t',))
            del tail[:k_]
        U = units[u]; r = ring + 4*(q % R); half = (len(buf) + 1)//2
        for m in range(2):
            acc = vr(U.acc + 4*m)
            e(f"v_mfma_f32_16x16x32_bf16 {acc}, {vr(r)}, {vr(xreg + 8*(s % 2) + 4*m)}, {acc}")
            for b in (buf[:half] if m == 0 else buf[half:]): e(b)

def gelu_pack(e, jobs, T, C1):
    for i in range(0, len(jobs), 4):
        grp = jobs[i:i+4]
        for k, (s, d) in enumerate(grp): e(f"v_pk_mul_f32 {vr(T+2*k,2)}, {vr(s,2)}, {vr(s,2)}")
        for k, (s, d) in enumerate(grp): e(f"v_pk_fma_f32 {vr(T+2*k,2)}, {vr(T+2*k,2)}, {sr(S_C2,2)}, {vr(C1,2)}")
        for k, (s, d) in enumerate(grp): e(f"v_pk_mul_f32 {vr(T+2*k,2)}, {vr(T+2*k,2)}, {vr(s,2)}")
        for k in range(2*len(grp)): e(f"v_exp_f32 v{T+k}, v{T+k}")
        for k, (s, d) in enumerate(grp): e(f"v_pk_add_f32 {vr(T+2*k,2)}, {vr(T+2*k,2)}, 1.0 op_sel_hi:[1,0]")
        for k in range(2*len(grp)): e(f"v_rcp_f32 v{T+k}, v{T+k}")
        for k, (s, d) in enumerate(grp): e(f"v_pk_mul_f32 {vr(T+2*k,2)}, {vr(T+2*k,2)}, {vr(s,2)}")
        for k, (s, d) in enumerate(grp): e(f"v_cvt_pk_bf16_f32 v{d}, v{T+2*k}, v{T+2*k+1}")

def softmax2(e, P, E, OUT, X, fill=(), wr=None):
    B = []; o = lambda t: B.extend(t.split("\n"))
    mx, mn = X, X + 2
    o(f"v_max3_f32 v{mx}, v{P}, v{P+1}, v{P+2}\nv_min3_f32 v{mn}, v{P}, v{P+1}, v{P+2}")
    for i in range(3, 19, 2): o(f"v_max3_f32 v{mx}, v{mx}, v{P+i}, v{P+i+1}\nv_min3_f32 v{mn}, v{mn}, v{P+i}, v{P+i+1}")
    o(f"v_max_f32 v{mx}, v{mx}, v{P+19}\nv_min_f32 v{mn}, v{mn}, v{P+19}")
    o(f"v_mul_f32 v{mx}, s{S_L}, v{mx}\nv_mul_f32 v{mn}, s{S_L}, v{mn}")
    for i in range(0, 20, 2):
        o(f"v_pk_fma_f32 {vr(E+i,2)}, {vr(P+i,2)}, {sr(S_L,2)}, {vr(mx,2)} op_sel_hi:[1,1,0] neg_lo:[0,0,1] neg_hi:[0,0,1]")
        o(f"v_pk_fma_f32 {vr(P+i,2)}, {vr(P+i,2)}, {sr(S_L,2)}, {vr(mn,2)} op_sel_hi:[1,1,0] neg_lo:[1,0,0] neg_hi:[1,0,0]")
    for i in range(20): o(f"v_exp_f32 v{E+i}, v{E+i}\nv_exp_f32 v{P+i}, v{P+i}")
    sp, sn = X + 4, X + 6
    o(f"v_pk_add_f32 {vr(sp,2)}, {vr(E,2)}, {vr(E+2,2)}\nv_pk_add_f32 {vr(sn,2)}, {vr(P,2)}, {vr(P+2,2)}")
    for i in range(4, 20, 2): o(f"v_pk_add_f32 {vr(sp,2)}, {vr(sp,2)}, {vr(E+i,2)}\nv_pk_add_f32 {vr(sn,2)}, {vr(sn,2)}, {vr(P+i,2)}")
    o(f"v_add_f32 v{sp}, v{sp}, v{sp+1}\nv_add_f32 v{sn}, v{sn}, v{sn+1}\nv_rcp_f32 v{sp}, v{sp}\nv_rcp_f32 v{sn}, v{sn}")
    fill = list(fill); step = len(B) // (len(fill) + 1)
    for i, x in enumerate(B):
        e(x)
        if fill and (i + 1) % step == 0: e(fill.pop(0))
    for src, sc, half in ((E, sp, 0), (P, sn, 1)):
        for i in range(10):
            e(f"v_pk_mul_f32 {vr(src+2*i,2)}, {vr(src+2*i,2)}, {vr(sc,2)} op_sel_hi:[1,0]")
            if i >= 1: e(f"v_cvt_pk_bf16_f32 v{OUT+10*half+i-1}, v{src+2*i-2}, v{src+2*i-1}")
            done = 10*half + i
            if wr and i >= 1 and done % 4 == 0: wr(done // 4 - 1)
        e(f"v_cvt_pk_bf16_f32 v{OUT+10*half+9}, v{src+18}, v{src+19}")
    if wr: wr(4)

def weave(e, main, fill, per=2):
    fill = [x for t in fill for x in t.split("\n")]
    for x in main:
        e(x)
        for _ in range(per):
            if fill: e(fill.pop(0))
    for x in fill: e(x)

def gen(diag=False, D=5, rot=(10, 20, 10, 5), PB=5, **opt):
    e = G(diag, **opt)
    e(f"; @launch grid=(256,1,1) block=(512,1,1) lds={LDS_TOTAL}")
    e(f'.amdgcn_target "amdgcn-amd-amdhsa--gfx950"\n.text\n.globl {NAME}\n.p2align 8\n.type {NAME},@function\n{NAME}:')
    if diag: e("s_memtime s[80:81]\ns_memrealtime s[100:101]")
    e("s_cmp_ge_u32 s2, 256\ns_cbranch_scc1 L_end")
    e("s_load_dwordx16 s[16:31], s[0:1], 0\ns_load_dwordx8 s[32:39], s[0:1], 64\ns_load_dwordx2 s[40:41], s[0:1], 96")
    if opt.get('epf', False):
        e(f"s_getpc_b64 s[12:13]\nL_pc0:\nv_lshlrev_b32 v2, 4, v0\nv_and_b32 v2, 0xc00, v2\nv_and_b32 v3, 7, v0\nv_lshl_add_u32 v2, v3, 7, v2")
        e(f"v_mov_b32 v3, L_C-L_pc0\nv_cmp_gt_u32 vcc, 256, v0\nv_cndmask_b32 v3, 0, v3, vcc\nv_add_u32 v2, v2, v3\ns_mov_b64 exec, 0xff\nglobal_load_dword v186, v2, s[12:13]\ns_mov_b64 exec, -1")
    if opt.get('cpt'):
        e(f"s_getpc_b64 s[76:77]\nL_pct:\ns_lshr_b32 s78, s2, 3\ns_lshl_b32 s78, s78, 11\nv_lshrrev_b32 v1, 6, v0\nv_and_b32 v2, 1, v0\nv_lshl_add_u32 v2, v1, 1, v2\nv_lshl_add_u32 v2, v2, 7, s78")
        e(f"v_min_u32 v2, L_end-L_pct, v2\ns_mov_b64 exec, 3\nglobal_load_dword v187, v2, s[76:77]\ns_mov_b64 exec, -1")
    e(f"v_lshrrev_b32 v1, 6, v0\nv_and_b32 v0, 63, v0")
    e(f"s_and_b32 s70, s2, 7\ns_lshr_b32 s71, s2, 3")
    e(f"v_readfirstlane_b32 s{S_WAVE}, v1")
    e(f"s_and_b32 s72, s70, 1\ns_and_b32 s73, s71, 7\ns_lshl_b32 s74, s72, 3\ns_add_u32 s{S_RB}, s74, s73")
    if opt.get('mix', True):
        e(f"s_lshr_b32 s{S_ISQ}, s71, 4\ns_lshr_b32 s74, s70, 1\ns_lshr_b32 s75, s71, 3")
        e(f"s_and_b32 s76, s75, 1\ns_lshl_b32 s77, s74, 1\ns_add_u32 s{S_J}, s76, s77")
    else:
        e(f"s_lshr_b32 s{S_ISQ}, s70, 2\ns_lshr_b32 s74, s70, 1\ns_lshr_b32 s75, s71, 3")
        e(f"s_and_b32 s76, s74, 1\ns_lshl_b32 s76, s76, 2\ns_add_u32 s{S_J}, s76, s75")
    a, b, c, d = rot
    e(f"s_mul_i32 s76, s73, {a}\ns_mul_i32 s77, s75, {b}\ns_add_u32 s76, s76, s77\ns_mul_i32 s77, s74, {c}\ns_add_u32 s76, s76, s77\ns_mul_i32 s77, s72, {d}\ns_add_u32 s76, s76, s77\ns_lshr_b32 s76, s76, 3")
    e(f"s_mul_i32 s77, s76, 6554\ns_lshr_b32 s77, s77, 16\ns_mul_i32 s77, s77, 10\ns_sub_u32 s{S_PH}, s76, s77")
    e(f"s_and_b32 s{S_WV}, s{S_WAVE}, 3")
    e.fstamp(3)
    if opt.get('c0', True):
        e(f"s_cmp_ge_u32 s{S_WAVE}, 4\ns_cbranch_scc1 L_M")
        c_first(e)
        e("s_branch L_C\nL_M:")
    else: e(f"s_cmp_lt_u32 s{S_WAVE}, 4\ns_cbranch_scc1 L_C")
    m_wave(e, PB)
    e("L_C:")
    c_wave(e, D)
    e("L_end:\ns_endpgm")
    e(f""".section .rodata,"a"
.p2align 6
.amdhsa_kernel {NAME}
  .amdhsa_next_free_vgpr 256
  .amdhsa_next_free_sgpr 102
  .amdhsa_accum_offset 256
  .amdhsa_group_segment_fixed_size 0
  .amdhsa_kernarg_size 104
  .amdhsa_user_sgpr_count 2
  .amdhsa_user_sgpr_kernarg_segment_ptr 1
  .amdhsa_system_sgpr_workgroup_id_x 1
.end_amdhsa_kernel""")
    txt, n = hazard.fix("\n".join(e.L), opt.get('verbose', False))
    return txt + "\n"

def x_setup(e, VX):
    e(f"v_lshrrev_b32 v2, 3, v0\ns_lshl_b32 s76, s{S_WV}, 4\nv_add_u32 v2, s76, v2")
    e(f"v_lshrrev_b32 v3, 4, v0\nv_xor_b32 v3, v3, v0\nv_and_b32 v3, 7, v3\nv_lshlrev_b32 v3, 4, v3")
    e(f"v_mul_u32_u24 v2, 1280, v2\nv_add_u32 v{VX[0]}, v2, v3")
    e(f"v_xor_b32 v3, 64, v3\nv_add_u32 v2, {8*1280-1024}, v2\nv_add_u32 v{VX[1]}, v2, v3")
    e(f"s_mul_i32 s{S_XOFF}, s{S_RB}, {128*1280}\ns_lshl_b32 s{S_M0X}, s{S_WV}, 11\ns_add_u32 s{S_M0X}, s{S_M0X}, {XBASE}\ns_lshl_b32 s{S_XK}, s{S_PH}, 7")
XADV = f"s_add_u32 s{S_XK}, s{S_XK}, 128\ns_cmp_eq_u32 s{S_XK}, 1280\ns_cmov_b32 s{S_XK}, 0"
def dma_x_ops(VX, X, h):
    pre = f"s_add_u32 s76, s{S_XK}, {h*81920}\ns_add_u32 m0, s{S_M0X}, {(X % NX)*XSLOT + h*8192}\ns_add_u32 s76, s76, s{S_XOFF}\n"
    return [(('x', X), pre + f"buffer_load_dwordx4 v{VX[0]}, {sr(SRD_X)}, s76 offen lds"),
            (('x', X), f"buffer_load_dwordx4 v{VX[1]}, {sr(SRD_X)}, s76 offen offset:1024 lds" + ("\n" + XADV if h else ""))]

def m_wave(e, PB):
    e("s_setprio 3")
    VX = [16, 17]; VB = [18, 20, 22, 24]; VS = [26, 27, 28, 29]; VA = [30, 32, 34, 36]
    e(f"s_lshl_b32 s{S_M0W}, s{S_WV}, 12\ns_lshl_b32 s{S_KK}, s{S_PH}, 1")
    e(f"s_lshr_b32 s76, s{S_WV}, 1\ns_lshl_b32 s76, s76, 4\ns_and_b32 s77, s{S_WV}, 1\ns_lshl_b32 s77, s77, 2\ns_add_u32 s78, s76, s77")
    def krow(dst, rho):
        e(f"v_and_b32 v{dst}, 4, v{rho}\nv_add3_u32 v{dst}, v{dst}, v{rho}, s78")
    def panel(dst, ci0, colreg, kv):
        e(f"v_add_u32 v2, {ci0}, v0\nv_mul_u32_u24 v3, 6554, v2\nv_lshrrev_b32 v3, 16, v3\nv_mul_u32_u24 v4, 10, v3\nv_sub_u32 v4, v2, v4")
        if kv: e(f"v_lshrrev_b32 v6, 3, v3\nv_and_b32 v3, 7, v3\nv_mul_u32_u24 v6, 1280, v6\nv_lshl_add_u32 v4, v4, 4, v6")
        else: e(f"v_lshlrev_b32 v4, 4, v4")
        krow(5, 3)
        e(f"v_mul_u32_u24 v5, 3840, v5\nv_add3_u32 v{dst}, v5, v4, s{colreg}")
    def h160(dst, hi0):
        e(f"v_add_u32 v2, {hi0}, v0\nv_min_i32 v2, 159, v2\nv_max_i32 v2, 0, v2\nv_mul_u32_u24 v3, 3277, v2\nv_lshrrev_b32 v3, 16, v3\nv_mul_u32_u24 v4, 20, v3\nv_sub_u32 v4, v2, v4")
        e(f"v_lshrrev_b32 v6, 1, v3\nv_and_b32 v6, 2, v6\nv_xor_b32 v4, v4, v6\nv_min_u32 v4, s77, v4\nv_lshlrev_b32 v4, 4, v4")
        krow(5, 3)
        e(f"v_mul_u32_u24 v5, 3456, v5\nv_add3_u32 v{dst}, v5, v4, s76")
    def addptr(b, off, plo, phi):
        if b: e(f"v_subrev_u32 v{off}, {1024*b}, v{off}\nv_ashrrev_i32 v7, 31, v{off}")
        else: e(f"v_mov_b32 v7, 0")
        e(f"v_add_co_u32 v{VB[b]}, vcc, {plo}, v{off}")
        if phi.startswith('s'): e(f"v_mov_b32 v6, {phi}"); phi = "v6"
        e(f"v_addc_co_u32 v{VB[b]+1}, vcc, {phi}, v7, vcc")
    vm = ([('pf',)] if e.opt.get('epf', False) else []) + ([('pf',)] if e.opt.get('cpt') else [])
    def emit(lst):
        for tag, txt in lst: e(txt); vm.append(tag)
    def wait_vm(pred):
        idx = max([i for i, t in enumerate(vm) if pred(t)], default=-1)
        if idx >= 0: e(f"s_waitcnt vmcnt({len(vm)-1-idx})"); del vm[:idx+1]
    def dma_w(step):
        pre = "".join(f"v_mad_u64_u32 {vr(VA[b],2)}, vcc, v{VS[b]}, s{S_KK}, {vr(VB[b],2)}\n" for b in range(4))
        pre += f"s_add_u32 m0, s{S_M0W}, {(step % NW)*WSLOT}\ns_add_u32 s{S_KK}, s{S_KK}, 1\ns_cmp_eq_u32 s{S_KK}, 20\ns_cmov_b32 s{S_KK}, 0\n"
        return [(('w', step), (pre if b == 0 else "") + f"global_load_lds_dwordx4 {vr(VA[b],2)}, off offset:{1024*b} {e.opt.get('wnt', '')}") for b in range(4)]
    dma_x = lambda X, h: dma_x_ops(VX, X, h)
    O = [8, 46, 10, 11, 12]
    e(f"s_cmp_eq_u32 s{S_ISQ}, 1\ns_cbranch_scc1 L_MQ")
    e(f"s_mul_i32 s76, s{S_J}, 160\ns_add_u32 s76, s76, 1280")
    panel(O[0], 0, 76, True); panel(O[1], 64, 76, True); panel(O[2], 128, 76, True)
    e(f"v_lshrrev_b32 v3, 3, v0\nv_and_b32 v4, 6, v3\nv_xor_b32 v4, v4, v0\nv_and_b32 v4, 7, v4\nv_lshlrev_b32 v4, 4, v4\ns_lshl_b32 s76, s{S_J}, 7")
    krow(5, 3)
    e(f"v_mul_u32_u24 v5, 3456, v5\nv_add3_u32 v{O[3]}, v5, v4, s76")
    e(f"v_subrev_u32 v2, 32, v0\nv_min_u32 v2, 3, v2\nv_lshlrev_b32 v2, 4, v2\nv_cmp_gt_u32 s[14:15], 32, v0")
    e(f"v_mov_b32 v{VS[0]}, {32*3840}\nv_mov_b32 v{VS[1]}, {32*3840}\nv_mov_b32 v{VS[3]}, {32*3456}\nv_cndmask_b32 v{O[2]}, v2, v{O[2]}, s[14:15]\nv_cndmask_b32 v{VS[2]}, 64, v{VS[0]}, s[14:15]")
    e.fstamp(4)
    e("s_waitcnt lgkmcnt(0)")
    e.fstamp(5)
    addptr(0, O[0], f"s{S_WQKV}", f"s{S_WQKV+1}"); addptr(1, O[1], f"s{S_WQKV}", f"s{S_WQKV+1}"); addptr(3, O[3], f"s{S_W1}", f"s{S_W1+1}")
    e(f"v_mov_b32 v2, s{S_GATE}\nv_mov_b32 v3, s{S_WQKV}\nv_cndmask_b32 v2, v2, v3, s[14:15]\nv_mov_b32 v3, s{S_GATE+1}\nv_mov_b32 v4, s{S_WQKV+1}\nv_cndmask_b32 v3, v3, v4, s[14:15]")
    addptr(2, O[2], "v2", "v3")
    e("s_branch L_Mgo\nL_MQ:")
    e(f"s_mul_i32 s79, s{S_J}, 160\ns_mul_i32 s76, s{S_J}, 320\ns_add_u32 s76, s76, 1024\ns_cmp_eq_u32 s{S_J}, 7\ns_cselect_b32 s77, 11, 19")
    panel(O[0], 0, 79, False); panel(O[1], 64, 79, False); h160(O[4], -16); h160(O[2], 48); h160(O[3], 112)
    e(f"v_cmp_gt_u32 s[14:15], 16, v0\nv_mov_b32 v{VS[0]}, {32*3840}\nv_mov_b32 v{VS[2]}, {32*3456}\nv_mov_b32 v{VS[3]}, {32*3456}")
    e(f"v_cndmask_b32 v{O[1]}, v{O[4]}, v{O[1]}, s[14:15]\nv_cndmask_b32 v{VS[1]}, v{VS[2]}, v{VS[0]}, s[14:15]")
    e.fstamp(4)
    e("s_waitcnt lgkmcnt(0)")
    e.fstamp(5)
    addptr(0, O[0], f"s{S_WQKV}", f"s{S_WQKV+1}"); addptr(2, O[2], f"s{S_W1}", f"s{S_W1+1}"); addptr(3, O[3], f"s{S_W1}", f"s{S_W1+1}")
    e(f"v_mov_b32 v2, s{S_W1}\nv_mov_b32 v3, s{S_WQKV}\nv_cndmask_b32 v2, v2, v3, s[14:15]\nv_mov_b32 v3, s{S_W1+1}\nv_mov_b32 v4, s{S_WQKV+1}\nv_cndmask_b32 v3, v3, v4, s[14:15]")
    addptr(1, O[1], "v2", "v3")
    e("L_Mgo:")
    LA = e.opt.get('LA', 2); JS = e.opt.get('JS', 8)
    if e.opt.get('linbar'): e("s_barrier")
    emit(dma_w(0))
    e.stamp(1)
    emit(dma_w(1))
    x_setup(e, VX); e.srd(SRD_X, S_X, 2048*1280)
    e(XADV)
    if LA >= 3: emit(dma_x(1, 0)); emit(dma_w(2))
    e(f"s_setprio {e.opt.get('lprio', 0)}")
    e(f"s_and_b32 s76, s70, 3\ns_lshl_b32 s76, s76, 3\ns_add_u32 s{S_R64}, s76, s73\ns_and_b32 s76, s70, 4\ns_add_u32 s{S_CB}, s76, s75")
    e(f"s_mul_i32 s7, s73, 5\ns_mul_i32 s76, s75, 10\ns_add_u32 s7, s7, s76\ns_lshr_b32 s7, s7, 2")
    VZ, VL16 = 1, 15
    VJ = [38, 39, 40, 41, 42]; VJR = 43; VP = 14; JF = 48
    chunks = {}
    def c0():
        e.srd(SRD_WS, S_WS, WS_SIZE); e.srd(SRD_D, S_DBG, 256)
        e(f"v_mov_b32 v{VZ}, 0\nv_lshlrev_b32 v{VL16}, 4, v0")
        if e.opt.get('jq', True):
            NQJ = e.opt.get('nqj', 432)
            e(f"s_lshl_b32 s70, s{S_J}, 4\ns_add_u32 s70, s70, s{S_RB}\ns_sub_u32 s71, 127, s70\ns_lshl_b32 s71, s71, 2\ns_add_u32 s71, s71, s{S_WV}\ns_lshl_b32 s72, s{S_WV}, 7\ns_add_u32 s72, s72, s70\ns_add_u32 s72, s72, {NQJ}")
            e(f"s_cmp_eq_u32 s{S_ISQ}, 0\ns_cselect_b32 s72, s72, s71\ns_mov_b32 s71, {NQJ}\ns_cmov_b32 s71, 592\ns_sub_u32 s70, s72, s71\ns_lshr_b32 s71, s72, 3\ns_and_b32 s72, s72, 7")
        else:
            e(f"s_mul_i32 s70, s2, 37\ns_add_u32 s71, s70, 37\ns_lshr_b32 s70, s70, 4\ns_lshr_b32 s71, s71, 4\ns_add_u32 s72, s70, s{S_WV}\ns_sub_u32 s70, s72, s71\ns_lshr_b32 s71, s72, 3\ns_and_b32 s72, s72, 7")
        e(f"s_sub_u32 s73, s71, 54\ns_mul_i32 s77, s73, 6554\ns_lshr_b32 s77, s77, 15\ns_mul_i32 s78, s77, 5\ns_sub_u32 s78, s73, s78")
        e(f"s_mul_i32 s73, s77, 160\ns_lshr_b32 s77, s78, 1\ns_mul_i32 s77, s77, 80\ns_and_b32 s79, s78, 1\ns_lshl_b32 s79, s79, 3\ns_add_u32 s77, s77, s79")
        e(f"s_cmp_eq_u32 s78, 4\ns_cselect_b32 s77, 16, s77\ns_cselect_b32 s75, 80, 4\ns_add_u32 s73, s73, s77\ns_mov_b32 s74, 20")
    def c1():
        e(f"s_lshl_b32 s77, s71, 5\ns_cmp_lt_u32 s71, 54\ns_cselect_b32 s73, s77, s73\ns_cselect_b32 s74, 4, s74\ns_cselect_b32 s75, 16, s75")
        e(f"s_cselect_b32 s{SRD_T}, s{S_W2}, s{S_WO}\ns_cselect_b32 s{SRD_T+1}, s{S_W2+1}, s{S_WO+1}\ns_mov_b32 s{SRD_T+2}, {640*1280}\ns_cmov_b32 s{SRD_T+2}, {1728*1280}\ns_mov_b32 s{SRD_T+3}, 0x20000")
        e(f"s_mul_i32 s12, s73, 1280\ns_mul_i32 s77, s72, 160\ns_add_u32 s12, s12, s77")
        e(f"s_mul_i32 s13, s72, 74\ns_add_u32 s13, s13, s71\ns_mul_i32 s13, s13, 5120\ns_add_u32 s13, s13, {WS_WF}")
        e(f"s_and_b32 s77, s{S_RB}, 3\ns_lshl_b32 s78, s{S_ISQ}, 2\ns_add_u32 s77, s77, s78\ns_lshl_b32 s77, s77, 7\ns_add_u32 s77, s77, {WS_FL + FL_W*128}"); e.wsptr(14, "s77")
        e(f"s_cmp_lt_i32 s70, 0\ns_cselect_b32 s12, s12, {OOB}\ns_cselect_b32 s13, s13, {OOB}")
        e(f"s_mul_i32 s3, s{S_WV}, 5120\ns_add_u32 s3, s3, {STG}")
        e(f"v_lshrrev_b32 v2, 2, v0\nv_mul_u32_u24 v2, 160, v2\nv_and_b32 v3, 3, v0\nv_mul_u32_u24 v3, 40, v3\nv_add3_u32 v{VJR}, v2, v3, s3\nv_add_u32 v44, 4096, v{VL16}")
    def cj(i0, i1):
        def f():
            for i in range(i0, i1):
                e(f"v_add_u32 v2, {64*i}, v0\nv_mul_u32_u24 v3, 6554, v2\nv_lshrrev_b32 v3, 16, v3\nv_mul_u32_u24 v4, 10, v3\nv_sub_u32 v4, v2, v4")
                e(f"v_bfe_u32 v5, v3, 2, 2\nv_mul_u32_u24 v5, s74, v5\nv_lshrrev_b32 v6, 4, v3\nv_mul_u32_u24 v6, s75, v6\nv_and_b32 v3, 3, v3\nv_add3_u32 v3, v3, v5, v6")
                e(f"v_mul_u32_u24 v3, 1280, v3\nv_lshl_add_u32 v{VJ[i]}, v4, 4, v3")
        return f
    def c8():
        e(f"s_cmp_eq_u32 s{S_WV}, 3\ns_cselect_b32 s70, 8, 10\ns_mul_i32 s71, s{S_WV}, 10\ns_add_u32 s71, s71, 16")
        for _ in range(2): e(f"s_cmp_ge_u32 s7, s70\ns_cselect_b32 s72, s70, 0\ns_sub_u32 s7, s7, s72")
        e(f"s_mul_i32 s74, s{S_R64}, 54\ns_add_u32 s72, s74, s71\ns_lshl_b32 s{SAS}, s72, 12\ns_lshl_b32 s73, s70, 12\ns_add_u32 s{SAE}, s{SAS}, s73\ns_lshl_b32 s73, s7, 12\ns_add_u32 s{SA}, s{SAS}, s73")
        e(f"s_mul_i32 s75, s{S_CB}, 74\ns_add_u32 s73, s75, s71\ns_mul_i32 s73, s73, 5120\ns_add_u32 s{SBS}, s73, {WS_WF}\ns_mul_i32 s73, s70, 5120\ns_add_u32 s{SBE}, s{SBS}, s73\ns_mul_i32 s73, s7, 5120\ns_add_u32 s{SB}, s{SBS}, s73")
    def c9():
        e(f"s_lshl_b32 s70, s{S_WV}, 2\ns_add_u32 s71, s74, s70\ns_lshl_b32 s{SA2}, s71, 12\ns_add_u32 s71, s75, s70\ns_mul_i32 s71, s71, 5120\ns_add_u32 s{SB2}, s71, {WS_WF}")
        e(f"s_mul_i32 s70, s{S_WV}, 5\ns_add_u32 s70, s70, s75\ns_add_u32 s70, s70, 54\ns_mul_i32 s70, s70, 5120\ns_add_u32 s{SOB}, s70, {WS_WF}")
        e(f"s_mul_i32 s70, s{S_R64}, 81920\ns_add_u32 s{SOA}, s70, {WS_OF}")
        e(f"s_lshl_b32 s70, s{S_R64}, 3\ns_add_u32 s70, s70, s{S_CB}\ns_lshl_b32 s70, s70, 2\ns_add_u32 s70, s70, s{S_WV}\ns_lshl_b32 s70, s70, 7\ns_add_u32 s70, s70, {WS_FL + FL_H*128}"); e.wsptr(SFH, "s70")
        e(f"s_mov_b32 s{SFW}, {WS_FL + FL_W*128 + 1024}")
        e(f"s_lshl_b32 s70, s{S_R64}, 8\ns_lshl_b32 s71, s{S_WV}, 14\ns_add_u32 s70, s70, s71\ns_add_u32 s{SG}, s70, {WS_G}")
    def c10():
        e(f"s_mul_i32 s{SPK}, s{S_WV}, 20480\ns_add_u32 s{SPK}, s{SPK}, {PARK}\ns_cmp_eq_u32 s{S_WV}, 3\ns_cmov_b32 s{SPK}, {STG}")
        e(f"v_add_u32 v{P3_VL2}, 4096, v{VL16}")
        e(f"s_and_b32 s70, s{S_CB}, {3 if e.opt.get('trot', True) else 0}\ns_xor_b32 s{S_TL}, s70, s{S_WV}")
        for t in range(4): e(f"s_xor_b32 s70, s{S_TL}, {t}\ns_lshl_b32 s70, s70, 10\nv_add_u32 v{P3_VT[t]}, s70, v{VL16}")
        e(f"v_min_u32 v4, 144, v{VL16}\ns_mul_i32 s70, s{S_CB}, 160\nv_add_u32 v4, s70, v4")
        e(f"v_and_b32 v8, 7, v0\nv_lshlrev_b32 v8, 7, v8")
    JL = e.opt.get('JL', -1); JR = e.opt.get('JR', 2); JA = e.opt.get('JA', 8); ZA = e.opt.get('ZA', 2); pre = e.opt.get('pre', 0)
    for c_ in (c0, c1, cj(0, 5), c8, c9, c10): c_()
    e(f"s_lshl_b32 s76, s2, 12\nv_lshl_add_u32 v2, v0, 7, s76\ns_lshl_b32 s76, s2, 10\ns_add_u32 s76, s76, {(FL_KV - 32)*128}\nv_lshl_add_u32 v6, v0, 7, s76\nv_cmp_gt_u32 vcc, 32, v0\nv_mov_b32 v168, 0\nv_mov_b32 v169, 0\nv_cndmask_b32 v2, v6, v2, vcc")
    e(f"v_mov_b32 v6, {OOB}\nv_cmp_gt_u32 vcc, 40, v0\nv_mov_b32 v170, 0\nv_mov_b32 v171, 0\nv_cndmask_b32 v2, v6, v2, vcc\ns_add_u32 s76, s2, {FL_W}\ns_lshl_b32 s76, s76, 7\ns_cmp_lt_u32 s2, 16\ns_cselect_b32 s76, s76, {OOB}\nv_writelane_b32 v2, s76, 40")
    e(f"s_lshl_b32 s76, s{S_WV}, 8\ns_or_b32 s76, s76, s2\ns_cmp_lt_u32 s76, {NINIT}\ns_mov_b32 s76, {OOB}\ns_cmov_b32 s76, {WS_FL}")
    emit([(('zero',), f"buffer_store_dwordx4 v[168:171], v2, {sr(SRD_WS)}, s76 offen sc1")])
    emit([(('b2',), f"s_mov_b32 m0, {B2_LDS}\nglobal_load_lds_dwordx4 v4, s[{S_B2}:{S_B2+1}]")])
    txt = (f"s_mul_i32 s76, s{S_J}, 3200\ns_lshl_b32 s77, s{S_WV}, 10\ns_add_u32 m0, s77, {WPHI_LDS}\ns_add_u32 s76, s76, s77\ns_add_u32 s76, s76, s{S_WPHI}\ns_addc_u32 s77, s{S_WPHI+1}, 0\n"
           f"s_cmp_eq_u32 s{S_WV}, 3\ns_mov_b32 s78, 1008\ns_cmov_b32 s78, 112\nv_min_u32 v6, s78, v{VL16}\nglobal_load_lds_dwordx4 v6, s[76:77]")
    emit([(('phi',), txt)])
    if e.opt.get('cpf', True) and not e.opt.get('cpc', True):
        e(f"s_getpc_b64 s[76:77]\nL_pc:\ns_sub_u32 s76, s76, L_pc-{NAME}\ns_subb_u32 s77, s77, 0")
        e(f"s_lshr_b32 s78, s2, 3\ns_lshl_b32 s78, s78, 2\ns_add_u32 s78, s78, s{S_WV}\ns_lshl_b32 s78, s78, 9\nv_and_b32 v6, 3, v0\nv_lshl_add_u32 v6, v6, 7, s78")
        emit([(('pf',), f"s_mov_b32 s78, L_end-{NAME}\nv_min_u32 v6, s78, v6\ns_mov_b64 exec, 15\nglobal_load_dword v167, v6, s[76:77]\ns_mov_b64 exec, -1")])
    def job_loads():
        for i in range(5):
            emit([(('job',), f"s_add_u32 m0, s3, {1024*i}\ns_nop 0\nbuffer_load_dwordx4 v{VJ[i]}, {sr(SRD_T)}, s12 offen {e.opt.get('jnt', 'nt')} lds")])
    if JL < 0: job_loads()
    P3S = P3(e, PB, VZ, VL16, vm)
    if JL < 0: P3S.early_setup()
    WD = [20, 22, 23, 30, 31, 32, 33, 12]
    def extras(s):
        if s == ZA:
            wait_vm(lambda t: t[0] in ('zero', 'b2', 'phi'))
            Li = e.lab("L_ini")
            e(f"s_lshl_b32 s77, s{S_WV}, 8\ns_or_b32 s77, s77, s2\ns_cmp_ge_u32 s77, {NINIT}\ns_cbranch_scc1 {Li}\ns_mov_b32 s21, 1\ns_atomic_add s21, s[{S_DBG}:{S_DBG+1}], 0 glc\n{Li}:")
        if s == JR:
            wait_vm(lambda t: t[0] == 'job')
            for u in range(5):
                e(f"ds_read_b64_tr_b16 {vr(JF+4*u,2)}, v{VJR} offset:{8*u}\nds_read_b64_tr_b16 {vr(JF+4*u+2,2)}, v{VJR} offset:{8*u + 2560}")
        if s == JA - 1: e.sfirst(S_DBG, [0], [31])
        if s == JA:
            e.scheck([31], NINIT, SRD_D, "0", VZ, VP, vm)
            wait_vm(lambda t: t[0] == 'jst')
            e(f"s_mov_b64 exec, 1\nv_mov_b32 v174, {CNT_LDS + 4*3}\nv_mov_b32 v175, 1\nds_add_rtn_u32 v174, v174, v175\ns_mov_b64 exec, -1\ns_mov_b32 s22, 0")
        if s == JA + 1:
            Lw = e.lab("L_w1")
            e(f"s_waitcnt lgkmcnt(0)\nv_readfirstlane_b32 s78, v174\ns_cmp_lg_u32 s78, 3\ns_cbranch_scc1 {Lw}\ns_mov_b32 s22, 1\ns_atomic_add s22, s[14:15], 0 glc\n{Lw}:")
        if s == JA + e.opt.get('JF', 2):
            Lw = e.lab("L_w2")
            e(f"s_waitcnt lgkmcnt(0)\ns_cmp_lg_u32 s22, 31\ns_cbranch_scc1 {Lw}\ns_mov_b32 s23, 1\ns_atomic_add s23, s[14:15], 1024 glc\n{Lw}:")
    for s in range(NSTEP):
        wait_vm(lambda t: t == ('w', s) or t == ('x', s//2))
        e("s_barrier")
        if s == 0: e.stamp(2)
        if e.opt.get('steps'): e(f"s_memtime s[76:77]\ns_waitcnt lgkmcnt(0)\ns_sub_u32 s76, s76, s80\nv_writelane_b32 v9, s76, {s}")
        n_list = [2, 3] if (LA == 2 and s == 0) else [s + 3]
        for n_ in n_list:
            if n_ < NSTEP: emit(dma_x(n_ // 2, n_ % 2))
        extras(s)
        if s + LA < NSTEP: emit(dma_w(s + LA))
        if s == JL: job_loads(); P3S.early_setup()
        if s == JR + e.opt.get('JSd', 0):
            e("s_waitcnt lgkmcnt(0)")
            for u in range(5):
                if u < 4: emit([(('jst',), f"buffer_store_dwordx4 {vr(JF+4*u)}, v{VL16}, {sr(SRD_WS)}, s13 offen offset:{1024*u} sc1")])
                else: emit([(('jst',), f"buffer_store_dwordx4 {vr(JF+4*u)}, v44, {sr(SRD_WS)}, s13 offen sc1")])
        if s == (17 if pre else 18): e.wsptr(76, f"s{SFW}"); e.sfirst(76, [128*i for i in range(8)], WD)
        if s == 18 and pre:
            e.scheck(WD, 1, SRD_WS, f"s{SFW}", 8, VP, vm)
            for _ in range(pre): P3S.prefetch()
    e.stamp(3)
    if not pre: e.scheck(WD, 1, SRD_WS, f"s{SFW}", 8, VP, vm)
    e(f"s_setprio {e.opt.get('mprio', 0)}")
    e.stamp(4)
    if e.opt.get('nop3'):
        e.stamps_out(); e("s_endpgm"); return
    P3S.begin()
    while P3S.npre < PB:
        if P3S.npre >= e.opt.get('free', 2):
            if not P3S.ring:
                e.lwait(8, 174, 175); P3S.ring = True
                P3S.park_now(e.opt.get('pkf', 0))
            P3S.yield_()
        P3S.prefetch()
        if len(vm) > P3S.THR: e(f"s_waitcnt vmcnt({P3S.THR})"); del vm[:len(vm) - P3S.THR]
    if e.opt.get('pkl', 4):
        if not P3S.ring: e.lwait(8, 174, 175); P3S.ring = True
        if e.opt.get('pkw') is not None:
            P3S.park_now(e.opt.get('pkw', 1)); e.lwait(e.opt.get('pkc', 12), 174, 175)
        P3S.park_now(e.opt.get('pkl', 4) - P3S.parked)
    P3S.run()

def P3(e, PB, VZ, VL16, vm):
    class S: pass
    S.npre = 0
    opt = e.opt
    ACC = 176; POOL = 16; NPOOL = 38
    VL2, VP = 13, 14; VGO = 173; VY = 9; assert not (opt.get('steps') and opt.get('yld'))
    VT = P3_VT
    VG = 2
    acc = lambda u, t: ACC + 16*u + 4*t
    NQ, NK = 10, 4; NS = NQ + NK; HPM = (opt.get('hp', 3), opt.get('mprio', 0))
    def pst(i):
        if opt.get('steps'): e(f"s_waitcnt lgkmcnt(0)\ns_memtime s[76:77]\ns_waitcnt lgkmcnt(0)\ns_sub_u32 s76, s76, s80\nv_writelane_b32 v9, s76, {i}")
    free = list(range(NPOOL)); frag = {}
    def emit1(item): e(item[1]); vm.append(item[0])
    def waitvm(pred):
        idx = max([i for i, t in enumerate(vm) if pred(t)], default=-1)
        if idx >= 0: e(f"s_waitcnt vmcnt({len(vm)-1-idx})"); del vm[:idx+1]
    def ld(d, v, so, off): return f"buffer_load_dwordx4 {d}, v{v}, {sr(SRD_WS)}, {so} offen" + (f" offset:{off}" if off else "") + " sc1"
    def take(k): return free.pop(0)
    def group(kind, k):
        out = []
        for i in range(4 if kind == 'A' else 5):
            sl = take(k); frag[(kind, k, i)] = POOL + 4*sl; d = vr(POOL + 4*sl)
            pre = post = ""
            if kind == 'A':
                if k < NQ:
                    if k == NQ - 2 and i == 0: pre = f"s_cmp_eq_u32 s{S_WV}, 3\ns_cmov_b32 s{SA}, {OOB}\n"
                    if i == 3: post = f"\ns_add_u32 s{SA}, s{SA}, 4096\ns_cmp_eq_u32 s{SA}, s{SAE}\ns_cmov_b32 s{SA}, s{SAS}"
                    txt = ld(d, VT[i], f"s{SA}", 0)
                else:
                    txt = ld(d, VT[i], f"s{SA2}", 0)
                    if i == 3: post = f"\ns_add_u32 s{SA2}, s{SA2}, 4096"
            else:
                if k < NQ:
                    so = f"s{SB}"
                    if k == NQ - 2 and i == 0: pre = f"s_cmp_eq_u32 s{S_WV}, 3\ns_cmov_b32 s{SB}, {OOB}\n"
                    if i == 4: post = f"\ns_add_u32 s{SB}, s{SB}, 5120\ns_cmp_eq_u32 s{SB}, s{SBE}\ns_cmov_b32 s{SB}, s{SBS}"
                else:
                    so = f"s{SB2}"
                    if i == 4: post = f"\ns_add_u32 s{SB2}, s{SB2}, 5120"
                txt = ld(d, VL16, so, 1024*i) if i < 4 else ld(d, VL2, so, 0)
            out.append(((kind, k), pre + txt + post))
        return out
    THR = opt.get('thr', 10)
    YLD = opt.get('yld', '')
    def yield_(pre_read=False):
        if not YLD: return
        L = e.lab("L_y"); D = e.lab("L_yd")
        if not pre_read: e(f"ds_read_b32 v{VP}, v{VY}")
        e(f"s_setprio {opt.get('hp', 3)}\ns_mov_b32 s79, 0\n{L}:\ns_waitcnt lgkmcnt(0)\nv_readfirstlane_b32 s78, v{VP}\ns_cmp_eq_u32 s78, 0\ns_cbranch_scc1 {D}")
        e(f"s_add_u32 s79, s79, 1\ns_cmp_ge_u32 s79, 0x1000000\ns_cbranch_scc1 L_end\ns_sleep 1\nds_read_b32 v{VP}, v{VY}\ns_branch {L}\n{D}:\ns_setprio {opt.get('mprio', 0)}")
    def prefetch():
        for it in group('B', S.npre):
            emit1(it)
            r_ = opt.get('rth')
            if r_ is not None and S.npre >= opt.get('free', 2) and len(vm) > r_: e(f"s_waitcnt vmcnt({r_})"); del vm[:len(vm) - r_]
        S.npre += 1
    S.prefetch = prefetch; S.THR = THR
    def msync(cnt):
        e.lpost(cnt, 174, 175); e.lwait(cnt, 174, 175, sleep=0)
    def park(j):
        out = []
        for i in range(5):
            pre = f"s_add_u32 s12, s{S_R64}, {j}\ns_and_b32 s12, s12, 3\ns_mul_i32 s12, s12, 5120\ns_add_u32 s13, s12, s{SOB}\ns_add_u32 s12, s12, s{SPK}\n" if i == 0 else ""
            out.append((('L',), pre + f"s_add_u32 m0, s12, {1024*i}\ns_add_u32 s77, s13, {1024*i}\nbuffer_load_dwordx4 v{VL16}, {sr(SRD_WS)}, s77 offen sc1 lds"))
        return out
    VH = [4, 5, 6, 7]; VOUT = 169; VGS = [2, 168, 170, 172]
    def early_setup():
        for t in range(4): e(f"s_xor_b32 s70, s{S_TL}, {t}\ns_lshr_b32 s71, s70, 1\ns_lshl_b32 s71, s71, 10\ns_and_b32 s70, s70, 1\ns_lshl_b32 s70, s70, 3\ns_add_u32 s70, s70, s71\ns_add_u32 s70, s70, 8192\nv_add_u32 v{VH[t]}, s70, v{VL16}")
        e.srd(SRD_T, S_OUT, 2048*1280)
        e(f"v_and_b32 v{VOUT}, 15, v0\nv_mul_u32_u24 v{VOUT}, 1280, v{VOUT}\nv_lshrrev_b32 v170, 4, v0\nv_mul_u32_u24 v170, 40, v170\nv_add_u32 v{VOUT}, v{VOUT}, v170\nv_add_u32 v171, s{SPK}, v{VL16}")
        e(f"s_lshl_b32 s70, s{S_R64}, 2\ns_add_u32 s70, s70, s{S_TL}\ns_mul_i32 s70, s70, {16*1280}\ns_mul_i32 s71, s{S_CB}, 160\ns_add_u32 s42, s70, s71")
        e(f"s_mul_i32 s70, s{S_WV}, 20480\ns_add_u32 s{SOA}, s{SOA}, s70")
        e(f"v_and_b32 v{VGO}, 15, v0\nv_lshlrev_b32 v{VGO}, 2, v{VGO}")
    S.early_setup = early_setup
    S.ring = False; S.yield_ = yield_; S.parked = 0
    def park_now(n):
        for _ in range(n):
            yield_()
            for it in park(S.parked):
                emit1(it)
                p_ = opt.get('pth', 2)
                if len(vm) > p_: e(f"s_waitcnt vmcnt({p_})"); del vm[:len(vm) - p_]
            S.parked += 1
            if len(vm) > THR: e(f"s_waitcnt vmcnt({THR})"); del vm[:len(vm) - THR]
    S.park_now = park_now
    S.begin = lambda: e(f"v_mov_b32 v{VY}, {CNT_LDS + 4*11}") if YLD else None
    def run():
        if not S.ring: e.lwait(8, 174, 175)
        e.stamp(5, True)
        PK = opt.get('pk', (10, 11, 11, 12))
        for j in range(4):
            if PK[j] >= 0 or j < S.parked: continue
            yield_()
            for it in park(j): emit1(it)
            if len(vm) > THR: e(f"s_waitcnt vmcnt({THR})"); del vm[:len(vm) - THR]
        P2 = opt.get('pk2', 0); SP2 = [4, 5, 6]
        if P2: e.lwait(12, 174, 175)
        for j in range(P2):
            e(f"s_xor_b32 s76, s{S_WV}, {j+1}\ns_mul_i32 s{SP2[j]}, s76, 15360\ns_cmp_eq_u32 s76, 3\ns_cmov_b32 s{SP2[j]}, {EXCH_H3}\ns_add_u32 s{SP2[j]}, s{SP2[j]}, {5120*j}")
            for i in range(5):
                emit1((('L',), f"s_add_u32 m0, s{SP2[j]}, {1024*i}\ns_add_u32 s77, s{SB2}, {5120*(NK - P2 + j) + 1024*i}\nbuffer_load_dwordx4 v{VL16}, {sr(SRD_WS)}, s77 offen sc1 lds"))
                p_ = opt.get('pth2', 2)
                if len(vm) > p_: e(f"s_waitcnt vmcnt({p_})"); del vm[:len(vm) - p_]
        for ch, role, cnt in (('q', 0, 0), ('k', 1, 2)):
            if ch in opt.get('hw', ''):
                Lh = e.lab("L_hw")
                e(f"s_cmp_eq_u32 s{S_ISQ}, {role}\ns_cbranch_scc1 {Lh}"); e.lwait(cnt, 174, 175); e(f"{Lh}:")
        e.spoll(SFH, SPD, sleep=opt.get('slh', 0), least=2)
        e.stamp(6, True)
        order = []
        for k in range(NS):
            order.append(('A', k))
            if PB <= k < NS - P2: order.append(('B', k))
        pend = []; gate = [False]
        LOOK = opt.get('look', 2)
        def refill(cur):
            i = 0
            while i < len(order):
                kind, k = order[i]
                if kind == 'A' and k >= NQ and not gate[0]: i += 1; continue
                if k > cur + LOOK or len(free) < (4 if kind == 'A' else 5) + (8 if i > 0 else 0): break
                pend.extend(group(kind, k)); order.pop(i)
        yield_()
        refill(-1)
        for it in pend: emit1(it)
        pend.clear()
        nxtflag = f"s_add_u32 s{SFH}, s{SFH}, 4"
        GK = NQ - opt.get('gk', LOOK); GO = NS - opt.get('go', 0)
        bo = {}; aq = []; dsq = []; lg = []
        def o_weights_stream():
            for u in range(5):
                sl = free.pop(0); bo[(4, u)] = POOL + 4*sl
                pend.append((('Bo',), (f"s_add_u32 s77, s{SOB}, {4*5120}\n" if u == 0 else "") + (ld(vr(POOL + 4*sl), VL16, "s77", 1024*u) if u < 4 else ld(vr(POOL + 4*sl), VL2, "s77", 0))))
        SNAKE = opt.get('snake', True)
        iord = lambda t: ([3, 2, 4, 1, 0] if (t == 2 and SNAKE) else [0, 1, 2, 3, 4])
        oa = [(t, i) for t in (3, 2, 1, 0) for i in iord(t)]; ao = {}
        def a_next():
            t, i = oa.pop(0); sl = free.pop(0); ao[(t, i)] = d = POOL + 4*sl
            if i < 4: return [(('Ao', t, i), f"s_add_u32 s76, s{SOA}, {(i >> 1)*10240 + (i & 1)*4096}\n" + ld(vr(d), VT[t], "s76", 0))]
            return [(('Ao', t, i), f"s_add_u32 s76, s{SOA}, {ee*10240}\nbuffer_load_dwordx2 {vr(d+2*ee,2)}, v{VH[t]}, {sr(SRD_WS)}, s76 offen sc1") for ee in range(2)]
        ob = [(t, i, u) for t in (3, 2, 1, 0) for i in range(4) for u in range(5)]
        if SNAKE: ob = [(3, i, u) for i in range(4) for u in range(5)] + [(2, i, u) for i in (1, 0) for u in range(5)]
        def b_next():
            t, i, u = ob.pop(0); sl = free.pop(0); bo[(t, i, u)] = POOL + 4*sl
            if len(lg) >= 15: e("s_waitcnt lgkmcnt(10)"); del lg[:5]
            e(f"ds_read_b128 {vr(POOL + 4*sl)}, v171 offset:{5120*i + 1024*u}"); lg.append((t, i))
        def o_gate():
            e.stamp(7, True)
            e.spoll(SFH, SPD, probed=True, sleep=opt.get('slz', 0), least=2)
            e.stamp(8, True); lg.clear()
            while oa: pend.extend(a_next())
        for k in range(NS):
            if k == GK:
                e.spoll(SFH, SPD, probed=True, sleep=opt.get('slo', 0), least=2)
                gate[0] = True
                for t in range(4): emit1((('g',), f"s_xor_b32 s76, s{S_TL}, {t}\ns_lshl_b32 s76, s76, 6\ns_add_u32 s76, s76, s{SG}\nbuffer_load_dword v{VGS[t]}, v{VGO}, {sr(SRD_WS)}, s76 offen sc1"))
            refill(k)
            for j in range(4):
                if PK[j] == k and j >= S.parked: pend.extend(park(j))
            if k == NS - 2: o_weights_stream()
            while any(it[0] in (('A', k), ('B', k)) for it in pend): emit1(pend.pop(0))
            if k == GO:
                o_gate()
                for _ in range(4): emit1(pend.pop(0))
            waitvm(lambda t: t in (('A', k), ('B', k)))
            if pend and k != GK - 1 and k < GO - 1: yield_(pre_read=k > 0 and k != GK)
            if k >= NS - P2: e("s_waitcnt lgkmcnt(0)")
            pst(24 + k)
            dq = []
            if NS - P2 <= k + 1 < NS:
                j = k + 1 - (NS - P2)
                for u in range(5):
                    sl = free.pop(0); frag[('B', k + 1, u)] = POOL + 4*sl
                    dq.append((f"v_add_u32 v14, s{SP2[j]}, v{VL16}\n" if u == 0 else "") + f"ds_read_b128 {vr(POOL + 4*sl)}, v14 offset:{1024*u}")
            cnt = 0
            for t in range(4):
                for u in range(5):
                    e(f"v_mfma_f32_16x16x32_bf16 {vr(acc(u,t))}, {vr(frag[('B',k,u)])}, {vr(frag[('A',k,t)])}, {vr(acc(u,t)) if k else 0}")
                    cnt += 1
                    if cnt % 2 == 0 and pend: emit1(pend.pop(0))
                    elif cnt % 2 == 1 and dq: e(dq.pop(0))
            while pend: emit1(pend.pop(0))
            for i in range(4): free.append((frag[('A', k, i)] - POOL)//4)
            for i in range(5): free.append((frag[('B', k, i)] - POOL)//4)
            if k == GK - 2 or (k == GO - 2 and GO < NS): e(nxtflag); e.sprobe(SFH, SPD)
            elif k == NS - 1 and GO >= NS: e(nxtflag)
            elif YLD and k + 1 < GO - 1 and k + 1 != GK: e(f"ds_read_b32 v{VP}, v{VY}")
        assert not order
        pst(38)
        e.lwait(12, 174, 175)
        waitvm(lambda t: t in (('g',), ('L',)))
        bs = [free.pop(0) for _ in range(3)]; br = [POOL + 4*x for x in bs]
        e(f"v_lshrrev_b32 v{VGO}, 4, v0\nv_mul_u32_u24 v{VGO}, 40, v{VGO}\nv_add_u32 v{VGO}, {B2_LDS}, v{VGO}")
        for i in range(5): e(f"ds_read_b64 {vr(br[i >> 1] + 2*(i & 1), 2)}, v{VGO} offset:{8*i}")
        e("s_waitcnt lgkmcnt(0)")
        for u in range(5):
            for h_ in range(2):
                x = br[u >> 1] + 2*(u & 1) + h_; a = acc(u, 0) + 2*h_
                e(f"v_lshlrev_b32 v174, 16, v{x}\nv_and_b32 v175, 0xffff0000, v{x}\nv_pk_add_f32 {vr(a,2)}, {vr(a,2)}, v[174:175]")
        free.extend(bs)
        if GO >= NS: e.sprobe(SFH, SPD)
        while len(free) > (0 if GO < NS else 20): b_next()
        for t in range(4): e(f"v_sub_f32 v{VGS[t]}, 1.0, v{VGS[t]}")
        for t in (3, 2, 1, 0):
            for u in range(5):
                for r in (0, 2): e(f"v_pk_mul_f32 {vr(acc(u,t)+r,2)}, {vr(acc(u,t)+r,2)}, {vr(VGS[t],2)} op_sel_hi:[1,0]")
        RA = [2, 168, 170, 172]
        for t in range(4): e(f"s_xor_b32 s76, s{S_WV}, {t}\ns_mul_i32 s77, s76, 15360\ns_cmp_eq_u32 s76, 3\ns_cmov_b32 s77, {EXCH_H3}\nv_add_u32 v{RA[t]}, s77, v{VL16}")
        if opt.get('opf'):
            emit1((('opf',), f"buffer_load_dword v{VP}, v{VOUT}, {sr(SRD_T)}, s42 offen"))
        if GO >= NS:
            o_gate()
            for _ in range(opt.get('a0', 12)): emit1(pend.pop(0))
        pst(39)
        wq = []
        FAST = opt.get('fastred', True)
        if FAST:
            for t in range(1, 4): e(f"s_xor_b32 s76, s{S_WV}, {t}\ns_lshl_b32 s76, s76, 4\ns_add_u32 s{71+t}, s76, {CNT_LDS + 4*24 + 4*(t-1)}")
            e(f"s_lshl_b32 s76, s{S_WV}, 4\ns_add_u32 s76, s76, {CNT_LDS + 4*24}\nv_mov_b32 v{VGO}, s76\nv_mov_b32 v175, 1")
        def tile_steps(t, fill=None):
            for i in iord(t):
                while any(it[0] == ('Ao', t, i) for it in pend): emit1(pend.pop(0))
                while any(x[:2] == (t, i) for x in ob): b_next()
                waitvm(lambda x: x == ('Ao', t, i) or x == ('Bo',))
                idx = max([n for n, x in enumerate(lg) if x == (t, i)], default=-1)
                if idx >= 0: e(f"s_waitcnt lgkmcnt({len(lg)-1-idx})"); del lg[:idx+1]
                src = t if not SNAKE else (3 if (i >= 2 or t == 3) else 2)
                drop = i < 4 and (not SNAKE or (t == 3 and i < 2))
                for u in range(5):
                    bb = bo[(src, i, u)] if i < 4 else bo[(4, u)]
                    e(f"v_mfma_f32_16x16x32_bf16 {vr(acc(u,t))}, {vr(bb)}, {vr(ao[(t,i)])}, {vr(acc(u,t))}")
                    if drop and u: free.append((bo[(t, i, u-1)] - POOL)//4)
                    if u in (0, 2) and pend: emit1(pend.pop(0))
                    if wq and (u == 3 or (FAST and t == 0 and u == 1)):
                        if len(lg) >= 14: e("s_waitcnt lgkmcnt(9)"); del lg[:len(lg) - 9]
                        x = wq.pop(0); e(x); lg.extend(['w'] * (2 if 'ds_add' in x else 1))
                    if ob and free and len([x for x in lg if x != 'w']) < 12: b_next()
                    if fill: fill(i, u)
                if drop: free.append((bo[(t, i, 4)] - POOL)//4)
                free.append((ao[(t, i)] - POOL)//4)
            if t:
                wq.extend([f"ds_write_b128 v{RA[t]}, {vr(acc(u,t))} offset:{5120*(t-1) + 1024*u}" for u in range(5)])
                if FAST: wq[-1] += f"\ns_mov_b64 exec, 1\nv_mov_b32 v174, s{71+t}\nds_add_u32 v174, v175\ns_mov_b64 exec, -1"
        def early(i, u):
            if i == 4 and u == 0 and FAST: e(f"ds_read_b96 v[12:14], v{VGO}"); lg.append('w')
        for t in (3, 2, 1): tile_steps(t, early if t == 1 else None)
        if not FAST:
            tile_steps(0)
            assert not wq and not oa and not ob
            pst(40)
            e("s_waitcnt lgkmcnt(0)\ns_barrier")
            pst(41)
            R = POOL
            for u in range(5):
                for sw in range(3): e(f"ds_read_b128 {vr(R + 12*u + 4*sw)}, v{RA[0]} offset:{sw*5120 + u*1024}")
            for u in range(5):
                e(f"s_waitcnt lgkmcnt({12 - 3*u})")
                b = R + 12*u; a = acc(u, 0)
                for r in (0, 2): e(f"v_pk_add_f32 {vr(a+r,2)}, {vr(a+r,2)}, {vr(b+r,2)}\nv_pk_add_f32 {vr(b+4+r,2)}, {vr(b+4+r,2)}, {vr(b+8+r,2)}")
                for r in (0, 2): e(f"v_pk_add_f32 {vr(a+r,2)}, {vr(a+r,2)}, {vr(b+4+r,2)}")
        else:
            assert not pend and not ob and not oa
            sl = [free.pop(0) for _ in range(5)]
            IN = [[acc(u, 3), acc(u, 2), POOL + 4*sl[u]] for u in range(5)]
            rds = [f"ds_read_b128 {vr(IN[u][sw])}, v{RA[0]} offset:{(2-sw)*5120 + u*1024}" for sw in range(3) for u in range(5)]
            Lslow = e.lab("L_rs"); Ljoin = e.lab("L_rj")
            e(f"s_waitcnt lgkmcnt(2)\nv_min3_u32 v{VP}, v12, v13, v14\nv_readfirstlane_b32 s78, v{VP}\ns_cmp_lt_u32 s78, 1\ns_cbranch_scc1 {Lslow}"); assert 'ds_add' in "".join(e.L[-12:]); del lg[:-2]
            st = (list(wq), list(vm), list(free))
            q = list(rds); adds = []
            for u in range(5):
                adds += [f"v_add_f32 v{IN[u][0]+r}, v{IN[u][0]+r}, v{IN[u][1]+r}" for r in range(4)]
            for u in range(5):
                adds += [f"v_add_f32 v{IN[u][0]+r}, v{IN[u][0]+r}, v{IN[u][2]+r}" for r in range(4)]
            state = {'n': 0}
            def fill(i, u):
                state['n'] += 1
                if q:
                    for _ in range(2):
                        if q:
                            if len(lg) >= 14: e("s_waitcnt lgkmcnt(9)"); del lg[:len(lg) - 9]
                            e(q.pop(0)); lg.append('r')
                elif state['n'] >= 12:
                    if 'r' in lg or lg: e("s_waitcnt lgkmcnt(0)"); lg.clear()
                    for _ in range(3):
                        if adds: e(adds.pop(0))
            tile_steps(0, fill)
            assert not wq
            for x in adds: e(x)
            e(f"s_branch {Ljoin}\n{Lslow}:")
            wq[:], vm[:], free[:] = st; lg.clear()
            tile_steps(0)
            pst(40)
            for sw in range(3):
                L = e.lab("L_rw")
                e(f"s_mov_b32 s79, 0\n{L}:\nds_read_b32 v{VP}, v{VGO} offset:{4*(2-sw)}\ns_waitcnt lgkmcnt(0)\nv_readfirstlane_b32 s78, v{VP}\ns_add_u32 s79, s79, 1\ns_cmp_ge_u32 s79, 0x1000000\ns_cbranch_scc1 L_end\ns_cmp_lt_u32 s78, 1\ns_cbranch_scc1 {L}")
                if sw == 2: pst(41)
                for x in rds[5*sw:5*sw+5]: e(x)
                if sw == 2:
                    for u in range(5):
                        for r in (0, 2): e(f"v_pk_add_f32 {vr(IN[u][0]+r,2)}, {vr(IN[u][0]+r,2)}, {vr(IN[u][1]+r,2)}")
            for u in range(5):
                e(f"s_waitcnt lgkmcnt({4 - u})")
                for r in (0, 2): e(f"v_pk_add_f32 {vr(IN[u][0]+r,2)}, {vr(IN[u][0]+r,2)}, {vr(IN[u][2]+r,2)}")
            e(f"{Ljoin}:\ns_nop 7")
            for u in range(5):
                for r in (0, 2): e(f"v_pk_add_f32 {vr(acc(u,0)+r,2)}, {vr(acc(u,0)+r,2)}, {vr(IN[u][0]+r,2)}")
        pst(42)
        for u in range(5):
            a = acc(u, 0)
            e(f"v_cvt_pk_bf16_f32 v{100+2*u}, v{a}, v{a+1}\nv_cvt_pk_bf16_f32 v{101+2*u}, v{a+2}, v{a+3}")
        fl = opt.get('outfl', '')
        e(f"buffer_store_dwordx4 v[100:103], v{VOUT}, {sr(SRD_T)}, s42 offen {fl}\nbuffer_store_dwordx4 v[104:107], v{VOUT}, {sr(SRD_T)}, s42 offen offset:16 {fl}\nbuffer_store_dwordx2 v[108:109], v{VOUT}, {sr(SRD_T)}, s42 offen offset:32 {fl}")
        pst(43)
        if opt.get('steps'):
            e("s_waitcnt vmcnt(0)"); pst(44)
            e(f"s_lshl_b32 s70, s2, 2\ns_add_u32 s70, s70, s{S_WV}\ns_lshl_b32 s70, s70, 8\ns_add_u32 s70, s70, 0xF00000\nv_lshlrev_b32 v2, 2, v0\nbuffer_store_dword v9, v2, {sr(SRD_WS)}, s70 offen\ns_waitcnt vmcnt(0)")
        e.stamps_out()
        e("s_endpgm")
    S.run = run
    return S

def c_first(e):
    if e.opt.get('cpf', True) and e.opt.get('cpc', True):
        e(f"s_getpc_b64 s[76:77]\nL_pc:\ns_sub_u32 s76, s76, L_pc-{NAME}\ns_subb_u32 s77, s77, 0")
        e(f"s_lshl_b32 s78, s71, 2\ns_add_u32 s78, s78, s{S_WV}\ns_lshl_b32 s78, s78, 9\nv_and_b32 v6, 3, v0\nv_lshl_add_u32 v6, v6, 7, s78")
        e(f"s_mov_b32 s78, L_end-{NAME}\nv_min_u32 v6, s78, v6\ns_mov_b64 exec, 15\nglobal_load_dword v187, v6, s[76:77]\ns_mov_b64 exec, -1")
    x_setup(e, [128, 129])
    e(f"s_lshl_b32 s78, s{S_J}, 7\ns_mul_i32 s77, s{S_J}, 320\ns_add_u32 s77, s77, 1024\ns_cmp_eq_u32 s{S_ISQ}, 1\ns_cselect_b32 s78, s77, s78\nv_lshlrev_b32 v132, 4, v0\ns_mov_b32 m0, {B1_LDS}")
    e("s_waitcnt lgkmcnt(0)")
    e.srd(SRD_T, S_B1, 3456); e.srd(SRD_X, S_X, 2048*1280)
    e(f"s_mov_b64 exec, 0xfffff\nbuffer_load_dwordx4 v132, {sr(SRD_T)}, s78 offen lds\ns_mov_b64 exec, -1")
    for t, x in dma_x_ops([128, 129], 0, 0) + dma_x_ops([128, 129], 0, 1): e(x)
    e.fstamp(8); e.fstamp(6)

def c_wave(e, D):
    XREG = 224; RING = 192; VXA = [246, 247]; AT = [240, 241]
    VZ, VL16 = 242, 243
    if not e.opt.get('c0', True): c_first(e)
    e("v_lshrrev_b32 v1, 4, v0\nv_bfe_u32 v2, v0, 2, 2\nv_and_b32 v3, 3, v0")
    e("v_and_b32 v5, 1, v1\nv_lshl_add_u32 v4, v5, 2, v2\nv_lshrrev_b32 v6, 1, v1\nv_lshlrev_b32 v6, 13, v6")
    e(f"s_lshl_b32 s76, s{S_WV}, 5\nv_and_b32 v7, 15, v0\nv_add_u32 v7, s76, v7")
    e(f"v_lshrrev_b32 v128, 1, v7\nv_xor_b32 v128, v128, v1\nv_and_b32 v128, 7, v128\nv_lshlrev_b32 v128, 4, v128\nv_lshl_add_u32 v128, v7, 7, v128")
    e(f"v_add_u32 v{VXA[0]}, {XBASE}, v128\nv_xor_b32 v{VXA[1]}, 64, v{VXA[0]}")
    e(f"v_mul_u32_u24 v128, 160, v4\nv_mul_u32_u24 v129, 40, v3\nv_add3_u32 v{AT[0]}, v128, v129, v6\nv_add_u32 v{AT[1]}, {3*WSLOT}, v{AT[0]}")
    e(f"v_mov_b32 v{VZ}, 0\nv_lshlrev_b32 v{VL16}, 4, v0\nv_mov_b32 v128, 0\nv_mov_b32 v129, 0\nv_mov_b32 v130, 0\nv_mov_b32 v131, 0")
    e(f"s_lshl_b32 s76, s{S_WV}, 9\ns_add_u32 s76, s76, {ZERO_LDS}\nv_lshl_add_u32 v132, v0, 3, s76\nds_write_b64 v132, v[128:129]")
    e(f"v_lshlrev_b32 v132, 2, v0\nv_add_u32 v132, {CNT_LDS}, v132\nds_write_b32 v132, v128")
    VPH = 244
    e(f"v_mul_u32_u24 v132, 800, v3\nv_mul_u32_u24 v133, 40, v2\nv_add3_u32 v132, v132, v133, s76\nv_cmp_eq_u32 vcc, v1, v3\ns_add_u32 s77, s76, {-WPHI_LDS & 0xffffffff}")
    e(f"v_subrev_u32 v132, s77, v132\nv_mov_b32 v133, {ZERO_LDS}\nv_cndmask_b32 v{VPH}, v133, v132, vcc")
    e(f"s_mov_b32 s{S_C2}, {f2u(GC2)}\ns_mov_b32 s{S_C2+1}, {f2u(GC2)}\ns_mov_b32 s{S_L}, {f2u(LOG2E)}\ns_mov_b32 s{S_L+1}, {f2u(LOG2E)}")
    e("s_waitcnt lgkmcnt(0)")
    e.srd(SRD_WS, S_WS, WS_SIZE)
    S_HO, S_HFL, S_KFL = 12, 72, 74
    e(f"s_lshl_b32 s76, s{S_RB}, 1\ns_lshr_b32 s77, s{S_WV}, 1\ns_add_u32 s15, s76, s77")
    e(f"s_lshl_b32 s76, s{S_RB}, 13\ns_lshr_b32 s77, s{S_J}, 1\ns_lshl_b32 s77, s77, 7\ns_add_u32 s76, s76, s77\ns_add_u32 s76, s76, {WS_FL + FL_H*128}"); e.wsptr(S_HFL, "s76")
    e(f"s_lshl_b32 s76, s{S_J}, 11\ns_add_u32 s76, s76, {WS_FL + FL_KV*128}"); e.wsptr(S_KFL, "s76")
    S_GO = 3
    e(f"s_lshl_b32 s76, s{S_J}, 13\ns_lshl_b32 s77, s{S_RB}, 9\ns_add_u32 s76, s76, s77\ns_lshl_b32 s77, s{S_WV}, 7\ns_add_u32 s76, s76, s77\ns_add_u32 s{S_GO}, s76, {WS_G}")
    def after_bar0(): e.stamp(2)
    def bias_init(nu, hacc, zero_lo, zero_hi):
        e.fstamp(7)
        for i in list(range(*zero_lo)) + list(range(*zero_hi)): e(f"v_mov_b32 v{i}, 0")
        e(f"v_lshlrev_b32 v156, 3, v1\nv_add_u32 v156, {B1_LDS}, v156\ns_waitcnt vmcnt(4)")
        for t in range(nu): e(f"ds_read_b64 {vr(136+2*t,2)}, v156 offset:{32*t}")
        e("s_waitcnt lgkmcnt(0)")
        for t in range(nu):
            for m in range(2):
                a = hacc + 8*t + 4*m
                e(f"v_lshlrev_b32 v{a}, 16, v{136+2*t}\nv_and_b32 v{a+1}, 0xffff0000, v{136+2*t}\nv_lshlrev_b32 v{a+2}, 16, v{137+2*t}\nv_and_b32 v{a+3}, 0xffff0000, v{137+2*t}")
        e("s_waitcnt vmcnt(0)")
        e.stamp(1)
    C1 = 128; T = 130; PK = 140
    def gelu_steps(hacc, nsteps, PK, VL16, skip_from=None, mid=None, defer=None):
        e(f"v_mov_b32 v{C1}, {f2u(GC1)}\nv_mov_b32 v{C1+1}, {f2u(GC1)}")
        Ls = e.lab("L_hskip")
        for i in range(nsteps):
            if i == skip_from: e(f"s_cmp_eq_u32 s{S_J}, 7\ns_cbranch_scc1 {Ls}")
            for m in range(2):
                d = PK + 4*((2*i + m) % 4)
                a0 = hacc + 16*i + 4*m; a1 = a0 + 8
                gelu_pack(e, [(a0, d), (a0+2, d+1), (a1, d+2), (a1+2, d+3)], T, C1)
                st = f"buffer_store_dwordx4 {vr(d)}, v{VL16}, {sr(SRD_WS)}, s{S_HO} offen offset:{1024*m} sc1"
                if defer is None: e(st)
                else: defer.append(st)
            if defer is None: e(f"s_add_u32 s{S_HO}, s{S_HO}, 4096")
            if mid and i == 0: mid()
        e(f"{Ls}:")
    WF_ = 140
    QP = 192
    PHR = [f"ds_read_b64_tr_b16 {vr(WF_ + 10*tau + 2*t, 2)}, v{VPH} offset:{160*t + 8*tau}" for tau in range(5) for t in range(5)]
    def phi_mfma(P, m):
        out = []
        for ks in range(3):
            for tau in range(5):
                d = vr(P + 20*m + 4*tau); c = "0" if ks == 0 else d
                if ks < 2: out.append(f"v_mfma_f32_16x16x32_bf16 {d}, {vr(WF_+10*tau+4*ks)}, {vr(QP+10*m+4*ks)}, {c}")
                else: out.append(f"v_mfma_f32_16x16x16_bf16 {d}, {vr(WF_+10*tau+8,2)}, {vr(QP+10*m+8,2)}, {c}")
        return out
    def phi_cvt():
        for m in range(2):
            for t in range(5):
                a = 8 + 8*t + 4*m
                e(f"v_cvt_pk_bf16_f32 v{QP+10*m+2*t}, v{a}, v{a+1}\nv_cvt_pk_bf16_f32 v{QP+10*m+2*t+1}, v{a+2}, v{a+3}")
        e("s_waitcnt lgkmcnt(0)")
    def phi_stage(P, fill=()):
        for m in range(2):
            for t in range(5):
                a = 8 + 8*t + 4*m
                e(f"v_cvt_pk_bf16_f32 v{QP+10*m+2*t}, v{a}, v{a+1}\nv_cvt_pk_bf16_f32 v{QP+10*m+2*t+1}, v{a+2}, v{a+3}")
        e("s_waitcnt lgkmcnt(0)")
        mf = []
        for ks in range(3):
            for m in range(2):
                for tau in range(5):
                    d = vr(P + 20*m + 4*tau); c = "0" if ks == 0 else d
                    if ks < 2: mf.append(f"v_mfma_f32_16x16x32_bf16 {d}, {vr(WF_+10*tau+4*ks)}, {vr(QP+10*m+4*ks)}, {c}")
                    else: mf.append(f"v_mfma_f32_16x16x16_bf16 {d}, {vr(WF_+10*tau+8,2)}, {vr(QP+10*m+8,2)}, {c}")
        weave(e, mf, fill)
    e(f"s_cmp_eq_u32 s{S_ISQ}, 1\ns_cbranch_scc1 L_CQ")
    AH = [[248, 249], [250, 251], [252, 253], [254, 255]]; AG = [190, 191]
    e("v_lshrrev_b32 v128, 1, v4\nv_lshlrev_b32 v129, 7, v4\nv_lshl_add_u32 v129, v3, 3, v129\nv_add_u32 v129, v129, v6")
    for t in range(4): e(f"v_xor_b32 v130, {t}, v128\nv_lshl_add_u32 v{AH[t][0]}, v130, 5, v129\nv_add_u32 v{AH[t][1]}, {3*WSLOT}, v{AH[t][0]}")
    e(f"v_lshlrev_b32 v{AG[0]}, 4, v1\nv_add_u32 v{AG[1]}, {3*WSLOT}, v{AG[0]}")
    e(f"s_mul_i32 s76, s15, 54\ns_lshl_b32 s77, s{S_J}, 1\ns_add_u32 s76, s76, s77\ns_lshl_b32 s76, s76, 12\ns_and_b32 s77, s{S_WV}, 1\ns_lshl_b32 s77, s77, 11\ns_add_u32 s{S_HO}, s76, s77")
    AR = 128; AA = [133, 134, 135]; VSL, VTB = 6, 7
    e(f"v_lshl_add_u32 v8, v1, 2, v2\nv_and_b32 v9, 7, v8\nv_lshlrev_b32 v8, 7, v8\ns_lshl_b32 s76, s{S_WV}, 14\ns_cmp_eq_u32 s{S_WV}, 3\ns_cmov_b32 s76, {EXCH_H3}\nv_and_b32 v10, 1, v3\nv_lshl_add_u32 v8, v10, 3, v8\nv_add_u32 v8, s76, v8\nv_lshrrev_b32 v10, 1, v3")
    for i, c0 in enumerate([0, 2, 4, 5]): e(f"v_add_u32 v{AR+i}, {c0}, v10\nv_xor_b32 v{AR+i}, v{AR+i}, v9\nv_lshl_add_u32 v{AR+i}, v{AR+i}, 4, v8")
    e(f"v_xor_b32 v{AR+4}, 7, v9\nv_lshl_add_u32 v{AR+4}, v{AR+4}, 4, v8")
    e(f"v_mov_b32 v10, {EXCH_H3 // 16384}\nv_and_b32 v8, 15, v0\ns_lshl_b32 s76, s{S_WV}, 5\nv_add_u32 v8, s76, v8\nv_cmp_eq_u32 vcc, 3, v1\nv_lshlrev_b32 v8, 7, v8\nv_and_b32 v11, 7, v0\nv_cndmask_b32 v9, v1, v10, vcc\nv_lshl_add_u32 v8, v11, 4, v8\nv_lshl_add_u32 v245, v9, 14, v8")
    e(f"v_mov_b32 v13, {OOB}\nv_and_b32 v14, 15, v0\nv_cmp_gt_u32 vcc, 32, v0\nv_cndmask_b32 v{AA[0]}, v13, v{VL16}, vcc\nv_cmp_gt_u32 vcc, 5, v14\nv_cndmask_b32 v{AA[1]}, v13, v{VL16}, vcc\nv_cndmask_b32 v{AA[2]}, v13, v{AA[0]}, vcc")
    e(f"s_lshl_b32 s76, s{S_J}, 6\ns_add_u32 s76, s76, s{S_WV}\ns_mul_i32 s76, s76, 6144\ns_add_u32 s4, s76, {WS_KP}\ns_mul_i32 s76, s{S_RB}, 24576\ns_add_u32 s5, s4, s76\ns_add_u32 s6, s5, 4096")
    e(f"s_mul_i32 s76, s{S_RB}, 14\nv_add_u32 v8, s76, v14\nv_mul_u32_u24 v9, 3121, v8\nv_lshrrev_b32 v9, 16, v9\nv_mul_u32_u24 v10, 21, v9\nv_sub_u32 v10, v8, v10")
    e(f"v_lshrrev_b32 v11, 2, v9\nv_lshrrev_b32 v12, 4, v10\nv_lshl_add_u32 v11, v11, 1, v12\nv_and_b32 v12, 3, v9\nv_and_b32 v15, 15, v10\nv_lshl_add_u32 v12, v12, 4, v15\nv_lshlrev_b32 v12, 4, v12\nv_lshl_add_u32 v11, v11, 10, v12")
    e(f"v_mul_u32_u24 v12, 24576, v1\nv_add_u32 v11, v11, v12\nv_cmp_gt_u32 s[76:77], 14, v14\nv_cmp_gt_u32 vcc, 210, v8\ns_and_b64 vcc, vcc, s[76:77]\nv_cndmask_b32 v{VSL}, v13, v11, vcc")
    e(f"v_mul_u32_u24 v12, 24, v9\nv_add_lshl_u32 v12, v12, v10, 3\ns_and_b64 vcc, vcc, 0xffff\nv_cndmask_b32 v{VTB}, v13, v12, vcc")
    e(f"s_lshl_b32 s76, s{S_J}, 2\ns_add_u32 s76, s76, s{S_WV}\ns_lshl_b32 s76, s76, 11\ns_add_u32 s7, s76, {WS_KV}")
    e(f"s_add_u32 s68, s{S_KFL}, {(FL_KP - FL_KV)*128}\ns_addc_u32 s69, s{S_KFL+1}, 0")
    bias_init(4, 88, (8, 88), (120, 128))
    c_main_loop(e, [Unit(AT, 8*t, 8 + 8*t) for t in range(5)] + [Unit(AT, 1280 + 8*t, 48 + 8*t) for t in range(5)]
                + [Unit(AH[t], 3072, 88 + 8*t) for t in range(4)] + [Unit(AG, 2560, 120, gate=True)], XREG, VXA, RING, D, after_bar0, PHR)
    e.stamp(3)
    e(f"s_setprio {e.opt.get('cprio', 2)}")
    e(f"v_mov_b32 v4, 0\nv_mov_b32 v5, v{VL16}")
    VZ0, VL0 = VZ, VL16; VZ, VL16 = 4, 5
    e.busy(1, 136, 137, 'k'); e.lpost(8, 136, 137)
    P = 212; RV = [8, 20]; RP = [140, 160]; EE = 192; XX = 40; AW = 32
    F = [f"v_xor_b32 v{AW+i}, {16*i}, v245" for i in range(8)]
    for m in range(2):
        for t in range(5):
            a = 48 + 8*t + 4*m
            F += [f"v_cvt_pk_bf16_f32 v{RV[m]+2*t}, v{a}, v{a+1}", f"v_cvt_pk_bf16_f32 v{RV[m]+1+2*t}, v{a+2}, v{a+3}"]
        F += [f"v_mov_b32 v{RV[m]+10}, 0x3f80", f"v_mov_b32 v{RV[m]+11}, 0"]
    phi_cvt()
    weave(e, phi_mfma(P, 0), F)
    e.stamp(4)
    EE0 = 48; RP0 = 68
    softmax2(e, P, EE0, RP0, XX)
    G_ = [f"v_mul_f32 v{40+m}, {f2u(-LOG2E)}, v{120+4*m}" for m in range(2)] + [f"v_exp_f32 v{40+m}, v{40+m}" for m in range(2)] + [f"v_add_f32 v{40+m}, 1.0, v{40+m}" for m in range(2)] + [f"v_rcp_f32 v{40+m}, v{40+m}" for m in range(2)] + ["v_lshlrev_b32 v42, 2, v0"]
    W_ = [f"ds_write_b128 v{AW+i}, {vr(RP0+4*i)}" for i in range(5)] + [f"ds_write_b128 v{AW+5+i}, {vr(RV[m]+4*i)} offset:{2048*m}" for m in range(2) for i in range(3)]
    for n_, x in enumerate(phi_mfma(P, 1)):
        e(x)
        if W_: e(W_.pop(0))
        if G_: e(G_.pop(0))
    e(f"s_mov_b64 exec, 0xffff")
    for m in range(2): e(f"buffer_store_dword v{40+m}, v42, {sr(SRD_WS)}, s{S_GO} offen offset:{64*m} sc1")
    e("s_mov_b64 exec, -1")
    softmax2(e, P + 20, EE, RP[1], XX, wr=lambda i: e(f"ds_write_b128 v{AW+i}, {vr(RP[1]+4*i)} offset:2048"))
    e.stamp(5)
    e.busy(1, 136, 137, 'a')
    e.lsync(1, 136, 137)
    e.stamp(6)
    FR = lambda st: (48 + 20*st) if st < 2 else (140 + 20*(st - 2))
    KD = 212
    rd = [f"ds_read_b64_tr_b16 {vr(FR(st) + 4*i + 2*h, 2)}, v{AR+i} offset:{4096*st + 2048*h}" for st in range(4) for i in range(5) for h in range(2)]
    for x in rd[:14]: e(x)
    nxt = 14
    for st in range(4):
        need = 10*(st + 1)
        while nxt < need: e(rd[nxt]); nxt += 1
        e(f"s_waitcnt lgkmcnt({nxt - need})")
        for U in range(2):
            for Tt in range(3):
                d = vr(KD + 12*U + 4*Tt)
                e(f"v_mfma_f32_16x16x32_bf16 {d}, {vr(FR(st)+4*Tt)}, {vr(FR(st)+12+4*U)}, {'0' if st == 0 else d}")
                for _ in range(2):
                    if nxt < min(40, need + 14): e(rd[nxt]); nxt += 1
    e.lpost(12, 136, 137)
    for Tt in range(3):
        for U in range(2):
            av = [[VL16, AA[1]], [VL16, AA[1]], [AA[0], AA[2]]][Tt][U]; ti = 2*Tt + U
            e(f"buffer_store_dwordx4 {vr(KD + 12*U + 4*Tt)}, v{av}, {sr(SRD_WS)}, s{5 if ti < 4 else 6} offen offset:{1024*(ti % 4)} sc1")
    e.stamp(7)
    def mid(): e.post('p', 2, 68, 0, 128, "s_waitcnt vmcnt(2)", lambda: (e.f2(4), e.busy(-1, 136, 137, 'a'), e.busy(-1, 136, 137, 'k')))
    G1 = e.opt.get('g1', 0)
    gelu_steps(88, 1 if G1 else 2, 192, VL16, mid=mid)
    e(f"s_lshl_b32 s76, s{S_RB}, 7\ns_add_u32 s68, s68, s76\ns_addc_u32 s69, s69, 0")
    e.busy(1, 136, 137, 'b')
    if e.opt.get('lead', False): e.lpoll(19, 68, 34, 16, 136, 137)
    else: e.spoll(68, [34], sleep=e.opt.get('slk', 0), least=16)
    e.busy(1, 136, 137, 'B')
    e.stamp(8)
    SL = 16
    for i in range(4): e(f"buffer_load_dwordx4 {vr(SL + 4*i)}, v{VSL}, {sr(SRD_WS)}, s4 offen sc1\ns_add_u32 s4, s4, {4*24576}")
    late = []
    if G1:
        gelu_steps(104, 1, 200, VL16, defer=late if G1 == 2 else None)
        e(f"s_waitcnt vmcnt({0 if G1 == 2 else 2})")
    else:
        e.post('x', 0, S_HFL, 1, 512, "s_waitcnt vmcnt(4)")
        e("s_waitcnt vmcnt(0)")
    e.f2(5)
    for r in (0, 2): e(f"v_pk_add_f32 {vr(SL+r,2)}, {vr(SL+r,2)}, {vr(SL+4+r,2)}\nv_pk_add_f32 {vr(SL+8+r,2)}, {vr(SL+8+r,2)}, {vr(SL+12+r,2)}")
    for r in (0, 2): e(f"v_pk_add_f32 {vr(SL+r,2)}, {vr(SL+r,2)}, {vr(SL+8+r,2)}")
    for op in ("v_permlane32_swap_b32", "v_permlane16_swap_b32"):
        for r in range(4): e(f"v_mov_b32 v{SL+4+r}, v{SL+r}")
        for r in range(4): e(f"{op} v{SL+4+r}, v{SL+r}")
        for r in (0, 2): e(f"v_pk_add_f32 {vr(SL+r,2)}, {vr(SL+r,2)}, {vr(SL+4+r,2)}")
    e(f"v_cvt_pk_bf16_f32 v14, v{SL}, v{SL+1}\nv_cvt_pk_bf16_f32 v15, v{SL+2}, v{SL+3}\nbuffer_store_dwordx2 v[14:15], v{VTB}, {sr(SRD_WS)}, s7 offen sc1")
    for x in late: e(x)
    e.post('k', 4, S_KFL, 0, 128, f"s_waitcnt vmcnt({len(late)})", lambda: (e.f2(6), e.busy(-1, 136, 137, 'b'), e.busy(-1, 136, 137, 'B')))
    if G1:
        e(f"s_mul_i32 s70, s{S_WV}, 2048\ns_add_u32 s70, s70, s{S_HFL}\ns_addc_u32 s71, s{S_HFL+1}, 0\n" + "\n".join(f"s_mov_b32 s{24+i}, 1" for i in range(4)))
        if late: e("s_waitcnt vmcnt(0)"); e.lsync(0, 136, 137)
        for i in range(4): e(f"s_atomic_add s{24+i}, s[70:71], {512*i + 4} glc")
    e.stamps_out()
    e("s_endpgm")
    VZ, VL16 = VZ0, VL0
    e("L_CQ:")
    AE, AO = [248, 249], [250, 251]
    e(f"v_mul_u32_u24 v128, 320, v4\nv_lshl_add_u32 v128, v3, 3, v128\nv_add_u32 v128, v128, v6\nv_lshlrev_b32 v129, 5, v5")
    e(f"v_add_u32 v{AE[0]}, v128, v129\nv_sub_u32 v{AO[0]}, v128, v129\nv_add_u32 v{AO[0]}, 32, v{AO[0]}\nv_add_u32 v{AE[1]}, {3*WSLOT}, v{AE[0]}\nv_add_u32 v{AO[1]}, {3*WSLOT}, v{AO[0]}")
    e(f"s_mul_i32 s76, s15, 54\ns_mul_i32 s77, s{S_J}, 5\ns_add_u32 s76, s76, s77\ns_add_u32 s76, s76, 16\ns_lshl_b32 s76, s76, 12\ns_and_b32 s77, s{S_WV}, 1\ns_lshl_b32 s77, s77, 11\ns_add_u32 s{S_HO}, s76, s77")
    bias_init(10, 48, (8, 48), (0, 0))
    c_main_loop(e, [Unit(AT, 8*t, 8 + 8*t) for t in range(5)] + [Unit(AE if t % 2 == 0 else AO, 1280 + 32*(t - t % 2), 48 + 8*t) for t in range(10)],
                XREG, VXA, RING, D, after_bar0, PHR)
    e.stamp(3)
    e(f"s_setprio {e.opt.get('cprio', 2)}")
    e.busy(1, 136, 137, 'd'); e.lpost(8, 136, 137); e.lpost(12, 136, 137)
    gelu_steps(48, 5, 212, VL16, skip_from=3)
    e.busy(-1, 136, 137, 'd')
    e.stamp(4)
    P = 88
    F = []; f = F.append
    f(f"v_mul_u32_u24 v68, {KVS}, v1\nv_add_u32 v68, {KVT}, v68\nv_cmp_eq_u32 vcc, v1, v2\nv_lshl_add_u32 v69, v3, 3, v68\nv_mov_b32 v70, {ZERO_LDS}\nv_cndmask_b32 v240, v70, v69, vcc\nv_cndmask_b32 v239, v70, v68, vcc")
    f(f"v_and_b32 v241, 15, v0\nv_lshlrev_b32 v241, 2, v241")
    phi_stage(P, F)
    PHI = [192, 212]
    hq = e.opt.get('hq', 0)
    hsig = e.signal(S_HFL, 0, 512)
    def harr(): e.post('h', 0, S_HFL, 0, 512, "s_waitcnt vmcnt(0)"); e.stamp(5)
    for m in range(2):
        if m == hq: harr()
        softmax2(e, P + 20*m, 48, PHI[m], 128)
    e(f"s_lshl_b32 s76, s{S_J}, 2\ns_add_u32 s76, s76, s{S_WV}\ns_lshl_b32 s76, s76, 11\ns_add_u32 s4, s76, {WS_KV}\ns_mul_i32 s76, s{S_WV}, {KVS}\ns_add_u32 m0, s76, {KVT}")
    e(f"s_lshl_b32 s76, s15, 3\ns_add_u32 s76, s76, s{S_J}\ns_mul_i32 s76, s76, 10240\ns_add_u32 s76, s76, {WS_OF}\ns_and_b32 s77, s{S_WV}, 1\ns_lshl_b32 s5, s77, 11\ns_add_u32 s5, s5, s76\ns_lshl_b32 s6, s77, 10\ns_add_u32 s6, s6, s76\ns_add_u32 s6, s6, 8192\ns_add_u32 s7, s5, 4096")
    e.stamp(6)
    e(f"s_lshl_b32 s76, s{S_RB}, 7\ns_add_u32 s{S_KFL}, s{S_KFL}, s76\ns_addc_u32 s{S_KFL+1}, s{S_KFL+1}, 0")
    if e.opt.get('lead', False): e.lpoll(19, S_KFL, 34, 16, 136, 137)
    else: e.spoll(S_KFL, [34], sleep=e.opt.get('slk', 0), least=16)
    e.stamp(7)
    if e.opt.get('oprio', 3): e(f"s_setprio {e.opt.get('oprio', 3)}")
    for t in range(2): e(f"buffer_load_dwordx4 v{VL16}, {sr(SRD_WS)}, s4 offen offset:{1024*t} sc1 lds")
    e.busy(1, 136, 137, 'c')
    for m in range(2): e(f"buffer_load_dword v{62+m}, v241, {sr(SRD_WS)}, s{S_GO} offen offset:{64*m} sc1")
    e("s_waitcnt vmcnt(2)")
    e.f2(4)
    e.lsync(1, 136, 137)
    e.f2(5)
    AF = 64
    seq = [5, 0, 1, 2, 3, 4]
    rd = [f"ds_read_b64 {vr(AF + 20*n_ + 4*kp + 2*h, 2)}, v{240 if u < 5 else 239} offset:{8*(48*kp + 4*u + 24*h)}" for n_, u in enumerate(seq) for kp in range(5) for h in range(2)]
    for x in rd[:14]: e(x)
    nxt = 14
    OD = 8
    for n_, u in enumerate(seq):
        while nxt < 10*(n_+1): e(rd[nxt]); nxt += 1
        e(f"s_waitcnt lgkmcnt({nxt - 10*(n_+1)})")
        F = []
        while nxt < min(60, 10*(n_+1) + 14): F.append(rd[nxt]); nxt += 1
        if n_ == 2:
            F.append("s_waitcnt vmcnt(0)")
            F += [f"v_add_f32 v{56+2*m}, {f2u(1e-6)}, v{OD+40+4*m}" for m in range(2)] + [f"v_rcp_f32 v{56+2*m}, v{56+2*m}" for m in range(2)] + [f"v_mul_f32 v{56+2*m}, v{56+2*m}, v{62+m}" for m in range(2)]
        if n_ >= 4:
            for uu in ([0, 1] if n_ == 4 else [2]):
                for m in range(2):
                    a = OD + 8*uu + 4*m
                    F += [f"v_mul_f32 v{a+r}, v{56+2*m}, v{a+r}" for r in range(4)]
                    F += [f"v_cvt_pk_bf16_f32 v{232+8*0 + 0}, v{a}, v{a+1}".replace(f"v{232}", f"v{[184,188][m] + 2*uu if uu < 2 else [244,248][m]}"),
                          f"v_cvt_pk_bf16_f32 v{([184,188][m] + 2*uu if uu < 2 else [244,248][m]) + 1}, v{a+2}, v{a+3}"]
        weave(e, [f"v_mfma_f32_16x16x32_bf16 {vr(OD + 8*u + 4*m)}, {vr(AF + 20*n_ + 4*kp)}, {vr(PHI[m] + 4*kp)}, {'0' if kp == 0 else vr(OD + 8*u + 4*m)}" for kp in range(5) for m in range(2)], F)
        if n_ == 4:
            for m in range(2): e(f"buffer_store_dwordx4 {vr([184,188][m])}, v{VL16}, {sr(SRD_WS)}, s5 offen offset:{1024*m} sc1")
    e.f2(6)
    for uu in (3, 4):
        for m in range(2):
            a = OD + 8*uu + 4*m
            e(f"v_pk_mul_f32 {vr(a,2)}, {vr(a,2)}, {vr(56+2*m,2)} op_sel_hi:[1,0]\nv_pk_mul_f32 {vr(a+2,2)}, {vr(a+2,2)}, {vr(56+2*m,2)} op_sel_hi:[1,0]")
            d = [244, 248][m] + 2 if uu == 3 else 252 + 2*m
            e(f"v_cvt_pk_bf16_f32 v{d}, v{a}, v{a+1}\nv_cvt_pk_bf16_f32 v{d+1}, v{a+2}, v{a+3}")
        if uu == 3:
            for m in range(2): e(f"buffer_store_dwordx4 {vr([244,248][m])}, v{VL16}, {sr(SRD_WS)}, s7 offen offset:{1024*m} sc1")
    e(f"buffer_store_dwordx4 v[252:255], v{VL16}, {sr(SRD_WS)}, s6 offen sc1")
    e.stamp(8)
    e.post('o', 2, S_HFL, 2, 512, "s_waitcnt vmcnt(0)", lambda: e.busy(-1, 136, 137, 'c'))
    e.stamps_out()

HEADER = open("gated_mix__linear_kernel_hedgehog__dense_activation_gelu__prompt.s.ref").read().split("; Override launch")[0] if __name__ == "__main__" else ""
if __name__ == "__main__":
    import ast
    kw = ast.literal_eval(sys.argv[2]) if len(sys.argv) > 2 else {}
    open(sys.argv[1], "w").write(HEADER + gen(**kw))
```

```python
import sys
import hazard

NAME = "gated_mix__linear_kernel_hedgehog__dense_activation_gelu__prompt_kernel"
WSLOT = 16384; NW = 5; XBASE = NW*WSLOT; XSLOT = 16384; NX = 3; NSTEP = 20
SPARE = XBASE + NX*XSLOT
ZERO_LDS = SPARE; CNT_LDS = SPARE + 2048; WPHI_LDS = SPARE + 2304; KVT = WPHI_LDS + 64; KVS = 2080; STG = WPHI_LDS + 8448
EXCH_H3 = XBASE + 2*XSLOT; PARK = 3*WSLOT
B2_LDS = STG + 4*5120
B1_LDS = B2_LDS + 1024
assert B1_LDS + 320 <= 163840
LDS_TOTAL = 163840
WS_HF = 0; WS_OF = 0x700000; WS_WF = 0xA00000; WS_G = 0xD00000; WS_KV = 0xE00000; WS_FL = 0xE20000; WS_KP = 0x1000000
WS_SIZE = 0x1400000; WS_STAMP = 0x2000000
FL_H, FL_KV, FL_KP, FL_W = 0, 1024, 1152, 1280
NINIT = 32
OOB = 0x40000000
S_X, S_WQKV, S_WPHI, S_WO, S_BX, S_W1, S_B1, S_W2 = 16, 18, 20, 22, 24, 26, 28, 30
S_B2, S_GATE, S_OUT, S_DBG, S_WS = 32, 34, 36, 38, 40
SRD_X, SRD_WS, SRD_T, SRD_D = 44, 48, 52, 56
S_RB, S_J, S_ISQ, S_WAVE, S_PH, S_WV, S_R64, S_CB = 60, 61, 62, 63, 64, 65, 66, 67
S_KK, S_XK, S_XOFF, S_M0X, S_M0W = 68, 69, 4, 5, 6
S_C2, S_L = 8, 10
LOG2E = 1.4426950408889634
import struct, math
def f2u(x): return struct.unpack('<I', struct.pack('<f', x))[0]
GC1 = -2.0 * LOG2E * math.sqrt(2.0 / math.pi); GC2 = GC1 * 0.044715

def vr(b, n=4): return f"v[{b}:{b+n-1}]" if n > 1 else f"v{b}"
def sr(b, n=4): return f"s[{b}:{b+n-1}]"

class G:
    def __init__(self, diag=False, **opt):
        self.L = []; self.diag = diag; self.opt = opt; self.nlab = 0
    def __call__(self, s): self.L.append(s)
    def dsbatch(self, lst):
        for i, x in enumerate(lst):
            if i >= 15 and (i - 15) % 5 == 0: self("s_waitcnt lgkmcnt(10)")
            self(x)
    def lab(self, p="L"): self.nlab += 1; return f"{p}_{self.nlab}"
    def srd(self, R, p, size):
        self(f"s_mov_b32 s{R}, s{p}\ns_mov_b32 s{R+1}, s{p+1}\ns_mov_b32 s{R+2}, {size}\ns_mov_b32 s{R+3}, 0x20000")
    def fstamp(self, i):
        if self.opt.get('fine'): self(f"s_memtime s[{80+2*i}:{81+2*i}]")
    def f2(self, i):
        if self.opt.get('fine2'): self(f"s_waitcnt lgkmcnt(0)\ns_memtime s[{80+2*i}:{81+2*i}]\ns_waitcnt lgkmcnt(0)")
    def stamp(self, i, m=False):
        if self.opt.get('fine') and 3 <= i <= 8: return
        if self.opt.get('fine2') and m: return
        if self.diag and (i == 9 or not self.opt.get('lite')): self(f"s_waitcnt lgkmcnt(0)\ns_memtime s[{80+2*i}:{81+2*i}]\ns_waitcnt lgkmcnt(0)")
    def stamps_out(self):
        if not self.diag: return
        e = self
        e(f"s_waitcnt vmcnt(0) lgkmcnt(0)")
        e.stamp(9)
        e("s_memrealtime s[72:73]\ns_waitcnt lgkmcnt(0)")
        e(f"s_mov_b32 s{SRD_T}, s{S_WS}\ns_mov_b32 s{SRD_T+1}, s{S_WS+1}\ns_mov_b32 s{SRD_T+2}, 0x10000000\ns_mov_b32 s{SRD_T+3}, 0x20000")
        e(f"s_lshl_b32 s70, s2, 3\ns_add_u32 s70, s70, s{S_WAVE}\ns_lshl_b32 s70, s70, 6\ns_add_u32 s70, s70, {WS_STAMP}")
        e("s_mov_b64 exec, 1\nv_mov_b32 v1, 0")
        for i in range(10):
            if i: e(f"s_sub_u32 s71, s{80+2*i}, s80")
            else: e("s_mov_b32 s71, s80")
            e(f"v_mov_b32 v2, s71\nbuffer_store_dword v2, v1, {sr(SRD_T)}, s70 offen offset:{4*i}")
        e(f"v_mov_b32 v2, s100\nbuffer_store_dword v2, v1, {sr(SRD_T)}, s70 offen offset:40\nv_mov_b32 v2, s72\nbuffer_store_dword v2, v1, {sr(SRD_T)}, s70 offen offset:44")
        e("s_waitcnt vmcnt(0)")
        if self.opt.get('dbgrt'):
            e("s_memrealtime s[70:71]\ns_waitcnt lgkmcnt(0)")
            e.srd(SRD_T, S_DBG, 256)
            e(f"v_mov_b32 v2, s70\nbuffer_atomic_umax v2, v1, {sr(SRD_T)}, 0 offen offset:4 sc1")
            e(f"s_not_b32 s71, s100\nv_mov_b32 v2, s71\nbuffer_atomic_umax v2, v1, {sr(SRD_T)}, 0 offen offset:8 sc1")
            for i in range(1, 10):
                e(f"s_sub_u32 s71, s{80+2*i}, s80\ns_cmp_gt_u32 s71, 0x1000000\ns_cmov_b32 s71, 0\nv_mov_b32 v2, s71\nbuffer_atomic_umax v2, v1, {sr(SRD_T)}, 0 offen offset:{8+4*i} sc1")
            e(f"v_mov_b32 v2, s100\nbuffer_atomic_umax v2, v1, {sr(SRD_T)}, 0 offen offset:48 sc1")
            e("s_waitcnt vmcnt(0)")
    def wsptr(self, d, soff):
        self(f"s_add_u32 s{d}, s{S_WS}, {soff}\ns_addc_u32 s{d+1}, s{S_WS+1}, 0")
    def sprobe(self, base, dst):
        for i, d in enumerate(dst): self(f"s_load_dword s{d}, s[{base}:{base+1}], {128*i} glc")
    def spoll(self, base, dst, probed=False, sleep=1, least=None):
        e = self; L = e.lab("L_sp"); C = e.lab("L_spc"); D = e.lab("L_spd")
        e("s_mov_b32 s79, 0")
        if probed: e(f"s_branch {C}") if False else None
        def chk():
            e("s_waitcnt lgkmcnt(0)")
            if least is not None: e(f"s_cmp_ge_u32 s{dst[0]}, {least}")
            elif len(dst) == 1: e(f"s_cmp_lg_u32 s{dst[0]}, 0")
            else:
                for d in dst[1:]: e(f"s_and_b32 s{dst[0]}, s{dst[0]}, s{d}")
            e(f"s_cbranch_scc1 {D}")
        if probed: chk()
        e(f"{L}:"); e.sprobe(base, dst); chk()
        e(f"s_add_u32 s79, s79, 1\ns_cmp_ge_u32 s79, 0x200000\ns_cbranch_scc1 L_end")
        if sleep: e(f"s_sleep {sleep}")
        e(f"s_branch {L}\n{D}:")
    def lpoll(self, cnt, base, d, least, va, vt, probed=False, sleep=0, hp=None):
        e = self; F = e.lab("L_lf"); D = e.lab("L_lpd"); S = e.lab("L_lps"); L = e.lab("L_lpl")
        if hp is not None: e(f"s_setprio {hp[0]}")
        e(f"v_mov_b32 v{va}, {CNT_LDS + 4*cnt}\ns_mov_b32 s79, 0")
        if probed: e(f"s_waitcnt lgkmcnt(0)\ns_cmp_ge_u32 s{d}, {least}\ns_cbranch_scc1 {S}")
        e(f"s_cmp_lg_u32 s{S_WV}, 0\ns_cbranch_scc1 {F}\n{L}:\ns_load_dword s{d}, s[{base}:{base+1}], 0 glc\ns_waitcnt lgkmcnt(0)\ns_cmp_ge_u32 s{d}, {least}\ns_cbranch_scc1 {S}")
        e(f"s_add_u32 s79, s79, 1\ns_cmp_ge_u32 s79, 0x200000\ns_cbranch_scc1 L_end\n" + (f"s_sleep {sleep}\n" if sleep else "") + f"s_branch {L}")
        e(f"{F}:\nds_read_b32 v{vt}, v{va}\ns_waitcnt lgkmcnt(0)\nv_readfirstlane_b32 s78, v{vt}\ns_cmp_lg_u32 s78, 0\ns_cbranch_scc1 {D}")
        e(f"s_add_u32 s79, s79, 1\ns_cmp_ge_u32 s79, 0x1000000\ns_cbranch_scc1 L_end\ns_branch {F}")
        e(f"{S}:\nv_mov_b32 v{vt}, 1\nds_write_b32 v{va}, v{vt}\n{D}:")
        if hp is not None: e(f"s_setprio {hp[1]}")
    def arrive(self, cnt, va, vt, then):
        e = self; D = e.lab("L_arr")
        e(f"s_mov_b64 exec, 1\nv_mov_b32 v{va}, {CNT_LDS + 4*cnt}\nv_mov_b32 v{vt}, 1\nds_add_rtn_u32 v{va}, v{va}, v{vt}\ns_waitcnt lgkmcnt(0)")
        e(f"v_readfirstlane_b32 s78, v{va}\ns_mov_b64 exec, -1\ns_cmp_lg_u32 s78, 3\ns_cbranch_scc1 {D}")
        then(D)
        e(f"{D}:")
    def signal(self, base, word=0, stride=128):
        def f(D):
            for i in range(16): self(f"s_atomic_add s{16+i}, s[{base}:{base+1}], {stride*i + 4*word} glc")
        return f
    def arm4(self, base, stride):
        self(f"s_waitcnt lgkmcnt(0)\ns_mul_i32 s20, s{S_WV}, {4*stride}\ns_add_u32 s20, s20, s{base}\ns_addc_u32 s21, s{base+1}, 0\n" + "\n".join(f"s_mov_b32 s{16+i}, 1" for i in range(4)))
    def sig4(self, cnt, va, vt, word, stride):
        self.lsync(cnt, va, vt)
        for i in range(4): self(f"s_atomic_add s{16+i}, s[20:21], {stride*i + 4*word} glc")
    def post(self, site, cnt, base, word, stride, wait, between=None):
        if site in self.opt.get('s4', 'pkho'):
            self.arm4(base, stride); self(wait)
            if between: between()
            self.sig4(cnt, 136, 137, word, stride)
        else:
            self.arm(); self(wait)
            if between: between()
            self.arrive(cnt, 136, 137, self.signal(base, word, stride))
    def arm(self):
        self("s_waitcnt lgkmcnt(0)\n" + "\n".join(f"s_mov_b32 s{16+i}, 1" for i in range(16)))
    def sfirst(self, base, offs, dst):
        for o, d in zip(offs, dst): self(f"s_load_dword s{d}, s[{base}:{base+1}], {o}")
    def scheck(self, dst, target, srd, soff, vz, vt, vm):
        e = self; D = e.lab("L_sc")
        e("s_waitcnt lgkmcnt(0)")
        for d in dst[1:]: e(f"s_min_u32 s{dst[0]}, s{dst[0]}, s{d}")
        e(f"s_cmp_ge_u32 s{dst[0]}, {target}\ns_cbranch_scc1 {D}\nv_mov_b32 v{vt}, 0")
        e.vpoll(srd, soff, target, vz, vt)
        e(f"{D}:")
    def vpoll(self, srd, soff, target, vz, vt):
        e = self; L = e.lab("L_vp"); D = e.lab("L_vpd")
        e(f"s_mov_b32 s79, 0\n{L}:\nv_cmp_gt_u32 vcc, {target}, v{vt}\ns_cmp_eq_u64 vcc, 0\ns_cbranch_scc1 {D}")
        e(f"s_add_u32 s79, s79, 1\ns_cmp_ge_u32 s79, 0x100000\ns_cbranch_scc1 L_end\ns_sleep 8")
        e(f"buffer_load_dword v{vt}, v{vz}, {sr(srd)}, {soff} offen sc1\ns_waitcnt vmcnt(0)\ns_branch {L}\n{D}:")
    def lpost(self, cnt, va, vt):
        self(f"s_mov_b64 exec, 1\nv_mov_b32 v{va}, {CNT_LDS + 4*cnt}\nv_mov_b32 v{vt}, 1\nds_add_u32 v{va}, v{vt}\ns_mov_b64 exec, -1")
    def lwait(self, cnt, va, vt, sleep=1):
        e = self; L = e.lab("L_lw"); D = e.lab("L_lwd")
        e(f"s_setprio {e.opt.get('hp', 3)}")
        e(f"v_mov_b32 v{va}, {CNT_LDS + 4*cnt}\ns_mov_b32 s79, 0\n{L}:\nds_read_b32 v{vt}, v{va}\ns_waitcnt lgkmcnt(0)\nv_readfirstlane_b32 s78, v{vt}\ns_cmp_ge_u32 s78, 4\ns_cbranch_scc1 {D}")
        e(f"s_add_u32 s79, s79, 1\ns_cmp_ge_u32 s79, 0x1000000\ns_cbranch_scc1 L_end\n" + (f"s_sleep {sleep}\n" if sleep else "") + f"s_branch {L}\n{D}:\ns_setprio {e.opt.get('mprio', 0)}")
    def busy(self, d, va, vt, w=''):
        if w in self.opt.get('yld', ''): self(f"s_mov_b64 exec, 1\nv_mov_b32 v{va}, {CNT_LDS + 4*11}\nv_mov_b32 v{vt}, {d}\nds_add_u32 v{va}, v{vt}\ns_mov_b64 exec, -1")
    def lsync(self, cnt, va, vt):
        e = self; L = e.lab("L_ls")
        e(f"s_waitcnt lgkmcnt(0)\ns_mov_b64 exec, 1\nv_mov_b32 v{va}, {CNT_LDS + 4*cnt}\nv_mov_b32 v{vt}, 1\nds_add_u32 v{va}, v{vt}\ns_mov_b32 s79, 0\n{L}:")
        e(f"ds_read_b32 v{vt}, v{va}\ns_waitcnt lgkmcnt(0)\nv_readfirstlane_b32 s78, v{vt}\ns_add_u32 s79, s79, 1\ns_cmp_ge_u32 s79, 0x1000000\ns_cbranch_scc1 L_end\ns_cmp_lt_u32 s78, 4\ns_cbranch_scc1 {L}\ns_mov_b64 exec, -1")

SA, SAE, SAS, SB, SBE, SBS, SA2, SB2, SOA, SOB, SG, SPK = 16, 17, 18, 19, 24, 25, 26, 27, 28, 29, 10, 11
SFH, SFW = 34, 8
SPD = [20]; S_TL = 43
P3_ACC = 176; P3_B2 = 100; P3_VT = [10, 11, 12, 3]; P3_VL2 = 13; P3_VLB = 5; P3_VF = 171
p3acc = lambda u, t: P3_ACC + 16*u + 4*t

class Unit:
    def __init__(self, areg, off, acc, gate=False): self.areg, self.off, self.acc, self.gate = areg, off, acc, gate

def c_main_loop(e, units, xreg, xaddr, ring, D, after_bar0, tail=()):
    tail = list(tail)
    n = len(units); R = D + 2; lg = []; total = NSTEP * n
    def wait_lg(tags):
        idx = max([i for i, t in enumerate(lg) if t in tags], default=-1)
        if idx < 0: return
        cnt = len(lg) - 1 - idx; assert cnt <= 15
        e(f"s_waitcnt lgkmcnt({cnt})"); del lg[:idx + 1]
    def xreads(s, out):
        for m in range(2):
            out.append(f"ds_read_b128 {vr(xreg + 8*(s % 2) + 4*m)}, v{xaddr[s % 2]} offset:{((s//2) % NX)*XSLOT + m*2048}"); lg.append(('x', s))
    def wreads(q, out):
        s, u = divmod(q, n); U = units[u]; r = ring + 4*(q % R); slot = s % NW
        a = U.areg[slot // 3]; o = (slot % 3)*WSLOT + U.off
        if U.gate:
            out.append(f"ds_read_b128 {vr(r)}, v{a} offset:{o}"); lg.append(('w', q)); return
        out.append(f"ds_read_b64_tr_b16 {vr(r,2)}, v{a} offset:{o}"); out.append(f"ds_read_b64_tr_b16 {vr(r+2,2)}, v{a} offset:{o + 4096}")
        lg.extend([('w', q)]*2)
    e("s_barrier"); after_bar0()
    buf = []; xreads(0, buf)
    for q in range(D): wreads(q, buf)
    for b in buf: e(b)
    for q in range(total):
        s, u = divmod(q, n)
        tags = [('w', q), ('x', s)]
        if q % 2 == 0 and q + 1 < total: tags += [('w', q + 1), ('x', (q + 1)//n)]
        wait_lg(tags)
        buf = []; qa = q + D
        if qa < total:
            if qa % n == 0: buf.append("s_barrier"); xreads(qa // n, buf)
            wreads(qa, buf)
        elif tail:
            k_ = -(-len(tail) // (total - q))
            for x in tail[:k_]:
                if len(lg) >= 15: buf.append("s_waitcnt lgkmcnt(10)"); del lg[:len(lg) - 10]
                buf.append(x); lg.append(('t',))
            del tail[:k_]
        U = units[u]; r = ring + 4*(q % R); half = (len(buf) + 1)//2
        for m in range(2):
            acc = vr(U.acc + 4*m)
            e(f"v_mfma_f32_16x16x32_bf16 {acc}, {vr(r)}, {vr(xreg + 8*(s % 2) + 4*m)}, {acc}")
            for b in (buf[:half] if m == 0 else buf[half:]): e(b)

def gelu_pack(e, jobs, T, C1):
    for i in range(0, len(jobs), 4):
        grp = jobs[i:i+4]
        for k, (s, d) in enumerate(grp): e(f"v_pk_mul_f32 {vr(T+2*k,2)}, {vr(s,2)}, {vr(s,2)}")
        for k, (s, d) in enumerate(grp): e(f"v_pk_fma_f32 {vr(T+2*k,2)}, {vr(T+2*k,2)}, {sr(S_C2,2)}, {vr(C1,2)}")
        for k, (s, d) in enumerate(grp): e(f"v_pk_mul_f32 {vr(T+2*k,2)}, {vr(T+2*k,2)}, {vr(s,2)}")
        for k in range(2*len(grp)): e(f"v_exp_f32 v{T+k}, v{T+k}")
        for k, (s, d) in enumerate(grp): e(f"v_pk_add_f32 {vr(T+2*k,2)}, {vr(T+2*k,2)}, 1.0 op_sel_hi:[1,0]")
        for k in range(2*len(grp)): e(f"v_rcp_f32 v{T+k}, v{T+k}")
        for k, (s, d) in enumerate(grp): e(f"v_pk_mul_f32 {vr(T+2*k,2)}, {vr(T+2*k,2)}, {vr(s,2)}")
        for k, (s, d) in enumerate(grp): e(f"v_cvt_pk_bf16_f32 v{d}, v{T+2*k}, v{T+2*k+1}")

def softmax2(e, P, E, OUT, X, fill=(), wr=None):
    B = []; o = lambda t: B.extend(t.split("\n"))
    mx, mn = X, X + 2
    o(f"v_max3_f32 v{mx}, v{P}, v{P+1}, v{P+2}\nv_min3_f32 v{mn}, v{P}, v{P+1}, v{P+2}")
    for i in range(3, 19, 2): o(f"v_max3_f32 v{mx}, v{mx}, v{P+i}, v{P+i+1}\nv_min3_f32 v{mn}, v{mn}, v{P+i}, v{P+i+1}")
    o(f"v_max_f32 v{mx}, v{mx}, v{P+19}\nv_min_f32 v{mn}, v{mn}, v{P+19}")
    o(f"v_mul_f32 v{mx}, s{S_L}, v{mx}\nv_mul_f32 v{mn}, s{S_L}, v{mn}")
    for i in range(0, 20, 2):
        o(f"v_pk_fma_f32 {vr(E+i,2)}, {vr(P+i,2)}, {sr(S_L,2)}, {vr(mx,2)} op_sel_hi:[1,1,0] neg_lo:[0,0,1] neg_hi:[0,0,1]")
        o(f"v_pk_fma_f32 {vr(P+i,2)}, {vr(P+i,2)}, {sr(S_L,2)}, {vr(mn,2)} op_sel_hi:[1,1,0] neg_lo:[1,0,0] neg_hi:[1,0,0]")
    for i in range(20): o(f"v_exp_f32 v{E+i}, v{E+i}\nv_exp_f32 v{P+i}, v{P+i}")
    sp, sn = X + 4, X + 6
    o(f"v_pk_add_f32 {vr(sp,2)}, {vr(E,2)}, {vr(E+2,2)}\nv_pk_add_f32 {vr(sn,2)}, {vr(P,2)}, {vr(P+2,2)}")
    for i in range(4, 20, 2): o(f"v_pk_add_f32 {vr(sp,2)}, {vr(sp,2)}, {vr(E+i,2)}\nv_pk_add_f32 {vr(sn,2)}, {vr(sn,2)}, {vr(P+i,2)}")
    o(f"v_add_f32 v{sp}, v{sp}, v{sp+1}\nv_add_f32 v{sn}, v{sn}, v{sn+1}\nv_rcp_f32 v{sp}, v{sp}\nv_rcp_f32 v{sn}, v{sn}")
    fill = list(fill); step = len(B) // (len(fill) + 1)
    for i, x in enumerate(B):
        e(x)
        if fill and (i + 1) % step == 0: e(fill.pop(0))
    for src, sc, half in ((E, sp, 0), (P, sn, 1)):
        for i in range(10):
            e(f"v_pk_mul_f32 {vr(src+2*i,2)}, {vr(src+2*i,2)}, {vr(sc,2)} op_sel_hi:[1,0]")
            if i >= 1: e(f"v_cvt_pk_bf16_f32 v{OUT+10*half+i-1}, v{src+2*i-2}, v{src+2*i-1}")
            done = 10*half + i
            if wr and i >= 1 and done % 4 == 0: wr(done // 4 - 1)
        e(f"v_cvt_pk_bf16_f32 v{OUT+10*half+9}, v{src+18}, v{src+19}")
    if wr: wr(4)

def weave(e, main, fill, per=2):
    fill = [x for t in fill for x in t.split("\n")]
    for x in main:
        e(x)
        for _ in range(per):
            if fill: e(fill.pop(0))
    for x in fill: e(x)

def gen(diag=False, D=5, rot=(10, 20, 10, 5), PB=5, **opt):
    e = G(diag, **opt)
    e(f"; @launch grid=(256,1,1) block=(512,1,1) lds={LDS_TOTAL}")
    e(f'.amdgcn_target "amdgcn-amd-amdhsa--gfx950"\n.text\n.globl {NAME}\n.p2align 8\n.type {NAME},@function\n{NAME}:')
    if diag: e("s_memtime s[80:81]\ns_memrealtime s[100:101]")
    e("s_cmp_ge_u32 s2, 256\ns_cbranch_scc1 L_end")
    e("s_load_dwordx16 s[16:31], s[0:1], 0\ns_load_dwordx8 s[32:39], s[0:1], 64\ns_load_dwordx2 s[40:41], s[0:1], 96")
    if opt.get('epf', False):
        e(f"s_getpc_b64 s[12:13]\nL_pc0:\nv_lshlrev_b32 v2, 4, v0\nv_and_b32 v2, 0xc00, v2\nv_and_b32 v3, 7, v0\nv_lshl_add_u32 v2, v3, 7, v2")
        e(f"v_mov_b32 v3, L_C-L_pc0\nv_cmp_gt_u32 vcc, 256, v0\nv_cndmask_b32 v3, 0, v3, vcc\nv_add_u32 v2, v2, v3\ns_mov_b64 exec, 0xff\nglobal_load_dword v186, v2, s[12:13]\ns_mov_b64 exec, -1")
    if opt.get('cpt'):
        e(f"s_getpc_b64 s[76:77]\nL_pct:\ns_lshr_b32 s78, s2, 3\ns_lshl_b32 s78, s78, 11\nv_lshrrev_b32 v1, 6, v0\nv_and_b32 v2, 1, v0\nv_lshl_add_u32 v2, v1, 1, v2\nv_lshl_add_u32 v2, v2, 7, s78")
        e(f"v_min_u32 v2, L_end-L_pct, v2\ns_mov_b64 exec, 3\nglobal_load_dword v187, v2, s[76:77]\ns_mov_b64 exec, -1")
    e(f"v_lshrrev_b32 v1, 6, v0\nv_and_b32 v0, 63, v0")
    e(f"s_and_b32 s70, s2, 7\ns_lshr_b32 s71, s2, 3")
    e(f"v_readfirstlane_b32 s{S_WAVE}, v1")
    e(f"s_and_b32 s72, s70, 1\ns_and_b32 s73, s71, 7\ns_lshl_b32 s74, s72, 3\ns_add_u32 s{S_RB}, s74, s73")
    if opt.get('mix', True):
        e(f"s_lshr_b32 s{S_ISQ}, s71, 4\ns_lshr_b32 s74, s70, 1\ns_lshr_b32 s75, s71, 3")
        e(f"s_and_b32 s76, s75, 1\ns_lshl_b32 s77, s74, 1\ns_add_u32 s{S_J}, s76, s77")
    else:
        e(f"s_lshr_b32 s{S_ISQ}, s70, 2\ns_lshr_b32 s74, s70, 1\ns_lshr_b32 s75, s71, 3")
        e(f"s_and_b32 s76, s74, 1\ns_lshl_b32 s76, s76, 2\ns_add_u32 s{S_J}, s76, s75")
    a, b, c, d = rot
    e(f"s_mul_i32 s76, s73, {a}\ns_mul_i32 s77, s75, {b}\ns_add_u32 s76, s76, s77\ns_mul_i32 s77, s74, {c}\ns_add_u32 s76, s76, s77\ns_mul_i32 s77, s72, {d}\ns_add_u32 s76, s76, s77\ns_lshr_b32 s76, s76, 3")
    e(f"s_mul_i32 s77, s76, 6554\ns_lshr_b32 s77, s77, 16\ns_mul_i32 s77, s77, 10\ns_sub_u32 s{S_PH}, s76, s77")
    e(f"s_and_b32 s{S_WV}, s{S_WAVE}, 3")
    e.fstamp(3)
    if opt.get('c0', True):
        e(f"s_cmp_ge_u32 s{S_WAVE}, 4\ns_cbranch_scc1 L_M")
        c_first(e)
        e("s_branch L_C\nL_M:")
    else: e(f"s_cmp_lt_u32 s{S_WAVE}, 4\ns_cbranch_scc1 L_C")
    m_wave(e, PB)
    e("L_C:")
    c_wave(e, D)
    e("L_end:\ns_endpgm")
    e(f""".section .rodata,"a"
.p2align 6
.amdhsa_kernel {NAME}
  .amdhsa_next_free_vgpr 256
  .amdhsa_next_free_sgpr 102
  .amdhsa_accum_offset 256
  .amdhsa_group_segment_fixed_size 0
  .amdhsa_kernarg_size 104
  .amdhsa_user_sgpr_count 2
  .amdhsa_user_sgpr_kernarg_segment_ptr 1
  .amdhsa_system_sgpr_workgroup_id_x 1
.end_amdhsa_kernel""")
    txt, n = hazard.fix("\n".join(e.L), opt.get('verbose', False))
    return txt + "\n"

def x_setup(e, VX):
    e(f"v_lshrrev_b32 v2, 3, v0\ns_lshl_b32 s76, s{S_WV}, 4\nv_add_u32 v2, s76, v2")
    e(f"v_lshrrev_b32 v3, 4, v0\nv_xor_b32 v3, v3, v0\nv_and_b32 v3, 7, v3\nv_lshlrev_b32 v3, 4, v3")
    e(f"v_mul_u32_u24 v2, 1280, v2\nv_add_u32 v{VX[0]}, v2, v3")
    e(f"v_xor_b32 v3, 64, v3\nv_add_u32 v2, {8*1280-1024}, v2\nv_add_u32 v{VX[1]}, v2, v3")
    e(f"s_mul_i32 s{S_XOFF}, s{S_RB}, {128*1280}\ns_lshl_b32 s{S_M0X}, s{S_WV}, 11\ns_add_u32 s{S_M0X}, s{S_M0X}, {XBASE}\ns_lshl_b32 s{S_XK}, s{S_PH}, 7")
XADV = f"s_add_u32 s{S_XK}, s{S_XK}, 128\ns_cmp_eq_u32 s{S_XK}, 1280\ns_cmov_b32 s{S_XK}, 0"
def dma_x_ops(VX, X, h):
    pre = f"s_add_u32 s76, s{S_XK}, {h*81920}\ns_add_u32 m0, s{S_M0X}, {(X % NX)*XSLOT + h*8192}\ns_add_u32 s76, s76, s{S_XOFF}\n"
    return [(('x', X), pre + f"buffer_load_dwordx4 v{VX[0]}, {sr(SRD_X)}, s76 offen lds"),
            (('x', X), f"buffer_load_dwordx4 v{VX[1]}, {sr(SRD_X)}, s76 offen offset:1024 lds" + ("\n" + XADV if h else ""))]

def m_wave(e, PB):
    e("s_setprio 3")
    VX = [16, 17]; VB = [18, 20, 22, 24]; VS = [26, 27, 28, 29]; VA = [30, 32, 34, 36]
    e(f"s_lshl_b32 s{S_M0W}, s{S_WV}, 12\ns_lshl_b32 s{S_KK}, s{S_PH}, 1")
    e(f"s_lshr_b32 s76, s{S_WV}, 1\ns_lshl_b32 s76, s76, 4\ns_and_b32 s77, s{S_WV}, 1\ns_lshl_b32 s77, s77, 2\ns_add_u32 s78, s76, s77")
    def krow(dst, rho):
        e(f"v_and_b32 v{dst}, 4, v{rho}\nv_add3_u32 v{dst}, v{dst}, v{rho}, s78")
    def panel(dst, ci0, colreg, kv):
        e(f"v_add_u32 v2, {ci0}, v0\nv_mul_u32_u24 v3, 6554, v2\nv_lshrrev_b32 v3, 16, v3\nv_mul_u32_u24 v4, 10, v3\nv_sub_u32 v4, v2, v4")
        if kv: e(f"v_lshrrev_b32 v6, 3, v3\nv_and_b32 v3, 7, v3\nv_mul_u32_u24 v6, 1280, v6\nv_lshl_add_u32 v4, v4, 4, v6")
        else: e(f"v_lshlrev_b32 v4, 4, v4")
        krow(5, 3)
        e(f"v_mul_u32_u24 v5, 3840, v5\nv_add3_u32 v{dst}, v5, v4, s{colreg}")
    def h160(dst, hi0):
        e(f"v_add_u32 v2, {hi0}, v0\nv_min_i32 v2, 159, v2\nv_max_i32 v2, 0, v2\nv_mul_u32_u24 v3, 3277, v2\nv_lshrrev_b32 v3, 16, v3\nv_mul_u32_u24 v4, 20, v3\nv_sub_u32 v4, v2, v4")
        e(f"v_lshrrev_b32 v6, 1, v3\nv_and_b32 v6, 2, v6\nv_xor_b32 v4, v4, v6\nv_min_u32 v4, s77, v4\nv_lshlrev_b32 v4, 4, v4")
        krow(5, 3)
        e(f"v_mul_u32_u24 v5, 3456, v5\nv_add3_u32 v{dst}, v5, v4, s76")
    def addptr(b, off, plo, phi):
        if b: e(f"v_subrev_u32 v{off}, {1024*b}, v{off}\nv_ashrrev_i32 v7, 31, v{off}")
        else: e(f"v_mov_b32 v7, 0")
        e(f"v_add_co_u32 v{VB[b]}, vcc, {plo}, v{off}")
        if phi.startswith('s'): e(f"v_mov_b32 v6, {phi}"); phi = "v6"
        e(f"v_addc_co_u32 v{VB[b]+1}, vcc, {phi}, v7, vcc")
    vm = ([('pf',)] if e.opt.get('epf', False) else []) + ([('pf',)] if e.opt.get('cpt') else [])
    def emit(lst):
        for tag, txt in lst: e(txt); vm.append(tag)
    def wait_vm(pred):
        idx = max([i for i, t in enumerate(vm) if pred(t)], default=-1)
        if idx >= 0: e(f"s_waitcnt vmcnt({len(vm)-1-idx})"); del vm[:idx+1]
    def dma_w(step):
        pre = "".join(f"v_mad_u64_u32 {vr(VA[b],2)}, vcc, v{VS[b]}, s{S_KK}, {vr(VB[b],2)}\n" for b in range(4))
        pre += f"s_add_u32 m0, s{S_M0W}, {(step % NW)*WSLOT}\ns_add_u32 s{S_KK}, s{S_KK}, 1\ns_cmp_eq_u32 s{S_KK}, 20\ns_cmov_b32 s{S_KK}, 0\n"
        return [(('w', step), (pre if b == 0 else "") + f"global_load_lds_dwordx4 {vr(VA[b],2)}, off offset:{1024*b} {e.opt.get('wnt', '')}") for b in range(4)]
    dma_x = lambda X, h: dma_x_ops(VX, X, h)
    O = [8, 46, 10, 11, 12]
    e(f"s_cmp_eq_u32 s{S_ISQ}, 1\ns_cbranch_scc1 L_MQ")
    e(f"s_mul_i32 s76, s{S_J}, 160\ns_add_u32 s76, s76, 1280")
    panel(O[0], 0, 76, True); panel(O[1], 64, 76, True); panel(O[2], 128, 76, True)
    e(f"v_lshrrev_b32 v3, 3, v0\nv_and_b32 v4, 6, v3\nv_xor_b32 v4, v4, v0\nv_and_b32 v4, 7, v4\nv_lshlrev_b32 v4, 4, v4\ns_lshl_b32 s76, s{S_J}, 7")
    krow(5, 3)
    e(f"v_mul_u32_u24 v5, 3456, v5\nv_add3_u32 v{O[3]}, v5, v4, s76")
    e(f"v_subrev_u32 v2, 32, v0\nv_min_u32 v2, 3, v2\nv_lshlrev_b32 v2, 4, v2\nv_cmp_gt_u32 s[14:15], 32, v0")
    e(f"v_mov_b32 v{VS[0]}, {32*3840}\nv_mov_b32 v{VS[1]}, {32*3840}\nv_mov_b32 v{VS[3]}, {32*3456}\nv_cndmask_b32 v{O[2]}, v2, v{O[2]}, s[14:15]\nv_cndmask_b32 v{VS[2]}, 64, v{VS[0]}, s[14:15]")
    e.fstamp(4)
    e("s_waitcnt lgkmcnt(0)")
    e.fstamp(5)
    addptr(0, O[0], f"s{S_WQKV}", f"s{S_WQKV+1}"); addptr(1, O[1], f"s{S_WQKV}", f"s{S_WQKV+1}"); addptr(3, O[3], f"s{S_W1}", f"s{S_W1+1}")
    e(f"v_mov_b32 v2, s{S_GATE}\nv_mov_b32 v3, s{S_WQKV}\nv_cndmask_b32 v2, v2, v3, s[14:15]\nv_mov_b32 v3, s{S_GATE+1}\nv_mov_b32 v4, s{S_WQKV+1}\nv_cndmask_b32 v3, v3, v4, s[14:15]")
    addptr(2, O[2], "v2", "v3")
    e("s_branch L_Mgo\nL_MQ:")
    e(f"s_mul_i32 s79, s{S_J}, 160\ns_mul_i32 s76, s{S_J}, 320\ns_add_u32 s76, s76, 1024\ns_cmp_eq_u32 s{S_J}, 7\ns_cselect_b32 s77, 11, 19")
    panel(O[0], 0, 79, False); panel(O[1], 64, 79, False); h160(O[4], -16); h160(O[2], 48); h160(O[3], 112)
    e(f"v_cmp_gt_u32 s[14:15], 16, v0\nv_mov_b32 v{VS[0]}, {32*3840}\nv_mov_b32 v{VS[2]}, {32*3456}\nv_mov_b32 v{VS[3]}, {32*3456}")
    e(f"v_cndmask_b32 v{O[1]}, v{O[4]}, v{O[1]}, s[14:15]\nv_cndmask_b32 v{VS[1]}, v{VS[2]}, v{VS[0]}, s[14:15]")
    e.fstamp(4)
    e("s_waitcnt lgkmcnt(0)")
    e.fstamp(5)
    addptr(0, O[0], f"s{S_WQKV}", f"s{S_WQKV+1}"); addptr(2, O[2], f"s{S_W1}", f"s{S_W1+1}"); addptr(3, O[3], f"s{S_W1}", f"s{S_W1+1}")
    e(f"v_mov_b32 v2, s{S_W1}\nv_mov_b32 v3, s{S_WQKV}\nv_cndmask_b32 v2, v2, v3, s[14:15]\nv_mov_b32 v3, s{S_W1+1}\nv_mov_b32 v4, s{S_WQKV+1}\nv_cndmask_b32 v3, v3, v4, s[14:15]")
    addptr(1, O[1], "v2", "v3")
    e("L_Mgo:")
    LA = e.opt.get('LA', 2); JS = e.opt.get('JS', 8)
    if e.opt.get('linbar'): e("s_barrier")
    emit(dma_w(0))
    e.stamp(1)
    emit(dma_w(1))
    x_setup(e, VX); e.srd(SRD_X, S_X, 2048*1280)
    e(XADV)
    if LA >= 3: emit(dma_x(1, 0)); emit(dma_w(2))
    e(f"s_setprio {e.opt.get('lprio', 0)}")
    e(f"s_and_b32 s76, s70, 3\ns_lshl_b32 s76, s76, 3\ns_add_u32 s{S_R64}, s76, s73\ns_and_b32 s76, s70, 4\ns_add_u32 s{S_CB}, s76, s75")
    e(f"s_mul_i32 s7, s73, 5\ns_mul_i32 s76, s75, 10\ns_add_u32 s7, s7, s76\ns_lshr_b32 s7, s7, 2")
    VZ, VL16 = 1, 15
    VJ = [38, 39, 40, 41, 42]; VJR = 43; VP = 14; JF = 48
    chunks = {}
    def c0():
        e.srd(SRD_WS, S_WS, WS_SIZE); e.srd(SRD_D, S_DBG, 256)
        e(f"v_mov_b32 v{VZ}, 0\nv_lshlrev_b32 v{VL16}, 4, v0")
        if e.opt.get('jq', True):
            NQJ = e.opt.get('nqj', 432)
            e(f"s_lshl_b32 s70, s{S_J}, 4\ns_add_u32 s70, s70, s{S_RB}\ns_sub_u32 s71, 127, s70\ns_lshl_b32 s71, s71, 2\ns_add_u32 s71, s71, s{S_WV}\ns_lshl_b32 s72, s{S_WV}, 7\ns_add_u32 s72, s72, s70\ns_add_u32 s72, s72, {NQJ}")
            e(f"s_cmp_eq_u32 s{S_ISQ}, 0\ns_cselect_b32 s72, s72, s71\ns_mov_b32 s71, {NQJ}\ns_cmov_b32 s71, 592\ns_sub_u32 s70, s72, s71\ns_lshr_b32 s71, s72, 3\ns_and_b32 s72, s72, 7")
        else:
            e(f"s_mul_i32 s70, s2, 37\ns_add_u32 s71, s70, 37\ns_lshr_b32 s70, s70, 4\ns_lshr_b32 s71, s71, 4\ns_add_u32 s72, s70, s{S_WV}\ns_sub_u32 s70, s72, s71\ns_lshr_b32 s71, s72, 3\ns_and_b32 s72, s72, 7")
        e(f"s_sub_u32 s73, s71, 54\ns_mul_i32 s77, s73, 6554\ns_lshr_b32 s77, s77, 15\ns_mul_i32 s78, s77, 5\ns_sub_u32 s78, s73, s78")
        e(f"s_mul_i32 s73, s77, 160\ns_lshr_b32 s77, s78, 1\ns_mul_i32 s77, s77, 80\ns_and_b32 s79, s78, 1\ns_lshl_b32 s79, s79, 3\ns_add_u32 s77, s77, s79")
        e(f"s_cmp_eq_u32 s78, 4\ns_cselect_b32 s77, 16, s77\ns_cselect_b32 s75, 80, 4\ns_add_u32 s73, s73, s77\ns_mov_b32 s74, 20")
    def c1():
        e(f"s_lshl_b32 s77, s71, 5\ns_cmp_lt_u32 s71, 54\ns_cselect_b32 s73, s77, s73\ns_cselect_b32 s74, 4, s74\ns_cselect_b32 s75, 16, s75")
        e(f"s_cselect_b32 s{SRD_T}, s{S_W2}, s{S_WO}\ns_cselect_b32 s{SRD_T+1}, s{S_W2+1}, s{S_WO+1}\ns_mov_b32 s{SRD_T+2}, {640*1280}\ns_cmov_b32 s{SRD_T+2}, {1728*1280}\ns_mov_b32 s{SRD_T+3}, 0x20000")
        e(f"s_mul_i32 s12, s73, 1280\ns_mul_i32 s77, s72, 160\ns_add_u32 s12, s12, s77")
        e(f"s_mul_i32 s13, s72, 74\ns_add_u32 s13, s13, s71\ns_mul_i32 s13, s13, 5120\ns_add_u32 s13, s13, {WS_WF}")
        e(f"s_and_b32 s77, s{S_RB}, 3\ns_lshl_b32 s78, s{S_ISQ}, 2\ns_add_u32 s77, s77, s78\ns_lshl_b32 s77, s77, 7\ns_add_u32 s77, s77, {WS_FL + FL_W*128}"); e.wsptr(14, "s77")
        e(f"s_cmp_lt_i32 s70, 0\ns_cselect_b32 s12, s12, {OOB}\ns_cselect_b32 s13, s13, {OOB}")
        e(f"s_mul_i32 s3, s{S_WV}, 5120\ns_add_u32 s3, s3, {STG}")
        e(f"v_lshrrev_b32 v2, 2, v0\nv_mul_u32_u24 v2, 160, v2\nv_and_b32 v3, 3, v0\nv_mul_u32_u24 v3, 40, v3\nv_add3_u32 v{VJR}, v2, v3, s3\nv_add_u32 v44, 4096, v{VL16}")
    def cj(i0, i1):
        def f():
            for i in range(i0, i1):
                e(f"v_add_u32 v2, {64*i}, v0\nv_mul_u32_u24 v3, 6554, v2\nv_lshrrev_b32 v3, 16, v3\nv_mul_u32_u24 v4, 10, v3\nv_sub_u32 v4, v2, v4")
                e(f"v_bfe_u32 v5, v3, 2, 2\nv_mul_u32_u24 v5, s74, v5\nv_lshrrev_b32 v6, 4, v3\nv_mul_u32_u24 v6, s75, v6\nv_and_b32 v3, 3, v3\nv_add3_u32 v3, v3, v5, v6")
                e(f"v_mul_u32_u24 v3, 1280, v3\nv_lshl_add_u32 v{VJ[i]}, v4, 4, v3")
        return f
    def c8():
        e(f"s_cmp_eq_u32 s{S_WV}, 3\ns_cselect_b32 s70, 8, 10\ns_mul_i32 s71, s{S_WV}, 10\ns_add_u32 s71, s71, 16")
        for _ in range(2): e(f"s_cmp_ge_u32 s7, s70\ns_cselect_b32 s72, s70, 0\ns_sub_u32 s7, s7, s72")
        e(f"s_mul_i32 s74, s{S_R64}, 54\ns_add_u32 s72, s74, s71\ns_lshl_b32 s{SAS}, s72, 12\ns_lshl_b32 s73, s70, 12\ns_add_u32 s{SAE}, s{SAS}, s73\ns_lshl_b32 s73, s7, 12\ns_add_u32 s{SA}, s{SAS}, s73")
        e(f"s_mul_i32 s75, s{S_CB}, 74\ns_add_u32 s73, s75, s71\ns_mul_i32 s73, s73, 5120\ns_add_u32 s{SBS}, s73, {WS_WF}\ns_mul_i32 s73, s70, 5120\ns_add_u32 s{SBE}, s{SBS}, s73\ns_mul_i32 s73, s7, 5120\ns_add_u32 s{SB}, s{SBS}, s73")
    def c9():
        e(f"s_lshl_b32 s70, s{S_WV}, 2\ns_add_u32 s71, s74, s70\ns_lshl_b32 s{SA2}, s71, 12\ns_add_u32 s71, s75, s70\ns_mul_i32 s71, s71, 5120\ns_add_u32 s{SB2}, s71, {WS_WF}")
        e(f"s_mul_i32 s70, s{S_WV}, 5\ns_add_u32 s70, s70, s75\ns_add_u32 s70, s70, 54\ns_mul_i32 s70, s70, 5120\ns_add_u32 s{SOB}, s70, {WS_WF}")
        e(f"s_mul_i32 s70, s{S_R64}, 81920\ns_add_u32 s{SOA}, s70, {WS_OF}")
        e(f"s_lshl_b32 s70, s{S_R64}, 3\ns_add_u32 s70, s70, s{S_CB}\ns_lshl_b32 s70, s70, 2\ns_add_u32 s70, s70, s{S_WV}\ns_lshl_b32 s70, s70, 7\ns_add_u32 s70, s70, {WS_FL + FL_H*128}"); e.wsptr(SFH, "s70")
        e(f"s_mov_b32 s{SFW}, {WS_FL + FL_W*128 + 1024}")
        e(f"s_lshl_b32 s70, s{S_R64}, 8\ns_lshl_b32 s71, s{S_WV}, 14\ns_add_u32 s70, s70, s71\ns_add_u32 s{SG}, s70, {WS_G}")
    def c10():
        e(f"s_mul_i32 s{SPK}, s{S_WV}, 20480\ns_add_u32 s{SPK}, s{SPK}, {PARK}\ns_cmp_eq_u32 s{S_WV}, 3\ns_cmov_b32 s{SPK}, {STG}")
        e(f"v_add_u32 v{P3_VL2}, 4096, v{VL16}")
        e(f"s_and_b32 s70, s{S_CB}, {3 if e.opt.get('trot', True) else 0}\ns_xor_b32 s{S_TL}, s70, s{S_WV}")
        for t in range(4): e(f"s_xor_b32 s70, s{S_TL}, {t}\ns_lshl_b32 s70, s70, 10\nv_add_u32 v{P3_VT[t]}, s70, v{VL16}")
        e(f"v_min_u32 v4, 144, v{VL16}\ns_mul_i32 s70, s{S_CB}, 160\nv_add_u32 v4, s70, v4")
        e(f"v_and_b32 v8, 7, v0\nv_lshlrev_b32 v8, 7, v8")
    JL = e.opt.get('JL', -1); JR = e.opt.get('JR', 2); JA = e.opt.get('JA', 8); ZA = e.opt.get('ZA', 2); pre = e.opt.get('pre', 0)
    for c_ in (c0, c1, cj(0, 5), c8, c9, c10): c_()
    e(f"s_lshl_b32 s76, s2, 12\nv_lshl_add_u32 v2, v0, 7, s76\ns_lshl_b32 s76, s2, 10\ns_add_u32 s76, s76, {(FL_KV - 32)*128}\nv_lshl_add_u32 v6, v0, 7, s76\nv_cmp_gt_u32 vcc, 32, v0\nv_mov_b32 v168, 0\nv_mov_b32 v169, 0\nv_cndmask_b32 v2, v6, v2, vcc")
    e(f"v_mov_b32 v6, {OOB}\nv_cmp_gt_u32 vcc, 40, v0\nv_mov_b32 v170, 0\nv_mov_b32 v171, 0\nv_cndmask_b32 v2, v6, v2, vcc\ns_add_u32 s76, s2, {FL_W}\ns_lshl_b32 s76, s76, 7\ns_cmp_lt_u32 s2, 16\ns_cselect_b32 s76, s76, {OOB}\nv_writelane_b32 v2, s76, 40")
    e(f"s_lshl_b32 s76, s{S_WV}, 8\ns_or_b32 s76, s76, s2\ns_cmp_lt_u32 s76, {NINIT}\ns_mov_b32 s76, {OOB}\ns_cmov_b32 s76, {WS_FL}")
    emit([(('zero',), f"buffer_store_dwordx4 v[168:171], v2, {sr(SRD_WS)}, s76 offen sc1")])
    emit([(('b2',), f"s_mov_b32 m0, {B2_LDS}\nglobal_load_lds_dwordx4 v4, s[{S_B2}:{S_B2+1}]")])
    txt = (f"s_mul_i32 s76, s{S_J}, 3200\ns_lshl_b32 s77, s{S_WV}, 10\ns_add_u32 m0, s77, {WPHI_LDS}\ns_add_u32 s76, s76, s77\ns_add_u32 s76, s76, s{S_WPHI}\ns_addc_u32 s77, s{S_WPHI+1}, 0\n"
           f"s_cmp_eq_u32 s{S_WV}, 3\ns_mov_b32 s78, 1008\ns_cmov_b32 s78, 112\nv_min_u32 v6, s78, v{VL16}\nglobal_load_lds_dwordx4 v6, s[76:77]")
    emit([(('phi',), txt)])
    if e.opt.get('cpf', True) and not e.opt.get('cpc', True):
        e(f"s_getpc_b64 s[76:77]\nL_pc:\ns_sub_u32 s76, s76, L_pc-{NAME}\ns_subb_u32 s77, s77, 0")
        e(f"s_lshr_b32 s78, s2, 3\ns_lshl_b32 s78, s78, 2\ns_add_u32 s78, s78, s{S_WV}\ns_lshl_b32 s78, s78, 9\nv_and_b32 v6, 3, v0\nv_lshl_add_u32 v6, v6, 7, s78")
        emit([(('pf',), f"s_mov_b32 s78, L_end-{NAME}\nv_min_u32 v6, s78, v6\ns_mov_b64 exec, 15\nglobal_load_dword v167, v6, s[76:77]\ns_mov_b64 exec, -1")])
    if e.opt.get('tlb'):
        st_ = e.opt['tlb']
        e(f"v_lshlrev_b32 v6, {st_}, v0\nv_min_u32 v6, {WS_SIZE - 64}, v6\ns_lshl_b32 s76, s{S_WV}, {st_ - 2}")
        emit([(('pf',), f"s_mov_b64 exec, {(1 << min(63, WS_SIZE >> st_)) - 1}\nbuffer_load_dword v167, v6, {sr(SRD_WS)}, s76 offen\ns_mov_b64 exec, -1")])
        emit([(('pf',), f"v_min_u32 v6, {2048*1280 - 64}, v6\ns_mov_b64 exec, 7\nglobal_load_dword v166, v6, s[{S_OUT}:{S_OUT+1}]\ns_mov_b64 exec, -1")])
        e(f"s_load_dword s33, s[{SFH}:{SFH+1}], 64")
    def job_loads():
        for i in range(5):
            emit([(('job',), f"s_add_u32 m0, s3, {1024*i}\ns_nop 0\nbuffer_load_dwordx4 v{VJ[i]}, {sr(SRD_T)}, s12 offen {e.opt.get('jnt', 'nt')} lds")])
    if JL < 0: job_loads()
    P3S = P3(e, PB, VZ, VL16, vm)
    if JL < 0: P3S.early_setup()
    WD = [20, 22, 23, 30, 31, 32, 33, 12]
    def extras(s):
        if s == ZA:
            wait_vm(lambda t: t[0] in ('zero', 'b2', 'phi'))
            Li = e.lab("L_ini")
            e(f"s_lshl_b32 s77, s{S_WV}, 8\ns_or_b32 s77, s77, s2\ns_cmp_ge_u32 s77, {NINIT}\ns_cbranch_scc1 {Li}\ns_mov_b32 s21, 1\ns_atomic_add s21, s[{S_DBG}:{S_DBG+1}], 0 glc\n{Li}:")
        if s == JR:
            wait_vm(lambda t: t[0] == 'job')
            for u in range(5):
                e(f"ds_read_b64_tr_b16 {vr(JF+4*u,2)}, v{VJR} offset:{8*u}\nds_read_b64_tr_b16 {vr(JF+4*u+2,2)}, v{VJR} offset:{8*u + 2560}")
        if s == JA - 1: e.sfirst(S_DBG, [0], [31])
        if s == JA:
            e.scheck([31], NINIT, SRD_D, "0", VZ, VP, vm)
            wait_vm(lambda t: t[0] == 'jst')
            e(f"s_mov_b64 exec, 1\nv_mov_b32 v174, {CNT_LDS + 4*3}\nv_mov_b32 v175, 1\nds_add_rtn_u32 v174, v174, v175\ns_mov_b64 exec, -1\ns_mov_b32 s22, 0")
        if s == JA + 1:
            Lw = e.lab("L_w1")
            e(f"s_waitcnt lgkmcnt(0)\nv_readfirstlane_b32 s78, v174\ns_cmp_lg_u32 s78, 3\ns_cbranch_scc1 {Lw}\ns_mov_b32 s22, 1\ns_atomic_add s22, s[14:15], 0 glc\n{Lw}:")
        if s == JA + e.opt.get('JF', 2):
            Lw = e.lab("L_w2")
            e(f"s_waitcnt lgkmcnt(0)\ns_cmp_lg_u32 s22, 31\ns_cbranch_scc1 {Lw}\ns_mov_b32 s23, 1\ns_atomic_add s23, s[14:15], 1024 glc\n{Lw}:")
    for s in range(NSTEP):
        wait_vm(lambda t: t == ('w', s) or t == ('x', s//2))
        e("s_barrier")
        if s == 0: e.stamp(2)
        if e.opt.get('steps'): e(f"s_memtime s[76:77]\ns_waitcnt lgkmcnt(0)\ns_sub_u32 s76, s76, s80\nv_writelane_b32 v9, s76, {s}")
        n_list = [2, 3] if (LA == 2 and s == 0) else [s + 3]
        for n_ in n_list:
            if n_ < NSTEP: emit(dma_x(n_ // 2, n_ % 2))
        extras(s)
        if s + LA < NSTEP: emit(dma_w(s + LA))
        if s == JL: job_loads(); P3S.early_setup()
        if s == JR + e.opt.get('JSd', 0):
            e("s_waitcnt lgkmcnt(0)")
            for u in range(5):
                if u < 4: emit([(('jst',), f"buffer_store_dwordx4 {vr(JF+4*u)}, v{VL16}, {sr(SRD_WS)}, s13 offen offset:{1024*u} sc1")])
                else: emit([(('jst',), f"buffer_store_dwordx4 {vr(JF+4*u)}, v44, {sr(SRD_WS)}, s13 offen sc1")])
        if s == (17 if pre else 18): e.wsptr(76, f"s{SFW}"); e.sfirst(76, [128*i for i in range(8)], WD)
        if s == 18 and pre:
            e.scheck(WD, 1, SRD_WS, f"s{SFW}", 8, VP, vm)
            for _ in range(pre): P3S.prefetch()
    e.stamp(3)
    if not pre: e.scheck(WD, 1, SRD_WS, f"s{SFW}", 8, VP, vm)
    e(f"s_setprio {e.opt.get('mprio', 0)}")
    e.stamp(4)
    if e.opt.get('nop3'):
        e.stamps_out(); e("s_endpgm"); return
    P3S.begin()
    while P3S.npre < PB:
        if P3S.npre >= e.opt.get('free', 2):
            if not P3S.ring:
                e.lwait(8, 174, 175); P3S.ring = True
                P3S.park_now(e.opt.get('pkf', 0))
            P3S.yield_()
        P3S.prefetch()
        if len(vm) > P3S.THR: e(f"s_waitcnt vmcnt({P3S.THR})"); del vm[:len(vm) - P3S.THR]
    if e.opt.get('pkl', 4):
        if not P3S.ring: e.lwait(8, 174, 175); P3S.ring = True
        if e.opt.get('pkw') is not None:
            P3S.park_now(e.opt.get('pkw', 1)); e.lwait(e.opt.get('pkc', 12), 174, 175)
        P3S.park_now(e.opt.get('pkl', 4) - P3S.parked)
    P3S.run()

def P3(e, PB, VZ, VL16, vm):
    class S: pass
    S.npre = 0
    opt = e.opt
    ACC = 176; POOL = 16; NPOOL = 38
    VL2, VP = 13, 14; VGO = 173; VY = 9; assert not (opt.get('steps') and opt.get('yld'))
    VT = P3_VT
    VG = 2
    acc = lambda u, t: ACC + 16*u + 4*t
    NQ, NK = 10, 4; NS = NQ + NK; HPM = (opt.get('hp', 3), opt.get('mprio', 0))
    def pst(i):
        if opt.get('steps'): e(f"s_waitcnt lgkmcnt(0)\ns_memtime s[76:77]\ns_waitcnt lgkmcnt(0)\ns_sub_u32 s76, s76, s80\nv_writelane_b32 v9, s76, {i}")
    free = list(range(NPOOL)); frag = {}
    def emit1(item): e(item[1]); vm.append(item[0])
    def waitvm(pred):
        idx = max([i for i, t in enumerate(vm) if pred(t)], default=-1)
        if idx >= 0: e(f"s_waitcnt vmcnt({len(vm)-1-idx})"); del vm[:idx+1]
    def ld(d, v, so, off): return f"buffer_load_dwordx4 {d}, v{v}, {sr(SRD_WS)}, {so} offen" + (f" offset:{off}" if off else "") + " sc1"
    def take(k): return free.pop(0)
    def group(kind, k):
        out = []
        for i in range(4 if kind == 'A' else 5):
            sl = take(k); frag[(kind, k, i)] = POOL + 4*sl; d = vr(POOL + 4*sl)
            pre = post = ""
            if kind == 'A':
                if k < NQ:
                    if k == NQ - 2 and i == 0: pre = f"s_cmp_eq_u32 s{S_WV}, 3\ns_cmov_b32 s{SA}, {OOB}\n"
                    if i == 3: post = f"\ns_add_u32 s{SA}, s{SA}, 4096\ns_cmp_eq_u32 s{SA}, s{SAE}\ns_cmov_b32 s{SA}, s{SAS}"
                    txt = ld(d, VT[i], f"s{SA}", 0)
                else:
                    txt = ld(d, VT[i], f"s{SA2}", 0)
                    if i == 3: post = f"\ns_add_u32 s{SA2}, s{SA2}, 4096"
            else:
                if k < NQ:
                    so = f"s{SB}"
                    if k == NQ - 2 and i == 0: pre = f"s_cmp_eq_u32 s{S_WV}, 3\ns_cmov_b32 s{SB}, {OOB}\n"
                    if i == 4: post = f"\ns_add_u32 s{SB}, s{SB}, 5120\ns_cmp_eq_u32 s{SB}, s{SBE}\ns_cmov_b32 s{SB}, s{SBS}"
                else:
                    so = f"s{SB2}"
                    if i == 4: post = f"\ns_add_u32 s{SB2}, s{SB2}, 5120"
                txt = ld(d, VL16, so, 1024*i) if i < 4 else ld(d, VL2, so, 0)
            out.append(((kind, k), pre + txt + post))
        return out
    THR = opt.get('thr', 10)
    YLD = opt.get('yld', '')
    def yield_(pre_read=False):
        if not YLD: return
        L = e.lab("L_y"); D = e.lab("L_yd")
        if not pre_read: e(f"ds_read_b32 v{VP}, v{VY}")
        e(f"s_setprio {opt.get('hp', 3)}\ns_mov_b32 s79, 0\n{L}:\ns_waitcnt lgkmcnt(0)\nv_readfirstlane_b32 s78, v{VP}\ns_cmp_eq_u32 s78, 0\ns_cbranch_scc1 {D}")
        e(f"s_add_u32 s79, s79, 1\ns_cmp_ge_u32 s79, 0x1000000\ns_cbranch_scc1 L_end\ns_sleep 1\nds_read_b32 v{VP}, v{VY}\ns_branch {L}\n{D}:\ns_setprio {opt.get('mprio', 0)}")
    def prefetch():
        for it in group('B', S.npre):
            emit1(it)
            r_ = opt.get('rth')
            if r_ is not None and S.npre >= opt.get('free', 2) and len(vm) > r_: e(f"s_waitcnt vmcnt({r_})"); del vm[:len(vm) - r_]
        S.npre += 1
    S.prefetch = prefetch; S.THR = THR
    def msync(cnt):
        e.lpost(cnt, 174, 175); e.lwait(cnt, 174, 175, sleep=0)
    def park(j):
        out = []
        for i in range(5):
            pre = f"s_add_u32 s12, s{S_R64}, {j}\ns_and_b32 s12, s12, 3\ns_mul_i32 s12, s12, 5120\ns_add_u32 s13, s12, s{SOB}\ns_add_u32 s12, s12, s{SPK}\n" if i == 0 else ""
            out.append((('L',), pre + f"s_add_u32 m0, s12, {1024*i}\ns_add_u32 s77, s13, {1024*i}\nbuffer_load_dwordx4 v{VL16}, {sr(SRD_WS)}, s77 offen sc1 lds"))
        return out
    VH = [4, 5, 6, 7]; VOUT = 169; VGS = [2, 168, 170, 172]
    def early_setup():
        for t in range(4): e(f"s_xor_b32 s70, s{S_TL}, {t}\ns_lshr_b32 s71, s70, 1\ns_lshl_b32 s71, s71, 10\ns_and_b32 s70, s70, 1\ns_lshl_b32 s70, s70, 3\ns_add_u32 s70, s70, s71\ns_add_u32 s70, s70, 8192\nv_add_u32 v{VH[t]}, s70, v{VL16}")
        e.srd(SRD_T, S_OUT, 2048*1280)
        e(f"v_and_b32 v{VOUT}, 15, v0\nv_mul_u32_u24 v{VOUT}, 1280, v{VOUT}\nv_lshrrev_b32 v170, 4, v0\nv_mul_u32_u24 v170, 40, v170\nv_add_u32 v{VOUT}, v{VOUT}, v170\nv_add_u32 v171, s{SPK}, v{VL16}")
        e(f"s_lshl_b32 s70, s{S_R64}, 2\ns_add_u32 s70, s70, s{S_TL}\ns_mul_i32 s70, s70, {16*1280}\ns_mul_i32 s71, s{S_CB}, 160\ns_add_u32 s42, s70, s71")
        e(f"s_mul_i32 s70, s{S_WV}, 20480\ns_add_u32 s{SOA}, s{SOA}, s70")
        e(f"v_and_b32 v{VGO}, 15, v0\nv_lshlrev_b32 v{VGO}, 2, v{VGO}")
    S.early_setup = early_setup
    S.ring = False; S.yield_ = yield_; S.parked = 0
    def park_now(n):
        for _ in range(n):
            yield_()
            for it in park(S.parked):
                emit1(it)
                p_ = opt.get('pth', 2)
                if len(vm) > p_: e(f"s_waitcnt vmcnt({p_})"); del vm[:len(vm) - p_]
            S.parked += 1
            if len(vm) > THR: e(f"s_waitcnt vmcnt({THR})"); del vm[:len(vm) - THR]
    S.park_now = park_now
    S.begin = lambda: e(f"v_mov_b32 v{VY}, {CNT_LDS + 4*11}") if YLD else None
    def run():
        if not S.ring: e.lwait(8, 174, 175)
        e.stamp(5, True)
        PK = opt.get('pk', (10, 11, 11, 12))
        for j in range(4):
            if PK[j] >= 0 or j < S.parked: continue
            yield_()
            for it in park(j): emit1(it)
            if len(vm) > THR: e(f"s_waitcnt vmcnt({THR})"); del vm[:len(vm) - THR]
        P2 = opt.get('pk2', 0); SP2 = [4, 5, 6]
        if P2: e.lwait(12, 174, 175)
        for j in range(P2):
            e(f"s_xor_b32 s76, s{S_WV}, {j+1}\ns_mul_i32 s{SP2[j]}, s76, 15360\ns_cmp_eq_u32 s76, 3\ns_cmov_b32 s{SP2[j]}, {EXCH_H3}\ns_add_u32 s{SP2[j]}, s{SP2[j]}, {5120*j}")
            for i in range(5):
                emit1((('L',), f"s_add_u32 m0, s{SP2[j]}, {1024*i}\ns_add_u32 s77, s{SB2}, {5120*(NK - P2 + j) + 1024*i}\nbuffer_load_dwordx4 v{VL16}, {sr(SRD_WS)}, s77 offen sc1 lds"))
                p_ = opt.get('pth2', 2)
                if len(vm) > p_: e(f"s_waitcnt vmcnt({p_})"); del vm[:len(vm) - p_]
        for ch, role, cnt in (('q', 0, 0), ('k', 1, 2)):
            if ch in opt.get('hw', ''):
                Lh = e.lab("L_hw")
                e(f"s_cmp_eq_u32 s{S_ISQ}, {role}\ns_cbranch_scc1 {Lh}"); e.lwait(cnt, 174, 175); e(f"{Lh}:")
        e.spoll(SFH, SPD, sleep=opt.get('slh', 0), least=2)
        e.stamp(6, True)
        order = []
        for k in range(NS):
            order.append(('A', k))
            if PB <= k < NS - P2: order.append(('B', k))
        pend = []; gate = [False]
        LOOK = opt.get('look', 2)
        def refill(cur):
            i = 0
            while i < len(order):
                kind, k = order[i]
                if kind == 'A' and k >= NQ and not gate[0]: i += 1; continue
                if k > cur + LOOK or len(free) < (4 if kind == 'A' else 5) + (8 if i > 0 else 0): break
                pend.extend(group(kind, k)); order.pop(i)
        yield_()
        refill(-1)
        for it in pend: emit1(it)
        pend.clear()
        nxtflag = f"s_add_u32 s{SFH}, s{SFH}, 4"
        GK = NQ - opt.get('gk', LOOK); GO = NS - opt.get('go', 0)
        bo = {}; aq = []; dsq = []; lg = []
        def o_weights_stream():
            for u in range(5):
                sl = free.pop(0); bo[(4, u)] = POOL + 4*sl
                pend.append((('Bo',), (f"s_add_u32 s77, s{SOB}, {4*5120}\n" if u == 0 else "") + (ld(vr(POOL + 4*sl), VL16, "s77", 1024*u) if u < 4 else ld(vr(POOL + 4*sl), VL2, "s77", 0))))
        SNAKE = opt.get('snake', True)
        iord = lambda t: ([3, 2, 4, 1, 0] if (t == 2 and SNAKE) else [0, 1, 2, 3, 4])
        oa = [(t, i) for t in (3, 2, 1, 0) for i in iord(t)]; ao = {}
        def a_next():
            t, i = oa.pop(0); sl = free.pop(0); ao[(t, i)] = d = POOL + 4*sl
            if i < 4: return [(('Ao', t, i), f"s_add_u32 s76, s{SOA}, {(i >> 1)*10240 + (i & 1)*4096}\n" + ld(vr(d), VT[t], "s76", 0))]
            return [(('Ao', t, i), f"s_add_u32 s76, s{SOA}, {ee*10240}\nbuffer_load_dwordx2 {vr(d+2*ee,2)}, v{VH[t]}, {sr(SRD_WS)}, s76 offen sc1") for ee in range(2)]
        ob = [(t, i, u) for t in (3, 2, 1, 0) for i in range(4) for u in range(5)]
        if SNAKE: ob = [(3, i, u) for i in range(4) for u in range(5)] + [(2, i, u) for i in (1, 0) for u in range(5)]
        def b_next():
            t, i, u = ob.pop(0); sl = free.pop(0); bo[(t, i, u)] = POOL + 4*sl
            if len(lg) >= 15: e("s_waitcnt lgkmcnt(10)"); del lg[:5]
            e(f"ds_read_b128 {vr(POOL + 4*sl)}, v171 offset:{5120*i + 1024*u}"); lg.append((t, i))
        def o_gate():
            e.stamp(7, True)
            e.spoll(SFH, SPD, probed=True, sleep=opt.get('slz', 0), least=2)
            e.stamp(8, True); lg.clear()
            while oa: pend.extend(a_next())
        for k in range(NS):
            if k == GK:
                e.spoll(SFH, SPD, probed=True, sleep=opt.get('slo', 0), least=2)
                gate[0] = True
                for t in range(4): emit1((('g',), f"s_xor_b32 s76, s{S_TL}, {t}\ns_lshl_b32 s76, s76, 6\ns_add_u32 s76, s76, s{SG}\nbuffer_load_dword v{VGS[t]}, v{VGO}, {sr(SRD_WS)}, s76 offen sc1"))
            refill(k)
            for j in range(4):
                if PK[j] == k and j >= S.parked: pend.extend(park(j))
            if k == NS - 2: o_weights_stream()
            while any(it[0] in (('A', k), ('B', k)) for it in pend): emit1(pend.pop(0))
            if k == GO:
                o_gate()
                for _ in range(4): emit1(pend.pop(0))
            waitvm(lambda t: t in (('A', k), ('B', k)))
            if pend and k != GK - 1 and k < GO - 1: yield_(pre_read=k > 0 and k != GK)
            if k >= NS - P2: e("s_waitcnt lgkmcnt(0)")
            pst(24 + k)
            dq = []
            if NS - P2 <= k + 1 < NS:
                j = k + 1 - (NS - P2)
                for u in range(5):
                    sl = free.pop(0); frag[('B', k + 1, u)] = POOL + 4*sl
                    dq.append((f"v_add_u32 v14, s{SP2[j]}, v{VL16}\n" if u == 0 else "") + f"ds_read_b128 {vr(POOL + 4*sl)}, v14 offset:{1024*u}")
            cnt = 0
            for t in range(4):
                for u in range(5):
                    e(f"v_mfma_f32_16x16x32_bf16 {vr(acc(u,t))}, {vr(frag[('B',k,u)])}, {vr(frag[('A',k,t)])}, {vr(acc(u,t)) if k else 0}")
                    cnt += 1
                    if cnt % 2 == 0 and pend: emit1(pend.pop(0))
                    elif cnt % 2 == 1 and dq: e(dq.pop(0))
            while pend: emit1(pend.pop(0))
            for i in range(4): free.append((frag[('A', k, i)] - POOL)//4)
            for i in range(5): free.append((frag[('B', k, i)] - POOL)//4)
            if k == GK - 2 or (k == GO - 2 and GO < NS): e(nxtflag); e.sprobe(SFH, SPD)
            elif k == NS - 1 and GO >= NS: e(nxtflag)
            elif YLD and k + 1 < GO - 1 and k + 1 != GK: e(f"ds_read_b32 v{VP}, v{VY}")
        assert not order
        pst(38)
        e.lwait(12, 174, 175)
        waitvm(lambda t: t in (('g',), ('L',)))
        bs = [free.pop(0) for _ in range(3)]; br = [POOL + 4*x for x in bs]
        e(f"v_lshrrev_b32 v{VGO}, 4, v0\nv_mul_u32_u24 v{VGO}, 40, v{VGO}\nv_add_u32 v{VGO}, {B2_LDS}, v{VGO}")
        for i in range(5): e(f"ds_read_b64 {vr(br[i >> 1] + 2*(i & 1), 2)}, v{VGO} offset:{8*i}")
        e("s_waitcnt lgkmcnt(0)")
        for u in range(5):
            for h_ in range(2):
                x = br[u >> 1] + 2*(u & 1) + h_; a = acc(u, 0) + 2*h_
                e(f"v_lshlrev_b32 v174, 16, v{x}\nv_and_b32 v175, 0xffff0000, v{x}\nv_pk_add_f32 {vr(a,2)}, {vr(a,2)}, v[174:175]")
        free.extend(bs)
        if GO >= NS: e.sprobe(SFH, SPD)
        while len(free) > (0 if GO < NS else 20): b_next()
        for t in range(4): e(f"v_sub_f32 v{VGS[t]}, 1.0, v{VGS[t]}")
        for t in (3, 2, 1, 0):
            for u in range(5):
                for r in (0, 2): e(f"v_pk_mul_f32 {vr(acc(u,t)+r,2)}, {vr(acc(u,t)+r,2)}, {vr(VGS[t],2)} op_sel_hi:[1,0]")
        RA = [2, 168, 170, 172]
        for t in range(4): e(f"s_xor_b32 s76, s{S_WV}, {t}\ns_mul_i32 s77, s76, 15360\ns_cmp_eq_u32 s76, 3\ns_cmov_b32 s77, {EXCH_H3}\nv_add_u32 v{RA[t]}, s77, v{VL16}")
        if opt.get('opf'):
            emit1((('opf',), f"buffer_load_dword v{VP}, v{VOUT}, {sr(SRD_T)}, s42 offen"))
        if GO >= NS:
            o_gate()
            for _ in range(opt.get('a0', 12)): emit1(pend.pop(0))
        pst(39)
        wq = []
        FAST = opt.get('fastred', True)
        if FAST:
            for t in range(1, 4): e(f"s_xor_b32 s76, s{S_WV}, {t}\ns_lshl_b32 s76, s76, 4\ns_add_u32 s{71+t}, s76, {CNT_LDS + 4*24 + 4*(t-1)}")
            e(f"s_lshl_b32 s76, s{S_WV}, 4\ns_add_u32 s76, s76, {CNT_LDS + 4*24}\nv_mov_b32 v{VGO}, s76\nv_mov_b32 v175, 1")
        def tile_steps(t, fill=None):
            for i in iord(t):
                while any(it[0] == ('Ao', t, i) for it in pend): emit1(pend.pop(0))
                while any(x[:2] == (t, i) for x in ob): b_next()
                waitvm(lambda x: x == ('Ao', t, i) or x == ('Bo',))
                idx = max([n for n, x in enumerate(lg) if x == (t, i)], default=-1)
                if idx >= 0: e(f"s_waitcnt lgkmcnt({len(lg)-1-idx})"); del lg[:idx+1]
                src = t if not SNAKE else (3 if (i >= 2 or t == 3) else 2)
                drop = i < 4 and (not SNAKE or (t == 3 and i < 2))
                for u in range(5):
                    bb = bo[(src, i, u)] if i < 4 else bo[(4, u)]
                    e(f"v_mfma_f32_16x16x32_bf16 {vr(acc(u,t))}, {vr(bb)}, {vr(ao[(t,i)])}, {vr(acc(u,t))}")
                    if drop and u: free.append((bo[(t, i, u-1)] - POOL)//4)
                    if u in (0, 2) and pend: emit1(pend.pop(0))
                    if wq and (u == 3 or (FAST and t == 0 and u == 1)):
                        if len(lg) >= 14: e("s_waitcnt lgkmcnt(9)"); del lg[:len(lg) - 9]
                        x = wq.pop(0); e(x); lg.extend(['w'] * (2 if 'ds_add' in x else 1))
                    if ob and free and len([x for x in lg if x != 'w']) < 12: b_next()
                    if fill: fill(i, u)
                if drop: free.append((bo[(t, i, 4)] - POOL)//4)
                free.append((ao[(t, i)] - POOL)//4)
            if t:
                wq.extend([f"ds_write_b128 v{RA[t]}, {vr(acc(u,t))} offset:{5120*(t-1) + 1024*u}" for u in range(5)])
                if FAST: wq[-1] += f"\ns_mov_b64 exec, 1\nv_mov_b32 v174, s{71+t}\nds_add_u32 v174, v175\ns_mov_b64 exec, -1"
        def early(i, u):
            if i == 4 and u == 0 and FAST: e(f"ds_read_b96 v[12:14], v{VGO}"); lg.append('w')
        for t in (3, 2, 1): tile_steps(t, early if t == 1 else None)
        if not FAST:
            tile_steps(0)
            assert not wq and not oa and not ob
            pst(40)
            e("s_waitcnt lgkmcnt(0)\ns_barrier")
            pst(41)
            R = POOL
            for u in range(5):
                for sw in range(3): e(f"ds_read_b128 {vr(R + 12*u + 4*sw)}, v{RA[0]} offset:{sw*5120 + u*1024}")
            for u in range(5):
                e(f"s_waitcnt lgkmcnt({12 - 3*u})")
                b = R + 12*u; a = acc(u, 0)
                for r in (0, 2): e(f"v_pk_add_f32 {vr(a+r,2)}, {vr(a+r,2)}, {vr(b+r,2)}\nv_pk_add_f32 {vr(b+4+r,2)}, {vr(b+4+r,2)}, {vr(b+8+r,2)}")
                for r in (0, 2): e(f"v_pk_add_f32 {vr(a+r,2)}, {vr(a+r,2)}, {vr(b+4+r,2)}")
        else:
            assert not pend and not ob and not oa
            sl = [free.pop(0) for _ in range(5)]
            IN = [[acc(u, 3), acc(u, 2), POOL + 4*sl[u]] for u in range(5)]
            rds = [f"ds_read_b128 {vr(IN[u][sw])}, v{RA[0]} offset:{(2-sw)*5120 + u*1024}" for sw in range(3) for u in range(5)]
            Lslow = e.lab("L_rs"); Ljoin = e.lab("L_rj")
            e(f"s_waitcnt lgkmcnt(2)\nv_min3_u32 v{VP}, v12, v13, v14\nv_readfirstlane_b32 s78, v{VP}\ns_cmp_lt_u32 s78, 1\ns_cbranch_scc1 {Lslow}"); assert 'ds_add' in "".join(e.L[-12:]); del lg[:-2]
            st = (list(wq), list(vm), list(free))
            q = list(rds); adds = []
            for u in range(5):
                adds += [f"v_add_f32 v{IN[u][0]+r}, v{IN[u][0]+r}, v{IN[u][1]+r}" for r in range(4)]
            for u in range(5):
                adds += [f"v_add_f32 v{IN[u][0]+r}, v{IN[u][0]+r}, v{IN[u][2]+r}" for r in range(4)]
            state = {'n': 0}
            def fill(i, u):
                state['n'] += 1
                if q:
                    for _ in range(2):
                        if q:
                            if len(lg) >= 14: e("s_waitcnt lgkmcnt(9)"); del lg[:len(lg) - 9]
                            e(q.pop(0)); lg.append('r')
                elif state['n'] >= 12:
                    if 'r' in lg or lg: e("s_waitcnt lgkmcnt(0)"); lg.clear()
                    for _ in range(3):
                        if adds: e(adds.pop(0))
            tile_steps(0, fill)
            assert not wq
            for x in adds: e(x)
            e(f"s_branch {Ljoin}\n{Lslow}:")
            wq[:], vm[:], free[:] = st; lg.clear()
            tile_steps(0)
            pst(40)
            for sw in range(3):
                L = e.lab("L_rw")
                e(f"s_mov_b32 s79, 0\n{L}:\nds_read_b32 v{VP}, v{VGO} offset:{4*(2-sw)}\ns_waitcnt lgkmcnt(0)\nv_readfirstlane_b32 s78, v{VP}\ns_add_u32 s79, s79, 1\ns_cmp_ge_u32 s79, 0x1000000\ns_cbranch_scc1 L_end\ns_cmp_lt_u32 s78, 1\ns_cbranch_scc1 {L}")
                if sw == 2: pst(41)
                for x in rds[5*sw:5*sw+5]: e(x)
                if sw == 2:
                    for u in range(5):
                        for r in (0, 2): e(f"v_pk_add_f32 {vr(IN[u][0]+r,2)}, {vr(IN[u][0]+r,2)}, {vr(IN[u][1]+r,2)}")
            for u in range(5):
                e(f"s_waitcnt lgkmcnt({4 - u})")
                for r in (0, 2): e(f"v_pk_add_f32 {vr(IN[u][0]+r,2)}, {vr(IN[u][0]+r,2)}, {vr(IN[u][2]+r,2)}")
            e(f"{Ljoin}:\ns_nop 7")
            for u in range(5):
                for r in (0, 2): e(f"v_pk_add_f32 {vr(acc(u,0)+r,2)}, {vr(acc(u,0)+r,2)}, {vr(IN[u][0]+r,2)}")
        pst(42)
        for u in range(5):
            a = acc(u, 0)
            e(f"v_cvt_pk_bf16_f32 v{100+2*u}, v{a}, v{a+1}\nv_cvt_pk_bf16_f32 v{101+2*u}, v{a+2}, v{a+3}")
        fl = opt.get('outfl', '')
        e(f"buffer_store_dwordx4 v[100:103], v{VOUT}, {sr(SRD_T)}, s42 offen {fl}\nbuffer_store_dwordx4 v[104:107], v{VOUT}, {sr(SRD_T)}, s42 offen offset:16 {fl}\nbuffer_store_dwordx2 v[108:109], v{VOUT}, {sr(SRD_T)}, s42 offen offset:32 {fl}")
        pst(43)
        if opt.get('steps'):
            e("s_waitcnt vmcnt(0)"); pst(44)
            e(f"s_lshl_b32 s70, s2, 2\ns_add_u32 s70, s70, s{S_WV}\ns_lshl_b32 s70, s70, 8\ns_add_u32 s70, s70, 0xF00000\nv_lshlrev_b32 v2, 2, v0\nbuffer_store_dword v9, v2, {sr(SRD_WS)}, s70 offen\ns_waitcnt vmcnt(0)")
        e.stamps_out()
        e("s_endpgm")
    S.run = run
    return S

def c_first(e):
    if e.opt.get('cpf', True) and e.opt.get('cpc', True):
        e(f"s_getpc_b64 s[76:77]\nL_pc:\ns_sub_u32 s76, s76, L_pc-{NAME}\ns_subb_u32 s77, s77, 0")
        e(f"s_lshl_b32 s78, s71, 2\ns_add_u32 s78, s78, s{S_WV}\ns_lshl_b32 s78, s78, 9\nv_and_b32 v6, 3, v0\nv_lshl_add_u32 v6, v6, 7, s78")
        e(f"s_mov_b32 s78, L_end-{NAME}\nv_min_u32 v6, s78, v6\ns_mov_b64 exec, 15\nglobal_load_dword v187, v6, s[76:77]\ns_mov_b64 exec, -1")
    x_setup(e, [128, 129])
    e(f"s_lshl_b32 s78, s{S_J}, 7\ns_mul_i32 s77, s{S_J}, 320\ns_add_u32 s77, s77, 1024\ns_cmp_eq_u32 s{S_ISQ}, 1\ns_cselect_b32 s78, s77, s78\nv_lshlrev_b32 v132, 4, v0\ns_mov_b32 m0, {B1_LDS}")
    e("s_waitcnt lgkmcnt(0)")
    e.srd(SRD_T, S_B1, 3456); e.srd(SRD_X, S_X, 2048*1280)
    e(f"s_mov_b64 exec, 0xfffff\nbuffer_load_dwordx4 v132, {sr(SRD_T)}, s78 offen lds\ns_mov_b64 exec, -1")
    for t, x in dma_x_ops([128, 129], 0, 0) + dma_x_ops([128, 129], 0, 1): e(x)
    e.fstamp(8); e.fstamp(6)

def c_wave(e, D):
    XREG = 224; RING = 192; VXA = [246, 247]; AT = [240, 241]
    VZ, VL16 = 242, 243
    if not e.opt.get('c0', True): c_first(e)
    e("v_lshrrev_b32 v1, 4, v0\nv_bfe_u32 v2, v0, 2, 2\nv_and_b32 v3, 3, v0")
    e("v_and_b32 v5, 1, v1\nv_lshl_add_u32 v4, v5, 2, v2\nv_lshrrev_b32 v6, 1, v1\nv_lshlrev_b32 v6, 13, v6")
    e(f"s_lshl_b32 s76, s{S_WV}, 5\nv_and_b32 v7, 15, v0\nv_add_u32 v7, s76, v7")
    e(f"v_lshrrev_b32 v128, 1, v7\nv_xor_b32 v128, v128, v1\nv_and_b32 v128, 7, v128\nv_lshlrev_b32 v128, 4, v128\nv_lshl_add_u32 v128, v7, 7, v128")
    e(f"v_add_u32 v{VXA[0]}, {XBASE}, v128\nv_xor_b32 v{VXA[1]}, 64, v{VXA[0]}")
    e(f"v_mul_u32_u24 v128, 160, v4\nv_mul_u32_u24 v129, 40, v3\nv_add3_u32 v{AT[0]}, v128, v129, v6\nv_add_u32 v{AT[1]}, {3*WSLOT}, v{AT[0]}")
    e(f"v_mov_b32 v{VZ}, 0\nv_lshlrev_b32 v{VL16}, 4, v0\nv_mov_b32 v128, 0\nv_mov_b32 v129, 0\nv_mov_b32 v130, 0\nv_mov_b32 v131, 0")
    e(f"s_lshl_b32 s76, s{S_WV}, 9\ns_add_u32 s76, s76, {ZERO_LDS}\nv_lshl_add_u32 v132, v0, 3, s76\nds_write_b64 v132, v[128:129]")
    e(f"v_lshlrev_b32 v132, 2, v0\nv_add_u32 v132, {CNT_LDS}, v132\nds_write_b32 v132, v128")
    VPH = 244
    e(f"v_mul_u32_u24 v132, 800, v3\nv_mul_u32_u24 v133, 40, v2\nv_add3_u32 v132, v132, v133, s76\nv_cmp_eq_u32 vcc, v1, v3\ns_add_u32 s77, s76, {-WPHI_LDS & 0xffffffff}")
    e(f"v_subrev_u32 v132, s77, v132\nv_mov_b32 v133, {ZERO_LDS}\nv_cndmask_b32 v{VPH}, v133, v132, vcc")
    e(f"s_mov_b32 s{S_C2}, {f2u(GC2)}\ns_mov_b32 s{S_C2+1}, {f2u(GC2)}\ns_mov_b32 s{S_L}, {f2u(LOG2E)}\ns_mov_b32 s{S_L+1}, {f2u(LOG2E)}")
    e("s_waitcnt lgkmcnt(0)")
    e.srd(SRD_WS, S_WS, WS_SIZE)
    S_HO, S_HFL, S_KFL = 12, 72, 74
    e(f"s_lshl_b32 s76, s{S_RB}, 1\ns_lshr_b32 s77, s{S_WV}, 1\ns_add_u32 s15, s76, s77")
    e(f"s_lshl_b32 s76, s{S_RB}, 13\ns_lshr_b32 s77, s{S_J}, 1\ns_lshl_b32 s77, s77, 7\ns_add_u32 s76, s76, s77\ns_add_u32 s76, s76, {WS_FL + FL_H*128}"); e.wsptr(S_HFL, "s76")
    e(f"s_lshl_b32 s76, s{S_J}, 11\ns_add_u32 s76, s76, {WS_FL + FL_KV*128}"); e.wsptr(S_KFL, "s76")
    S_GO = 3
    e(f"s_lshl_b32 s76, s{S_J}, 13\ns_lshl_b32 s77, s{S_RB}, 9\ns_add_u32 s76, s76, s77\ns_lshl_b32 s77, s{S_WV}, 7\ns_add_u32 s76, s76, s77\ns_add_u32 s{S_GO}, s76, {WS_G}")
    def after_bar0(): e.stamp(2)
    def bias_init(nu, hacc, zero_lo, zero_hi):
        e.fstamp(7)
        for i in list(range(*zero_lo)) + list(range(*zero_hi)): e(f"v_mov_b32 v{i}, 0")
        e(f"v_lshlrev_b32 v156, 3, v1\nv_add_u32 v156, {B1_LDS}, v156\ns_waitcnt vmcnt(4)")
        for t in range(nu): e(f"ds_read_b64 {vr(136+2*t,2)}, v156 offset:{32*t}")
        e("s_waitcnt lgkmcnt(0)")
        for t in range(nu):
            for m in range(2):
                a = hacc + 8*t + 4*m
                e(f"v_lshlrev_b32 v{a}, 16, v{136+2*t}\nv_and_b32 v{a+1}, 0xffff0000, v{136+2*t}\nv_lshlrev_b32 v{a+2}, 16, v{137+2*t}\nv_and_b32 v{a+3}, 0xffff0000, v{137+2*t}")
        e("s_waitcnt vmcnt(0)")
        e.stamp(1)
    C1 = 128; T = 130; PK = 140
    def gelu_steps(hacc, nsteps, PK, VL16, skip_from=None, mid=None, defer=None):
        e(f"v_mov_b32 v{C1}, {f2u(GC1)}\nv_mov_b32 v{C1+1}, {f2u(GC1)}")
        Ls = e.lab("L_hskip")
        for i in range(nsteps):
            if i == skip_from: e(f"s_cmp_eq_u32 s{S_J}, 7\ns_cbranch_scc1 {Ls}")
            for m in range(2):
                d = PK + 4*((2*i + m) % 4)
                a0 = hacc + 16*i + 4*m; a1 = a0 + 8
                gelu_pack(e, [(a0, d), (a0+2, d+1), (a1, d+2), (a1+2, d+3)], T, C1)
                st = f"buffer_store_dwordx4 {vr(d)}, v{VL16}, {sr(SRD_WS)}, s{S_HO} offen offset:{1024*m} sc1"
                if defer is None: e(st)
                else: defer.append(st)
            if defer is None: e(f"s_add_u32 s{S_HO}, s{S_HO}, 4096")
            if mid and i == 0: mid()
        e(f"{Ls}:")
    WF_ = 140
    QP = 192
    PHR = [f"ds_read_b64_tr_b16 {vr(WF_ + 10*tau + 2*t, 2)}, v{VPH} offset:{160*t + 8*tau}" for tau in range(5) for t in range(5)]
    def phi_mfma(P, m):
        out = []
        for ks in range(3):
            for tau in range(5):
                d = vr(P + 20*m + 4*tau); c = "0" if ks == 0 else d
                if ks < 2: out.append(f"v_mfma_f32_16x16x32_bf16 {d}, {vr(WF_+10*tau+4*ks)}, {vr(QP+10*m+4*ks)}, {c}")
                else: out.append(f"v_mfma_f32_16x16x16_bf16 {d}, {vr(WF_+10*tau+8,2)}, {vr(QP+10*m+8,2)}, {c}")
        return out
    def phi_cvt():
        for m in range(2):
            for t in range(5):
                a = 8 + 8*t + 4*m
                e(f"v_cvt_pk_bf16_f32 v{QP+10*m+2*t}, v{a}, v{a+1}\nv_cvt_pk_bf16_f32 v{QP+10*m+2*t+1}, v{a+2}, v{a+3}")
        e("s_waitcnt lgkmcnt(0)")
    def phi_stage(P, fill=()):
        for m in range(2):
            for t in range(5):
                a = 8 + 8*t + 4*m
                e(f"v_cvt_pk_bf16_f32 v{QP+10*m+2*t}, v{a}, v{a+1}\nv_cvt_pk_bf16_f32 v{QP+10*m+2*t+1}, v{a+2}, v{a+3}")
        e("s_waitcnt lgkmcnt(0)")
        mf = []
        for ks in range(3):
            for m in range(2):
                for tau in range(5):
                    d = vr(P + 20*m + 4*tau); c = "0" if ks == 0 else d
                    if ks < 2: mf.append(f"v_mfma_f32_16x16x32_bf16 {d}, {vr(WF_+10*tau+4*ks)}, {vr(QP+10*m+4*ks)}, {c}")
                    else: mf.append(f"v_mfma_f32_16x16x16_bf16 {d}, {vr(WF_+10*tau+8,2)}, {vr(QP+10*m+8,2)}, {c}")
        weave(e, mf, fill)
    e(f"s_cmp_eq_u32 s{S_ISQ}, 1\ns_cbranch_scc1 L_CQ")
    AH = [[248, 249], [250, 251], [252, 253], [254, 255]]; AG = [190, 191]
    e("v_lshrrev_b32 v128, 1, v4\nv_lshlrev_b32 v129, 7, v4\nv_lshl_add_u32 v129, v3, 3, v129\nv_add_u32 v129, v129, v6")
    for t in range(4): e(f"v_xor_b32 v130, {t}, v128\nv_lshl_add_u32 v{AH[t][0]}, v130, 5, v129\nv_add_u32 v{AH[t][1]}, {3*WSLOT}, v{AH[t][0]}")
    e(f"v_lshlrev_b32 v{AG[0]}, 4, v1\nv_add_u32 v{AG[1]}, {3*WSLOT}, v{AG[0]}")
    e(f"s_mul_i32 s76, s15, 54\ns_lshl_b32 s77, s{S_J}, 1\ns_add_u32 s76, s76, s77\ns_lshl_b32 s76, s76, 12\ns_and_b32 s77, s{S_WV}, 1\ns_lshl_b32 s77, s77, 11\ns_add_u32 s{S_HO}, s76, s77")
    AR = 128; AA = [133, 134, 135]; VSL, VTB = 6, 7
    e(f"v_lshl_add_u32 v8, v1, 2, v2\nv_and_b32 v9, 7, v8\nv_lshlrev_b32 v8, 7, v8\ns_lshl_b32 s76, s{S_WV}, 14\ns_cmp_eq_u32 s{S_WV}, 3\ns_cmov_b32 s76, {EXCH_H3}\nv_and_b32 v10, 1, v3\nv_lshl_add_u32 v8, v10, 3, v8\nv_add_u32 v8, s76, v8\nv_lshrrev_b32 v10, 1, v3")
    for i, c0 in enumerate([0, 2, 4, 5]): e(f"v_add_u32 v{AR+i}, {c0}, v10\nv_xor_b32 v{AR+i}, v{AR+i}, v9\nv_lshl_add_u32 v{AR+i}, v{AR+i}, 4, v8")
    e(f"v_xor_b32 v{AR+4}, 7, v9\nv_lshl_add_u32 v{AR+4}, v{AR+4}, 4, v8")
    e(f"v_mov_b32 v10, {EXCH_H3 // 16384}\nv_and_b32 v8, 15, v0\ns_lshl_b32 s76, s{S_WV}, 5\nv_add_u32 v8, s76, v8\nv_cmp_eq_u32 vcc, 3, v1\nv_lshlrev_b32 v8, 7, v8\nv_and_b32 v11, 7, v0\nv_cndmask_b32 v9, v1, v10, vcc\nv_lshl_add_u32 v8, v11, 4, v8\nv_lshl_add_u32 v245, v9, 14, v8")
    e(f"v_mov_b32 v13, {OOB}\nv_and_b32 v14, 15, v0\nv_cmp_gt_u32 vcc, 32, v0\nv_cndmask_b32 v{AA[0]}, v13, v{VL16}, vcc\nv_cmp_gt_u32 vcc, 5, v14\nv_cndmask_b32 v{AA[1]}, v13, v{VL16}, vcc\nv_cndmask_b32 v{AA[2]}, v13, v{AA[0]}, vcc")
    e(f"s_lshl_b32 s76, s{S_J}, 6\ns_add_u32 s76, s76, s{S_WV}\ns_mul_i32 s76, s76, 6144\ns_add_u32 s4, s76, {WS_KP}\ns_mul_i32 s76, s{S_RB}, 24576\ns_add_u32 s5, s4, s76\ns_add_u32 s6, s5, 4096")
    e(f"s_mul_i32 s76, s{S_RB}, 14\nv_add_u32 v8, s76, v14\nv_mul_u32_u24 v9, 3121, v8\nv_lshrrev_b32 v9, 16, v9\nv_mul_u32_u24 v10, 21, v9\nv_sub_u32 v10, v8, v10")
    e(f"v_lshrrev_b32 v11, 2, v9\nv_lshrrev_b32 v12, 4, v10\nv_lshl_add_u32 v11, v11, 1, v12\nv_and_b32 v12, 3, v9\nv_and_b32 v15, 15, v10\nv_lshl_add_u32 v12, v12, 4, v15\nv_lshlrev_b32 v12, 4, v12\nv_lshl_add_u32 v11, v11, 10, v12")
    e(f"v_mul_u32_u24 v12, 24576, v1\nv_add_u32 v11, v11, v12\nv_cmp_gt_u32 s[76:77], 14, v14\nv_cmp_gt_u32 vcc, 210, v8\ns_and_b64 vcc, vcc, s[76:77]\nv_cndmask_b32 v{VSL}, v13, v11, vcc")
    e(f"v_mul_u32_u24 v12, 24, v9\nv_add_lshl_u32 v12, v12, v10, 3\ns_and_b64 vcc, vcc, 0xffff\nv_cndmask_b32 v{VTB}, v13, v12, vcc")
    e(f"s_lshl_b32 s76, s{S_J}, 2\ns_add_u32 s76, s76, s{S_WV}\ns_lshl_b32 s76, s76, 11\ns_add_u32 s7, s76, {WS_KV}")
    e(f"s_add_u32 s68, s{S_KFL}, {(FL_KP - FL_KV)*128}\ns_addc_u32 s69, s{S_KFL+1}, 0")
    bias_init(4, 88, (8, 88), (120, 128))
    c_main_loop(e, [Unit(AT, 8*t, 8 + 8*t) for t in range(5)] + [Unit(AT, 1280 + 8*t, 48 + 8*t) for t in range(5)]
                + [Unit(AH[t], 3072, 88 + 8*t) for t in range(4)] + [Unit(AG, 2560, 120, gate=True)], XREG, VXA, RING, D, after_bar0, PHR)
    e.stamp(3)
    e(f"s_setprio {e.opt.get('cprio', 2)}")
    e(f"v_mov_b32 v4, 0\nv_mov_b32 v5, v{VL16}")
    VZ0, VL0 = VZ, VL16; VZ, VL16 = 4, 5
    e.busy(1, 136, 137, 'k'); e.lpost(8, 136, 137)
    P = 212; RV = [8, 20]; RP = [140, 160]; EE = 192; XX = 40; AW = 32
    F = [f"v_xor_b32 v{AW+i}, {16*i}, v245" for i in range(8)]
    for m in range(2):
        for t in range(5):
            a = 48 + 8*t + 4*m
            F += [f"v_cvt_pk_bf16_f32 v{RV[m]+2*t}, v{a}, v{a+1}", f"v_cvt_pk_bf16_f32 v{RV[m]+1+2*t}, v{a+2}, v{a+3}"]
        F += [f"v_mov_b32 v{RV[m]+10}, 0x3f80", f"v_mov_b32 v{RV[m]+11}, 0"]
    phi_cvt()
    weave(e, phi_mfma(P, 0), F)
    e.stamp(4)
    EE0 = 48; RP0 = 68
    softmax2(e, P, EE0, RP0, XX)
    G_ = [f"v_mul_f32 v{40+m}, {f2u(-LOG2E)}, v{120+4*m}" for m in range(2)] + [f"v_exp_f32 v{40+m}, v{40+m}" for m in range(2)] + [f"v_add_f32 v{40+m}, 1.0, v{40+m}" for m in range(2)] + [f"v_rcp_f32 v{40+m}, v{40+m}" for m in range(2)] + ["v_lshlrev_b32 v42, 2, v0"]
    W_ = [f"ds_write_b128 v{AW+i}, {vr(RP0+4*i)}" for i in range(5)] + [f"ds_write_b128 v{AW+5+i}, {vr(RV[m]+4*i)} offset:{2048*m}" for m in range(2) for i in range(3)]
    for n_, x in enumerate(phi_mfma(P, 1)):
        e(x)
        if W_: e(W_.pop(0))
        if G_: e(G_.pop(0))
    e(f"s_mov_b64 exec, 0xffff")
    for m in range(2): e(f"buffer_store_dword v{40+m}, v42, {sr(SRD_WS)}, s{S_GO} offen offset:{64*m} sc1")
    e("s_mov_b64 exec, -1")
    softmax2(e, P + 20, EE, RP[1], XX, wr=lambda i: e(f"ds_write_b128 v{AW+i}, {vr(RP[1]+4*i)} offset:2048"))
    e.stamp(5)
    e.busy(1, 136, 137, 'a')
    e.lsync(1, 136, 137)
    e.stamp(6)
    FR = lambda st: (48 + 20*st) if st < 2 else (140 + 20*(st - 2))
    KD = 212
    rd = [f"ds_read_b64_tr_b16 {vr(FR(st) + 4*i + 2*h, 2)}, v{AR+i} offset:{4096*st + 2048*h}" for st in range(4) for i in range(5) for h in range(2)]
    for x in rd[:14]: e(x)
    nxt = 14
    for st in range(4):
        need = 10*(st + 1)
        while nxt < need: e(rd[nxt]); nxt += 1
        e(f"s_waitcnt lgkmcnt({nxt - need})")
        for U in range(2):
            for Tt in range(3):
                d = vr(KD + 12*U + 4*Tt)
                e(f"v_mfma_f32_16x16x32_bf16 {d}, {vr(FR(st)+4*Tt)}, {vr(FR(st)+12+4*U)}, {'0' if st == 0 else d}")
                for _ in range(2):
                    if nxt < min(40, need + 14): e(rd[nxt]); nxt += 1
    e.lpost(12, 136, 137)
    for Tt in range(3):
        for U in range(2):
            av = [[VL16, AA[1]], [VL16, AA[1]], [AA[0], AA[2]]][Tt][U]; ti = 2*Tt + U
            e(f"buffer_store_dwordx4 {vr(KD + 12*U + 4*Tt)}, v{av}, {sr(SRD_WS)}, s{5 if ti < 4 else 6} offen offset:{1024*(ti % 4)} sc1")
    e.stamp(7)
    def mid(): e.post('p', 2, 68, 0, 128, "s_waitcnt vmcnt(2)", lambda: (e.f2(4), e.busy(-1, 136, 137, 'a'), e.busy(-1, 136, 137, 'k')))
    G1 = e.opt.get('g1', 0)
    gelu_steps(88, 1 if G1 else 2, 192, VL16, mid=mid)
    e(f"s_lshl_b32 s76, s{S_RB}, 7\ns_add_u32 s68, s68, s76\ns_addc_u32 s69, s69, 0")
    e.busy(1, 136, 137, 'b')
    if e.opt.get('lead', False): e.lpoll(19, 68, 34, 16, 136, 137)
    else: e.spoll(68, [34], sleep=e.opt.get('slk', 0), least=16)
    e.busy(1, 136, 137, 'B')
    e.stamp(8)
    SL = 16
    for i in range(4): e(f"buffer_load_dwordx4 {vr(SL + 4*i)}, v{VSL}, {sr(SRD_WS)}, s4 offen sc1\ns_add_u32 s4, s4, {4*24576}")
    late = []
    if G1:
        gelu_steps(104, 1, 200, VL16, defer=late if G1 == 2 else None)
        e(f"s_waitcnt vmcnt({0 if G1 == 2 else 2})")
    else:
        e.post('x', 0, S_HFL, 1, 512, "s_waitcnt vmcnt(4)")
        e("s_waitcnt vmcnt(0)")
    e.f2(5)
    for r in (0, 2): e(f"v_pk_add_f32 {vr(SL+r,2)}, {vr(SL+r,2)}, {vr(SL+4+r,2)}\nv_pk_add_f32 {vr(SL+8+r,2)}, {vr(SL+8+r,2)}, {vr(SL+12+r,2)}")
    for r in (0, 2): e(f"v_pk_add_f32 {vr(SL+r,2)}, {vr(SL+r,2)}, {vr(SL+8+r,2)}")
    for op in ("v_permlane32_swap_b32", "v_permlane16_swap_b32"):
        for r in range(4): e(f"v_mov_b32 v{SL+4+r}, v{SL+r}")
        for r in range(4): e(f"{op} v{SL+4+r}, v{SL+r}")
        for r in (0, 2): e(f"v_pk_add_f32 {vr(SL+r,2)}, {vr(SL+r,2)}, {vr(SL+4+r,2)}")
    e(f"v_cvt_pk_bf16_f32 v14, v{SL}, v{SL+1}\nv_cvt_pk_bf16_f32 v15, v{SL+2}, v{SL+3}\nbuffer_store_dwordx2 v[14:15], v{VTB}, {sr(SRD_WS)}, s7 offen sc1")
    for x in late: e(x)
    e.post('k', 4, S_KFL, 0, 128, f"s_waitcnt vmcnt({len(late)})", lambda: (e.f2(6), e.busy(-1, 136, 137, 'b'), e.busy(-1, 136, 137, 'B')))
    if G1:
        e(f"s_mul_i32 s70, s{S_WV}, 2048\ns_add_u32 s70, s70, s{S_HFL}\ns_addc_u32 s71, s{S_HFL+1}, 0\n" + "\n".join(f"s_mov_b32 s{24+i}, 1" for i in range(4)))
        if late: e("s_waitcnt vmcnt(0)"); e.lsync(0, 136, 137)
        for i in range(4): e(f"s_atomic_add s{24+i}, s[70:71], {512*i + 4} glc")
    e.stamps_out()
    e("s_endpgm")
    VZ, VL16 = VZ0, VL0
    e("L_CQ:")
    AE, AO = [248, 249], [250, 251]
    e(f"v_mul_u32_u24 v128, 320, v4\nv_lshl_add_u32 v128, v3, 3, v128\nv_add_u32 v128, v128, v6\nv_lshlrev_b32 v129, 5, v5")
    e(f"v_add_u32 v{AE[0]}, v128, v129\nv_sub_u32 v{AO[0]}, v128, v129\nv_add_u32 v{AO[0]}, 32, v{AO[0]}\nv_add_u32 v{AE[1]}, {3*WSLOT}, v{AE[0]}\nv_add_u32 v{AO[1]}, {3*WSLOT}, v{AO[0]}")
    e(f"s_mul_i32 s76, s15, 54\ns_mul_i32 s77, s{S_J}, 5\ns_add_u32 s76, s76, s77\ns_add_u32 s76, s76, 16\ns_lshl_b32 s76, s76, 12\ns_and_b32 s77, s{S_WV}, 1\ns_lshl_b32 s77, s77, 11\ns_add_u32 s{S_HO}, s76, s77")
    bias_init(10, 48, (8, 48), (0, 0))
    c_main_loop(e, [Unit(AT, 8*t, 8 + 8*t) for t in range(5)] + [Unit(AE if t % 2 == 0 else AO, 1280 + 32*(t - t % 2), 48 + 8*t) for t in range(10)],
                XREG, VXA, RING, D, after_bar0, PHR)
    e.stamp(3)
    e(f"s_setprio {e.opt.get('cprio', 2)}")
    e.busy(1, 136, 137, 'd'); e.lpost(8, 136, 137); e.lpost(12, 136, 137)
    gelu_steps(48, 5, 212, VL16, skip_from=3)
    e.busy(-1, 136, 137, 'd')
    e.stamp(4)
    P = 88
    F = []; f = F.append
    f(f"v_mul_u32_u24 v68, {KVS}, v1\nv_add_u32 v68, {KVT}, v68\nv_cmp_eq_u32 vcc, v1, v2\nv_lshl_add_u32 v69, v3, 3, v68\nv_mov_b32 v70, {ZERO_LDS}\nv_cndmask_b32 v240, v70, v69, vcc\nv_cndmask_b32 v239, v70, v68, vcc")
    f(f"v_and_b32 v241, 15, v0\nv_lshlrev_b32 v241, 2, v241")
    phi_stage(P, F)
    PHI = [192, 212]
    hq = e.opt.get('hq', 0)
    hsig = e.signal(S_HFL, 0, 512)
    def harr(): e.post('h', 0, S_HFL, 0, 512, "s_waitcnt vmcnt(0)"); e.stamp(5)
    for m in range(2):
        if m == hq: harr()
        softmax2(e, P + 20*m, 48, PHI[m], 128)
    e(f"s_lshl_b32 s76, s{S_J}, 2\ns_add_u32 s76, s76, s{S_WV}\ns_lshl_b32 s76, s76, 11\ns_add_u32 s4, s76, {WS_KV}\ns_mul_i32 s76, s{S_WV}, {KVS}\ns_add_u32 m0, s76, {KVT}")
    e(f"s_lshl_b32 s76, s15, 3\ns_add_u32 s76, s76, s{S_J}\ns_mul_i32 s76, s76, 10240\ns_add_u32 s76, s76, {WS_OF}\ns_and_b32 s77, s{S_WV}, 1\ns_lshl_b32 s5, s77, 11\ns_add_u32 s5, s5, s76\ns_lshl_b32 s6, s77, 10\ns_add_u32 s6, s6, s76\ns_add_u32 s6, s6, 8192\ns_add_u32 s7, s5, 4096")
    e.stamp(6)
    e(f"s_lshl_b32 s76, s{S_RB}, 7\ns_add_u32 s{S_KFL}, s{S_KFL}, s76\ns_addc_u32 s{S_KFL+1}, s{S_KFL+1}, 0")
    if e.opt.get('lead', False): e.lpoll(19, S_KFL, 34, 16, 136, 137)
    else: e.spoll(S_KFL, [34], sleep=e.opt.get('slk', 0), least=16)
    e.stamp(7)
    if e.opt.get('oprio', 3): e(f"s_setprio {e.opt.get('oprio', 3)}")
    for t in range(2): e(f"buffer_load_dwordx4 v{VL16}, {sr(SRD_WS)}, s4 offen offset:{1024*t} sc1 lds")
    e.busy(1, 136, 137, 'c')
    for m in range(2): e(f"buffer_load_dword v{62+m}, v241, {sr(SRD_WS)}, s{S_GO} offen offset:{64*m} sc1")
    e("s_waitcnt vmcnt(2)")
    e.f2(4)
    e.lsync(1, 136, 137)
    e.f2(5)
    AF = 64
    seq = [5, 0, 1, 2, 3, 4]
    rd = [f"ds_read_b64 {vr(AF + 20*n_ + 4*kp + 2*h, 2)}, v{240 if u < 5 else 239} offset:{8*(48*kp + 4*u + 24*h)}" for n_, u in enumerate(seq) for kp in range(5) for h in range(2)]
    for x in rd[:14]: e(x)
    nxt = 14
    OD = 8
    for n_, u in enumerate(seq):
        while nxt < 10*(n_+1): e(rd[nxt]); nxt += 1
        e(f"s_waitcnt lgkmcnt({nxt - 10*(n_+1)})")
        F = []
        while nxt < min(60, 10*(n_+1) + 14): F.append(rd[nxt]); nxt += 1
        if n_ == 2:
            F.append("s_waitcnt vmcnt(0)")
            F += [f"v_add_f32 v{56+2*m}, {f2u(1e-6)}, v{OD+40+4*m}" for m in range(2)] + [f"v_rcp_f32 v{56+2*m}, v{56+2*m}" for m in range(2)] + [f"v_mul_f32 v{56+2*m}, v{56+2*m}, v{62+m}" for m in range(2)]
        if n_ >= 4:
            for uu in ([0, 1] if n_ == 4 else [2]):
                for m in range(2):
                    a = OD + 8*uu + 4*m
                    F += [f"v_mul_f32 v{a+r}, v{56+2*m}, v{a+r}" for r in range(4)]
                    F += [f"v_cvt_pk_bf16_f32 v{232+8*0 + 0}, v{a}, v{a+1}".replace(f"v{232}", f"v{[184,188][m] + 2*uu if uu < 2 else [244,248][m]}"),
                          f"v_cvt_pk_bf16_f32 v{([184,188][m] + 2*uu if uu < 2 else [244,248][m]) + 1}, v{a+2}, v{a+3}"]
        weave(e, [f"v_mfma_f32_16x16x32_bf16 {vr(OD + 8*u + 4*m)}, {vr(AF + 20*n_ + 4*kp)}, {vr(PHI[m] + 4*kp)}, {'0' if kp == 0 else vr(OD + 8*u + 4*m)}" for kp in range(5) for m in range(2)], F)
        if n_ == 4:
            for m in range(2): e(f"buffer_store_dwordx4 {vr([184,188][m])}, v{VL16}, {sr(SRD_WS)}, s5 offen offset:{1024*m} sc1")
    e.f2(6)
    for uu in (3, 4):
        for m in range(2):
            a = OD + 8*uu + 4*m
            e(f"v_pk_mul_f32 {vr(a,2)}, {vr(a,2)}, {vr(56+2*m,2)} op_sel_hi:[1,0]\nv_pk_mul_f32 {vr(a+2,2)}, {vr(a+2,2)}, {vr(56+2*m,2)} op_sel_hi:[1,0]")
            d = [244, 248][m] + 2 if uu == 3 else 252 + 2*m
            e(f"v_cvt_pk_bf16_f32 v{d}, v{a}, v{a+1}\nv_cvt_pk_bf16_f32 v{d+1}, v{a+2}, v{a+3}")
        if uu == 3:
            for m in range(2): e(f"buffer_store_dwordx4 {vr([244,248][m])}, v{VL16}, {sr(SRD_WS)}, s7 offen offset:{1024*m} sc1")
    e(f"buffer_store_dwordx4 v[252:255], v{VL16}, {sr(SRD_WS)}, s6 offen sc1")
    e.stamp(8)
    e.post('o', 2, S_HFL, 2, 512, "s_waitcnt vmcnt(0)", lambda: e.busy(-1, 136, 137, 'c'))
    e.stamps_out()

HEADER = open("gated_mix__linear_kernel_hedgehog__dense_activation_gelu__prompt.s.ref").read().split("; Override launch")[0] if __name__ == "__main__" else ""
if __name__ == "__main__":
    import ast
    kw = ast.literal_eval(sys.argv[2]) if len(sys.argv) > 2 else {}
    open(sys.argv[1], "w").write(HEADER + gen(**kw))
```

```python
import sys
import hazard

NAME = "gated_mix__linear_kernel_hedgehog__dense_activation_gelu__prompt_kernel"
WSLOT = 16384; NW = 5; XBASE = NW*WSLOT; XSLOT = 16384; NX = 3; NSTEP = 20
SPARE = XBASE + NX*XSLOT
ZERO_LDS = SPARE; CNT_LDS = SPARE + 2048; WPHI_LDS = SPARE + 2304; KVT = WPHI_LDS + 64; KVS = 2080; STG = WPHI_LDS + 8448
EXCH_H3 = XBASE + 2*XSLOT; PARK = 3*WSLOT
B2_LDS = STG + 4*5120
B1_LDS = B2_LDS + 1024
assert B1_LDS + 320 <= 163840
LDS_TOTAL = 163840
WS_HF = 0; WS_OF = 0x700000; WS_WF = 0xA00000; WS_G = 0xD00000; WS_KV = 0xE00000; WS_FL = 0xE20000; WS_KP = 0x1000000
WS_SIZE = 0x1400000; WS_STAMP = 0x2000000
FL_H, FL_KV, FL_KP, FL_W = 0, 1024, 1152, 1280
NINIT = 32
OOB = 0x40000000
S_X, S_WQKV, S_WPHI, S_WO, S_BX, S_W1, S_B1, S_W2 = 16, 18, 20, 22, 24, 26, 28, 30
S_B2, S_GATE, S_OUT, S_DBG, S_WS = 32, 34, 36, 38, 40
SRD_X, SRD_WS, SRD_T, SRD_D = 44, 48, 52, 56
S_RB, S_J, S_ISQ, S_WAVE, S_PH, S_WV, S_R64, S_CB = 60, 61, 62, 63, 64, 65, 66, 67
S_KK, S_XK, S_XOFF, S_M0X, S_M0W = 68, 69, 4, 5, 6
S_C2, S_L = 8, 10
LOG2E = 1.4426950408889634
import struct, math
def f2u(x): return struct.unpack('<I', struct.pack('<f', x))[0]
GC1 = -2.0 * LOG2E * math.sqrt(2.0 / math.pi); GC2 = GC1 * 0.044715

def vr(b, n=4): return f"v[{b}:{b+n-1}]" if n > 1 else f"v{b}"
def sr(b, n=4): return f"s[{b}:{b+n-1}]"

class G:
    def __init__(self, diag=False, **opt):
        self.L = []; self.diag = diag; self.opt = opt; self.nlab = 0
    def __call__(self, s): self.L.append(s)
    def dsbatch(self, lst):
        for i, x in enumerate(lst):
            if i >= 15 and (i - 15) % 5 == 0: self("s_waitcnt lgkmcnt(10)")
            self(x)
    def lab(self, p="L"): self.nlab += 1; return f"{p}_{self.nlab}"
    def srd(self, R, p, size):
        self(f"s_mov_b32 s{R}, s{p}\ns_mov_b32 s{R+1}, s{p+1}\ns_mov_b32 s{R+2}, {size}\ns_mov_b32 s{R+3}, 0x20000")
    def fstamp(self, i):
        if self.opt.get('fine'): self(f"s_memtime s[{80+2*i}:{81+2*i}]")
    def f2(self, i):
        if self.opt.get('fine2'): self(f"s_waitcnt lgkmcnt(0)\ns_memtime s[{80+2*i}:{81+2*i}]\ns_waitcnt lgkmcnt(0)")
    def jitter(self, i):
        j = self.opt.get('jit')
        if not j: return
        L = self.lab("L_j"); D = self.lab("L_jd")
        self(f"s_mul_i32 s98, s2, {2654435761 % 65521 + 2*i}\ns_mul_i32 s99, s{S_WAVE}, {40503 + 7*i}\ns_add_u32 s98, s98, s99\ns_add_u32 s98, s98, {j*977 + i*131}\ns_mul_i32 s98, s98, 0x9e3779b1\ns_lshr_b32 s98, s98, 27")
        self(f"s_cmp_lt_u32 s98, 20\ns_cbranch_scc1 {D}\n{L}:\ns_sleep 6\ns_sub_u32 s98, s98, 1\ns_cmp_ge_u32 s98, 20\ns_cbranch_scc1 {L}\n{D}:")
    def stamp(self, i, m=False):
        if i != 9: self.jitter(i)
        if self.opt.get('fine') and 3 <= i <= 8: return
        if self.opt.get('fine2') and m: return
        if self.diag and (i == 9 or not self.opt.get('lite')): self(f"s_waitcnt lgkmcnt(0)\ns_memtime s[{80+2*i}:{81+2*i}]\ns_waitcnt lgkmcnt(0)")
    def stamps_out(self):
        if not self.diag: return
        e = self
        e(f"s_waitcnt vmcnt(0) lgkmcnt(0)")
        e.stamp(9)
        e("s_memrealtime s[72:73]\ns_waitcnt lgkmcnt(0)")
        e(f"s_mov_b32 s{SRD_T}, s{S_WS}\ns_mov_b32 s{SRD_T+1}, s{S_WS+1}\ns_mov_b32 s{SRD_T+2}, 0x10000000\ns_mov_b32 s{SRD_T+3}, 0x20000")
        e(f"s_lshl_b32 s70, s2, 3\ns_add_u32 s70, s70, s{S_WAVE}\ns_lshl_b32 s70, s70, 6\ns_add_u32 s70, s70, {WS_STAMP}")
        e("s_mov_b64 exec, 1\nv_mov_b32 v1, 0")
        for i in range(10):
            if i: e(f"s_sub_u32 s71, s{80+2*i}, s80")
            else: e("s_mov_b32 s71, s80")
            e(f"v_mov_b32 v2, s71\nbuffer_store_dword v2, v1, {sr(SRD_T)}, s70 offen offset:{4*i}")
        e(f"v_mov_b32 v2, s100\nbuffer_store_dword v2, v1, {sr(SRD_T)}, s70 offen offset:40\nv_mov_b32 v2, s72\nbuffer_store_dword v2, v1, {sr(SRD_T)}, s70 offen offset:44")
        e("s_waitcnt vmcnt(0)")
        if self.opt.get('dbgrt'):
            e("s_memrealtime s[70:71]\ns_waitcnt lgkmcnt(0)")
            e.srd(SRD_T, S_DBG, 256)
            e(f"v_mov_b32 v2, s70\nbuffer_atomic_umax v2, v1, {sr(SRD_T)}, 0 offen offset:4 sc1")
            e(f"s_not_b32 s71, s100\nv_mov_b32 v2, s71\nbuffer_atomic_umax v2, v1, {sr(SRD_T)}, 0 offen offset:8 sc1")
            for i in range(1, 10):
                e(f"s_sub_u32 s71, s{80+2*i}, s80\ns_cmp_gt_u32 s71, 0x1000000\ns_cmov_b32 s71, 0\nv_mov_b32 v2, s71\nbuffer_atomic_umax v2, v1, {sr(SRD_T)}, 0 offen offset:{8+4*i} sc1")
            e(f"v_mov_b32 v2, s100\nbuffer_atomic_umax v2, v1, {sr(SRD_T)}, 0 offen offset:48 sc1")
            e("s_waitcnt vmcnt(0)")
    def wsptr(self, d, soff):
        self(f"s_add_u32 s{d}, s{S_WS}, {soff}\ns_addc_u32 s{d+1}, s{S_WS+1}, 0")
    def sprobe(self, base, dst):
        for i, d in enumerate(dst): self(f"s_load_dword s{d}, s[{base}:{base+1}], {128*i} glc")
    def spoll(self, base, dst, probed=False, sleep=1, least=None):
        e = self; L = e.lab("L_sp"); C = e.lab("L_spc"); D = e.lab("L_spd")
        e("s_mov_b32 s79, 0")
        if probed: e(f"s_branch {C}") if False else None
        def chk():
            e("s_waitcnt lgkmcnt(0)")
            if least is not None: e(f"s_cmp_ge_u32 s{dst[0]}, {least}")
            elif len(dst) == 1: e(f"s_cmp_lg_u32 s{dst[0]}, 0")
            else:
                for d in dst[1:]: e(f"s_and_b32 s{dst[0]}, s{dst[0]}, s{d}")
            e(f"s_cbranch_scc1 {D}")
        if probed: chk()
        e(f"{L}:"); e.sprobe(base, dst); chk()
        e(f"s_add_u32 s79, s79, 1\ns_cmp_ge_u32 s79, 0x200000\ns_cbranch_scc1 L_end")
        if sleep: e(f"s_sleep {sleep}")
        e(f"s_branch {L}\n{D}:")
    def lpoll(self, cnt, base, d, least, va, vt, probed=False, sleep=0, hp=None):
        e = self; F = e.lab("L_lf"); D = e.lab("L_lpd"); S = e.lab("L_lps"); L = e.lab("L_lpl")
        if hp is not None: e(f"s_setprio {hp[0]}")
        e(f"v_mov_b32 v{va}, {CNT_LDS + 4*cnt}\ns_mov_b32 s79, 0")
        if probed: e(f"s_waitcnt lgkmcnt(0)\ns_cmp_ge_u32 s{d}, {least}\ns_cbranch_scc1 {S}")
        e(f"s_cmp_lg_u32 s{S_WV}, 0\ns_cbranch_scc1 {F}\n{L}:\ns_load_dword s{d}, s[{base}:{base+1}], 0 glc\ns_waitcnt lgkmcnt(0)\ns_cmp_ge_u32 s{d}, {least}\ns_cbranch_scc1 {S}")
        e(f"s_add_u32 s79, s79, 1\ns_cmp_ge_u32 s79, 0x200000\ns_cbranch_scc1 L_end\n" + (f"s_sleep {sleep}\n" if sleep else "") + f"s_branch {L}")
        e(f"{F}:\nds_read_b32 v{vt}, v{va}\ns_waitcnt lgkmcnt(0)\nv_readfirstlane_b32 s78, v{vt}\ns_cmp_lg_u32 s78, 0\ns_cbranch_scc1 {D}")
        e(f"s_add_u32 s79, s79, 1\ns_cmp_ge_u32 s79, 0x1000000\ns_cbranch_scc1 L_end\ns_branch {F}")
        e(f"{S}:\nv_mov_b32 v{vt}, 1\nds_write_b32 v{va}, v{vt}\n{D}:")
        if hp is not None: e(f"s_setprio {hp[1]}")
    def arrive(self, cnt, va, vt, then):
        e = self; D = e.lab("L_arr")
        e(f"s_mov_b64 exec, 1\nv_mov_b32 v{va}, {CNT_LDS + 4*cnt}\nv_mov_b32 v{vt}, 1\nds_add_rtn_u32 v{va}, v{va}, v{vt}\ns_waitcnt lgkmcnt(0)")
        e(f"v_readfirstlane_b32 s78, v{va}\ns_mov_b64 exec, -1\ns_cmp_lg_u32 s78, 3\ns_cbranch_scc1 {D}")
        then(D)
        e(f"{D}:")
    def signal(self, base, word=0, stride=128):
        def f(D):
            for i in range(16): self(f"s_atomic_add s{16+i}, s[{base}:{base+1}], {stride*i + 4*word} glc")
        return f
    def arm4(self, base, stride):
        self(f"s_waitcnt lgkmcnt(0)\ns_mul_i32 s20, s{S_WV}, {4*stride}\ns_add_u32 s20, s20, s{base}\ns_addc_u32 s21, s{base+1}, 0\n" + "\n".join(f"s_mov_b32 s{16+i}, 1" for i in range(4)))
    def sig4(self, cnt, va, vt, word, stride):
        self.lsync(cnt, va, vt)
        for i in range(4): self(f"s_atomic_add s{16+i}, s[20:21], {stride*i + 4*word} glc")
    def post(self, site, cnt, base, word, stride, wait, between=None):
        if site in self.opt.get('s4', 'pkho'):
            self.arm4(base, stride); self(wait)
            if between: between()
            self.sig4(cnt, 136, 137, word, stride)
        else:
            self.arm(); self(wait)
            if between: between()
            self.arrive(cnt, 136, 137, self.signal(base, word, stride))
    def arm(self):
        self("s_waitcnt lgkmcnt(0)\n" + "\n".join(f"s_mov_b32 s{16+i}, 1" for i in range(16)))
    def sfirst(self, base, offs, dst):
        for o, d in zip(offs, dst): self(f"s_load_dword s{d}, s[{base}:{base+1}], {o}")
    def scheck(self, dst, target, srd, soff, vz, vt, vm):
        e = self; D = e.lab("L_sc")
        e("s_waitcnt lgkmcnt(0)")
        for d in dst[1:]: e(f"s_min_u32 s{dst[0]}, s{dst[0]}, s{d}")
        e(f"s_cmp_ge_u32 s{dst[0]}, {target}\ns_cbranch_scc1 {D}\nv_mov_b32 v{vt}, 0")
        e.vpoll(srd, soff, target, vz, vt)
        e(f"{D}:")
    def vpoll(self, srd, soff, target, vz, vt, sleep=8):
        e = self; L = e.lab("L_vp"); D = e.lab("L_vpd")
        e(f"s_mov_b32 s79, 0\n{L}:\nv_cmp_gt_u32 vcc, {target}, v{vt}\ns_cmp_eq_u64 vcc, 0\ns_cbranch_scc1 {D}")
        e(f"s_add_u32 s79, s79, 1\ns_cmp_ge_u32 s79, 0x100000\ns_cbranch_scc1 L_end\ns_sleep {sleep}")
        e(f"buffer_load_dword v{vt}, v{vz}, {sr(srd)}, {soff} offen sc1\ns_waitcnt vmcnt(0)\ns_branch {L}\n{D}:")
    def lpost(self, cnt, va, vt):
        self(f"s_mov_b64 exec, 1\nv_mov_b32 v{va}, {CNT_LDS + 4*cnt}\nv_mov_b32 v{vt}, 1\nds_add_u32 v{va}, v{vt}\ns_mov_b64 exec, -1")
    def lwait(self, cnt, va, vt, sleep=1):
        e = self; L = e.lab("L_lw"); D = e.lab("L_lwd")
        e(f"s_setprio {e.opt.get('hp', 3)}")
        e(f"v_mov_b32 v{va}, {CNT_LDS + 4*cnt}\ns_mov_b32 s79, 0\n{L}:\nds_read_b32 v{vt}, v{va}\ns_waitcnt lgkmcnt(0)\nv_readfirstlane_b32 s78, v{vt}\ns_cmp_ge_u32 s78, 4\ns_cbranch_scc1 {D}")
        e(f"s_add_u32 s79, s79, 1\ns_cmp_ge_u32 s79, 0x1000000\ns_cbranch_scc1 L_end\n" + (f"s_sleep {sleep}\n" if sleep else "") + f"s_branch {L}\n{D}:\ns_setprio {e.opt.get('mprio', 0)}")
    def busy(self, d, va, vt, w=''):
        if w in self.opt.get('yld', ''): self(f"s_mov_b64 exec, 1\nv_mov_b32 v{va}, {CNT_LDS + 4*11}\nv_mov_b32 v{vt}, {d}\nds_add_u32 v{va}, v{vt}\ns_mov_b64 exec, -1")
    def lsync(self, cnt, va, vt):
        e = self; L = e.lab("L_ls")
        e(f"s_waitcnt lgkmcnt(0)\ns_mov_b64 exec, 1\nv_mov_b32 v{va}, {CNT_LDS + 4*cnt}\nv_mov_b32 v{vt}, 1\nds_add_u32 v{va}, v{vt}\ns_mov_b32 s79, 0\n{L}:")
        e(f"ds_read_b32 v{vt}, v{va}\ns_waitcnt lgkmcnt(0)\nv_readfirstlane_b32 s78, v{vt}\ns_add_u32 s79, s79, 1\ns_cmp_ge_u32 s79, 0x1000000\ns_cbranch_scc1 L_end\ns_cmp_lt_u32 s78, 4\ns_cbranch_scc1 {L}\ns_mov_b64 exec, -1")

SA, SAE, SAS, SB, SBE, SBS, SA2, SB2, SOA, SOB, SG, SPK = 16, 17, 18, 19, 24, 25, 26, 27, 28, 29, 10, 11
SFH, SFW = 34, 8
SPD = [20]; S_TL = 43
P3_ACC = 176; P3_B2 = 100; P3_VT = [10, 11, 12, 3]; P3_VL2 = 13; P3_VLB = 5; P3_VF = 171
p3acc = lambda u, t: P3_ACC + 16*u + 4*t

class Unit:
    def __init__(self, areg, off, acc, gate=False): self.areg, self.off, self.acc, self.gate = areg, off, acc, gate

def c_main_loop(e, units, xreg, xaddr, ring, D, after_bar0, tail=()):
    tail = list(tail)
    n = len(units); R = D + 2; lg = []; total = NSTEP * n
    def wait_lg(tags):
        idx = max([i for i, t in enumerate(lg) if t in tags], default=-1)
        if idx < 0: return
        cnt = len(lg) - 1 - idx; assert cnt <= 15
        e(f"s_waitcnt lgkmcnt({cnt})"); del lg[:idx + 1]
    def xreads(s, out):
        for m in range(2):
            out.append(f"ds_read_b128 {vr(xreg + 8*(s % 2) + 4*m)}, v{xaddr[s % 2]} offset:{((s//2) % NX)*XSLOT + m*2048}"); lg.append(('x', s))
    def wreads(q, out):
        s, u = divmod(q, n); U = units[u]; r = ring + 4*(q % R); slot = s % NW
        a = U.areg[slot // 3]; o = (slot % 3)*WSLOT + U.off
        if U.gate:
            out.append(f"ds_read_b128 {vr(r)}, v{a} offset:{o}"); lg.append(('w', q)); return
        out.append(f"ds_read_b64_tr_b16 {vr(r,2)}, v{a} offset:{o}"); out.append(f"ds_read_b64_tr_b16 {vr(r+2,2)}, v{a} offset:{o + 4096}")
        lg.extend([('w', q)]*2)
    e("s_barrier"); after_bar0()
    buf = []; xreads(0, buf)
    for q in range(D): wreads(q, buf)
    for b in buf: e(b)
    for q in range(total):
        s, u = divmod(q, n)
        tags = [('w', q), ('x', s)]
        if q % 2 == 0 and q + 1 < total: tags += [('w', q + 1), ('x', (q + 1)//n)]
        wait_lg(tags)
        buf = []; qa = q + D
        if qa < total:
            if qa % n == 0: buf.append("s_barrier"); xreads(qa // n, buf)
            wreads(qa, buf)
        elif tail:
            k_ = -(-len(tail) // (total - q))
            for x in tail[:k_]:
                if len(lg) >= 15: buf.append("s_waitcnt lgkmcnt(10)"); del lg[:len(lg) - 10]
                buf.append(x); lg.append(('t',))
            del tail[:k_]
        U = units[u]; r = ring + 4*(q % R); half = (len(buf) + 1)//2
        for m in range(2):
            acc = vr(U.acc + 4*m)
            e(f"v_mfma_f32_16x16x32_bf16 {acc}, {vr(r)}, {vr(xreg + 8*(s % 2) + 4*m)}, {acc}")
            for b in (buf[:half] if m == 0 else buf[half:]): e(b)

def gelu_pack(e, jobs, T, C1):
    for i in range(0, len(jobs), 4):
        grp = jobs[i:i+4]
        for k, (s, d) in enumerate(grp): e(f"v_pk_mul_f32 {vr(T+2*k,2)}, {vr(s,2)}, {vr(s,2)}")
        for k, (s, d) in enumerate(grp): e(f"v_pk_fma_f32 {vr(T+2*k,2)}, {vr(T+2*k,2)}, {sr(S_C2,2)}, {vr(C1,2)}")
        for k, (s, d) in enumerate(grp): e(f"v_pk_mul_f32 {vr(T+2*k,2)}, {vr(T+2*k,2)}, {vr(s,2)}")
        for k in range(2*len(grp)): e(f"v_exp_f32 v{T+k}, v{T+k}")
        for k, (s, d) in enumerate(grp): e(f"v_pk_add_f32 {vr(T+2*k,2)}, {vr(T+2*k,2)}, 1.0 op_sel_hi:[1,0]")
        for k in range(2*len(grp)): e(f"v_rcp_f32 v{T+k}, v{T+k}")
        for k, (s, d) in enumerate(grp): e(f"v_pk_mul_f32 {vr(T+2*k,2)}, {vr(T+2*k,2)}, {vr(s,2)}")
        for k, (s, d) in enumerate(grp): e(f"v_cvt_pk_bf16_f32 v{d}, v{T+2*k}, v{T+2*k+1}")

def softmax2(e, P, E, OUT, X, fill=(), wr=None):
    B = []; o = lambda t: B.extend(t.split("\n"))
    mx, mn = X, X + 2
    o(f"v_max3_f32 v{mx}, v{P}, v{P+1}, v{P+2}\nv_min3_f32 v{mn}, v{P}, v{P+1}, v{P+2}")
    for i in range(3, 19, 2): o(f"v_max3_f32 v{mx}, v{mx}, v{P+i}, v{P+i+1}\nv_min3_f32 v{mn}, v{mn}, v{P+i}, v{P+i+1}")
    o(f"v_max_f32 v{mx}, v{mx}, v{P+19}\nv_min_f32 v{mn}, v{mn}, v{P+19}")
    o(f"v_mul_f32 v{mx}, s{S_L}, v{mx}\nv_mul_f32 v{mn}, s{S_L}, v{mn}")
    for i in range(0, 20, 2):
        o(f"v_pk_fma_f32 {vr(E+i,2)}, {vr(P+i,2)}, {sr(S_L,2)}, {vr(mx,2)} op_sel_hi:[1,1,0] neg_lo:[0,0,1] neg_hi:[0,0,1]")
        o(f"v_pk_fma_f32 {vr(P+i,2)}, {vr(P+i,2)}, {sr(S_L,2)}, {vr(mn,2)} op_sel_hi:[1,1,0] neg_lo:[1,0,0] neg_hi:[1,0,0]")
    for i in range(20): o(f"v_exp_f32 v{E+i}, v{E+i}\nv_exp_f32 v{P+i}, v{P+i}")
    sp, sn = X + 4, X + 6
    o(f"v_pk_add_f32 {vr(sp,2)}, {vr(E,2)}, {vr(E+2,2)}\nv_pk_add_f32 {vr(sn,2)}, {vr(P,2)}, {vr(P+2,2)}")
    for i in range(4, 20, 2): o(f"v_pk_add_f32 {vr(sp,2)}, {vr(sp,2)}, {vr(E+i,2)}\nv_pk_add_f32 {vr(sn,2)}, {vr(sn,2)}, {vr(P+i,2)}")
    o(f"v_add_f32 v{sp}, v{sp}, v{sp+1}\nv_add_f32 v{sn}, v{sn}, v{sn+1}\nv_rcp_f32 v{sp}, v{sp}\nv_rcp_f32 v{sn}, v{sn}")
    fill = list(fill); step = len(B) // (len(fill) + 1)
    for i, x in enumerate(B):
        e(x)
        if fill and (i + 1) % step == 0: e(fill.pop(0))
    for src, sc, half in ((E, sp, 0), (P, sn, 1)):
        for i in range(10):
            e(f"v_pk_mul_f32 {vr(src+2*i,2)}, {vr(src+2*i,2)}, {vr(sc,2)} op_sel_hi:[1,0]")
            if i >= 1: e(f"v_cvt_pk_bf16_f32 v{OUT+10*half+i-1}, v{src+2*i-2}, v{src+2*i-1}")
            done = 10*half + i
            if wr and i >= 1 and done % 4 == 0: wr(done // 4 - 1)
        e(f"v_cvt_pk_bf16_f32 v{OUT+10*half+9}, v{src+18}, v{src+19}")
    if wr: wr(4)

def weave(e, main, fill, per=2):
    fill = [x for t in fill for x in t.split("\n")]
    for x in main:
        e(x)
        for _ in range(per):
            if fill: e(fill.pop(0))
    for x in fill: e(x)

DOC = """; One persistent launch, one workgroup per CU (generated by a script of mine; all scheduling is static).
;  C epilogue: gelu -> h fragments; feature map + dual softmax (true max); k/v: per-workgroup phi_k^T [v|1] partials,
;      each k/v workgroup sums one slice over the 16 partials -> table; q: o = g * (phi_q kv) / (phi_q z + 1e-6).
;  P3  M: out[64 x 80] = (1-g) (h w2 + b2) + (g o) wo, operands straight from the workspace into registers, K split
; Hand-offs between workgroups: write-through stores, acknowledged, then counters (zeroed in this launch, debug word 0
; says when); nothing depends on which die a workgroup runs on."""

def gen(diag=False, D=5, rot=(10, 20, 10, 5), PB=5, **opt):
    e = G(diag, **opt)
    e(f"; @launch grid=(256,1,1) block=(512,1,1) lds={LDS_TOTAL}")
    e(DOC)
    e(f'.amdgcn_target "amdgcn-amd-amdhsa--gfx950"\n.text\n.globl {NAME}\n.p2align 8\n.type {NAME},@function\n{NAME}:')
    if diag: e("s_memtime s[80:81]\ns_memrealtime s[100:101]")
    e("s_cmp_ge_u32 s2, 256\ns_cbranch_scc1 L_end")
    e("s_load_dwordx16 s[16:31], s[0:1], 0\ns_load_dwordx8 s[32:39], s[0:1], 64\ns_load_dwordx2 s[40:41], s[0:1], 96")
    if opt.get('epf', False):
        e(f"s_getpc_b64 s[12:13]\nL_pc0:\nv_lshlrev_b32 v2, 4, v0\nv_and_b32 v2, 0xc00, v2\nv_and_b32 v3, 7, v0\nv_lshl_add_u32 v2, v3, 7, v2")
        e(f"v_mov_b32 v3, L_C-L_pc0\nv_cmp_gt_u32 vcc, 256, v0\nv_cndmask_b32 v3, 0, v3, vcc\nv_add_u32 v2, v2, v3\ns_mov_b64 exec, 0xff\nglobal_load_dword v186, v2, s[12:13]\ns_mov_b64 exec, -1")
    if opt.get('cpt'):
        e(f"s_getpc_b64 s[76:77]\nL_pct:\ns_lshr_b32 s78, s2, 3\ns_lshl_b32 s78, s78, 11\nv_lshrrev_b32 v1, 6, v0\nv_and_b32 v2, 1, v0\nv_lshl_add_u32 v2, v1, 1, v2\nv_lshl_add_u32 v2, v2, 7, s78")
        e(f"v_min_u32 v2, L_end-L_pct, v2\ns_mov_b64 exec, 3\nglobal_load_dword v187, v2, s[76:77]\ns_mov_b64 exec, -1")
    e(f"v_lshrrev_b32 v1, 6, v0\nv_and_b32 v0, 63, v0")
    e(f"s_and_b32 s70, s2, 7\ns_lshr_b32 s71, s2, 3")
    e(f"v_readfirstlane_b32 s{S_WAVE}, v1")
    e(f"s_and_b32 s72, s70, 1\ns_and_b32 s73, s71, 7\ns_lshl_b32 s74, s72, 3\ns_add_u32 s{S_RB}, s74, s73")
    if opt.get('mix', True):
        e(f"s_lshr_b32 s{S_ISQ}, s71, 4\ns_lshr_b32 s74, s70, 1\ns_lshr_b32 s75, s71, 3")
        e(f"s_and_b32 s76, s75, 1\ns_lshl_b32 s77, s74, 1\ns_add_u32 s{S_J}, s76, s77")
    else:
        e(f"s_lshr_b32 s{S_ISQ}, s70, 2\ns_lshr_b32 s74, s70, 1\ns_lshr_b32 s75, s71, 3")
        e(f"s_and_b32 s76, s74, 1\ns_lshl_b32 s76, s76, 2\ns_add_u32 s{S_J}, s76, s75")
    a, b, c, d = rot
    e(f"s_mul_i32 s76, s73, {a}\ns_mul_i32 s77, s75, {b}\ns_add_u32 s76, s76, s77\ns_mul_i32 s77, s74, {c}\ns_add_u32 s76, s76, s77\ns_mul_i32 s77, s72, {d}\ns_add_u32 s76, s76, s77\ns_lshr_b32 s76, s76, 3")
    e(f"s_mul_i32 s77, s76, 6554\ns_lshr_b32 s77, s77, 16\ns_mul_i32 s77, s77, 10\ns_sub_u32 s{S_PH}, s76, s77")
    e(f"s_and_b32 s{S_WV}, s{S_WAVE}, 3")
    e.fstamp(3)
    if opt.get('c0', True):
        e(f"s_cmp_ge_u32 s{S_WAVE}, 4\ns_cbranch_scc1 L_M")
        c_first(e)
        e("s_branch L_C\nL_M:")
    else: e(f"s_cmp_lt_u32 s{S_WAVE}, 4\ns_cbranch_scc1 L_C")
    m_wave(e, PB)
    e("L_C:")
    c_wave(e, D)
    e("L_end:\ns_endpgm")
    e(f""".section .rodata,"a"
.p2align 6
.amdhsa_kernel {NAME}
  .amdhsa_next_free_vgpr 256
  .amdhsa_next_free_sgpr 102
  .amdhsa_accum_offset 256
  .amdhsa_group_segment_fixed_size 0
  .amdhsa_kernarg_size 104
  .amdhsa_user_sgpr_count 2
  .amdhsa_user_sgpr_kernarg_segment_ptr 1
  .amdhsa_system_sgpr_workgroup_id_x 1
.end_amdhsa_kernel""")
    txt, n = hazard.fix("\n".join(e.L), opt.get('verbose', False))
    return txt + "\n"

def x_setup(e, VX):
    e(f"v_lshrrev_b32 v2, 3, v0\ns_lshl_b32 s76, s{S_WV}, 4\nv_add_u32 v2, s76, v2")
    e(f"v_lshrrev_b32 v3, 4, v0\nv_xor_b32 v3, v3, v0\nv_and_b32 v3, 7, v3\nv_lshlrev_b32 v3, 4, v3")
    e(f"v_mul_u32_u24 v2, 1280, v2\nv_add_u32 v{VX[0]}, v2, v3")
    e(f"v_xor_b32 v3, 64, v3\nv_add_u32 v2, {8*1280-1024}, v2\nv_add_u32 v{VX[1]}, v2, v3")
    e(f"s_mul_i32 s{S_XOFF}, s{S_RB}, {128*1280}\ns_lshl_b32 s{S_M0X}, s{S_WV}, 11\ns_add_u32 s{S_M0X}, s{S_M0X}, {XBASE}\ns_lshl_b32 s{S_XK}, s{S_PH}, 7")
XADV = f"s_add_u32 s{S_XK}, s{S_XK}, 128\ns_cmp_eq_u32 s{S_XK}, 1280\ns_cmov_b32 s{S_XK}, 0"
def dma_x_ops(VX, X, h):
    pre = f"s_add_u32 s76, s{S_XK}, {h*81920}\ns_add_u32 m0, s{S_M0X}, {(X % NX)*XSLOT + h*8192}\ns_add_u32 s76, s76, s{S_XOFF}\n"
    return [(('x', X), pre + f"buffer_load_dwordx4 v{VX[0]}, {sr(SRD_X)}, s76 offen lds"),
            (('x', X), f"buffer_load_dwordx4 v{VX[1]}, {sr(SRD_X)}, s76 offen offset:1024 lds" + ("\n" + XADV if h else ""))]

def m_wave(e, PB):
    e("s_setprio 3")
    VX = [16, 17]; VB = [18, 20, 22, 24]; VS = [26, 27, 28, 29]; VA = [30, 32, 34, 36]
    e(f"s_lshl_b32 s{S_M0W}, s{S_WV}, 12\ns_lshl_b32 s{S_KK}, s{S_PH}, 1")
    e(f"s_lshr_b32 s76, s{S_WV}, 1\ns_lshl_b32 s76, s76, 4\ns_and_b32 s77, s{S_WV}, 1\ns_lshl_b32 s77, s77, 2\ns_add_u32 s78, s76, s77")
    def krow(dst, rho):
        e(f"v_and_b32 v{dst}, 4, v{rho}\nv_add3_u32 v{dst}, v{dst}, v{rho}, s78")
    def panel(dst, ci0, colreg, kv):
        e(f"v_add_u32 v2, {ci0}, v0\nv_mul_u32_u24 v3, 6554, v2\nv_lshrrev_b32 v3, 16, v3\nv_mul_u32_u24 v4, 10, v3\nv_sub_u32 v4, v2, v4")
        if kv: e(f"v_lshrrev_b32 v6, 3, v3\nv_and_b32 v3, 7, v3\nv_mul_u32_u24 v6, 1280, v6\nv_lshl_add_u32 v4, v4, 4, v6")
        else: e(f"v_lshlrev_b32 v4, 4, v4")
        krow(5, 3)
        e(f"v_mul_u32_u24 v5, 3840, v5\nv_add3_u32 v{dst}, v5, v4, s{colreg}")
    def h160(dst, hi0):
        e(f"v_add_u32 v2, {hi0}, v0\nv_min_i32 v2, 159, v2\nv_max_i32 v2, 0, v2\nv_mul_u32_u24 v3, 3277, v2\nv_lshrrev_b32 v3, 16, v3\nv_mul_u32_u24 v4, 20, v3\nv_sub_u32 v4, v2, v4")
        e(f"v_lshrrev_b32 v6, 1, v3\nv_and_b32 v6, 2, v6\nv_xor_b32 v4, v4, v6\nv_min_u32 v4, s77, v4\nv_lshlrev_b32 v4, 4, v4")
        krow(5, 3)
        e(f"v_mul_u32_u24 v5, 3456, v5\nv_add3_u32 v{dst}, v5, v4, s76")
    def addptr(b, off, plo, phi):
        if b: e(f"v_subrev_u32 v{off}, {1024*b}, v{off}\nv_ashrrev_i32 v7, 31, v{off}")
        else: e(f"v_mov_b32 v7, 0")
        e(f"v_add_co_u32 v{VB[b]}, vcc, {plo}, v{off}")
        if phi.startswith('s'): e(f"v_mov_b32 v6, {phi}"); phi = "v6"
        e(f"v_addc_co_u32 v{VB[b]+1}, vcc, {phi}, v7, vcc")
    vm = ([('pf',)] if e.opt.get('epf', False) else []) + ([('pf',)] if e.opt.get('cpt') else [])
    def emit(lst):
        for tag, txt in lst: e(txt); vm.append(tag)
    def wait_vm(pred):
        idx = max([i for i, t in enumerate(vm) if pred(t)], default=-1)
        if idx >= 0: e(f"s_waitcnt vmcnt({len(vm)-1-idx})"); del vm[:idx+1]
    def dma_w(step):
        pre = "".join(f"v_mad_u64_u32 {vr(VA[b],2)}, vcc, v{VS[b]}, s{S_KK}, {vr(VB[b],2)}\n" for b in range(4))
        pre += f"s_add_u32 m0, s{S_M0W}, {(step % NW)*WSLOT}\ns_add_u32 s{S_KK}, s{S_KK}, 1\ns_cmp_eq_u32 s{S_KK}, 20\ns_cmov_b32 s{S_KK}, 0\n"
        return [(('w', step), (pre if b == 0 else "") + f"global_load_lds_dwordx4 {vr(VA[b],2)}, off offset:{1024*b} {e.opt.get('wnt', '')}") for b in range(4)]
    dma_x = lambda X, h: dma_x_ops(VX, X, h)
    O = [8, 46, 10, 11, 12]
    e(f"s_cmp_eq_u32 s{S_ISQ}, 1\ns_cbranch_scc1 L_MQ")
    e(f"s_mul_i32 s76, s{S_J}, 160\ns_add_u32 s76, s76, 1280")
    panel(O[0], 0, 76, True); panel(O[1], 64, 76, True); panel(O[2], 128, 76, True)
    e(f"v_lshrrev_b32 v3, 3, v0\nv_and_b32 v4, 6, v3\nv_xor_b32 v4, v4, v0\nv_and_b32 v4, 7, v4\nv_lshlrev_b32 v4, 4, v4\ns_lshl_b32 s76, s{S_J}, 7")
    krow(5, 3)
    e(f"v_mul_u32_u24 v5, 3456, v5\nv_add3_u32 v{O[3]}, v5, v4, s76")
    e(f"v_subrev_u32 v2, 32, v0\nv_min_u32 v2, 3, v2\nv_lshlrev_b32 v2, 4, v2\nv_cmp_gt_u32 s[14:15], 32, v0")
    e(f"v_mov_b32 v{VS[0]}, {32*3840}\nv_mov_b32 v{VS[1]}, {32*3840}\nv_mov_b32 v{VS[3]}, {32*3456}\nv_cndmask_b32 v{O[2]}, v2, v{O[2]}, s[14:15]\nv_cndmask_b32 v{VS[2]}, 64, v{VS[0]}, s[14:15]")
    e.fstamp(4)
    e("s_waitcnt lgkmcnt(0)")
    e.fstamp(5)
    addptr(0, O[0], f"s{S_WQKV}", f"s{S_WQKV+1}"); addptr(1, O[1], f"s{S_WQKV}", f"s{S_WQKV+1}"); addptr(3, O[3], f"s{S_W1}", f"s{S_W1+1}")
    e(f"v_mov_b32 v2, s{S_GATE}\nv_mov_b32 v3, s{S_WQKV}\nv_cndmask_b32 v2, v2, v3, s[14:15]\nv_mov_b32 v3, s{S_GATE+1}\nv_mov_b32 v4, s{S_WQKV+1}\nv_cndmask_b32 v3, v3, v4, s[14:15]")
    addptr(2, O[2], "v2", "v3")
    e("s_branch L_Mgo\nL_MQ:")
    e(f"s_mul_i32 s79, s{S_J}, 160\ns_mul_i32 s76, s{S_J}, 320\ns_add_u32 s76, s76, 1024\ns_cmp_eq_u32 s{S_J}, 7\ns_cselect_b32 s77, 11, 19")
    panel(O[0], 0, 79, False); panel(O[1], 64, 79, False); h160(O[4], -16); h160(O[2], 48); h160(O[3], 112)
    e(f"v_cmp_gt_u32 s[14:15], 16, v0\nv_mov_b32 v{VS[0]}, {32*3840}\nv_mov_b32 v{VS[2]}, {32*3456}\nv_mov_b32 v{VS[3]}, {32*3456}")
    e(f"v_cndmask_b32 v{O[1]}, v{O[4]}, v{O[1]}, s[14:15]\nv_cndmask_b32 v{VS[1]}, v{VS[2]}, v{VS[0]}, s[14:15]")
    e.fstamp(4)
    e("s_waitcnt lgkmcnt(0)")
    e.fstamp(5)
    addptr(0, O[0], f"s{S_WQKV}", f"s{S_WQKV+1}"); addptr(2, O[2], f"s{S_W1}", f"s{S_W1+1}"); addptr(3, O[3], f"s{S_W1}", f"s{S_W1+1}")
    e(f"v_mov_b32 v2, s{S_W1}\nv_mov_b32 v3, s{S_WQKV}\nv_cndmask_b32 v2, v2, v3, s[14:15]\nv_mov_b32 v3, s{S_W1+1}\nv_mov_b32 v4, s{S_WQKV+1}\nv_cndmask_b32 v3, v3, v4, s[14:15]")
    addptr(1, O[1], "v2", "v3")
    e("L_Mgo:")
    LA = e.opt.get('LA', 2); JS = e.opt.get('JS', 8)
    if e.opt.get('linbar'): e("s_barrier")
    emit(dma_w(0))
    e.stamp(1)
    emit(dma_w(1))
    x_setup(e, VX); e.srd(SRD_X, S_X, 2048*1280)
    e(XADV)
    if LA >= 3: emit(dma_x(1, 0)); emit(dma_w(2))
    e(f"s_setprio {e.opt.get('lprio', 0)}")
    e(f"s_and_b32 s76, s70, 3\ns_lshl_b32 s76, s76, 3\ns_add_u32 s{S_R64}, s76, s73\ns_and_b32 s76, s70, 4\ns_add_u32 s{S_CB}, s76, s75")
    e(f"s_mul_i32 s7, s73, 5\ns_mul_i32 s76, s75, 10\ns_add_u32 s7, s7, s76\ns_lshr_b32 s7, s7, 2")
    VZ, VL16 = 1, 15
    VJ = [38, 39, 40, 41, 42]; VJR = 43; VP = 14; JF = 48
    chunks = {}
    def c0():
        e.srd(SRD_WS, S_WS, WS_SIZE); e.srd(SRD_D, S_DBG, 256)
        e(f"v_mov_b32 v{VZ}, 0\nv_lshlrev_b32 v{VL16}, 4, v0")
        if e.opt.get('jq', True):
            NQJ = e.opt.get('nqj', 432)
            e(f"s_lshl_b32 s70, s{S_J}, 4\ns_add_u32 s70, s70, s{S_RB}\ns_sub_u32 s71, 127, s70\ns_lshl_b32 s71, s71, 2\ns_add_u32 s71, s71, s{S_WV}\ns_lshl_b32 s72, s{S_WV}, 7\ns_add_u32 s72, s72, s70\ns_add_u32 s72, s72, {NQJ}")
            e(f"s_cmp_eq_u32 s{S_ISQ}, 0\ns_cselect_b32 s72, s72, s71\ns_mov_b32 s71, {NQJ}\ns_cmov_b32 s71, 592\ns_sub_u32 s70, s72, s71\ns_lshr_b32 s71, s72, 3\ns_and_b32 s72, s72, 7")
        else:
            e(f"s_mul_i32 s70, s2, 37\ns_add_u32 s71, s70, 37\ns_lshr_b32 s70, s70, 4\ns_lshr_b32 s71, s71, 4\ns_add_u32 s72, s70, s{S_WV}\ns_sub_u32 s70, s72, s71\ns_lshr_b32 s71, s72, 3\ns_and_b32 s72, s72, 7")
        e(f"s_sub_u32 s73, s71, 54\ns_mul_i32 s77, s73, 6554\ns_lshr_b32 s77, s77, 15\ns_mul_i32 s78, s77, 5\ns_sub_u32 s78, s73, s78")
        e(f"s_mul_i32 s73, s77, 160\ns_lshr_b32 s77, s78, 1\ns_mul_i32 s77, s77, 80\ns_and_b32 s79, s78, 1\ns_lshl_b32 s79, s79, 3\ns_add_u32 s77, s77, s79")
        e(f"s_cmp_eq_u32 s78, 4\ns_cselect_b32 s77, 16, s77\ns_cselect_b32 s75, 80, 4\ns_add_u32 s73, s73, s77\ns_mov_b32 s74, 20")
    def c1():
        e(f"s_lshl_b32 s77, s71, 5\ns_cmp_lt_u32 s71, 54\ns_cselect_b32 s73, s77, s73\ns_cselect_b32 s74, 4, s74\ns_cselect_b32 s75, 16, s75")
        e(f"s_cselect_b32 s{SRD_T}, s{S_W2}, s{S_WO}\ns_cselect_b32 s{SRD_T+1}, s{S_W2+1}, s{S_WO+1}\ns_mov_b32 s{SRD_T+2}, {640*1280}\ns_cmov_b32 s{SRD_T+2}, {1728*1280}\ns_mov_b32 s{SRD_T+3}, 0x20000")
        e(f"s_mul_i32 s12, s73, 1280\ns_mul_i32 s77, s72, 160\ns_add_u32 s12, s12, s77")
        e(f"s_mul_i32 s13, s72, 74\ns_add_u32 s13, s13, s71\ns_mul_i32 s13, s13, 5120\ns_add_u32 s13, s13, {WS_WF}")
        e(f"s_and_b32 s77, s{S_RB}, 3\ns_lshl_b32 s78, s{S_ISQ}, 2\ns_add_u32 s77, s77, s78\ns_lshl_b32 s77, s77, 7\ns_add_u32 s77, s77, {WS_FL + FL_W*128}"); e.wsptr(14, "s77")
        e(f"s_cmp_lt_i32 s70, 0\ns_cselect_b32 s12, s12, {OOB}\ns_cselect_b32 s13, s13, {OOB}")
        e(f"s_mul_i32 s3, s{S_WV}, 5120\ns_add_u32 s3, s3, {STG}")
        e(f"v_lshrrev_b32 v2, 2, v0\nv_mul_u32_u24 v2, 160, v2\nv_and_b32 v3, 3, v0\nv_mul_u32_u24 v3, 40, v3\nv_add3_u32 v{VJR}, v2, v3, s3\nv_add_u32 v44, 4096, v{VL16}")
    def cj(i0, i1):
        def f():
            for i in range(i0, i1):
                e(f"v_add_u32 v2, {64*i}, v0\nv_mul_u32_u24 v3, 6554, v2\nv_lshrrev_b32 v3, 16, v3\nv_mul_u32_u24 v4, 10, v3\nv_sub_u32 v4, v2, v4")
                e(f"v_bfe_u32 v5, v3, 2, 2\nv_mul_u32_u24 v5, s74, v5\nv_lshrrev_b32 v6, 4, v3\nv_mul_u32_u24 v6, s75, v6\nv_and_b32 v3, 3, v3\nv_add3_u32 v3, v3, v5, v6")
                e(f"v_mul_u32_u24 v3, 1280, v3\nv_lshl_add_u32 v{VJ[i]}, v4, 4, v3")
        return f
    def c8():
        e(f"s_cmp_eq_u32 s{S_WV}, 3\ns_cselect_b32 s70, 8, 10\ns_mul_i32 s71, s{S_WV}, 10\ns_add_u32 s71, s71, 16")
        for _ in range(2): e(f"s_cmp_ge_u32 s7, s70\ns_cselect_b32 s72, s70, 0\ns_sub_u32 s7, s7, s72")
        e(f"s_mul_i32 s74, s{S_R64}, 54\ns_add_u32 s72, s74, s71\ns_lshl_b32 s{SAS}, s72, 12\ns_lshl_b32 s73, s70, 12\ns_add_u32 s{SAE}, s{SAS}, s73\ns_lshl_b32 s73, s7, 12\ns_add_u32 s{SA}, s{SAS}, s73")
        e(f"s_mul_i32 s75, s{S_CB}, 74\ns_add_u32 s73, s75, s71\ns_mul_i32 s73, s73, 5120\ns_add_u32 s{SBS}, s73, {WS_WF}\ns_mul_i32 s73, s70, 5120\ns_add_u32 s{SBE}, s{SBS}, s73\ns_mul_i32 s73, s7, 5120\ns_add_u32 s{SB}, s{SBS}, s73")
    def c9():
        e(f"s_lshl_b32 s70, s{S_WV}, 2\ns_add_u32 s71, s74, s70\ns_lshl_b32 s{SA2}, s71, 12\ns_add_u32 s71, s75, s70\ns_mul_i32 s71, s71, 5120\ns_add_u32 s{SB2}, s71, {WS_WF}")
        e(f"s_mul_i32 s70, s{S_WV}, 5\ns_add_u32 s70, s70, s75\ns_add_u32 s70, s70, 54\ns_mul_i32 s70, s70, 5120\ns_add_u32 s{SOB}, s70, {WS_WF}")
        e(f"s_mul_i32 s70, s{S_R64}, 81920\ns_add_u32 s{SOA}, s70, {WS_OF}")
        e(f"s_lshl_b32 s70, s{S_R64}, 3\ns_add_u32 s70, s70, s{S_CB}\ns_lshl_b32 s70, s70, 2\ns_add_u32 s70, s70, s{S_WV}\ns_lshl_b32 s70, s70, 7\ns_add_u32 s70, s70, {WS_FL + FL_H*128}"); e.wsptr(SFH, "s70")
        e(f"s_mov_b32 s{SFW}, {WS_FL + FL_W*128 + 1024}")
        e(f"s_lshl_b32 s70, s{S_R64}, 8\ns_lshl_b32 s71, s{S_WV}, 14\ns_add_u32 s70, s70, s71\ns_add_u32 s{SG}, s70, {WS_G}")
    def c10():
        e(f"s_mul_i32 s{SPK}, s{S_WV}, 20480\ns_add_u32 s{SPK}, s{SPK}, {PARK}\ns_cmp_eq_u32 s{S_WV}, 3\ns_cmov_b32 s{SPK}, {STG}")
        e(f"v_add_u32 v{P3_VL2}, 4096, v{VL16}")
        e(f"s_and_b32 s70, s{S_CB}, {3 if e.opt.get('trot', True) else 0}\ns_xor_b32 s{S_TL}, s70, s{S_WV}")
        for t in range(4): e(f"s_xor_b32 s70, s{S_TL}, {t}\ns_lshl_b32 s70, s70, 10\nv_add_u32 v{P3_VT[t]}, s70, v{VL16}")
        e(f"v_min_u32 v4, 144, v{VL16}\ns_mul_i32 s70, s{S_CB}, 160\nv_add_u32 v4, s70, v4")
        e(f"v_and_b32 v8, 7, v0\nv_lshlrev_b32 v8, 7, v8")
    JL = e.opt.get('JL', -1); JR = e.opt.get('JR', 2); JA = e.opt.get('JA', 8); ZA = e.opt.get('ZA', 2); pre = e.opt.get('pre', 0)
    for c_ in (c0, c1, cj(0, 5), c8, c9, c10): c_()
    e(f"s_lshl_b32 s76, s2, 12\nv_lshl_add_u32 v2, v0, 7, s76\ns_lshl_b32 s76, s2, 10\ns_add_u32 s76, s76, {(FL_KV - 32)*128}\nv_lshl_add_u32 v6, v0, 7, s76\nv_cmp_gt_u32 vcc, 32, v0\nv_mov_b32 v168, 0\nv_mov_b32 v169, 0\nv_cndmask_b32 v2, v6, v2, vcc")
    e(f"v_mov_b32 v6, {OOB}\nv_cmp_gt_u32 vcc, 40, v0\nv_mov_b32 v170, 0\nv_mov_b32 v171, 0\nv_cndmask_b32 v2, v6, v2, vcc\ns_add_u32 s76, s2, {FL_W}\ns_lshl_b32 s76, s76, 7\ns_cmp_lt_u32 s2, 16\ns_cselect_b32 s76, s76, {OOB}\nv_writelane_b32 v2, s76, 40")
    e(f"s_lshl_b32 s76, s{S_WV}, 8\ns_or_b32 s76, s76, s2\ns_cmp_lt_u32 s76, {NINIT}\ns_mov_b32 s76, {OOB}\ns_cmov_b32 s76, {WS_FL}")
    emit([(('zero',), f"buffer_store_dwordx4 v[168:171], v2, {sr(SRD_WS)}, s76 offen sc1")])
    emit([(('b2',), f"s_mov_b32 m0, {B2_LDS}\nglobal_load_lds_dwordx4 v4, s[{S_B2}:{S_B2+1}]")])
    txt = (f"s_mul_i32 s76, s{S_J}, 3200\ns_lshl_b32 s77, s{S_WV}, 10\ns_add_u32 m0, s77, {WPHI_LDS}\ns_add_u32 s76, s76, s77\ns_add_u32 s76, s76, s{S_WPHI}\ns_addc_u32 s77, s{S_WPHI+1}, 0\n"
           f"s_cmp_eq_u32 s{S_WV}, 3\ns_mov_b32 s78, 1008\ns_cmov_b32 s78, 112\nv_min_u32 v6, s78, v{VL16}\nglobal_load_lds_dwordx4 v6, s[76:77]")
    emit([(('phi',), txt)])
    if e.opt.get('cpf', True) and not e.opt.get('cpc', True):
        e(f"s_getpc_b64 s[76:77]\nL_pc:\ns_sub_u32 s76, s76, L_pc-{NAME}\ns_subb_u32 s77, s77, 0")
        e(f"s_lshr_b32 s78, s2, 3\ns_lshl_b32 s78, s78, 2\ns_add_u32 s78, s78, s{S_WV}\ns_lshl_b32 s78, s78, 9\nv_and_b32 v6, 3, v0\nv_lshl_add_u32 v6, v6, 7, s78")
        emit([(('pf',), f"s_mov_b32 s78, L_end-{NAME}\nv_min_u32 v6, s78, v6\ns_mov_b64 exec, 15\nglobal_load_dword v167, v6, s[76:77]\ns_mov_b64 exec, -1")])
    def job_loads():
        for i in range(5):
            emit([(('job',), f"s_add_u32 m0, s3, {1024*i}\ns_nop 0\nbuffer_load_dwordx4 v{VJ[i]}, {sr(SRD_T)}, s12 offen {e.opt.get('jnt', 'nt')} lds")])
    if JL < 0: job_loads()
    P3S = P3(e, PB, VZ, VL16, vm)
    if JL < 0: P3S.early_setup()
    WD = [20, 22, 23, 30, 31, 32, 33, 12]
    def extras(s):
        if s == ZA:
            wait_vm(lambda t: t[0] in ('zero', 'b2', 'phi'))
            Li = e.lab("L_ini")
            e(f"s_lshl_b32 s77, s{S_WV}, 8\ns_or_b32 s77, s77, s2\ns_cmp_ge_u32 s77, {NINIT}\ns_cbranch_scc1 {Li}\ns_mov_b32 s21, 1\ns_atomic_add s21, s[{S_DBG}:{S_DBG+1}], 0 glc\n{Li}:")
        if s == JR:
            wait_vm(lambda t: t[0] == 'job')
            for u in range(5):
                e(f"ds_read_b64_tr_b16 {vr(JF+4*u,2)}, v{VJR} offset:{8*u}\nds_read_b64_tr_b16 {vr(JF+4*u+2,2)}, v{VJR} offset:{8*u + 2560}")
        IC = min(JA, 12)
        if s == IC - 1: e.sfirst(S_DBG, [0], [31])
        if s == IC: e.scheck([31], NINIT, SRD_D, "0", VZ, VP, vm)
        if s == JA:
            wait_vm(lambda t: t[0] == 'jst')
            e(f"s_mov_b64 exec, 1\nv_mov_b32 v174, {CNT_LDS + 4*3}\nv_mov_b32 v175, 1\nds_add_rtn_u32 v174, v174, v175\ns_mov_b64 exec, -1\ns_mov_b32 s22, 0")
        if s == JA + 1:
            Lw = e.lab("L_w1")
            e(f"s_waitcnt lgkmcnt(0)\nv_readfirstlane_b32 s78, v174\ns_cmp_lg_u32 s78, 3\ns_cbranch_scc1 {Lw}\ns_mov_b32 s22, 1\ns_atomic_add s22, s[14:15], 0 glc\n{Lw}:")
        if s == JA + e.opt.get('JF', 2):
            Lw = e.lab("L_w2")
            e(f"s_waitcnt lgkmcnt(0)\ns_cmp_lg_u32 s22, 31\ns_cbranch_scc1 {Lw}\ns_mov_b32 s23, 1\ns_atomic_add s23, s[14:15], 1024 glc\n{Lw}:")
    for s in range(NSTEP):
        wait_vm(lambda t: t == ('w', s) or t == ('x', s//2))
        e("s_barrier")
        if s == 0: e.stamp(2)
        if e.opt.get('steps'): e(f"s_memtime s[76:77]\ns_waitcnt lgkmcnt(0)\ns_sub_u32 s76, s76, s80\nv_writelane_b32 v9, s76, {s}")
        n_list = [2, 3] if (LA == 2 and s == 0) else [s + 3]
        for n_ in n_list:
            if n_ < NSTEP: emit(dma_x(n_ // 2, n_ % 2))
        extras(s)
        if s + LA < NSTEP: emit(dma_w(s + LA))
        if s == JL: job_loads(); P3S.early_setup()
        if s == JR + e.opt.get('JSd', 0):
            e("s_waitcnt lgkmcnt(0)")
            for u in range(5):
                if u < 4: emit([(('jst',), f"buffer_store_dwordx4 {vr(JF+4*u)}, v{VL16}, {sr(SRD_WS)}, s13 offen offset:{1024*u} sc1")])
                else: emit([(('jst',), f"buffer_store_dwordx4 {vr(JF+4*u)}, v44, {sr(SRD_WS)}, s13 offen sc1")])
        if s == (17 if pre else 18) and JA < 16: e.wsptr(76, f"s{SFW}"); e.sfirst(76, [128*i for i in range(8)], WD)
        if s == 18 and pre:
            e.scheck(WD, 1, SRD_WS, f"s{SFW}", 8, VP, vm)
            for _ in range(pre): P3S.prefetch()
    e.stamp(3)
    if JA >= 16:
        e(f"s_setprio {e.opt.get('hp', 3)}")
        for s in range(NSTEP, NSTEP + 5): extras(s)
        e(f"v_mov_b32 v{VP}, 0"); e.vpoll(SRD_WS, f"s{SFW}", 1, 8, VP, sleep=e.opt.get('slw', 2))
    elif not pre: e.scheck(WD, 1, SRD_WS, f"s{SFW}", 8, VP, vm)
    e(f"s_setprio {e.opt.get('mprio', 0)}")
    e.stamp(4)
    if e.opt.get('nop3'):
        e.stamps_out(); e("s_endpgm"); return
    P3S.begin()
    while P3S.npre < PB:
        if P3S.npre >= e.opt.get('free', 2):
            if not P3S.ring:
                e.lwait(8, 174, 175); P3S.ring = True
                P3S.park_now(e.opt.get('pkf', 0))
            P3S.yield_()
        P3S.prefetch()
        if len(vm) > P3S.THR: e(f"s_waitcnt vmcnt({P3S.THR})"); del vm[:len(vm) - P3S.THR]
    if e.opt.get('pkl', 4):
        if not P3S.ring: e.lwait(8, 174, 175); P3S.ring = True
        if e.opt.get('pkw') is not None:
            P3S.park_now(e.opt.get('pkw', 1)); e.lwait(e.opt.get('pkc', 12), 174, 175)
        P3S.park_now(e.opt.get('pkl', 4) - P3S.parked)
    P3S.run()

def P3(e, PB, VZ, VL16, vm):
    class S: pass
    S.npre = 0
    opt = e.opt
    ACC = 176; POOL = 16; NPOOL = 38
    VL2, VP = 13, 14; VGO = 173; VY = 9; assert not (opt.get('steps') and opt.get('yld'))
    VT = P3_VT
    VG = 2
    acc = lambda u, t: ACC + 16*u + 4*t
    NQ, NK = 10, 4; NS = NQ + NK; HPM = (opt.get('hp', 3), opt.get('mprio', 0))
    def pst(i):
        if opt.get('steps'): e(f"s_waitcnt lgkmcnt(0)\ns_memtime s[76:77]\ns_waitcnt lgkmcnt(0)\ns_sub_u32 s76, s76, s80\nv_writelane_b32 v9, s76, {i}")
    free = list(range(NPOOL)); frag = {}
    def emit1(item): e(item[1]); vm.append(item[0])
    def waitvm(pred):
        idx = max([i for i, t in enumerate(vm) if pred(t)], default=-1)
        if idx >= 0: e(f"s_waitcnt vmcnt({len(vm)-1-idx})"); del vm[:idx+1]
    def ld(d, v, so, off): return f"buffer_load_dwordx4 {d}, v{v}, {sr(SRD_WS)}, {so} offen" + (f" offset:{off}" if off else "") + " sc1"
    def take(k): return free.pop(0)
    def group(kind, k):
        out = []
        for i in range(4 if kind == 'A' else 5):
            sl = take(k); frag[(kind, k, i)] = POOL + 4*sl; d = vr(POOL + 4*sl)
            pre = post = ""
            if kind == 'A':
                if k < NQ:
                    if k == NQ - 2 and i == 0: pre = f"s_cmp_eq_u32 s{S_WV}, 3\ns_cmov_b32 s{SA}, {OOB}\n"
                    if i == 3: post = f"\ns_add_u32 s{SA}, s{SA}, 4096\ns_cmp_eq_u32 s{SA}, s{SAE}\ns_cmov_b32 s{SA}, s{SAS}"
                    txt = ld(d, VT[i], f"s{SA}", 0)
                else:
                    txt = ld(d, VT[i], f"s{SA2}", 0)
                    if i == 3: post = f"\ns_add_u32 s{SA2}, s{SA2}, 4096"
            else:
                if k < NQ:
                    so = f"s{SB}"
                    if k == NQ - 2 and i == 0: pre = f"s_cmp_eq_u32 s{S_WV}, 3\ns_cmov_b32 s{SB}, {OOB}\n"
                    if i == 4: post = f"\ns_add_u32 s{SB}, s{SB}, 5120\ns_cmp_eq_u32 s{SB}, s{SBE}\ns_cmov_b32 s{SB}, s{SBS}"
                else:
                    so = f"s{SB2}"
                    if i == 4: post = f"\ns_add_u32 s{SB2}, s{SB2}, 5120"
                txt = ld(d, VL16, so, 1024*i) if i < 4 else ld(d, VL2, so, 0)
            out.append(((kind, k), pre + txt + post))
        return out
    THR = opt.get('thr', 10)
    YLD = opt.get('yld', '')
    def yield_(pre_read=False):
        if not YLD: return
        L = e.lab("L_y"); D = e.lab("L_yd")
        if not pre_read: e(f"ds_read_b32 v{VP}, v{VY}")
        e(f"s_setprio {opt.get('hp', 3)}\ns_mov_b32 s79, 0\n{L}:\ns_waitcnt lgkmcnt(0)\nv_readfirstlane_b32 s78, v{VP}\ns_cmp_eq_u32 s78, 0\ns_cbranch_scc1 {D}")
        e(f"s_add_u32 s79, s79, 1\ns_cmp_ge_u32 s79, 0x1000000\ns_cbranch_scc1 L_end\ns_sleep 1\nds_read_b32 v{VP}, v{VY}\ns_branch {L}\n{D}:\ns_setprio {opt.get('mprio', 0)}")
    def prefetch():
        for it in group('B', S.npre):
            emit1(it)
            r_ = opt.get('rth')
            if r_ is not None and S.npre >= opt.get('free', 2) and len(vm) > r_: e(f"s_waitcnt vmcnt({r_})"); del vm[:len(vm) - r_]
        S.npre += 1
    S.prefetch = prefetch; S.THR = THR
    def msync(cnt):
        e.lpost(cnt, 174, 175); e.lwait(cnt, 174, 175, sleep=0)
    def park(j):
        out = []
        for i in range(5):
            pre = f"s_add_u32 s12, s{S_R64}, {j}\ns_and_b32 s12, s12, 3\ns_mul_i32 s12, s12, 5120\ns_add_u32 s13, s12, s{SOB}\ns_add_u32 s12, s12, s{SPK}\n" if i == 0 else ""
            out.append((('L',), pre + f"s_add_u32 m0, s12, {1024*i}\ns_add_u32 s77, s13, {1024*i}\nbuffer_load_dwordx4 v{VL16}, {sr(SRD_WS)}, s77 offen sc1 lds"))
        return out
    VH = [4, 5, 6, 7]; VOUT = 169; VGS = [2, 168, 170, 172]
    def early_setup():
        for t in range(4): e(f"s_xor_b32 s70, s{S_TL}, {t}\ns_lshr_b32 s71, s70, 1\ns_lshl_b32 s71, s71, 10\ns_and_b32 s70, s70, 1\ns_lshl_b32 s70, s70, 3\ns_add_u32 s70, s70, s71\ns_add_u32 s70, s70, 8192\nv_add_u32 v{VH[t]}, s70, v{VL16}")
        e.srd(SRD_T, S_OUT, 2048*1280)
        e(f"v_and_b32 v{VOUT}, 15, v0\nv_mul_u32_u24 v{VOUT}, 1280, v{VOUT}\nv_lshrrev_b32 v170, 4, v0\nv_mul_u32_u24 v170, 40, v170\nv_add_u32 v{VOUT}, v{VOUT}, v170\nv_add_u32 v171, s{SPK}, v{VL16}")
        e(f"s_lshl_b32 s70, s{S_R64}, 2\ns_add_u32 s70, s70, s{S_TL}\ns_mul_i32 s70, s70, {16*1280}\ns_mul_i32 s71, s{S_CB}, 160\ns_add_u32 s42, s70, s71")
        e(f"s_mul_i32 s70, s{S_WV}, 20480\ns_add_u32 s{SOA}, s{SOA}, s70")
        e(f"v_and_b32 v{VGO}, 15, v0\nv_lshlrev_b32 v{VGO}, 2, v{VGO}")
    S.early_setup = early_setup
    S.ring = False; S.yield_ = yield_; S.parked = 0
    def park_now(n):
        for _ in range(n):
            yield_()
            for it in park(S.parked):
                emit1(it)
                p_ = opt.get('pth', 2)
                if len(vm) > p_: e(f"s_waitcnt vmcnt({p_})"); del vm[:len(vm) - p_]
            S.parked += 1
            if len(vm) > THR: e(f"s_waitcnt vmcnt({THR})"); del vm[:len(vm) - THR]
    S.park_now = park_now
    S.begin = lambda: e(f"v_mov_b32 v{VY}, {CNT_LDS + 4*11}") if YLD else None
    def run():
        if not S.ring: e.lwait(8, 174, 175)
        e.stamp(5, True)
        PK = opt.get('pk', (10, 11, 11, 12))
        for j in range(4):
            if PK[j] >= 0 or j < S.parked: continue
            yield_()
            for it in park(j): emit1(it)
            if len(vm) > THR: e(f"s_waitcnt vmcnt({THR})"); del vm[:len(vm) - THR]
        P2 = opt.get('pk2', 0); SP2 = [4, 5, 6]
        if P2: e.lwait(12, 174, 175)
        for j in range(P2):
            e(f"s_xor_b32 s76, s{S_WV}, {j+1}\ns_mul_i32 s{SP2[j]}, s76, 15360\ns_cmp_eq_u32 s76, 3\ns_cmov_b32 s{SP2[j]}, {EXCH_H3}\ns_add_u32 s{SP2[j]}, s{SP2[j]}, {5120*j}")
            for i in range(5):
                emit1((('L',), f"s_add_u32 m0, s{SP2[j]}, {1024*i}\ns_add_u32 s77, s{SB2}, {5120*(NK - P2 + j) + 1024*i}\nbuffer_load_dwordx4 v{VL16}, {sr(SRD_WS)}, s77 offen sc1 lds"))
                p_ = opt.get('pth2', 2)
                if len(vm) > p_: e(f"s_waitcnt vmcnt({p_})"); del vm[:len(vm) - p_]
        for ch, role, cnt in (('q', 0, 0), ('k', 1, 2)):
            if ch in opt.get('hw', ''):
                Lh = e.lab("L_hw")
                e(f"s_cmp_eq_u32 s{S_ISQ}, {role}\ns_cbranch_scc1 {Lh}"); e.lwait(cnt, 174, 175); e(f"{Lh}:")
        e.spoll(SFH, SPD, sleep=opt.get('slh', 0), least=2)
        e.stamp(6, True)
        order = []
        for k in range(NS):
            order.append(('A', k))
            if PB <= k < NS - P2: order.append(('B', k))
        pend = []; gate = [False]
        LOOK = opt.get('look', 2)
        BL = opt.get('bl', 0)
        def refill(cur):
            i = 0
            while i < len(order):
                kind, k = order[i]
                if kind == 'A' and ((k >= NQ and not gate[0]) or k > cur + LOOK): i += 1; continue
                if kind == 'B' and k > cur + LOOK + BL: break
                if len(free) < (4 if kind == 'A' else 5) + ((opt.get('grs', 8 if not BL else 0) if not gate[0] and k >= NQ else opt.get('brs', 0)) if i > 0 else 0): break
                pend.extend(group(kind, k)); order.pop(i)
        yield_()
        refill(-1)
        for it in pend: emit1(it)
        pend.clear()
        nxtflag = f"s_add_u32 s{SFH}, s{SFH}, 4"
        GK = NQ - opt.get('gk', LOOK); GO = NS - opt.get('go', 0)
        bo = {}; aq = []; dsq = []; lg = []
        def o_weights_stream():
            for u in range(5):
                sl = free.pop(0); bo[(4, u)] = POOL + 4*sl
                pend.append((('Bo',), (f"s_add_u32 s77, s{SOB}, {4*5120}\n" if u == 0 else "") + (ld(vr(POOL + 4*sl), VL16, "s77", 1024*u) if u < 4 else ld(vr(POOL + 4*sl), VL2, "s77", 0))))
        SNAKE = opt.get('snake', True)
        iord = lambda t: ([3, 2, 4, 1, 0] if (t == 2 and SNAKE) else [0, 1, 2, 3, 4])
        oa = [(t, i) for t in (3, 2, 1, 0) for i in iord(t)]; ao = {}
        def a_next():
            t, i = oa.pop(0); sl = free.pop(0); ao[(t, i)] = d = POOL + 4*sl
            if i < 4: return [(('Ao', t, i), f"s_add_u32 s76, s{SOA}, {(i >> 1)*10240 + (i & 1)*4096}\n" + ld(vr(d), VT[t], "s76", 0))]
            return [(('Ao', t, i), f"s_add_u32 s76, s{SOA}, {ee*10240}\nbuffer_load_dwordx2 {vr(d+2*ee,2)}, v{VH[t]}, {sr(SRD_WS)}, s76 offen sc1") for ee in range(2)]
        ob = [(t, i, u) for t in (3, 2, 1, 0) for i in range(4) for u in range(5)]
        if SNAKE: ob = [(3, i, u) for i in range(4) for u in range(5)] + [(2, i, u) for i in (1, 0) for u in range(5)]
        def b_next():
            t, i, u = ob.pop(0); sl = free.pop(0); bo[(t, i, u)] = POOL + 4*sl
            if len(lg) >= 15: e("s_waitcnt lgkmcnt(10)"); del lg[:5]
            e(f"ds_read_b128 {vr(POOL + 4*sl)}, v171 offset:{5120*i + 1024*u}"); lg.append((t, i))
        def o_gate():
            e.stamp(7, True)
            e.spoll(SFH, SPD, probed=True, sleep=opt.get('slz', 0), least=2)
            e.stamp(8, True); lg.clear()
            while oa: pend.extend(a_next())
        for k in range(NS):
            if k == GK:
                e.spoll(SFH, SPD, probed=True, sleep=opt.get('slo', 0), least=2)
                gate[0] = True
                for t in range(4): emit1((('g',), f"s_xor_b32 s76, s{S_TL}, {t}\ns_lshl_b32 s76, s76, 6\ns_add_u32 s76, s76, s{SG}\nbuffer_load_dword v{VGS[t]}, v{VGO}, {sr(SRD_WS)}, s76 offen sc1"))
            refill(k)
            for j in range(4):
                if PK[j] == k and j >= S.parked: pend.extend(park(j))
            if k == NS - 2 - BL: o_weights_stream()
            while any(it[0] in (('A', k), ('B', k)) for it in pend): emit1(pend.pop(0))
            if k == GO:
                o_gate()
                for _ in range(4): emit1(pend.pop(0))
            waitvm(lambda t: t in (('A', k), ('B', k)))
            if pend and k != GK - 1 and k < GO - 1: yield_(pre_read=k > 0 and k != GK)
            if k >= NS - P2: e("s_waitcnt lgkmcnt(0)")
            pst(24 + k)
            dq = []
            if NS - P2 <= k + 1 < NS:
                j = k + 1 - (NS - P2)
                for u in range(5):
                    sl = free.pop(0); frag[('B', k + 1, u)] = POOL + 4*sl
                    dq.append((f"v_add_u32 v14, s{SP2[j]}, v{VL16}\n" if u == 0 else "") + f"ds_read_b128 {vr(POOL + 4*sl)}, v14 offset:{1024*u}")
            cnt = 0
            for t in range(4):
                for u in range(5):
                    e(f"v_mfma_f32_16x16x32_bf16 {vr(acc(u,t))}, {vr(frag[('B',k,u)])}, {vr(frag[('A',k,t)])}, {vr(acc(u,t)) if k else 0}")
                    cnt += 1
                    if cnt % 2 == 0 and pend: emit1(pend.pop(0))
                    elif cnt % 2 == 1 and dq: e(dq.pop(0))
            while pend: emit1(pend.pop(0))
            for i in range(4): free.append((frag[('A', k, i)] - POOL)//4)
            for i in range(5): free.append((frag[('B', k, i)] - POOL)//4)
            if k == GK - 2 or (k == GO - 2 and GO < NS): e(nxtflag); e.sprobe(SFH, SPD)
            elif k == NS - 1 and GO >= NS: e(nxtflag)
            elif YLD and k + 1 < GO - 1 and k + 1 != GK: e(f"ds_read_b32 v{VP}, v{VY}")
        assert not order
        pst(38)
        e.lwait(12, 174, 175)
        waitvm(lambda t: t in (('g',), ('L',)))
        bs = [free.pop(0) for _ in range(3)]; br = [POOL + 4*x for x in bs]
        e(f"v_lshrrev_b32 v{VGO}, 4, v0\nv_mul_u32_u24 v{VGO}, 40, v{VGO}\nv_add_u32 v{VGO}, {B2_LDS}, v{VGO}")
        for i in range(5): e(f"ds_read_b64 {vr(br[i >> 1] + 2*(i & 1), 2)}, v{VGO} offset:{8*i}")
        e("s_waitcnt lgkmcnt(0)")
        for u in range(5):
            for h_ in range(2):
                x = br[u >> 1] + 2*(u & 1) + h_; a = acc(u, 0) + 2*h_
                e(f"v_lshlrev_b32 v174, 16, v{x}\nv_and_b32 v175, 0xffff0000, v{x}\nv_pk_add_f32 {vr(a,2)}, {vr(a,2)}, v[174:175]")
        free.extend(bs)
        if GO >= NS: e.sprobe(SFH, SPD)
        while len(free) > (0 if GO < NS else 20): b_next()
        for t in range(4): e(f"v_sub_f32 v{VGS[t]}, 1.0, v{VGS[t]}")
        for t in (3, 2, 1, 0):
            for u in range(5):
                for r in (0, 2): e(f"v_pk_mul_f32 {vr(acc(u,t)+r,2)}, {vr(acc(u,t)+r,2)}, {vr(VGS[t],2)} op_sel_hi:[1,0]")
        RA = [2, 168, 170, 172]
        for t in range(4): e(f"s_xor_b32 s76, s{S_WV}, {t}\ns_mul_i32 s77, s76, 15360\ns_cmp_eq_u32 s76, 3\ns_cmov_b32 s77, {EXCH_H3}\nv_add_u32 v{RA[t]}, s77, v{VL16}")
        if opt.get('opf'):
            emit1((('opf',), f"buffer_load_dword v{VP}, v{VOUT}, {sr(SRD_T)}, s42 offen"))
        if GO >= NS:
            o_gate()
            for _ in range(opt.get('a0', 12)): emit1(pend.pop(0))
        pst(39)
        wq = []
        FAST = opt.get('fastred', True)
        if FAST:
            for t in range(1, 4): e(f"s_xor_b32 s76, s{S_WV}, {t}\ns_lshl_b32 s76, s76, 4\ns_add_u32 s{71+t}, s76, {CNT_LDS + 4*24 + 4*(t-1)}")
            e(f"s_lshl_b32 s76, s{S_WV}, 4\ns_add_u32 s76, s76, {CNT_LDS + 4*24}\nv_mov_b32 v{VGO}, s76\nv_mov_b32 v175, 1")
        def tile_steps(t, fill=None):
            for i in iord(t):
                while any(it[0] == ('Ao', t, i) for it in pend): emit1(pend.pop(0))
                while any(x[:2] == (t, i) for x in ob): b_next()
                waitvm(lambda x: x == ('Ao', t, i) or x == ('Bo',))
                idx = max([n for n, x in enumerate(lg) if x == (t, i)], default=-1)
                if idx >= 0: e(f"s_waitcnt lgkmcnt({len(lg)-1-idx})"); del lg[:idx+1]
                src = t if not SNAKE else (3 if (i >= 2 or t == 3) else 2)
                drop = i < 4 and (not SNAKE or (t == 3 and i < 2))
                for u in range(5):
                    bb = bo[(src, i, u)] if i < 4 else bo[(4, u)]
                    e(f"v_mfma_f32_16x16x32_bf16 {vr(acc(u,t))}, {vr(bb)}, {vr(ao[(t,i)])}, {vr(acc(u,t))}")
                    if drop and u: free.append((bo[(t, i, u-1)] - POOL)//4)
                    if u in (0, 2) and pend: emit1(pend.pop(0))
                    if wq and (u == 3 or (FAST and t == 0 and u == 1)):
                        if len(lg) >= 14: e("s_waitcnt lgkmcnt(9)"); del lg[:len(lg) - 9]
                        x = wq.pop(0); e(x); lg.extend(['w'] * (2 if 'ds_add' in x else 1))
                    if ob and free and len([x for x in lg if x != 'w']) < 12: b_next()
                    if fill: fill(i, u)
                if drop: free.append((bo[(t, i, 4)] - POOL)//4)
                free.append((ao[(t, i)] - POOL)//4)
            if t:
                wq.extend([f"ds_write_b128 v{RA[t]}, {vr(acc(u,t))} offset:{5120*(t-1) + 1024*u}" for u in range(5)])
                if FAST: wq[-1] += f"\ns_mov_b64 exec, 1\nv_mov_b32 v174, s{71+t}\nds_add_u32 v174, v175\ns_mov_b64 exec, -1"
        def early(i, u):
            if i == 4 and u == 0 and FAST: e(f"ds_read_b96 v[12:14], v{VGO}"); lg.append('w')
        for t in (3, 2, 1): tile_steps(t, early if t == 1 else None)
        if not FAST:
            tile_steps(0)
            assert not wq and not oa and not ob
            pst(40)
            e("s_waitcnt lgkmcnt(0)\ns_barrier")
            pst(41)
            R = POOL
            for u in range(5):
                for sw in range(3): e(f"ds_read_b128 {vr(R + 12*u + 4*sw)}, v{RA[0]} offset:{sw*5120 + u*1024}")
            for u in range(5):
                e(f"s_waitcnt lgkmcnt({12 - 3*u})")
                b = R + 12*u; a = acc(u, 0)
                for r in (0, 2): e(f"v_pk_add_f32 {vr(a+r,2)}, {vr(a+r,2)}, {vr(b+r,2)}\nv_pk_add_f32 {vr(b+4+r,2)}, {vr(b+4+r,2)}, {vr(b+8+r,2)}")
                for r in (0, 2): e(f"v_pk_add_f32 {vr(a+r,2)}, {vr(a+r,2)}, {vr(b+4+r,2)}")
        else:
            assert not pend and not ob and not oa
            sl = [free.pop(0) for _ in range(5)]
            IN = [[acc(u, 3), acc(u, 2), POOL + 4*sl[u]] for u in range(5)]
            rds = [f"ds_read_b128 {vr(IN[u][sw])}, v{RA[0]} offset:{(2-sw)*5120 + u*1024}" for sw in range(3) for u in range(5)]
            Lslow = e.lab("L_rs"); Ljoin = e.lab("L_rj")
            e(f"s_waitcnt lgkmcnt(2)\nv_min3_u32 v{VP}, v12, v13, v14\nv_readfirstlane_b32 s78, v{VP}\ns_cmp_lt_u32 s78, 1\ns_cbranch_scc1 {Lslow}"); assert 'ds_add' in "".join(e.L[-12:]); del lg[:-2]
            st = (list(wq), list(vm), list(free))
            q = list(rds); adds = []
            for u in range(5):
                adds += [f"v_add_f32 v{IN[u][0]+r}, v{IN[u][0]+r}, v{IN[u][1]+r}" for r in range(4)]
            for u in range(5):
                adds += [f"v_add_f32 v{IN[u][0]+r}, v{IN[u][0]+r}, v{IN[u][2]+r}" for r in range(4)]
            state = {'n': 0}
            def fill(i, u):
                state['n'] += 1
                if q:
                    for _ in range(2):
                        if q:
                            if len(lg) >= 14: e("s_waitcnt lgkmcnt(9)"); del lg[:len(lg) - 9]
                            e(q.pop(0)); lg.append('r')
                elif state['n'] >= 12:
                    if 'r' in lg or lg: e("s_waitcnt lgkmcnt(0)"); lg.clear()
                    for _ in range(3):
                        if adds: e(adds.pop(0))
            tile_steps(0, fill)
            assert not wq
            for x in adds: e(x)
            e(f"s_branch {Ljoin}\n{Lslow}:")
            wq[:], vm[:], free[:] = st; lg.clear()
            tile_steps(0)
            pst(40)
            for sw in range(3):
                L = e.lab("L_rw")
                e(f"s_mov_b32 s79, 0\n{L}:\nds_read_b32 v{VP}, v{VGO} offset:{4*(2-sw)}\ns_waitcnt lgkmcnt(0)\nv_readfirstlane_b32 s78, v{VP}\ns_add_u32 s79, s79, 1\ns_cmp_ge_u32 s79, 0x1000000\ns_cbranch_scc1 L_end\ns_cmp_lt_u32 s78, 1\ns_cbranch_scc1 {L}")
                if sw == 2: pst(41)
                for x in rds[5*sw:5*sw+5]: e(x)
                if sw == 2:
                    for u in range(5):
                        for r in (0, 2): e(f"v_pk_add_f32 {vr(IN[u][0]+r,2)}, {vr(IN[u][0]+r,2)}, {vr(IN[u][1]+r,2)}")
            for u in range(5):
                e(f"s_waitcnt lgkmcnt({4 - u})")
                for r in (0, 2): e(f"v_pk_add_f32 {vr(IN[u][0]+r,2)}, {vr(IN[u][0]+r,2)}, {vr(IN[u][2]+r,2)}")
            e(f"{Ljoin}:\ns_nop 7")
            for u in range(5):
                for r in (0, 2): e(f"v_pk_add_f32 {vr(acc(u,0)+r,2)}, {vr(acc(u,0)+r,2)}, {vr(IN[u][0]+r,2)}")
        pst(42)
        for u in range(5):
            a = acc(u, 0)
            e(f"v_cvt_pk_bf16_f32 v{100+2*u}, v{a}, v{a+1}\nv_cvt_pk_bf16_f32 v{101+2*u}, v{a+2}, v{a+3}")
        fl = opt.get('outfl', '')
        e(f"buffer_store_dwordx4 v[100:103], v{VOUT}, {sr(SRD_T)}, s42 offen {fl}\nbuffer_store_dwordx4 v[104:107], v{VOUT}, {sr(SRD_T)}, s42 offen offset:16 {fl}\nbuffer_store_dwordx2 v[108:109], v{VOUT}, {sr(SRD_T)}, s42 offen offset:32 {fl}")
        pst(43)
        if opt.get('steps'):
            e("s_waitcnt vmcnt(0)"); pst(44)
            e(f"s_lshl_b32 s70, s2, 2\ns_add_u32 s70, s70, s{S_WV}\ns_lshl_b32 s70, s70, 8\ns_add_u32 s70, s70, 0xF00000\nv_lshlrev_b32 v2, 2, v0\nbuffer_store_dword v9, v2, {sr(SRD_WS)}, s70 offen\ns_waitcnt vmcnt(0)")
        e.stamps_out()
        e("s_endpgm")
    S.run = run
    return S

def c_first(e):
    if e.opt.get('cpf', True) and e.opt.get('cpc', True):
        e(f"s_getpc_b64 s[76:77]\nL_pc:\ns_sub_u32 s76, s76, L_pc-{NAME}\ns_subb_u32 s77, s77, 0")
        e(f"s_lshl_b32 s78, s71, 2\ns_add_u32 s78, s78, s{S_WV}\ns_lshl_b32 s78, s78, 9\nv_and_b32 v6, 3, v0\nv_lshl_add_u32 v6, v6, 7, s78")
        e(f"s_mov_b32 s78, L_end-{NAME}\nv_min_u32 v6, s78, v6\ns_mov_b64 exec, 15\nglobal_load_dword v187, v6, s[76:77]\ns_mov_b64 exec, -1")
    x_setup(e, [128, 129])
    e(f"s_lshl_b32 s78, s{S_J}, 7\ns_mul_i32 s77, s{S_J}, 320\ns_add_u32 s77, s77, 1024\ns_cmp_eq_u32 s{S_ISQ}, 1\ns_cselect_b32 s78, s77, s78\nv_lshlrev_b32 v132, 4, v0\ns_mov_b32 m0, {B1_LDS}")
    e("s_waitcnt lgkmcnt(0)")
    e.srd(SRD_T, S_B1, 3456); e.srd(SRD_X, S_X, 2048*1280)
    e(f"s_mov_b64 exec, 0xfffff\nbuffer_load_dwordx4 v132, {sr(SRD_T)}, s78 offen lds\ns_mov_b64 exec, -1")
    for t, x in dma_x_ops([128, 129], 0, 0) + dma_x_ops([128, 129], 0, 1): e(x)
    e.fstamp(8); e.fstamp(6)

def c_wave(e, D):
    XREG = 224; RING = 192; VXA = [246, 247]; AT = [240, 241]
    VZ, VL16 = 242, 243
    if not e.opt.get('c0', True): c_first(e)
    e("v_lshrrev_b32 v1, 4, v0\nv_bfe_u32 v2, v0, 2, 2\nv_and_b32 v3, 3, v0")
    e("v_and_b32 v5, 1, v1\nv_lshl_add_u32 v4, v5, 2, v2\nv_lshrrev_b32 v6, 1, v1\nv_lshlrev_b32 v6, 13, v6")
    e(f"s_lshl_b32 s76, s{S_WV}, 5\nv_and_b32 v7, 15, v0\nv_add_u32 v7, s76, v7")
    e(f"v_lshrrev_b32 v128, 1, v7\nv_xor_b32 v128, v128, v1\nv_and_b32 v128, 7, v128\nv_lshlrev_b32 v128, 4, v128\nv_lshl_add_u32 v128, v7, 7, v128")
    e(f"v_add_u32 v{VXA[0]}, {XBASE}, v128\nv_xor_b32 v{VXA[1]}, 64, v{VXA[0]}")
    e(f"v_mul_u32_u24 v128, 160, v4\nv_mul_u32_u24 v129, 40, v3\nv_add3_u32 v{AT[0]}, v128, v129, v6\nv_add_u32 v{AT[1]}, {3*WSLOT}, v{AT[0]}")
    e(f"v_mov_b32 v{VZ}, 0\nv_lshlrev_b32 v{VL16}, 4, v0\nv_mov_b32 v128, 0\nv_mov_b32 v129, 0\nv_mov_b32 v130, 0\nv_mov_b32 v131, 0")
    e(f"s_lshl_b32 s76, s{S_WV}, 9\ns_add_u32 s76, s76, {ZERO_LDS}\nv_lshl_add_u32 v132, v0, 3, s76\nds_write_b64 v132, v[128:129]")
    e(f"v_lshlrev_b32 v132, 2, v0\nv_add_u32 v132, {CNT_LDS}, v132\nds_write_b32 v132, v128")
    VPH = 244
    e(f"v_mul_u32_u24 v132, 800, v3\nv_mul_u32_u24 v133, 40, v2\nv_add3_u32 v132, v132, v133, s76\nv_cmp_eq_u32 vcc, v1, v3\ns_add_u32 s77, s76, {-WPHI_LDS & 0xffffffff}")
    e(f"v_subrev_u32 v132, s77, v132\nv_mov_b32 v133, {ZERO_LDS}\nv_cndmask_b32 v{VPH}, v133, v132, vcc")
    e(f"s_mov_b32 s{S_C2}, {f2u(GC2)}\ns_mov_b32 s{S_C2+1}, {f2u(GC2)}\ns_mov_b32 s{S_L}, {f2u(LOG2E)}\ns_mov_b32 s{S_L+1}, {f2u(LOG2E)}")
    e("s_waitcnt lgkmcnt(0)")
    e.srd(SRD_WS, S_WS, WS_SIZE)
    S_HO, S_HFL, S_KFL = 12, 72, 74
    e(f"s_lshl_b32 s76, s{S_RB}, 1\ns_lshr_b32 s77, s{S_WV}, 1\ns_add_u32 s15, s76, s77")
    e(f"s_lshl_b32 s76, s{S_RB}, 13\ns_lshr_b32 s77, s{S_J}, 1\ns_lshl_b32 s77, s77, 7\ns_add_u32 s76, s76, s77\ns_add_u32 s76, s76, {WS_FL + FL_H*128}"); e.wsptr(S_HFL, "s76")
    e(f"s_lshl_b32 s76, s{S_J}, 11\ns_add_u32 s76, s76, {WS_FL + FL_KV*128}"); e.wsptr(S_KFL, "s76")
    S_GO = 3
    e(f"s_lshl_b32 s76, s{S_J}, 13\ns_lshl_b32 s77, s{S_RB}, 9\ns_add_u32 s76, s76, s77\ns_lshl_b32 s77, s{S_WV}, 7\ns_add_u32 s76, s76, s77\ns_add_u32 s{S_GO}, s76, {WS_G}")
    def after_bar0(): e.stamp(2)
    def bias_init(nu, hacc, zero_lo, zero_hi):
        e.fstamp(7)
        for i in list(range(*zero_lo)) + list(range(*zero_hi)): e(f"v_mov_b32 v{i}, 0")
        e(f"v_lshlrev_b32 v156, 3, v1\nv_add_u32 v156, {B1_LDS}, v156\ns_waitcnt vmcnt(4)")
        for t in range(nu): e(f"ds_read_b64 {vr(136+2*t,2)}, v156 offset:{32*t}")
        e("s_waitcnt lgkmcnt(0)")
        for t in range(nu):
            for m in range(2):
                a = hacc + 8*t + 4*m
                e(f"v_lshlrev_b32 v{a}, 16, v{136+2*t}\nv_and_b32 v{a+1}, 0xffff0000, v{136+2*t}\nv_lshlrev_b32 v{a+2}, 16, v{137+2*t}\nv_and_b32 v{a+3}, 0xffff0000, v{137+2*t}")
        e("s_waitcnt vmcnt(0)")
        e.stamp(1)
    C1 = 128; T = 130; PK = 140
    def gelu_steps(hacc, nsteps, PK, VL16, skip_from=None, mid=None, defer=None):
        e(f"v_mov_b32 v{C1}, {f2u(GC1)}\nv_mov_b32 v{C1+1}, {f2u(GC1)}")
        Ls = e.lab("L_hskip")
        for i in range(nsteps):
            if i == skip_from: e(f"s_cmp_eq_u32 s{S_J}, 7\ns_cbranch_scc1 {Ls}")
            for m in range(2):
                d = PK + 4*((2*i + m) % 4)
                a0 = hacc + 16*i + 4*m; a1 = a0 + 8
                gelu_pack(e, [(a0, d), (a0+2, d+1), (a1, d+2), (a1+2, d+3)], T, C1)
                st = f"buffer_store_dwordx4 {vr(d)}, v{VL16}, {sr(SRD_WS)}, s{S_HO} offen offset:{1024*m} sc1"
                if defer is None: e(st)
                else: defer.append(st)
            if defer is None: e(f"s_add_u32 s{S_HO}, s{S_HO}, 4096")
            if mid and i == 0: mid()
        e(f"{Ls}:")
    WF_ = 140
    QP = 192
    PHR = [f"ds_read_b64_tr_b16 {vr(WF_ + 10*tau + 2*t, 2)}, v{VPH} offset:{160*t + 8*tau}" for tau in range(5) for t in range(5)]
    def phi_mfma(P, m):
        out = []
        for ks in range(3):
            for tau in range(5):
                d = vr(P + 20*m + 4*tau); c = "0" if ks == 0 else d
                if ks < 2: out.append(f"v_mfma_f32_16x16x32_bf16 {d}, {vr(WF_+10*tau+4*ks)}, {vr(QP+10*m+4*ks)}, {c}")
                else: out.append(f"v_mfma_f32_16x16x16_bf16 {d}, {vr(WF_+10*tau+8,2)}, {vr(QP+10*m+8,2)}, {c}")
        return out
    def phi_cvt():
        for m in range(2):
            for t in range(5):
                a = 8 + 8*t + 4*m
                e(f"v_cvt_pk_bf16_f32 v{QP+10*m+2*t}, v{a}, v{a+1}\nv_cvt_pk_bf16_f32 v{QP+10*m+2*t+1}, v{a+2}, v{a+3}")
        e("s_waitcnt lgkmcnt(0)")
    def phi_stage(P, fill=()):
        for m in range(2):
            for t in range(5):
                a = 8 + 8*t + 4*m
                e(f"v_cvt_pk_bf16_f32 v{QP+10*m+2*t}, v{a}, v{a+1}\nv_cvt_pk_bf16_f32 v{QP+10*m+2*t+1}, v{a+2}, v{a+3}")
        e("s_waitcnt lgkmcnt(0)")
        mf = []
        for ks in range(3):
            for m in range(2):
                for tau in range(5):
                    d = vr(P + 20*m + 4*tau); c = "0" if ks == 0 else d
                    if ks < 2: mf.append(f"v_mfma_f32_16x16x32_bf16 {d}, {vr(WF_+10*tau+4*ks)}, {vr(QP+10*m+4*ks)}, {c}")
                    else: mf.append(f"v_mfma_f32_16x16x16_bf16 {d}, {vr(WF_+10*tau+8,2)}, {vr(QP+10*m+8,2)}, {c}")
        weave(e, mf, fill)
    e(f"s_cmp_eq_u32 s{S_ISQ}, 1\ns_cbranch_scc1 L_CQ")
    AH = [[248, 249], [250, 251], [252, 253], [254, 255]]; AG = [190, 191]
    e("v_lshrrev_b32 v128, 1, v4\nv_lshlrev_b32 v129, 7, v4\nv_lshl_add_u32 v129, v3, 3, v129\nv_add_u32 v129, v129, v6")
    for t in range(4): e(f"v_xor_b32 v130, {t}, v128\nv_lshl_add_u32 v{AH[t][0]}, v130, 5, v129\nv_add_u32 v{AH[t][1]}, {3*WSLOT}, v{AH[t][0]}")
    e(f"v_lshlrev_b32 v{AG[0]}, 4, v1\nv_add_u32 v{AG[1]}, {3*WSLOT}, v{AG[0]}")
    e(f"s_mul_i32 s76, s15, 54\ns_lshl_b32 s77, s{S_J}, 1\ns_add_u32 s76, s76, s77\ns_lshl_b32 s76, s76, 12\ns_and_b32 s77, s{S_WV}, 1\ns_lshl_b32 s77, s77, 11\ns_add_u32 s{S_HO}, s76, s77")
    AR = 128; AA = [133, 134, 135]; VSL, VTB = 6, 7
    e(f"v_lshl_add_u32 v8, v1, 2, v2\nv_and_b32 v9, 7, v8\nv_lshlrev_b32 v8, 7, v8\ns_lshl_b32 s76, s{S_WV}, 14\ns_cmp_eq_u32 s{S_WV}, 3\ns_cmov_b32 s76, {EXCH_H3}\nv_and_b32 v10, 1, v3\nv_lshl_add_u32 v8, v10, 3, v8\nv_add_u32 v8, s76, v8\nv_lshrrev_b32 v10, 1, v3")
    for i, c0 in enumerate([0, 2, 4, 5]): e(f"v_add_u32 v{AR+i}, {c0}, v10\nv_xor_b32 v{AR+i}, v{AR+i}, v9\nv_lshl_add_u32 v{AR+i}, v{AR+i}, 4, v8")
    e(f"v_xor_b32 v{AR+4}, 7, v9\nv_lshl_add_u32 v{AR+4}, v{AR+4}, 4, v8")
    e(f"v_mov_b32 v10, {EXCH_H3 // 16384}\nv_and_b32 v8, 15, v0\ns_lshl_b32 s76, s{S_WV}, 5\nv_add_u32 v8, s76, v8\nv_cmp_eq_u32 vcc, 3, v1\nv_lshlrev_b32 v8, 7, v8\nv_and_b32 v11, 7, v0\nv_cndmask_b32 v9, v1, v10, vcc\nv_lshl_add_u32 v8, v11, 4, v8\nv_lshl_add_u32 v245, v9, 14, v8")
    e(f"v_mov_b32 v13, {OOB}\nv_and_b32 v14, 15, v0\nv_cmp_gt_u32 vcc, 32, v0\nv_cndmask_b32 v{AA[0]}, v13, v{VL16}, vcc\nv_cmp_gt_u32 vcc, 5, v14\nv_cndmask_b32 v{AA[1]}, v13, v{VL16}, vcc\nv_cndmask_b32 v{AA[2]}, v13, v{AA[0]}, vcc")
    e(f"s_lshl_b32 s76, s{S_J}, 6\ns_add_u32 s76, s76, s{S_WV}\ns_mul_i32 s76, s76, 6144\ns_add_u32 s4, s76, {WS_KP}\ns_mul_i32 s76, s{S_RB}, 24576\ns_add_u32 s5, s4, s76\ns_add_u32 s6, s5, 4096")
    e(f"s_mul_i32 s76, s{S_RB}, 14\nv_add_u32 v8, s76, v14\nv_mul_u32_u24 v9, 3121, v8\nv_lshrrev_b32 v9, 16, v9\nv_mul_u32_u24 v10, 21, v9\nv_sub_u32 v10, v8, v10")
    e(f"v_lshrrev_b32 v11, 2, v9\nv_lshrrev_b32 v12, 4, v10\nv_lshl_add_u32 v11, v11, 1, v12\nv_and_b32 v12, 3, v9\nv_and_b32 v15, 15, v10\nv_lshl_add_u32 v12, v12, 4, v15\nv_lshlrev_b32 v12, 4, v12\nv_lshl_add_u32 v11, v11, 10, v12")
    e(f"v_mul_u32_u24 v12, 24576, v1\nv_add_u32 v11, v11, v12\nv_cmp_gt_u32 s[76:77], 14, v14\nv_cmp_gt_u32 vcc, 210, v8\ns_and_b64 vcc, vcc, s[76:77]\nv_cndmask_b32 v{VSL}, v13, v11, vcc")
    e(f"v_mul_u32_u24 v12, 24, v9\nv_add_lshl_u32 v12, v12, v10, 3\ns_and_b64 vcc, vcc, 0xffff\nv_cndmask_b32 v{VTB}, v13, v12, vcc")
    e(f"s_lshl_b32 s76, s{S_J}, 2\ns_add_u32 s76, s76, s{S_WV}\ns_lshl_b32 s76, s76, 11\ns_add_u32 s7, s76, {WS_KV}")
    e(f"s_add_u32 s68, s{S_KFL}, {(FL_KP - FL_KV)*128}\ns_addc_u32 s69, s{S_KFL+1}, 0")
    bias_init(4, 88, (8, 88), (120, 128))
    c_main_loop(e, [Unit(AT, 8*t, 8 + 8*t) for t in range(5)] + [Unit(AT, 1280 + 8*t, 48 + 8*t) for t in range(5)]
                + [Unit(AH[t], 3072, 88 + 8*t) for t in range(4)] + [Unit(AG, 2560, 120, gate=True)], XREG, VXA, RING, D, after_bar0, PHR)
    e.stamp(3)
    e(f"s_setprio {e.opt.get('cprio', 2)}")
    e(f"v_mov_b32 v4, 0\nv_mov_b32 v5, v{VL16}")
    VZ0, VL0 = VZ, VL16; VZ, VL16 = 4, 5
    e.busy(1, 136, 137, 'k'); e.lpost(8, 136, 137)
    P = 212; RV = [8, 20]; RP = [140, 160]; EE = 192; XX = 40; AW = 32
    F = [f"v_xor_b32 v{AW+i}, {16*i}, v245" for i in range(8)]
    for m in range(2):
        for t in range(5):
            a = 48 + 8*t + 4*m
            F += [f"v_cvt_pk_bf16_f32 v{RV[m]+2*t}, v{a}, v{a+1}", f"v_cvt_pk_bf16_f32 v{RV[m]+1+2*t}, v{a+2}, v{a+3}"]
        F += [f"v_mov_b32 v{RV[m]+10}, 0x3f80", f"v_mov_b32 v{RV[m]+11}, 0"]
    phi_cvt()
    weave(e, phi_mfma(P, 0), F)
    e.stamp(4)
    EE0 = 48; RP0 = 68
    softmax2(e, P, EE0, RP0, XX)
    G_ = [f"v_mul_f32 v{40+m}, {f2u(-LOG2E)}, v{120+4*m}" for m in range(2)] + [f"v_exp_f32 v{40+m}, v{40+m}" for m in range(2)] + [f"v_add_f32 v{40+m}, 1.0, v{40+m}" for m in range(2)] + [f"v_rcp_f32 v{40+m}, v{40+m}" for m in range(2)] + ["v_lshlrev_b32 v42, 2, v0"]
    W_ = [f"ds_write_b128 v{AW+i}, {vr(RP0+4*i)}" for i in range(5)] + [f"ds_write_b128 v{AW+5+i}, {vr(RV[m]+4*i)} offset:{2048*m}" for m in range(2) for i in range(3)]
    for n_, x in enumerate(phi_mfma(P, 1)):
        e(x)
        if W_: e(W_.pop(0))
        if G_: e(G_.pop(0))
    e(f"s_mov_b64 exec, 0xffff")
    for m in range(2): e(f"buffer_store_dword v{40+m}, v42, {sr(SRD_WS)}, s{S_GO} offen offset:{64*m} sc1")
    e("s_mov_b64 exec, -1")
    softmax2(e, P + 20, EE, RP[1], XX, wr=lambda i: e(f"ds_write_b128 v{AW+i}, {vr(RP[1]+4*i)} offset:2048"))
    e.stamp(5)
    e.busy(1, 136, 137, 'a')
    e.lsync(1, 136, 137)
    e.stamp(6)
    FR = lambda st: (48 + 20*st) if st < 2 else (140 + 20*(st - 2))
    KD = 212
    rd = [f"ds_read_b64_tr_b16 {vr(FR(st) + 4*i + 2*h, 2)}, v{AR+i} offset:{4096*st + 2048*h}" for st in range(4) for i in range(5) for h in range(2)]
    for x in rd[:14]: e(x)
    nxt = 14
    for st in range(4):
        need = 10*(st + 1)
        while nxt < need: e(rd[nxt]); nxt += 1
        e(f"s_waitcnt lgkmcnt({nxt - need})")
        for U in range(2):
            for Tt in range(3):
                d = vr(KD + 12*U + 4*Tt)
                e(f"v_mfma_f32_16x16x32_bf16 {d}, {vr(FR(st)+4*Tt)}, {vr(FR(st)+12+4*U)}, {'0' if st == 0 else d}")
                for _ in range(2):
                    if nxt < min(40, need + 14): e(rd[nxt]); nxt += 1
    e.lpost(12, 136, 137)
    for Tt in range(3):
        for U in range(2):
            av = [[VL16, AA[1]], [VL16, AA[1]], [AA[0], AA[2]]][Tt][U]; ti = 2*Tt + U
            e(f"buffer_store_dwordx4 {vr(KD + 12*U + 4*Tt)}, v{av}, {sr(SRD_WS)}, s{5 if ti < 4 else 6} offen offset:{1024*(ti % 4)} sc1")
    e.stamp(7)
    def mid(): e.post('p', 2, 68, 0, 128, "s_waitcnt vmcnt(2)", lambda: (e.f2(4), e.busy(-1, 136, 137, 'a'), e.busy(-1, 136, 137, 'k')))
    G1 = e.opt.get('g1', 0)
    gelu_steps(88, 1 if G1 else 2, 192, VL16, mid=mid)
    e(f"s_lshl_b32 s76, s{S_RB}, 7\ns_add_u32 s68, s68, s76\ns_addc_u32 s69, s69, 0")
    e.busy(1, 136, 137, 'b')
    if e.opt.get('lead', False): e.lpoll(19, 68, 34, 16, 136, 137)
    else: e.spoll(68, [34], sleep=e.opt.get('slk', 0), least=16)
    e.busy(1, 136, 137, 'B')
    e.stamp(8)
    SL = 16
    for i in range(4): e(f"buffer_load_dwordx4 {vr(SL + 4*i)}, v{VSL}, {sr(SRD_WS)}, s4 offen sc1\ns_add_u32 s4, s4, {4*24576}")
    late = []
    if G1:
        gelu_steps(104, 1, 200, VL16, defer=late if G1 == 2 else None)
        e(f"s_waitcnt vmcnt({0 if G1 == 2 else 2})")
    else:
        e.post('x', 0, S_HFL, 1, 512, "s_waitcnt vmcnt(4)")
        e("s_waitcnt vmcnt(0)")
    e.f2(5)
    for r in (0, 2): e(f"v_pk_add_f32 {vr(SL+r,2)}, {vr(SL+r,2)}, {vr(SL+4+r,2)}\nv_pk_add_f32 {vr(SL+8+r,2)}, {vr(SL+8+r,2)}, {vr(SL+12+r,2)}")
    for r in (0, 2): e(f"v_pk_add_f32 {vr(SL+r,2)}, {vr(SL+r,2)}, {vr(SL+8+r,2)}")
    for op in ("v_permlane32_swap_b32", "v_permlane16_swap_b32"):
        for r in range(4): e(f"v_mov_b32 v{SL+4+r}, v{SL+r}")
        for r in range(4): e(f"{op} v{SL+4+r}, v{SL+r}")
        for r in (0, 2): e(f"v_pk_add_f32 {vr(SL+r,2)}, {vr(SL+r,2)}, {vr(SL+4+r,2)}")
    e(f"v_cvt_pk_bf16_f32 v14, v{SL}, v{SL+1}\nv_cvt_pk_bf16_f32 v15, v{SL+2}, v{SL+3}\nbuffer_store_dwordx2 v[14:15], v{VTB}, {sr(SRD_WS)}, s7 offen sc1")
    for x in late: e(x)
    e.post('k', 4, S_KFL, 0, 128, f"s_waitcnt vmcnt({len(late)})", lambda: (e.f2(6), e.busy(-1, 136, 137, 'b'), e.busy(-1, 136, 137, 'B')))
    if G1:
        e(f"s_mul_i32 s70, s{S_WV}, 2048\ns_add_u32 s70, s70, s{S_HFL}\ns_addc_u32 s71, s{S_HFL+1}, 0\n" + "\n".join(f"s_mov_b32 s{24+i}, 1" for i in range(4)))
        if late: e("s_waitcnt vmcnt(0)"); e.lsync(0, 136, 137)
        for i in range(4): e(f"s_atomic_add s{24+i}, s[70:71], {512*i + 4} glc")
    e.stamps_out()
    e("s_endpgm")
    VZ, VL16 = VZ0, VL0
    e("L_CQ:")
    AE, AO = [248, 249], [250, 251]
    e(f"v_mul_u32_u24 v128, 320, v4\nv_lshl_add_u32 v128, v3, 3, v128\nv_add_u32 v128, v128, v6\nv_lshlrev_b32 v129, 5, v5")
    e(f"v_add_u32 v{AE[0]}, v128, v129\nv_sub_u32 v{AO[0]}, v128, v129\nv_add_u32 v{AO[0]}, 32, v{AO[0]}\nv_add_u32 v{AE[1]}, {3*WSLOT}, v{AE[0]}\nv_add_u32 v{AO[1]}, {3*WSLOT}, v{AO[0]}")
    e(f"s_mul_i32 s76, s15, 54\ns_mul_i32 s77, s{S_J}, 5\ns_add_u32 s76, s76, s77\ns_add_u32 s76, s76, 16\ns_lshl_b32 s76, s76, 12\ns_and_b32 s77, s{S_WV}, 1\ns_lshl_b32 s77, s77, 11\ns_add_u32 s{S_HO}, s76, s77")
    bias_init(10, 48, (8, 48), (0, 0))
    c_main_loop(e, [Unit(AT, 8*t, 8 + 8*t) for t in range(5)] + [Unit(AE if t % 2 == 0 else AO, 1280 + 32*(t - t % 2), 48 + 8*t) for t in range(10)],
                XREG, VXA, RING, D, after_bar0, PHR)
    e.stamp(3)
    e(f"s_setprio {e.opt.get('cprio', 2)}")
    e.busy(1, 136, 137, 'd'); e.lpost(8, 136, 137); e.lpost(12, 136, 137)
    gelu_steps(48, 5, 212, VL16, skip_from=3)
    e.busy(-1, 136, 137, 'd')
    e.stamp(4)
    P = 88
    F = []; f = F.append
    f(f"v_mul_u32_u24 v68, {KVS}, v1\nv_add_u32 v68, {KVT}, v68\nv_cmp_eq_u32 vcc, v1, v2\nv_lshl_add_u32 v69, v3, 3, v68\nv_mov_b32 v70, {ZERO_LDS}\nv_cndmask_b32 v240, v70, v69, vcc\nv_cndmask_b32 v239, v70, v68, vcc")
    f(f"v_and_b32 v241, 15, v0\nv_lshlrev_b32 v241, 2, v241")
    phi_stage(P, F)
    PHI = [192, 212]
    hq = e.opt.get('hq', 0)
    hsig = e.signal(S_HFL, 0, 512)
    def harr(): e.post('h', 0, S_HFL, 0, 512, "s_waitcnt vmcnt(0)"); e.stamp(5)
    for m in range(2):
        if m == hq: harr()
        softmax2(e, P + 20*m, 48, PHI[m], 128)
    e(f"s_lshl_b32 s76, s{S_J}, 2\ns_add_u32 s76, s76, s{S_WV}\ns_lshl_b32 s76, s76, 11\ns_add_u32 s4, s76, {WS_KV}\ns_mul_i32 s76, s{S_WV}, {KVS}\ns_add_u32 m0, s76, {KVT}")
    e(f"s_lshl_b32 s76, s15, 3\ns_add_u32 s76, s76, s{S_J}\ns_mul_i32 s76, s76, 10240\ns_add_u32 s76, s76, {WS_OF}\ns_and_b32 s77, s{S_WV}, 1\ns_lshl_b32 s5, s77, 11\ns_add_u32 s5, s5, s76\ns_lshl_b32 s6, s77, 10\ns_add_u32 s6, s6, s76\ns_add_u32 s6, s6, 8192\ns_add_u32 s7, s5, 4096")
    e.stamp(6)
    e(f"s_lshl_b32 s76, s{S_RB}, 7\ns_add_u32 s{S_KFL}, s{S_KFL}, s76\ns_addc_u32 s{S_KFL+1}, s{S_KFL+1}, 0")
    if e.opt.get('lead', False): e.lpoll(19, S_KFL, 34, 16, 136, 137)
    else: e.spoll(S_KFL, [34], sleep=e.opt.get('slk', 0), least=16)
    e.stamp(7)
    if e.opt.get('oprio', 3): e(f"s_setprio {e.opt.get('oprio', 3)}")
    for t in range(2): e(f"buffer_load_dwordx4 v{VL16}, {sr(SRD_WS)}, s4 offen offset:{1024*t} sc1 lds")
    e.busy(1, 136, 137, 'c')
    for m in range(2): e(f"buffer_load_dword v{62+m}, v241, {sr(SRD_WS)}, s{S_GO} offen offset:{64*m} sc1")
    e("s_waitcnt vmcnt(2)")
    e.f2(4)
    e.lsync(1, 136, 137)
    e.f2(5)
    AF = 64
    seq = [5, 0, 1, 2, 3, 4]
    rd = [f"ds_read_b64 {vr(AF + 20*n_ + 4*kp + 2*h, 2)}, v{240 if u < 5 else 239} offset:{8*(48*kp + 4*u + 24*h)}" for n_, u in enumerate(seq) for kp in range(5) for h in range(2)]
    for x in rd[:14]: e(x)
    nxt = 14
    OD = 8
    for n_, u in enumerate(seq):
        while nxt < 10*(n_+1): e(rd[nxt]); nxt += 1
        e(f"s_waitcnt lgkmcnt({nxt - 10*(n_+1)})")
        F = []
        while nxt < min(60, 10*(n_+1) + 14): F.append(rd[nxt]); nxt += 1
        if n_ == 2:
            F.append("s_waitcnt vmcnt(0)")
            F += [f"v_add_f32 v{56+2*m}, {f2u(1e-6)}, v{OD+40+4*m}" for m in range(2)] + [f"v_rcp_f32 v{56+2*m}, v{56+2*m}" for m in range(2)] + [f"v_mul_f32 v{56+2*m}, v{56+2*m}, v{62+m}" for m in range(2)]
        if n_ >= 4:
            for uu in ([0, 1] if n_ == 4 else [2]):
                for m in range(2):
                    a = OD + 8*uu + 4*m
                    F += [f"v_mul_f32 v{a+r}, v{56+2*m}, v{a+r}" for r in range(4)]
                    F += [f"v_cvt_pk_bf16_f32 v{232+8*0 + 0}, v{a}, v{a+1}".replace(f"v{232}", f"v{[184,188][m] + 2*uu if uu < 2 else [244,248][m]}"),
                          f"v_cvt_pk_bf16_f32 v{([184,188][m] + 2*uu if uu < 2 else [244,248][m]) + 1}, v{a+2}, v{a+3}"]
        weave(e, [f"v_mfma_f32_16x16x32_bf16 {vr(OD + 8*u + 4*m)}, {vr(AF + 20*n_ + 4*kp)}, {vr(PHI[m] + 4*kp)}, {'0' if kp == 0 else vr(OD + 8*u + 4*m)}" for kp in range(5) for m in range(2)], F)
        if n_ == 4:
            for m in range(2): e(f"buffer_store_dwordx4 {vr([184,188][m])}, v{VL16}, {sr(SRD_WS)}, s5 offen offset:{1024*m} sc1")
    e.f2(6)
    for uu in (3, 4):
        for m in range(2):
            a = OD + 8*uu + 4*m
            e(f"v_pk_mul_f32 {vr(a,2)}, {vr(a,2)}, {vr(56+2*m,2)} op_sel_hi:[1,0]\nv_pk_mul_f32 {vr(a+2,2)}, {vr(a+2,2)}, {vr(56+2*m,2)} op_sel_hi:[1,0]")
            d = [244, 248][m] + 2 if uu == 3 else 252 + 2*m
            e(f"v_cvt_pk_bf16_f32 v{d}, v{a}, v{a+1}\nv_cvt_pk_bf16_f32 v{d+1}, v{a+2}, v{a+3}")
        if uu == 3:
            for m in range(2): e(f"buffer_store_dwordx4 {vr([244,248][m])}, v{VL16}, {sr(SRD_WS)}, s7 offen offset:{1024*m} sc1")
    e(f"buffer_store_dwordx4 v[252:255], v{VL16}, {sr(SRD_WS)}, s6 offen sc1")
    e.stamp(8)
    e.post('o', 2, S_HFL, 2, 512, "s_waitcnt vmcnt(0)", lambda: e.busy(-1, 136, 137, 'c'))
    e.stamps_out()

HEADER = open("gated_mix__linear_kernel_hedgehog__dense_activation_gelu__prompt.s.ref").read().split("; Override launch")[0] if __name__ == "__main__" else ""
if __name__ == "__main__":
    import ast
    kw = ast.literal_eval(sys.argv[2]) if len(sys.argv) > 2 else {}
    open(sys.argv[1], "w").write(HEADER + gen(**kw))
```
